```python
import torch

def _softmax(x, axis=-1):
    return torch.softmax(x, dim=axis)
def _gelu(x):
    return torch.nn.functional.gelu(x, approximate="tanh")
def _silu(x):
    return torch.nn.functional.silu(x)
def _sigmoid(x):
    return torch.sigmoid(x)
def _layernorm(x, axis=-1, eps=1e-5):
    m = x.mean(dim=axis, keepdim=True)
    v = x.var(dim=axis, keepdim=True, unbiased=False)
    return (x - m) / torch.sqrt(v + eps)
def _scatter_add(tgt, idx, src, axis=0):
    return tgt.clone().index_add_(axis, idx, src)
def _segment_sum(src, seg, n):
    out = torch.zeros((n,) + src.shape[1:], dtype=src.dtype)
    return out.index_add_(0, seg, src)
def _pad(x, pw):
    flat = tuple(v for pair in reversed(pw) for v in pair)
    return torch.nn.functional.pad(x, flat)

kernel_name = 'sequential_preLN__linear_attn_block__dense_activation_relu__prompt'

def setup_inputs():

    _w = (lambda a: (lambda t: t.to(torch.bfloat16) if t.is_floating_point() else t)(torch.as_tensor(a)))
    def _A_setup():
        B, S, D = 1, 2048, 640
        return {
            "x": _w((lambda *s: torch.randn(*s, dtype=torch.bfloat16) * 0.05)(B, S, D)),
            "wqkv": _w((lambda *s: torch.randn(*s, dtype=torch.bfloat16) * 0.05)(D, 3 * D)),
            "wo": _w((lambda *s: torch.randn(*s, dtype=torch.bfloat16) * 0.05)(D, D)),
        }
    _A_in = _A_setup()

    def _B_setup():
        B, S, D, Dff = 1, 2048, 640, 1728
        return {
            "x": _w((lambda *s: torch.randn(*s, dtype=torch.bfloat16) * 0.05)(B, S, D)),
            "w1": _w((lambda *s: torch.randn(*s, dtype=torch.bfloat16) * 0.05)(D, Dff)),
            "w2": _w((lambda *s: torch.randn(*s, dtype=torch.bfloat16) * 0.05)(Dff, D)),
        }
    _B_in = _B_setup()

    return {
        "A_x": _A_in["x"],
        "A_wqkv": _A_in["wqkv"],
        "A_wo": _A_in["wo"],
        "B_x": _B_in["x"],
        "B_w1": _B_in["w1"],
        "B_w2": _B_in["w2"],
    }

def reference(A_x, A_wqkv, A_wo, B_x, B_w1, B_w2):
    def _A_ref(x, wqkv, wo):
        B, S, D = x.shape
        H = 32; Dh = D // H
        qkv = (lambda x, *d: x.permute(*d))((x @ wqkv).reshape(B, S, 3, H, Dh), 2, 0, 3, 1, 4)
        q, k, v = qkv[0], qkv[1], qkv[2]
        phi = lambda t: torch.where(t > 0, t + 1, torch.exp(t)) + 1e-6
        pq, pk = phi(q), phi(k)
        kv = torch.einsum("bhsd,bhse->bhde", pk, v)
        z = torch.einsum("bhsd->bhd", pk)
        num = torch.einsum("bhqd,bhde->bhqe", pq, kv)
        den = torch.einsum("bhqd,bhd->bhq", pq, z)[..., None] + 1e-6
        o = num / den
        return (lambda x, *d: x.permute(*d))(o, 0, 2, 1, 3).reshape(B, S, D) @ wo

    def _B_ref(x, w1, w2):
        h = torch.einsum("bsd,df->bsf", x, w1)
        zero = torch.zeros_like(h)
        h = torch.maximum(h, zero)
        return torch.einsum("bsf,fd->bsd", h, w2)

    x = A_x
    h = x + _A_ref(_layernorm(x, axis=-1), A_wqkv, A_wo)
    h2 = h + _B_ref(_layernorm(h, axis=-1), B_w1, B_w2)
    return h2
```

```python
import re

_REG = re.compile(r'^(-|\|)?(?:abs\()?([vas])(?:(\d+)|\[(\d+):(\d+)\])\)?\|?$')
TRANS = ('v_exp_f32', 'v_log_f32', 'v_rcp_f32', 'v_rsq_f32', 'v_sqrt_f32', 'v_sin_f32', 'v_cos_f32', 'v_rcp_iflag_f32')


def regs_of(tok):
    tok = tok.strip()
    if tok in ('vcc', 'exec', 'm0', 'scc'):
        return {tok}
    if tok in ('vcc_lo', 'vcc_hi'):
        return {'vcc'}
    if tok in ('exec_lo', 'exec_hi'):
        return {'exec'}
    m = _REG.match(tok)
    if not m:
        return set()
    f = m.group(2)
    if m.group(3) is not None:
        return {(f, int(m.group(3)))}
    return {(f, i) for i in range(int(m.group(4)), int(m.group(5)) + 1)}


def split_ops(s):
    ops, depth, cur = [], 0, ''
    for ch in s:
        if ch in '[(':
            depth += 1
        if ch in '])':
            depth -= 1
        if ch == ',' and depth == 0:
            ops.append(cur.strip())
            cur = ''
        else:
            cur += ch
    if cur.strip():
        ops.append(cur.strip())
    return ops


class Ins:
    def __init__(self, text):
        self.text = text
        t = text.split(';')[0].strip()
        parts = t.split(None, 1)
        self.op = parts[0]
        rest = parts[1] if len(parts) > 1 else ''
        ops = split_ops(rest)
        self.mods = []
        clean = []
        for o in ops:
            w = o.split()
            clean.append(w[0])
            self.mods += w[1:]
        self.ops = clean
        op = self.op
        self.w = set()
        self.r = set()
        self.kind = 'other'
        self.passes = 0
        self.srcC = set()
        self.srcAB = set()
        self.store_data = set()
        self.ws = 1
        R = [regs_of(o) for o in clean]
        allr = lambda lst: set().union(*lst) if lst else set()
        if op == 's_nop':
            self.ws = int(clean[0], 0) + 1
            self.kind = 'nop'
        elif op.startswith('v_mfma'):
            self.kind = 'mfma'
            self.w = R[0]
            self.srcAB = R[1] | R[2]
            self.srcC = R[3]
            self.r = self.srcAB | self.srcC
            if '32x32x16' in op or '32x32x8' in op:
                self.passes = 8
            elif '16x16x32' in op or '16x16x16' in op:
                self.passes = 4
            elif '16x16x4_f32' in op:
                self.passes = 8
            else:
                raise ValueError(op)
        elif op.startswith('v_'):
            self.kind = 'trans' if any(op.startswith(x) for x in TRANS) else 'valu'
            if op.startswith('v_cmp'):
                self.w = R[0]
                self.r = allr(R[1:])
                if op.startswith('v_cmpx'):
                    self.w |= {'exec'}
            elif 'permlane' in op and 'swap' in op:
                self.w = R[0] | R[1]
                self.r = R[0] | R[1]
            elif op.startswith(('v_add_co', 'v_sub_co', 'v_addc_co', 'v_subb_co', 'v_subrev_co')):
                self.w = R[0] | R[1]
                self.r = allr(R[2:])
            else:
                self.w = R[0]
                self.r = allr(R[1:])
                if op.startswith(('v_fmac', 'v_dot2c', 'v_pk_fmac')) or op.startswith('v_writelane'):
                    self.r |= R[0]
            self.dpp = op.endswith('_dpp') or any(m.startswith(('row_', 'quad_perm')) for m in self.mods)
        elif op.startswith('ds_'):
            self.kind = 'ds'
            if op.startswith(('ds_read', 'ds_bpermute', 'ds_permute', 'ds_swizzle')) or '_rtn' in op:
                self.w = R[0]
                self.r = allr(R[1:])
            else:
                self.r = allr(R)
        elif op.startswith(('buffer_', 'global_', 'flat_')):
            self.kind = 'vmem'
            lds = 'lds' in self.mods or '_lds_' in op
            self.ldsdma = lds
            if op in ('buffer_wbl2', 'buffer_inv'):
                pass
            elif lds:
                self.r = allr(R) | {'m0'}
            elif '_load' in op:
                self.w = R[0]
                self.r = allr(R[1:])
            elif '_store' in op:
                self.r = allr(R)
                if 'x4' in op or 'x3' in op:
                    self.store_data = R[0] if op.startswith('buffer_') else R[1]
            elif '_atomic' in op:
                if 'sc0' in self.mods:
                    self.w = R[0]
                    self.r = allr(R) if op.startswith('buffer_') else allr(R[1:])
                else:
                    self.r = allr(R)
            else:
                raise ValueError(text)
        elif op.startswith('s_'):
            if op.startswith(('s_branch', 's_cbranch')):
                self.kind = 'branch'
                self.target = clean[0]
            elif op.startswith(('s_load', 's_memtime', 's_memrealtime', 's_atomic', 's_buffer_load')):
                self.kind = 'smem'
                self.w = R[0]
                self.r = allr(R[1:])
            elif op.startswith(('s_waitcnt', 's_barrier', 's_endpgm', 's_sleep', 's_setprio')):
                self.kind = 'other'
            elif op.startswith('s_cmp'):
                self.kind = 'salu'
                self.r = allr(R)
            else:
                self.kind = 'salu'
                self.w = R[0]
                self.r = allr(R[1:])
                if 'saveexec' in op:
                    self.w |= {'exec'}
        else:
            raise ValueError(text)


def is_vreg(x):
    return isinstance(x, tuple) and x[0] in 'va'


def is_sreg(x):
    return x == 'vcc' or (isinstance(x, tuple) and x[0] == 's')


def need(p, c):
    n = 0
    pv = p.kind in ('valu', 'trans')
    cv = c.kind in ('valu', 'trans')
    if pv:
        wv = {x for x in p.w if is_vreg(x)}
        wsg = {x for x in p.w if is_sreg(x)}
        if c.kind == 'mfma' and wv & c.r:
            n = max(n, 2)
        if p.kind == 'trans' and (cv or c.kind in ('vmem', 'ds')) and wv & c.r:
            n = max(n, 1)
        if cv and wv & c.r:
            if c.op.startswith(('v_readfirstlane', 'v_readlane')):
                n = max(n, 1)
            if 'permlane' in c.op or getattr(c, 'dpp', False):
                n = max(n, 2)
        if wsg:
            rd = set(c.r)
            if cv and c.op.startswith(('v_cndmask', 'v_addc', 'v_subb', 'v_div_fmas')):
                pass
            if c.kind == 'vmem' and wsg & rd:
                n = max(n, 5)
            if cv and wsg & rd:
                n = max(n, 4 if c.op.startswith(('v_readlane', 'v_writelane', 'v_div_fmas')) else 2)
            if c.kind in ('salu', 'smem') and wsg & rd:
                n = max(n, 1)
            if c.kind == 'branch' and 'vcc' in wsg and 'vcc' in c.op:
                n = max(n, 5)
        if 'exec' in p.w:
            n = max(n, 5)
    if p.kind == 'mfma':
        t = {4: (6, 8, 8, 3), 8: (10, 12, 12, 7)}[p.passes]
        if c.kind == 'mfma':
            if p.w & c.srcC:
                if not (p.w == c.srcC and p.op == c.op):
                    n = max(n, t[0])
            if p.w & c.srcAB:
                n = max(n, t[1])
            if (p.w & c.w) and not (p.w == c.srcC and p.op == c.op):
                n = max(n, t[0])
        elif cv or c.kind in ('vmem', 'ds'):
            if p.w & (c.r | c.w):
                n = max(n, t[2])
            if cv and p.srcC & c.w:
                n = max(n, t[3])
    if p.kind == 'salu' and 'm0' in p.w and 'm0' in c.r and c.kind in ('vmem', 'ds'):
        n = max(n, 1)
    if p.store_data and (p.store_data & c.w):
        n = max(n, 2)
    return n


class Asm:
    def __init__(self):
        self.items = []
        self.vm = []
        self.uid = 0

    def __call__(self, text, tag=None):
        for line in text.strip().split('\n'):
            line = line.strip()
            if not line or line.startswith(';'):
                continue
            ins = Ins(line)
            self.items.append(ins)
            if ins.kind == 'vmem' and ins.op not in ('buffer_wbl2', 'buffer_inv'):
                self.vm.append(tag)

    def label(self, name):
        self.items.append(('label', name))

    def raw(self, text):
        self.items.append(('raw', text))

    def newlabel(self, base='L'):
        self.uid += 1
        return f'{base}_{self.uid}'

    def vm_reset(self):
        self.vm = []

    def vm_wait(self, tag, extra=''):
        idx = [i for i, t in enumerate(self.vm) if t == tag]
        assert idx, f'no outstanding op with tag {tag}'
        n = len(self.vm) - 1 - idx[-1]
        n = min(n, 63)
        self(f's_waitcnt vmcnt({n}){extra}')
        self.vm = self.vm[idx[-1] + 1:] if n == len(self.vm) - 1 - idx[-1] else self.vm

    def vm_wait_all(self, extra=''):
        self(f's_waitcnt vmcnt(0){extra}')
        self.vm = []

    def _pad_linear(self):
        out = []
        for it in self.items:
            if isinstance(it, Ins):
                req = 0
                dist = 0
                for p in reversed(out):
                    if not isinstance(p, Ins):
                        continue
                    if dist >= 14:
                        break
                    if p.op in ('s_branch', 's_endpgm'):
                        break
                    k = need(p, it) - dist
                    req = max(req, k)
                    dist += p.ws
                if req > 0:
                    out.append(Ins(f's_nop {req - 1}'))
            out.append(it)
        self.items = out

    def _pad_branches(self):
        labels = {it[1]: i for i, it in enumerate(self.items) if isinstance(it, tuple) and it[0] == 'label'}
        i = 0
        inserts = []
        for i, it in enumerate(self.items):
            if isinstance(it, Ins) and it.kind == 'branch' and it.target in labels:
                pre = []
                d = 0
                for p in reversed(self.items[:i + 1]):
                    if isinstance(p, Ins):
                        if p is not it and p.op in ('s_branch', 's_endpgm'):
                            break
                        pre.append(p)
                        d += p.ws
                        if d >= 14:
                            break
                post = []
                d = 0
                for c in self.items[labels[it.target]:]:
                    if isinstance(c, Ins):
                        post.append(c)
                        d += c.ws
                        if d >= 14 or c.op in ('s_branch', 's_endpgm'):
                            break
                req = 0
                dpost = 0
                for c in post:
                    dpre = 0
                    for p in pre:
                        k = need(p, c) - (dpre + dpost)
                        req = max(req, k)
                        dpre += p.ws
                    dpost += c.ws
                if req > 0:
                    inserts.append((i, req))
        for i, req in reversed(inserts):
            self.items.insert(i, Ins(f's_nop {req - 1}'))

    def text(self):
        self._pad_linear()
        self._pad_branches()
        lines = []
        for it in self.items:
            if isinstance(it, Ins):
                lines.append('    ' + it.text)
            elif it[0] == 'label':
                lines.append(it[1] + ':')
            else:
                lines.append(it[1])
        return '\n'.join(lines) + '\n'

    def max_regs(self):
        mv = ma = ms = -1
        for it in self.items:
            if isinstance(it, Ins):
                for x in it.w | it.r:
                    if isinstance(x, tuple):
                        if x[0] == 'v':
                            mv = max(mv, x[1])
                        elif x[0] == 'a':
                            ma = max(ma, x[1])
                        else:
                            ms = max(ms, x[1])
        return mv, ma, ms


class RegAlloc:
    def __init__(self, f, start, limit):
        self.f = f
        self.n = start
        self.limit = limit

    def get(self, cnt=1, align=1):
        self.n = (self.n + align - 1) // align * align
        b = self.n
        self.n += cnt
        assert self.n <= self.limit, f'out of {self.f} regs'
        return b


def vr(b, n=1, f='v'):
    return f'{f}{b}' if n == 1 else f'{f}[{b}:{b + n - 1}]'


def sr(b, n=1):
    return vr(b, n, 's')


def ar(b, n=1):
    return vr(b, n, 'a')
```

```python
from asmlib import *
from layout import *

LOG2E = 0x3FB8AA3B
P_X, P_WQKV, P_WO, P_BX, P_W1, P_W2, P_OUT, P_DBG, P_WS = 16, 18, 20, 22, 24, 26, 28, 30, 32


def load_args(a):
    a('s_load_dwordx16 s[16:31], s[0:1], 0')
    a('s_load_dwordx2 s[32:33], s[0:1], 64')


def srd(a, d, ptr, off, size):
    if off:
        a(f's_add_u32 s{d}, s{ptr}, {off}')
        a(f's_addc_u32 s{d + 1}, s{ptr + 1}, 0')
    else:
        a(f's_mov_b32 s{d}, s{ptr}')
        a(f's_mov_b32 s{d + 1}, s{ptr + 1}')
    a(f's_mov_b32 s{d + 2}, {size}')
    a(f's_mov_b32 s{d + 3}, 0x20000')


def bf16r(a, v, tmp=None):
    a(f'v_cvt_pk_bf16_f32 v{v}, v{v}, v{v}')
    a(f'v_lshlrev_b32 v{v}, 16, v{v}')


def ln_stats(a, vm, vvar, vrs):
    a(f'v_max_f32 v{vvar}, 0, v{vvar}')
    bf16r(a, vm)
    bf16r(a, vvar)
    a(f'v_add_f32 v{vvar}, 0x3727c5ac, v{vvar}')
    bf16r(a, vvar)
    a(f'v_sqrt_f32 v{vvar}, v{vvar}')
    bf16r(a, vvar)
    a(f'v_rcp_f32 v{vrs}, v{vvar}')
    a(f'v_mul_f32 v{vm}, v{vm}, v{vrs}')
    a(f'v_sub_f32 v{vm}, 0, v{vm}')


def split5(a, sT, sCg, sSig, sTmp):
    a(f's_mul_i32 s{sCg}, s{sT}, 205')
    a(f's_lshr_b32 s{sCg}, s{sCg}, 10')
    a(f's_mul_i32 s{sTmp}, s{sCg}, 5')
    a(f's_sub_u32 s{sSig}, s{sT}, s{sTmp}')
    a(f's_sub_u32 s{sTmp}, s{sSig}, 1')
    a(f's_cmp_eq_u32 s{sSig}, 0')
    a(f's_cselect_b32 s{sTmp}, 4, s{sTmp}')
    a(f's_bitcmp1_b32 s{sCg}, 0')
    a(f's_cselect_b32 s{sSig}, s{sTmp}, s{sSig}')


RING = 32768
RP_LDS = 131072
KVA_LDS = 151552
K1_LDS = 158720


def gen_k1(a, name):
    sX, sW, sR, sWS = 36, 40, 44, 48
    sa = RegAlloc('s', 52, 100)
    sWv = sa.get(); sRh = sa.get(); sCh = sa.get()
    sIt = sa.get(); sKc = sa.get(); sSA = sa.get(); sSB = sa.get()
    sSlotW = sa.get(); sSlotR = sa.get(); sMA = sa.get(); sMB = sa.get()
    sT0 = sa.get(); sT1 = sa.get(); sT2 = sa.get(); sT3 = sa.get()
    sSrc = sa.get(5); sDst = sa.get(5)
    sZero = sa.get()
    sHg = sa.get(); sRb = sa.get(); sCsD = sa.get()
    sM0 = sa.get(2, 2); sM1 = sa.get(2, 2); sM2 = sa.get(2, 2); sK = sa.get(2, 2)

    Lend = name + '_end'
    a.raw(f'.globl {name}\n.p2align 8\n.type {name},@function')
    a.label(name)
    a('s_cmp_ge_u32 s2, 256')
    a(f's_cbranch_scc1 {Lend}')
    load_args(a)
    va = RegAlloc('v', 1, 256)
    vL = va.get(); vG = va.get(); vR = va.get()
    vT = [va.get() for _ in range(8)]
    vRP = va.get(5)
    vOnes = va.get(4, 4)
    a(f'v_and_b32 v{vL}, 63, v0')
    a(f'v_lshrrev_b32 v{vT[0]}, 6, v0')
    a(f'v_readfirstlane_b32 s{sWv}, v{vT[0]}')
    a(f'v_lshrrev_b32 v{vG}, 4, v{vL}')
    a(f'v_and_b32 v{vR}, 15, v{vL}')
    a(f's_lshr_b32 s{sRh}, s{sWv}, 1')
    a(f's_and_b32 s{sCh}, s{sWv}, 1')
    a(f's_mov_b32 s{sZero}, 0')
    base_v = va.n
    Lq = name + '_q'
    a('s_cmp_ge_u32 s2, 176')
    a(f's_cbranch_scc1 {Lq}')

    for variant in ('kv', 'q'):
        kv = variant == 'kv'
        va.n = base_v
        if not kv:
            a.label(Lq)
        TR, TC = (3, 5) if kv else (4, 4)
        NA, NB = (3, 5) if kv else (4, 4)
        BOFF = 12288 if kv else 16384
        vOA = va.get(NA); vOB = va.get(NB)
        if kv:
            a(f's_and_b32 s{sHg}, s2, 7')
            a(f's_lshr_b32 s{sRb}, s2, 3')
            a(f's_mul_i32 s{sT0}, s{sRb}, 96')
            a(f's_mov_b32 s{sKc}, s{sRb}')
            for _ in range(2):
                a(f's_sub_u32 s{sT1}, s{sKc}, 10')
                a(f's_cmp_ge_u32 s{sKc}, 10')
                a(f's_cselect_b32 s{sKc}, s{sT1}, s{sKc}')
        else:
            a(f's_sub_u32 s{sT1}, s2, 176')
            a(f's_and_b32 s{sT2}, s{sT1}, 7')
            a(f's_lshr_b32 s{sT1}, s{sT1}, 3')
            a(f's_cmp_ge_u32 s{sT1}, 5')
            a(f's_cselect_b32 s{sT3}, 1, 0')
            a(f's_lshl_b32 s{sRb}, s{sT2}, 1')
            a(f's_add_u32 s{sRb}, s{sRb}, s{sT3}')
            a(f's_mul_i32 s{sT2}, s{sT3}, 5')
            a(f's_sub_u32 s{sHg}, s{sT1}, s{sT2}')
            a(f's_lshl_b32 s{sKc}, s{sHg}, 1')
            a(f's_add_u32 s{sKc}, s{sKc}, s{sT3}')
            a(f's_lshl_b32 s{sT0}, s{sRb}, 7')
        a(f's_mul_i32 s{sT1}, s{sWv}, {8 * NA}')
        a(f'v_lshrrev_b32 v{vT[0]}, 3, v{vL}')
        a(f'v_add_u32 v{vT[0]}, s{sT1}, v{vT[0]}')
        a(f'v_and_b32 v{vT[1]}, 7, v{vL}')
        a(f's_movk_i32 s{sT2}, 1280')
        for j in range(NA):
            if j:
                a(f'v_add_u32 v{vT[0]}, 8, v{vT[0]}')
            a(f'v_bfe_u32 v{vT[2]}, v{vT[0]}, 1, 3')
            a(f'v_xor_b32 v{vT[2]}, v{vT[2]}, v{vT[1]}')
            a(f'v_lshlrev_b32 v{vT[2]}, 4, v{vT[2]}')
            a(f'v_add_u32 v{vT[3]}, s{sT0}, v{vT[0]}')
            a(f'v_mad_u32_u24 v{vOA + j}, v{vT[3]}, s{sT2}, v{vT[2]}')
            if j:
                a(f'v_subrev_u32 v{vOA + j}, {1024 * j}, v{vOA + j}')
        a(f's_movk_i32 s{sT2}, 3840')
        if kv:
            a(f's_mul_i32 s{sT1}, s{sHg}, 160')
            a(f's_mul_i32 s{sT3}, s{sWv}, {16 * 3840}')
            a(f's_add_u32 s{sT1}, s{sT1}, s{sT3}')
            a(f's_add_u32 s{sT1}, s{sT1}, 1280')
            for j in range(NB):
                a(f'v_add_u32 v{vT[0]}, {64 * j}, v{vL}')
                a(f'v_mul_u32_u24 v{vT[1]}, 3277, v{vT[0]}')
                a(f'v_lshrrev_b32 v{vT[1]}, 16, v{vT[1]}')
                a(f'v_mul_u32_u24 v{vT[2]}, 20, v{vT[1]}')
                a(f'v_sub_u32 v{vT[0]}, v{vT[0]}, v{vT[2]}')
                a(f'v_lshrrev_b32 v{vT[2]}, 2, v{vT[1]}')
                a(f'v_and_b32 v{vT[2]}, 2, v{vT[2]}')
                a(f'v_xor_b32 v{vT[0]}, v{vT[0]}, v{vT[2]}')
                a(f'v_mul_u32_u24 v{vT[2]}, 205, v{vT[0]}')
                a(f'v_lshrrev_b32 v{vT[2]}, 10, v{vT[2]}')
                a(f'v_mul_u32_u24 v{vT[3]}, 5, v{vT[2]}')
                a(f'v_sub_u32 v{vT[0]}, v{vT[0]}, v{vT[3]}')
                a(f'v_lshlrev_b32 v{vT[0]}, 4, v{vT[0]}')
                a(f'v_and_b32 v{vT[3]}, 1, v{vT[2]}')
                a(f'v_mul_u32_u24 v{vT[3]}, 1280, v{vT[3]}')
                a(f'v_lshrrev_b32 v{vT[2]}, 1, v{vT[2]}')
                a(f'v_mul_u32_u24 v{vT[2]}, 80, v{vT[2]}')
                a(f'v_add3_u32 v{vT[0]}, v{vT[0]}, v{vT[2]}, v{vT[3]}')
                a(f'v_mad_u32_u24 v{vT[0]}, v{vT[1]}, s{sT2}, v{vT[0]}')
                a(f'v_add_u32 v{vOB + j}, s{sT1}, v{vT[0]}')
                if j & 3:
                    a(f'v_subrev_u32 v{vOB + j}, {1024 * (j & 3)}, v{vOB + j}')
        else:
            a(f's_lshl_b32 s{sT1}, s{sHg}, 8')
            a(f's_mul_i32 s{sT3}, s{sWv}, {16 * 3840}')
            a(f's_add_u32 s{sT1}, s{sT1}, s{sT3}')
            a(f'v_lshrrev_b32 v{vT[0]}, 1, v{vR}')
            a(f'v_xor_b32 v{vT[0]}, v{vT[0]}, v{vG}')
            a(f'v_lshlrev_b32 v{vT[0]}, 5, v{vT[0]}')
            a(f'v_and_b32 v{vT[1]}, 1, v{vL}')
            a(f'v_lshl_add_u32 v{vT[0]}, v{vT[1]}, 4, v{vT[0]}')
            a(f'v_mad_u32_u24 v{vT[1]}, v{vG}, s{sT2}, s{sT1}') if False else None
            a(f'v_mul_u32_u24 v{vT[1]}, 3840, v{vG}')
            a(f'v_add_u32 v{vT[1]}, s{sT1}, v{vT[1]}')
            for j in range(NB):
                if j >> 1:
                    a(f'v_xor_b32 v{vT[2]}, 128, v{vT[0]}')
                else:
                    a(f'v_mov_b32 v{vT[2]}, v{vT[0]}')
                a(f'v_add_u32 v{vT[2]}, v{vT[2]}, v{vT[1]}')
                a(f'v_add_u32 v{vOB + j}, {4 * j * 3840 - 1024 * j}, v{vT[2]}')
        a(f's_mul_i32 s{sMA}, s{sWv}, {NA * 1024}')
        a(f's_mul_i32 s{sMB}, s{sWv}, {NB * 1024}')
        a(f's_add_u32 s{sMB}, s{sMB}, {BOFF}')
        a('s_waitcnt lgkmcnt(0)')
        srd(a, sX, P_X, 0, S * D * 2)
        srd(a, sW, P_WQKV, 0, D * 3 * D * 2)
        srd(a, sWS, P_WS, 0, WS_USED)
        if kv:
            Lnt = a.newlabel('Lnt')
            a(f's_cmp_lg_u32 s{sWv}, 0')
            a(f's_cbranch_scc1 {Lnt}')
            a(f's_lshl_b32 s{sT1}, s{sHg}, 2')
            a(f'v_mov_b32 v{vT[6]}, s{sT1}')
            a(f'v_mov_b32 v{vT[5]}, 1')
            a('s_mov_b64 exec, 1')
            a(f'global_atomic_add v{vT[7]}, v{vT[6]}, v{vT[5]}, s[{P_DBG}:{P_DBG + 1}] sc0 sc1')
            a('s_mov_b64 exec, -1')
            a.label(Lnt)

        def issue_stage():
            a(f's_lshl_b32 s{sSA}, s{sKc}, 7')
            a(f's_mul_i32 s{sSB}, s{sKc}, {64 * 3840}')
            a(f's_add_u32 m0, s{sSlotW}, s{sMA}')
            a(f's_add_u32 s{sKc}, s{sKc}, 1')
            for j in range(NA):
                a(f'buffer_load_dwordx4 v{vOA + j}, s[{sX}:{sX + 3}], s{sSA} offen offset:{1024 * j} lds')
            a(f's_add_u32 m0, s{sSlotW}, s{sMB}')
            a(f's_cmp_eq_u32 s{sKc}, 10')
            for j in range(NB):
                if j == 4:
                    a(f's_add_u32 m0, m0, 4096')
                    a(f's_cmp_eq_u32 s{sKc}, 10')
                a(f'buffer_load_dwordx4 v{vOB + j}, s[{sW}:{sW + 3}], s{sSB} offen offset:{1024 * (j & 3)} lds')
            a(f's_cselect_b32 s{sKc}, 0, s{sKc}')
            a(f's_add_u32 s{sSlotW}, s{sSlotW}, {RING}')
            a(f's_and_b32 s{sSlotW}, s{sSlotW}, {4 * RING - 1}')

        a(f's_mov_b32 s{sSlotW}, 0')
        a(f's_mov_b32 s{sIt}, 0')
        Lp = a.newlabel('Lpro')
        a.label(Lp)
        issue_stage()
        a(f's_add_u32 s{sIt}, s{sIt}, 1')
        a(f's_cmp_lt_u32 s{sIt}, 4')
        a(f's_cbranch_scc1 {Lp}')

        Lw2 = a.newlabel('Lw2'); Lwo = a.newlabel('Lwo'); Lrd = a.newlabel('Lrd'); Lv12 = a.newlabel('Lv12')
        a(f'v_lshrrev_b32 v{vT[0]}, 3, v{vL}')
        a(f'v_and_b32 v{vT[1]}, 7, v{vL}')
        a(f'v_lshlrev_b32 v{vT[1]}, 4, v{vT[1]}')
        if kv:
            a('s_cmp_ge_u32 s2, 108')
            a(f's_cbranch_scc1 {Lw2}')
            srd(a, sR, P_W1, 0, D * F * 2)
            a(f's_mul_i32 s{sT0}, s2, 19')
            a(f's_lshr_b32 s{sT0}, s{sT0}, 9')
            a(f's_mul_i32 s{sT1}, s{sT0}, 27')
            a(f's_sub_u32 s{sT1}, s2, s{sT1}')
            a(f's_mul_i32 s{sSrc}, s{sT0}, {160 * 3456}')
            a(f's_lshl_b32 s{sT2}, s{sT1}, 7')
            a(f's_add_u32 s{sSrc}, s{sSrc}, s{sT2}')
            a(f's_lshl_b32 s{sT1}, s{sT1}, 2')
            a(f's_add_u32 s{sT1}, s{sT1}, s{sWv}')
            a(f's_mul_i32 s{sDst}, s{sT0}, {5 * 7168}')
            a(f's_add_u32 s{sDst}, s{sDst}, {W1P_OFF}')
            a(f's_sub_u32 s{sT2}, s{sT1}, 54')
            a(f's_cmp_ge_u32 s{sT1}, 54')
            a(f's_cselect_b32 s{sT1}, s{sT2}, s{sT1}')
            a(f's_cselect_b32 s{sT2}, {8 * 143360}, 0')
            a(f's_cselect_b32 s{sCsD}, {8 * 448}, 0')
            a(f's_add_u32 s{sCsD}, s{sCsD}, {CS1_OFF}')
            a(f's_add_u32 s{sDst}, s{sDst}, s{sT2}')
            a(f's_mul_i32 s{sT2}, s{sT0}, 7168')
            a(f's_add_u32 s{sCsD}, s{sCsD}, s{sT2}')
            a(f's_mul_i32 s{sT2}, s{sT1}, 37')
            a(f's_lshr_b32 s{sT2}, s{sT2}, 8')
            a(f's_mul_i32 s{sT3}, s{sT2}, 7')
            a(f's_cmp_ge_u32 s{sT1}, 48')
            a(f's_cselect_b32 s{sT2}, 7, s{sT2}')
            a(f's_cselect_b32 s{sT3}, 48, s{sT3}')
            a(f's_mul_i32 s{sT0}, s{sT2}, 448')
            a(f's_add_u32 s{sCsD}, s{sCsD}, s{sT0}')
            a(f's_mul_i32 s{sT2}, s{sT2}, 143360')
            a(f's_add_u32 s{sDst}, s{sDst}, s{sT2}')
            a(f's_sub_u32 s{sT1}, s{sT1}, s{sT3}')
            a(f's_sub_u32 s{sT2}, s{sT1}, 1')
            a(f's_cmp_eq_u32 s{sT1}, 0')
            a(f's_cselect_b32 s{sT2}, 6, s{sT2}')
            a(f's_bitcmp1_b32 s{sT3}, 0')
            a(f's_cselect_b32 s{sT1}, s{sT2}, s{sT1}')
            a(f's_lshl_b32 s{sT0}, s{sT1}, 6')
            a(f's_add_u32 s{sCsD}, s{sCsD}, s{sT0}')
            a(f's_lshl_b32 s{sT1}, s{sT1}, 10')
            a(f's_add_u32 s{sDst}, s{sDst}, s{sT1}')
            for i in range(1, 5):
                a(f's_add_u32 s{sSrc + i}, s{sSrc + i - 1}, {32 * 3456}')
                a(f's_add_u32 s{sDst + i}, s{sDst + i - 1}, 7168')
            a(f's_movk_i32 s{sT0}, 3456')
            a(f's_branch {Lv12}')
            a.label(Lw2)
        else:
            a('s_cmp_ge_u32 s2, 216')
            a(f's_cbranch_scc1 {Lwo}')
        srd(a, sR, P_W2, 0, D * F * 2)
        a(f's_sub_u32 s{sT0}, s2, 108')
        a(f's_lshr_b32 s{sT1}, s{sT0}, 1')
        a(f's_and_b32 s{sT0}, s{sT0}, 1')
        a(f's_mul_i32 s{sSrc}, s{sT1}, {32 * 1280}')
        a(f's_mul_i32 s{sT2}, s{sT0}, 640')
        a(f's_add_u32 s{sSrc}, s{sSrc}, s{sT2}')
        a(f's_mul_i32 s{sSA}, s{sT1}, 5120')
        a(f's_add_u32 s{sSA}, s{sSA}, {W2P_OFF}')
        a(f's_mul_i32 s{sT0}, s{sT0}, 20')
        a(f's_add_u32 s{sT0}, s{sT0}, s{sWv}')
        for i in range(5):
            if i:
                a(f's_add_u32 s{sSrc + i}, s{sSrc + i - 1}, 128')
                a(f's_add_u32 s{sT0}, s{sT0}, 4')
            split5(a, sT0, sT1, sT2, sT3)
            a(f's_mul_i32 s{sT1}, s{sT1}, 276480')
            a(f's_lshl_b32 s{sT2}, s{sT2}, 10')
            a(f's_add_u32 s{sT1}, s{sT1}, s{sT2}')
            a(f's_add_u32 s{sDst + i}, s{sT1}, s{sSA}')
        a(f's_movk_i32 s{sT0}, 1280')
        a.label(Lv12)
        a(f's_lshl_b32 s{sT1}, s{sWv}, 3')
        a(f'v_add_u32 v{vT[0]}, s{sT1}, v{vT[0]}')
        a(f'v_mad_u32_u24 v{vRP}, v{vT[0]}, s{sT0}, v{vT[1]}')
        for i in range(1, 5):
            a(f'v_mov_b32 v{vRP + i}, v{vRP}')
        if not kv:
            a(f's_branch {Lrd}')
            a.label(Lwo)
            srd(a, sR, P_WO, 0, D * D * 2)
            a(f's_sub_u32 s{sT0}, s2, 216')
            a(f's_mul_i32 s{sT1}, s{sT0}, 205')
            a(f's_lshr_b32 s{sT1}, s{sT1}, 11')
            a(f's_mul_i32 s{sT2}, s{sT1}, 10')
            a(f's_sub_u32 s{sT0}, s{sT0}, s{sT2}')
            a(f's_mul_i32 s{sSrc}, s{sT1}, {160 * 1280}')
            a(f's_mul_i32 s{sT2}, s{sWv}, {5 * 1280}')
            a(f's_add_u32 s{sSrc}, s{sSrc}, s{sT2}')
            a(f's_lshl_b32 s{sT2}, s{sT0}, 7')
            a(f's_add_u32 s{sSrc}, s{sSrc}, s{sT2}')
            a(f's_mul_i32 s{sSA}, s{sT1}, 25600')
            a(f's_add_u32 s{sSA}, s{sSA}, {WOP_OFF}')
            a(f's_lshl_b32 s{sT0}, s{sT0}, 2')
            a(f's_add_u32 s{sT0}, s{sT0}, s{sWv}')
            split5(a, sT0, sT1, sT2, sT3)
            a(f's_mul_i32 s{sT1}, s{sT1}, 102400')
            a(f's_lshl_b32 s{sT2}, s{sT2}, 10')
            a(f's_add_u32 s{sT1}, s{sT1}, s{sT2}')
            a(f's_add_u32 s{sDst}, s{sT1}, s{sSA}')
            a(f's_movk_i32 s{sT0}, 1280')
            for i in range(5):
                if i:
                    a(f's_mov_b32 s{sSrc + i}, s{sSrc}')
                    a(f's_add_u32 s{sDst + i}, s{sDst + i - 1}, 5120')
                a(f'v_add_u32 v{vT[2]}, {8 * i}, v{vT[0]}')
                a(f'v_mul_u32_u24 v{vT[3]}, 205, v{vT[2]}')
                a(f'v_lshrrev_b32 v{vT[3]}, 10, v{vT[3]}')
                a(f'v_mad_u32_u24 v{vT[2]}, v{vT[3]}, 15, v{vT[2]}')
                a(f'v_mad_u32_u24 v{vRP + i}, v{vT[2]}, s{sT0}, v{vT[1]}')
            a.label(Lrd)
        a(f's_lshl_b32 s{sT1}, s{sWv}, 10')
        for i in range(5):
            a(f's_add_u32 m0, s{sT1}, {RP_LDS + 4096 * i}')
            a(f'buffer_load_dwordx4 v{vRP + i}, s[{sR}:{sR + 3}], s{sSrc + i} offen lds')

        NBA = 2 if kv else 4
        vAb = va.get(2); vBb = va.get(2 * NBA)
        vAc = va.get(1); vBc = va.get(NBA)
        a(f's_xor_b32 s{sT0}, s{sRh}, s{sCh}')
        a(f'v_lshrrev_b32 v{vT[0]}, 3, v{vR}')
        a(f'v_lshlrev_b32 v{vT[0]}, 10, v{vT[0]}')
        a(f'v_and_b32 v{vT[1]}, 7, v{vR}')
        a(f'v_lshl_add_u32 v{vT[0]}, v{vT[1]}, 7, v{vT[0]}')
        a(f's_mul_i32 s{sT1}, s{sRh}, {TR * 2048}')
        a(f'v_add_u32 v{vT[0]}, s{sT1}, v{vT[0]}')
        a(f'v_lshrrev_b32 v{vT[1]}, 1, v{vR}')
        a(f'v_xor_b32 v{vT[1]}, v{vT[1]}, v{vG}')
        a(f's_lshl_b32 s{sT1}, s{sT0}, 2')
        a(f'v_xor_b32 v{vT[1]}, s{sT1}, v{vT[1]}')
        a(f'v_lshl_add_u32 v{vAb}, v{vT[1]}, 4, v{vT[0]}')
        a(f'v_xor_b32 v{vT[1]}, 4, v{vT[1]}')
        a(f'v_lshl_add_u32 v{vAb + 1}, v{vT[1]}, 4, v{vT[0]}')
        a(f'v_bfe_u32 v{vT[0]}, v{vL}, 2, 2')
        a(f'v_and_b32 v{vT[1]}, 3, v{vL}')
        a(f'v_lshl_add_u32 v{vT[2]}, v{vG}, 3, v{vT[0]}')
        a(f'v_and_b32 v{vT[3]}, 1, v{vG}')
        if kv:
            a(f'v_mul_u32_u24 v{vT[2]}, 320, v{vT[2]}')
            a(f'v_lshl_add_u32 v{vT[2]}, v{vT[1]}, 3, v{vT[2]}')
            a(f's_mul_i32 s{sT1}, s{sCh}, 160')
            a(f's_add_u32 s{sT1}, s{sT1}, {BOFF}')
            a(f'v_add_u32 v{vT[2]}, s{sT1}, v{vT[2]}')
            a(f'v_lshlrev_b32 v{vT[3]}, 5, v{vT[3]}')
            a(f'v_add_u32 v{vT[4]}, v{vT[2]}, v{vT[3]}')
            a(f'v_sub_u32 v{vT[5]}, v{vT[2]}, v{vT[3]}')
            a(f's_cmp_eq_u32 s{sCh}, 0')
            a(f's_cselect_b64 s[{sM0}:{sM0 + 1}], -1, 0')
            a(f'v_cndmask_b32 v{vT[2]}, v{vT[5]}, v{vT[4]}, s[{sM0}:{sM0 + 1}]')
            a(f'v_cndmask_b32 v{vT[3]}, v{vT[4]}, v{vT[5]}, s[{sM0}:{sM0 + 1}]')
            a(f's_mul_i32 s{sT1}, s{sT0}, 10240')
            a(f's_sub_u32 s{sT2}, 10240, s{sT1}')
            for o, sreg in ((0, sT1), (1, sT2)):
                a(f'v_add_u32 v{vBb + 2 * o}, s{sreg}, v{vT[2]}')
                a(f'v_add_u32 v{vBb + 2 * o + 1}, s{sreg}, v{vT[3]}')
        else:
            a(f'v_lshl_or_b32 v{vT[0]}, v{vT[3]}, 2, v{vT[0]}')
            a(f's_lshl_b32 s{sT1}, s{sCh}, 2')
            a(f'v_xor_b32 v{vT[0]}, s{sT1}, v{vT[0]}')
            a(f'v_lshlrev_b32 v{vT[2]}, 8, v{vT[2]}')
            a(f'v_lshl_add_u32 v{vT[2]}, v{vT[1]}, 3, v{vT[2]}')
            a(f's_lshl_b32 s{sT1}, s{sT0}, 13')
            a(f's_sub_u32 s{sT2}, {8192 + BOFF}, s{sT1}')
            a(f's_add_u32 s{sT1}, s{sT1}, {BOFF}')
            for t in range(4):
                a(f'v_xor_b32 v{vT[3]}, {t}, v{vT[0]}')
                a(f'v_lshl_add_u32 v{vT[3]}, v{vT[3]}, 5, v{vT[2]}')
                a(f'v_add_u32 v{vBb + t}, s{sT1}, v{vT[3]}')
                a(f'v_add_u32 v{vBb + 4 + t}, s{sT2}, v{vT[3]}')
        fr = [va.get(4 * (TR + TC), 4) for _ in range(2)]
        acc = va.get(4 * TR * TC, 4)
        s1 = va.get(4 * TR, 4); s2 = va.get(4 * TR, 4); cs = va.get(4 * TC, 4)
        nacc = cs + 4 * TC - acc
        for i in range(4):
            a(f'v_mov_b32 v{vOnes + i}, 0x3f803f80')
        for i in range(nacc):
            a(f'v_mov_b32 v{acc + i}, 0')
        if kv:
            a(f'v_lshlrev_b32 v{vT[0]}, 4, v0')
            a(f'ds_write_b128 v{vT[0]}, v[{acc}:{acc + 3}] offset:{KVA_LDS - 131072 + 0}') if False else None
            a(f'v_add_u32 v{vT[0]}, {KVA_LDS}, v{vT[0]}')
            a(f'ds_write_b128 v{vT[0]}, v[{acc}:{acc + 3}]')
            a(f'ds_write_b128 v{vT[0]}, v[{acc}:{acc + 3}] offset:3072')

        def set_cur(order, sSlot):
            a(f'v_add_u32 v{vAc}, s{sSlot}, v{vAb + order}')
            for t in range(NBA):
                a(f'v_add_u32 v{vBc + t}, s{sSlot}, v{vBb + NBA * order + t}')

        def reads(f):
            lst = []
            for t in range(TR):
                lst.append(f'ds_read_b128 v[{f + 4 * t}:{f + 4 * t + 3}], v{vAc} offset:{2048 * t}')
            for t in range(TC):
                b = f + 4 * TR + 4 * t
                for j in range(2):
                    if kv:
                        lst.append(f'ds_read_b64_tr_b16 v[{b + 2 * j}:{b + 2 * j + 1}], v{vBc + (t & 1)} offset:{32 * t + 1280 * j}')
                    else:
                        lst.append(f'ds_read_b64_tr_b16 v[{b + 2 * j}:{b + 2 * j + 1}], v{vBc + t} offset:{1024 * j}')
            return lst

        def mfmas(f, first):
            lst = []
            A = lambda t: f'v[{f + 4 * t}:{f + 4 * t + 3}]'
            B = lambda t: f'v[{f + 4 * TR + 4 * t}:{f + 4 * TR + 4 * t + 3}]'
            ones = f'v[{vOnes}:{vOnes + 3}]'
            M = 'v_mfma_f32_16x16x32_bf16'
            for tc in range(TC):
                for tr in range(TR):
                    d = acc + 4 * (tr * TC + tc)
                    x, y = (A(tr), B(tc)) if kv else (B(tc), A(tr))
                    lst.append(f'{M} v[{d}:{d + 3}], {x}, {y}, v[{d}:{d + 3}]')
            if first:
                for tr in range(TR):
                    d = s1 + 4 * tr
                    x, y = (A(tr), ones) if kv else (ones, A(tr))
                    lst.append(f'{M} v[{d}:{d + 3}], {x}, {y}, v[{d}:{d + 3}]')
                    d = s2 + 4 * tr
                    lst.append(f'{M} v[{d}:{d + 3}], {A(tr)}, {A(tr)}, v[{d}:{d + 3}]')
            else:
                for tc in range(TC):
                    d = cs + 4 * tc
                    x, y = (ones, B(tc)) if kv else (B(tc), ones)
                    lst.append(f'{M} v[{d}:{d + 3}], {x}, {y}, v[{d}:{d + 3}]')
            return lst

        def interleave(ms, rs):
            i = 0
            for k, m in enumerate(ms):
                a(m)
                if i < len(rs):
                    a(rs[i]); i += 1
            while i < len(rs):
                a(rs[i]); i += 1

        NST = NA + NB
        a(f's_waitcnt vmcnt({3 * NST + 5})')
        a('s_barrier')
        if kv:
            Lnz = a.newlabel('Lnz')
            a(f's_cmp_lg_u32 s{sWv}, 0')
            a(f's_cbranch_scc1 {Lnz}')
            a(f'v_readfirstlane_b32 s{sT1}, v{vT[7]}')
            a(f's_cmp_lg_u32 s{sT1}, 0')
            a(f's_cbranch_scc1 {Lnz}')
            a(f's_mov_b32 s{sZero}, 1')
            a(f's_mul_i32 s{sT1}, s{sHg}, {4 * KV_HS}')
            a(f's_add_u32 s{sT1}, s{sT1}, {KV_OFF}')
            a(f'v_lshlrev_b32 v{vT[0]}, 4, v{vL}')
            for i in range(7):
                if i == 4:
                    a(f's_add_u32 s{sT1}, s{sT1}, 4096')
                a(f'buffer_store_dwordx4 v[{acc}:{acc + 3}], v{vT[0]}, s[{sWS}:{sWS + 3}], s{sT1} offen offset:{1024 * (i & 3)} sc1')
            a.label(Lnz)
        a(f's_mov_b32 s{sSlotR}, 0')
        a(f's_mov_b32 s{sIt}, 0')
        set_cur(0, sSlotR)
        for r_ in reads(fr[0]):
            a(r_)
        Lloop = a.newlabel('Lloop')
        a.label(Lloop)
        set_cur(1, sSlotR)
        a('s_waitcnt lgkmcnt(0)')
        interleave(mfmas(fr[0], True), reads(fr[1]))
        L7 = a.newlabel('L7'); L8 = a.newlabel('L8'); Lb = a.newlabel('Lb')
        a(f's_add_u32 s{sSlotR}, s{sSlotR}, {RING}')
        a(f's_and_b32 s{sSlotR}, s{sSlotR}, {4 * RING - 1}')
        set_cur(0, sSlotR)
        a(f's_cmp_ge_u32 s{sIt}, 7')
        a(f's_cbranch_scc1 {L7}')
        a(f's_waitcnt vmcnt({2 * NST}) lgkmcnt(0)')
        a('s_barrier')
        a(f's_cmp_ge_u32 s{sIt}, 6')
        a(f's_cbranch_scc1 {Lb}')
        issue_stage()
        a(f's_cmp_lg_u32 s{sIt}, 3')
        a(f's_cbranch_scc1 {Lb}')
        a(f'v_lshlrev_b32 v{vT[0]}, 10, v{vG}')
        a(f'v_bfe_u32 v{vT[1]}, v{vL}, 2, 2')
        a(f'v_lshl_add_u32 v{vT[0]}, v{vT[1]}, 7, v{vT[0]}')
        a(f'v_and_b32 v{vT[1]}, 3, v{vL}')
        a(f'v_lshl_add_u32 v{vT[0]}, v{vT[1]}, 4, v{vT[0]}')
        a(f's_lshl_b32 s{sT1}, s{sRh}, 6')
        a(f's_lshl_b32 s{sT2}, s{sCh}, 3')
        a(f's_add_u32 s{sT1}, s{sT1}, s{sT2}')
        a(f's_add_u32 s{sT1}, s{sT1}, {RP_LDS}')
        a(f'v_add_u32 v{vT[0]}, s{sT1}, v{vT[0]}')
        a(f'v_lshlrev_b32 v{vT[1]}, 4, v{vL}')
        for i in range(5):
            for j in range(2):
                b = fr[0] + 4 * i + 2 * j
                a(f'ds_read_b64_tr_b16 v[{b}:{b + 1}], v{vT[0]} offset:{4096 * i + 512 * j}')
        a('s_waitcnt lgkmcnt(0)')
        for i in range(5):
            b = fr[0] + 4 * i
            a(f'buffer_store_dwordx4 v[{b}:{b + 3}], v{vT[1]}, s[{sWS}:{sWS + 3}], s{sDst + i} offen')
        a('s_nop 1')
        if kv:
            Lncs = a.newlabel('Lncs')
            a('s_cmp_ge_u32 s2, 108')
            a(f's_cbranch_scc1 {Lncs}')
            dd = fr[0] + 20
            for i in range(5):
                b = fr[0] + 4 * i
                c = '0' if i == 0 else f'v[{dd}:{dd + 3}]'
                a(f'v_mfma_f32_16x16x32_bf16 v[{dd}:{dd + 3}], v[{b}:{b + 3}], v[{vOnes}:{vOnes + 3}], {c}')
            a(f'v_lshlrev_b32 v{vT[0]}, 4, v{vG}')
            a('s_mov_b32 exec_lo, 0x00010001'); a('s_mov_b32 exec_hi, 0x00010001')
            a(f'buffer_store_dwordx4 v[{dd}:{dd + 3}], v{vT[0]}, s[{sWS}:{sWS + 3}], s{sCsD} offen')
            a('s_mov_b64 exec, -1')
            a('s_nop 1')
            a.label(Lncs)
            a(f's_cmp_eq_u32 s{sZero}, 0')
            a(f's_cbranch_scc1 {Lb}')
            a(f's_lshl_b32 s{sT1}, s{sHg}, 2')
            a(f'v_mov_b32 v{vT[0]}, s{sT1}')
            a(f'v_mov_b32 v{vT[1]}, 1')
            a('s_mov_b64 exec, 1')
            a(f'global_store_dword v{vT[0]}, v{vT[1]}, s[{P_DBG}:{P_DBG + 1}] offset:64 sc1')
            a('s_mov_b64 exec, -1')
        a(f's_branch {Lb}')
        a.label(L7)
        a(f's_cmp_eq_u32 s{sIt}, 7')
        a(f's_cbranch_scc0 {L8}')
        a(f's_waitcnt vmcnt({NST}) lgkmcnt(0)')
        a('s_barrier')
        a(f's_branch {Lb}')
        a.label(L8)
        a('s_waitcnt vmcnt(0) lgkmcnt(0)')
        a('s_barrier')
        a.label(Lb)
        interleave(mfmas(fr[1], False), reads(fr[0]))
        a(f's_add_u32 s{sIt}, s{sIt}, 1')
        a(f's_cmp_lt_u32 s{sIt}, 10')
        a(f's_cbranch_scc1 {Lloop}')

        NR = 16 * TR * 2
        NC = 16 * TC * 2
        ST1, ST2, CSP, AA, BB, CS = 0, 1024, 2048, 4096, 4608, 5120
        if kv:
            a(f's_lshl_b32 s{sT1}, s{sHg}, 2')
            a(f'v_mov_b32 v{vT[6]}, s{sT1}')
            a(f'global_load_dword v{vT[7]}, v{vT[6]}, s[{P_DBG}:{P_DBG + 1}] offset:64 sc1')
        a('s_waitcnt lgkmcnt(0)')
        a(f's_mov_b32 s{sM0}, 0x22222222'); a(f's_mov_b32 s{sM0 + 1}, 0x22222222')
        a(f's_mov_b32 s{sM1}, 0x44444444'); a(f's_mov_b32 s{sM1 + 1}, 0x44444444')
        a(f's_mov_b32 s{sM2}, 0x88888888'); a(f's_mov_b32 s{sM2 + 1}, 0x88888888')
        for t in range(TR):
            d = s2 + 4 * t
            a(f'v_cndmask_b32 v{d}, v{d}, v{d + 1}, s[{sM0}:{sM0 + 1}]')
            a(f'v_cndmask_b32 v{d}, v{d}, v{d + 2}, s[{sM1}:{sM1 + 1}]')
            a(f'v_cndmask_b32 v{d}, v{d}, v{d + 3}, s[{sM2}:{sM2 + 1}]')
        a(f's_mul_i32 s{sT1}, s{sCh}, {NR * 4}')
        a(f's_mul_i32 s{sT2}, s{sRh}, {TR * 64}')
        a(f's_add_u32 s{sT1}, s{sT1}, s{sT2}')
        a(f'v_lshl_add_u32 v{vT[0]}, v{vR}, 2, s{sT1}')
        a(f'v_lshl_add_u32 v{vT[1]}, v{vG}, 4, s{sT1}')
        a(f's_mul_i32 s{sT1}, s{sRh}, {NC * 4}')
        a(f's_mul_i32 s{sT2}, s{sCh}, {TC * 64}')
        a(f's_add_u32 s{sT1}, s{sT1}, s{sT2}')
        a(f'v_lshl_add_u32 v{vT[2]}, v{vR}, 2, s{sT1}')
        a(f'v_lshl_add_u32 v{vT[3]}, v{vG}, 4, s{sT1}')
        a('s_mov_b32 exec_lo, 0x00F0000F'); a('s_mov_b32 exec_hi, 0xF0000F00')
        for t in range(TR):
            a(f'ds_write_b32 v{vT[0]}, v{s2 + 4 * t} offset:{ST2 + 64 * t}')
        a('s_mov_b32 exec_lo, 0x00010001'); a('s_mov_b32 exec_hi, 0x00010001')
        if kv:
            for t in range(TR):
                a(f'ds_write_b128 v{vT[1]}, v[{s1 + 4 * t}:{s1 + 4 * t + 3}] offset:{ST1 + 64 * t}')
        else:
            for t in range(TC):
                a(f'ds_write_b128 v{vT[3]}, v[{cs + 4 * t}:{cs + 4 * t + 3}] offset:{CSP + 64 * t}')
        a('s_mov_b64 exec, 0xffff')
        if kv:
            for t in range(TC):
                a(f'ds_write_b32 v{vT[2]}, v{cs + 4 * t} offset:{CSP + 64 * t}')
        else:
            for t in range(TR):
                a(f'ds_write_b32 v{vT[0]}, v{s1 + 4 * t} offset:{ST1 + 64 * t}')
        a('s_mov_b64 exec, -1')
        a('s_waitcnt lgkmcnt(0)')
        a('s_barrier')
        e = fr[0]
        a(f'v_lshlrev_b32 v{vT[0]}, 2, v0')
        a(f'ds_read_b32 v{e}, v{vT[0]} offset:{ST1}')
        a(f'ds_read_b32 v{e + 1}, v{vT[0]} offset:{ST1 + NR * 4}')
        a(f'ds_read_b32 v{e + 2}, v{vT[0]} offset:{ST2}')
        a(f'ds_read_b32 v{e + 3}, v{vT[0]} offset:{ST2 + NR * 4}')
        a(f'ds_read_b32 v{e + 4}, v{vT[0]} offset:{CSP}')
        a(f'ds_read_b32 v{e + 5}, v{vT[0]} offset:{CSP + NC * 4}')
        a('s_waitcnt lgkmcnt(0)')
        a(f'v_add_f32 v{e}, v{e}, v{e + 1}')
        a(f'v_add_f32 v{e + 2}, v{e + 2}, v{e + 3}')
        a(f'v_add_f32 v{e + 4}, v{e + 4}, v{e + 5}')
        a(f'v_mul_f32 v{e}, 0x3acccccd, v{e}')
        a(f'v_mul_f32 v{e + 2}, 0x3acccccd, v{e + 2}')
        a(f'v_fma_f32 v{e + 2}, -v{e}, v{e}, v{e + 2}')
        ln_stats(a, e, e + 2, e + 1)
        a(f'v_cmp_gt_u32 vcc, {NR}, v0')
        a(f's_and_saveexec_b64 s[{sM0}:{sM0 + 1}], vcc')
        a(f'ds_write_b32 v{vT[0]}, v{e + 1} offset:{AA}')
        a(f'ds_write_b32 v{vT[0]}, v{e} offset:{BB}')
        a('s_mov_b64 exec, -1')
        a(f'v_cmp_gt_u32 vcc, {NC}, v0')
        a(f's_and_saveexec_b64 s[{sM0}:{sM0 + 1}], vcc')
        a(f'ds_write_b32 v{vT[0]}, v{e + 4} offset:{CS}')
        a('s_mov_b64 exec, -1')
        a('s_waitcnt lgkmcnt(0)')
        a('s_barrier')
        vC = va.get(6, 2)
        for i, c in enumerate((LOG2E, LOG2E, 0x3f800000, 0x3f800000, 0x358637bd, 0x358637bd)):
            a(f'v_mov_b32 v{vC + i}, 0x{c:x}')

        def phi_pair(t, u, p):
            a(f'v_pk_mul_f32 v[{u}:{u + 1}], v[{t}:{t + 1}], v[{vC}:{vC + 1}]')
            a(f'v_pk_add_f32 v[{p}:{p + 1}], v[{t}:{t + 1}], v[{vC + 2}:{vC + 3}]')
            a(f'v_exp_f32 v{u}, v{u}')
            a(f'v_exp_f32 v{u + 1}, v{u + 1}')
            a(f'v_med3_f32 v{u}, v{u}, v{p}, 1.0')
            a(f'v_med3_f32 v{u + 1}, v{u + 1}, v{p + 1}, 1.0')

        if kv:
            ra = fr[0]; rb_ = fr[0] + 12; rc = fr[1]
            a(f's_mul_i32 s{sT1}, s{sRh}, {TR * 64}')
            a(f'v_lshl_add_u32 v{vT[0]}, v{vG}, 4, s{sT1}')
            a(f's_mul_i32 s{sT1}, s{sCh}, {TC * 64}')
            a(f'v_lshl_add_u32 v{vT[1]}, v{vR}, 2, s{sT1}')
            for t in range(TR):
                a(f'ds_read_b128 v[{ra + 4 * t}:{ra + 4 * t + 3}], v{vT[0]} offset:{AA + 64 * t}')
                a(f'ds_read_b128 v[{rb_ + 4 * t}:{rb_ + 4 * t + 3}], v{vT[0]} offset:{BB + 64 * t}')
            for t in range(TC):
                a(f'ds_read_b32 v{rc + 2 * t}, v{vT[1]} offset:{CS + 64 * t}')
            tmp = fr[1] + 12
            pk = s1
            a(f's_mov_b32 s{sK}, 0x00ff00ff'); a(f's_mov_b32 s{sK + 1}, 0x00ff00ff')
            a('s_waitcnt lgkmcnt(0)')
            for tc in range(TC):
                for tr in range(TR):
                    for h in range(2):
                        d = acc + 4 * (tr * TC + tc) + 2 * h
                        w = tmp
                        a(f'v_pk_mul_f32 v[{w}:{w + 1}], v[{rb_ + 4 * tr + 2 * h}:{rb_ + 4 * tr + 2 * h + 1}], v[{rc + 2 * tc}:{rc + 2 * tc + 1}] op_sel_hi:[1,0]')
                        a(f'v_pk_fma_f32 v[{d}:{d + 1}], v[{d}:{d + 1}], v[{ra + 4 * tr + 2 * h}:{ra + 4 * tr + 2 * h + 1}], v[{w}:{w + 1}]')
                        dst = pk + 8 * tc + 2 * tr + h
                        if tc <= 2:
                            u, p = tmp + 2, tmp + 4
                            phi_pair(d, u, p)
                            a(f'v_pk_add_f32 v[{u}:{u + 1}], v[{u}:{u + 1}], v[{vC + 4}:{vC + 5}]')
                            if tc == 2:
                                a(f'v_cndmask_b32 v{u}, v{d}, v{u}, s[{sK}:{sK + 1}]')
                                a(f'v_cndmask_b32 v{u + 1}, v{d + 1}, v{u + 1}, s[{sK}:{sK + 1}]')
                            a(f'v_cvt_pk_bf16_f32 v{dst}, v{u}, v{u + 1}')
                        else:
                            a(f'v_cvt_pk_bf16_f32 v{dst}, v{d}, v{d + 1}')
            pairs = [(0, 2), (0, 3), (1, 2), (1, 3), (1, 4), (2, 3), (2, 4)]
            kd = acc
            Lskip = a.newlabel('Lskip'); Lno16 = a.newlabel('Lno16')
            a(f's_cmp_eq_u32 s{sRb}, 21')
            a(f's_cselect_b32 s{sT1}, 1, 0')
            a(f's_and_b32 s{sT2}, s{sT1}, s{sRh}')
            a(f's_cmp_eq_u32 s{sT2}, 1')
            a(f's_cbranch_scc1 {Lskip}')
            P4 = lambda t: f'v[{pk + 8 * t}:{pk + 8 * t + 3}]'
            P2 = lambda t: f'v[{pk + 8 * t + 4}:{pk + 8 * t + 5}]'
            for n, (tk, tv) in enumerate(pairs):
                d = kd + 4 * n
                a(f'v_mfma_f32_16x16x32_bf16 v[{d}:{d + 3}], {P4(tv)}, {P4(tk)}, 0')
            for tk in range(3):
                d = kd + 4 * (7 + tk)
                a(f'v_mfma_f32_16x16x32_bf16 v[{d}:{d + 3}], v[{vOnes}:{vOnes + 3}], {P4(tk)}, 0')
            a(f's_cmp_eq_u32 s{sT1}, 1')
            a(f's_cbranch_scc1 {Lno16}')
            for n, (tk, tv) in enumerate(pairs):
                d = kd + 4 * n
                a(f'v_mfma_f32_16x16x16_bf16 v[{d}:{d + 3}], {P2(tv)}, {P2(tk)}, v[{d}:{d + 3}]')
            for tk in range(3):
                d = kd + 4 * (7 + tk)
                a(f'v_mfma_f32_16x16x16_bf16 v[{d}:{d + 3}], v[{vOnes}:{vOnes + 1}], {P2(tk)}, v[{d}:{d + 3}]')
            a.label(Lno16)
            cp = fr[0]; rp = fr[0] + 3; ad = fr[0] + 6
            a(f's_mul_i32 s{sT1}, s{sCh}, {2 * KV_HS}')
            a(f's_add_u32 s{sT1}, s{sT1}, {KVA_LDS}')

            def lane_mask(fn):
                m = 0
                for l in range(64):
                    if fn(l >> 4, l & 15):
                        m |= 1 << l
                return m
            for tk in range(3):
                a(f'v_add_u32 v{cp + tk}, {16 * tk}, v{vR}')
                a(f'v_subrev_u32 v{vT[0]}, 20, v{cp + tk}')
                a(f'v_min_u32 v{cp + tk}, v{cp + tk}, v{vT[0]}')
                a(f'v_lshl_add_u32 v{cp + tk}, v{cp + tk}, 2, s{sT1}')
            for tv in range(2, 5):
                x = rp + tv - 2
                a(f'v_lshlrev_b32 v{x}, 2, v{vG}')
                a(f'v_add_u32 v{x}, {16 * tv - 40}, v{x}')
                a(f'v_cmp_le_i32 vcc, 20, v{x}')
                a(f'v_mul_i32_i24 v{x}, 80, v{x}')
                a(f'v_add_u32 v{vT[0]}, 192, v{x}')
                a(f'v_cndmask_b32 v{x}, v{x}, v{vT[0]}, vcc')
            for n, (tk, tv) in enumerate(pairs):
                m = lane_mask(lambda g, j: (16 * tk + j) < 40 and 0 <= (16 * tv + 4 * g - 40) and (16 * tk + j) // 20 == (16 * tv + 4 * g - 40) // 20)
                a(f'v_add_u32 v{ad}, v{cp + tk}, v{rp + tv - 2}')
                a(f's_mov_b32 exec_lo, 0x{m & 0xffffffff:x}'); a(f's_mov_b32 exec_hi, 0x{m >> 32:x}')
                for r in range(4):
                    a(f'ds_add_f32 v{ad}, v{kd + 4 * n + r} offset:{80 * r}')
                a('s_mov_b64 exec, -1')
            for tk in range(3):
                for hh in range(2):
                    m = lane_mask(lambda g, j: g == 0 and (16 * tk + j) < 40 and (16 * tk + j) // 20 == hh)
                    if not m:
                        continue
                    a(f's_mov_b32 exec_lo, 0x{m & 0xffffffff:x}'); a(f's_mov_b32 exec_hi, 0x{m >> 32:x}')
                    a(f'ds_add_f32 v{cp + tk}, v{kd + 4 * (7 + tk)} offset:{1600 + hh * KV_HS}')
            a('s_mov_b64 exec, -1')
            a.label(Lskip)
            a('s_waitcnt lgkmcnt(0)')
            a('s_barrier')
            a(f's_mul_i32 s{sT1}, s{sWv}, {KV_HS}')
            a(f's_add_u32 s{sT2}, s{sT1}, {KVA_LDS}')
            a(f'v_lshlrev_b32 v{vT[0]}, 2, v{vL}')
            a(f'v_add_u32 v{vT[1]}, s{sT2}, v{vT[0]}')
            for i in range(7):
                a(f'ds_read_b32 v{fr[0] + i}, v{vT[1]} offset:{256 * i}')
            a(f's_mul_i32 s{sT2}, s{sHg}, {4 * KV_HS}')
            a(f's_add_u32 s{sT1}, s{sT1}, s{sT2}')
            a(f's_add_u32 s{sT1}, s{sT1}, {KV_OFF}')
            Lpoll = a.newlabel('Lpoll'); Lgo = a.newlabel('Lgo')
            a(f's_mov_b32 s{sIt}, 0')
            a.label(Lpoll)
            a('s_waitcnt vmcnt(0)')
            a(f'v_readfirstlane_b32 s{sT2}, v{vT[7]}')
            a(f's_cmp_eq_u32 s{sT2}, 1')
            a(f's_cbranch_scc1 {Lgo}')
            a(f's_add_u32 s{sIt}, s{sIt}, 1')
            a(f's_cmp_ge_u32 s{sIt}, 100000')
            a(f's_cbranch_scc1 {Lgo}')
            a('s_sleep 2')
            a(f'global_load_dword v{vT[7]}, v{vT[6]}, s[{P_DBG}:{P_DBG + 1}] offset:64 sc1')
            a(f's_branch {Lpoll}')
            a.label(Lgo)
            a('s_waitcnt lgkmcnt(0)')
            for i in range(7):
                a(f'buffer_atomic_add_f32 v{fr[0] + i}, v{vT[0]}, s[{sWS}:{sWS + 3}], s{sT1} offen offset:{256 * i}')
            a('s_endpgm')
        else:
            ra = fr[0]; rb_ = fr[0] + 8; rc = fr[1]
            a(f's_mul_i32 s{sT1}, s{sRh}, {TR * 64}')
            a(f'v_lshl_add_u32 v{vT[0]}, v{vR}, 2, s{sT1}')
            a(f's_mul_i32 s{sT1}, s{sCh}, {TC * 64}')
            a(f'v_lshl_add_u32 v{vT[1]}, v{vG}, 4, s{sT1}')
            for t in range(TR):
                a(f'ds_read_b32 v{ra + 2 * t}, v{vT[0]} offset:{AA + 64 * t}')
                a(f'ds_read_b32 v{rb_ + 2 * t}, v{vT[0]} offset:{BB + 64 * t}')
            for t in range(TC):
                a(f'ds_read_b128 v[{rc + 4 * t}:{rc + 4 * t + 3}], v{vT[1]} offset:{CS + 64 * t}')
            a(f'v_and_b32 v{vT[2]}, 1, v{vG}')
            a(f'v_lshrrev_b32 v{vT[3]}, 1, v{vG}')
            a(f'v_lshl_or_b32 v{vT[2]}, v{vT[2]}, 1, v{vT[3]}')
            a(f'v_lshlrev_b32 v{vT[2]}, 8, v{vT[2]}')
            a(f'v_lshl_add_u32 v{vT[2]}, v{vR}, 4, v{vT[2]}')
            a(f's_lshl_b32 s{sT1}, s{sRb}, 3')
            a(f's_lshl_b32 s{sT2}, s{sRh}, 2')
            a(f's_add_u32 s{sT1}, s{sT1}, s{sT2}')
            a(f's_mul_i32 s{sT1}, s{sT1}, 20480')
            a(f's_lshl_b32 s{sT2}, s{sHg}, 12')
            a(f's_add_u32 s{sT1}, s{sT1}, s{sT2}')
            a(f's_lshl_b32 s{sT2}, s{sCh}, 11')
            a(f's_add_u32 s{sT1}, s{sT1}, s{sT2}')
            if PQ_OFF:
                a(f's_add_u32 s{sT1}, s{sT1}, {PQ_OFF}')
            tmp = fr[1] + 16
            a('s_waitcnt lgkmcnt(0)')
            for tr in range(TR):
                for pr in range(2):
                    o = s1 + 4 * ((2 * tr + pr) % 8)
                    for tt in range(2):
                        tc = 2 * pr + tt
                        for h in range(2):
                            d = acc + 4 * (tr * TC + tc) + 2 * h
                            w = tmp + 6 * h
                            a(f'v_pk_mul_f32 v[{w}:{w + 1}], v[{rc + 4 * tc + 2 * h}:{rc + 4 * tc + 2 * h + 1}], v[{rb_ + 2 * tr}:{rb_ + 2 * tr + 1}] op_sel_hi:[1,0]')
                            a(f'v_pk_fma_f32 v[{d}:{d + 1}], v[{d}:{d + 1}], v[{ra + 2 * tr}:{ra + 2 * tr + 1}], v[{w}:{w + 1}] op_sel_hi:[1,0,1]')
                            u, p = w + 2, w + 4
                            phi_pair(d, u, p)
                            a(f'v_pk_add_f32 v[{u}:{u + 1}], v[{u}:{u + 1}], v[{vC + 4}:{vC + 5}]')
                            a(f'v_cvt_pk_bf16_f32 v{o + 2 * tt + h}, v{u}, v{u + 1}')
                    a(f'v_permlane16_swap_b32 v{o}, v{o + 2}')
                    a(f'v_permlane16_swap_b32 v{o + 1}, v{o + 3}')
                    a(f'buffer_store_dwordx4 v[{o}:{o + 3}], v{vT[2]}, s[{sWS}:{sWS + 3}], s{sT1} offen offset:{1024 * pr}')
                if tr < TR - 1:
                    a(f's_add_u32 s{sT1}, s{sT1}, 20480')
            a.label(Lend)
            a('s_endpgm')
```

```python
from asmlib import *
from layout import *
from k1 import *

M16 = 'v_mfma_f32_16x16x32_bf16'
BIG = 0x7ff00000


def head(a, name, nwg, sWv, vL, vG, vR, vt):
    a.raw(f'.globl {name}\n.p2align 8\n.type {name},@function')
    a.label(name)
    a(f's_cmp_ge_u32 s2, {nwg}')
    a(f's_cbranch_scc1 {name}_end')
    load_args(a)
    a(f'v_and_b32 v{vL}, 63, v0')
    a(f'v_lshrrev_b32 v{vt}, 6, v0')
    a(f'v_readfirstlane_b32 s{sWv}, v{vt}')
    a(f'v_lshrrev_b32 v{vG}, 4, v{vL}')
    a(f'v_and_b32 v{vR}, 15, v{vL}')


def xsum_g(a, v, t):
    a(f'v_mov_b32 v{t}, v{v}')
    a(f'v_permlane32_swap_b32 v{v}, v{t}')
    a(f'v_add_f32 v{v}, v{v}, v{t}')
    a(f'v_mov_b32 v{t}, v{v}')
    a(f'v_permlane16_swap_b32 v{v}, v{t}')
    a(f'v_add_f32 v{v}, v{v}, v{t}')


def cg_blocks(a, sCg, sPb, sSb, sT):
    a(f's_mul_i32 s{sT}, s{sCg}, 5')
    a(f's_add_u32 s{sPb}, s{sT}, 1')
    a(f's_lshr_b32 s{sPb}, s{sPb}, 1')
    a(f's_add_u32 s{sSb}, s{sT}, 4')
    a(f's_bitcmp1_b32 s{sCg}, 0')
    a(f's_cselect_b32 s{sSb}, s{sT}, s{sSb}')


def add_residual(a, acc, res, out, tmp):
    for i in range(10):
        t = tmp + 4 * (i & 1)
        a(f'v_cvt_pk_bf16_f32 v{out + i}, v{acc + 2 * i}, v{acc + 2 * i + 1}')
        a(f'v_lshlrev_b32 v{t}, 16, v{out + i}')
        a(f'v_and_b32 v{t + 1}, 0xffff0000, v{out + i}')
        a(f'v_lshlrev_b32 v{t + 2}, 16, v{res + i}')
        a(f'v_and_b32 v{t + 3}, 0xffff0000, v{res + i}')
        a(f'v_pk_add_f32 v[{t}:{t + 1}], v[{t}:{t + 1}], v[{t + 2}:{t + 3}]')
        a(f'v_cvt_pk_bf16_f32 v{out + i}, v{t}, v{t + 1}')


K2_KV = 0
K2_RED = 4 * 14336
K2_LDS = K2_RED + 61440


def gen_k2(a, name):
    sX, sWS, sPQ = 36, 40, 44
    sa = RegAlloc('s', 48, 100)
    sWv = sa.get(); sRb = sa.get(); sCg = sa.get(); sPb = sa.get(); sSb = sa.get()
    sT0 = sa.get(); sT1 = sa.get(); sT2 = sa.get(); sT3 = sa.get()
    sRt = sa.get(4)
    va = RegAlloc('v', 1, 256)
    vL = va.get(); vG = va.get(); vR = va.get()
    vT = [va.get() for _ in range(8)]
    head(a, name, 256, sWv, vL, vG, vR, vT[0])
    vL16 = va.get(); vPQo = va.get()
    a(f's_and_b32 s{sT0}, s2, 7')
    a(f's_lshr_b32 s{sT1}, s2, 3')
    a(f's_and_b32 s{sCg}, s{sT1}, 7')
    a(f's_lshr_b32 s{sT1}, s{sT1}, 3')
    a(f's_lshl_b32 s{sRb}, s{sT0}, 2')
    a(f's_add_u32 s{sRb}, s{sRb}, s{sT1}')
    a(f'v_lshlrev_b32 v{vL16}, 4, v{vL}')
    a(f'v_mov_b32 v{vT[0]}, 0x{BIG:x}')
    a(f'v_cmp_gt_u32 vcc, 48, v{vL}')
    a(f'v_cndmask_b32 v{vPQo}, v{vT[0]}, v{vL16}, vcc')
    for i in range(4):
        a(f's_add_u32 s{sT0}, s{sWv}, {1 + i}')
        a(f's_and_b32 s{sT0}, s{sT0}, 3')
        a(f's_lshl_b32 s{sT1}, s{sRb}, 2')
        a(f's_add_u32 s{sT0}, s{sT0}, s{sT1}')
        a(f's_mul_i32 s{sT0}, s{sT0}, 20480')
        a(f's_mul_i32 s{sT1}, s{sWv}, 5120')
        a(f's_add_u32 s{sRt + i}, s{sT0}, s{sT1}')
    a('s_waitcnt lgkmcnt(0)')
    srd(a, sWS, P_WS, 0, WS_USED)
    srd(a, sPQ, P_WS, PQ_OFF, PQ_SZ)
    srd(a, sX, P_X, 0, S * D * 2)
    a.vm_reset()
    a(f's_mul_i32 s{sT0}, s{sWv}, 14336')
    a(f's_add_u32 s{sT1}, s{sT0}, {KV_OFF}')
    for i in range(14):
        if i % 4 == 0:
            a(f's_add_u32 m0, s{sT0}, {K2_KV + 1024 * i}')
            if i:
                a(f's_add_u32 s{sT1}, s{sT1}, 4096')
        a(f'buffer_load_dwordx4 v{vL16}, s[{sWS}:{sWS + 3}], s{sT1} offen offset:{1024 * (i & 3)} lds', tag='kv')
    aPQ = 0
    aWO = 128

    def load_pq(i):
        for hh in range(8):
            c = (20 * hh) // 8
            off = c * 256
            r = aPQ + 4 * (8 * i + hh)
            if off < 4096:
                a(f'buffer_load_dwordx4 a[{r}:{r + 3}], v{vPQo}, s[{sPQ}:{sPQ + 3}], s{sRt + i} offen offset:{off}', tag=f'pq{i}')
            else:
                a(f's_add_u32 s{sT0}, s{sRt + i}, 4096')
                a(f'buffer_load_dwordx4 a[{r}:{r + 3}], v{vPQo}, s[{sPQ}:{sPQ + 3}], s{sT0} offen offset:{off - 4096}', tag=f'pq{i}')
    load_pq(0)
    load_pq(1)
    a(f's_mul_i32 s{sT1}, s{sCg}, 102400')
    a(f's_mul_i32 s{sT2}, s{sWv}, 25600')
    a(f's_add_u32 s{sT1}, s{sT1}, s{sT2}')
    a(f's_add_u32 s{sT1}, s{sT1}, {WOP_OFF}')
    for f in range(25):
        if f and f % 4 == 0:
            a(f's_add_u32 s{sT1}, s{sT1}, 4096')
        r = aWO + 4 * f
        a(f'buffer_load_dwordx4 a[{r}:{r + 3}], v{vL16}, s[{sWS}:{sWS + 3}], s{sT1} offen offset:{1024 * (f & 3)}', tag='wo')
    load_pq(2)
    vKA = va.get(8)
    a(f'v_lshrrev_b32 v{vT[0]}, 2, v{vR}')
    a(f'v_and_b32 v{vT[1]}, 3, v{vR}')
    a(f'v_mad_u32_u24 v{vT[2]}, v{vT[0]}, 5, v{vT[1]}')
    a(f'v_mul_u32_u24 v{vT[2]}, 80, v{vT[2]}')
    a(f'v_mad_u32_u24 v{vT[3]}, v{vT[0]}, 5, 4')
    a(f'v_mov_b32 v{vT[4]}, 20')
    a(f'v_cmp_eq_u32 vcc, 1, v{vT[1]}')
    a(f'v_cndmask_b32 v{vT[3]}, v{vT[3]}, v{vT[4]}, vcc')
    a(f'v_mul_u32_u24 v{vT[3]}, 80, v{vT[3]}')
    a(f's_mul_i32 s{sT0}, s{sWv}, 14336')
    a(f's_add_u32 s{sT0}, s{sT0}, {K2_KV}')
    a(f's_add_u32 s{sT1}, s{sT0}, 1680')
    a(f'v_mov_b32 v{vT[5]}, s{sT1}')
    for tau in range(2):
        for par in range(2):
            for hf in range(2):
                x = vKA + tau * 4 + par * 2 + hf
                m = 0
                for l in range(64):
                    g, i = l >> 4, l & 15
                    uu = 2 * g - par + hf
                    ok = 0 <= uu <= 4 and (tau == 0 or (i & 3) < 2)
                    if ok:
                        m |= 1 << l
                a(f'v_lshl_add_u32 v{x}, v{vG}, 5, v{vT[2 + tau]}')
                a(f's_add_u32 s{sT1}, s{sT0}, {(hf - par) * 16 & 0xffffffff}')
                a(f'v_add_u32 v{x}, s{sT1}, v{x}')
                a(f's_mov_b32 vcc_lo, 0x{m & 0xffffffff:x}')
                a(f's_mov_b32 vcc_hi, 0x{m >> 32:x}')
                a(f'v_cndmask_b32 v{x}, v{vT[5]}, v{x}, vcc')
    load_pq(3)
    cg_blocks(a, sCg, sPb, sSb, sT0)
    vRes = va.get(12, 4)
    vXo = va.get()
    a(f's_lshl_b32 s{sT0}, s{sRb}, 2')
    a(f's_add_u32 s{sT0}, s{sT0}, s{sWv}')
    a(f's_mul_i32 s{sT1}, s{sT0}, {16 * 1280}')
    a(f'v_mul_u32_u24 v{vXo}, 1280, v{vR}')
    a(f'v_lshl_add_u32 v{vXo}, v{vG}, 4, v{vXo}')
    a(f's_lshl_b32 s{sT2}, s{sPb}, 6')
    a(f's_add_u32 s{sT2}, s{sT2}, s{sT1}')
    a(f'buffer_load_dwordx4 v[{vRes}:{vRes + 3}], v{vXo}, s[{sX}:{sX + 3}], s{sT2} offen', tag='x')
    a(f'buffer_load_dwordx4 v[{vRes + 4}:{vRes + 7}], v{vXo}, s[{sX}:{sX + 3}], s{sT2} offen offset:64', tag='x')
    a(f's_lshr_b32 s{sT2}, s{sSb}, 1')
    a(f's_lshl_b32 s{sT2}, s{sT2}, 6')
    a(f's_and_b32 s{sT3}, s{sSb}, 1')
    a(f's_lshl_b32 s{sT3}, s{sT3}, 3')
    a(f's_add_u32 s{sT2}, s{sT2}, s{sT3}')
    a(f's_add_u32 s{sT2}, s{sT2}, s{sT1}')
    a(f'buffer_load_dwordx2 v[{vRes + 8}:{vRes + 9}], v{vXo}, s[{sX}:{sX + 3}], s{sT2} offen', tag='x')

    acc = va.get(80, 4)
    kvT = va.get(64, 4)
    tmpk = va.get(32, 4)
    ofr = [va.get(20, 4) for _ in range(2)]
    vo = vT[6]
    a.vm_wait('kv')
    for hp in range(4):
        for hq in range(2):
            hh = 2 * hp + hq
            for tau in range(2):
                for hf in range(2):
                    t = tmpk + 16 * hq + 8 * tau + 4 * hf
                    a(f'ds_read_b128 v[{t}:{t + 3}], v{vKA + tau * 4 + (hh & 1) * 2 + hf} offset:{hh * KV_HS}')
        a('s_waitcnt lgkmcnt(0)')
        for hq in range(2):
            hh = 2 * hp + hq
            for tau in range(2):
                for q in range(4):
                    t = tmpk + 16 * hq + 8 * tau + 2 * q
                    a(f'v_cvt_pk_bf16_f32 v{kvT + 8 * hh + 4 * tau + q}, v{t}, v{t + 1}')
    vRW = vKA
    for i in range(3):
        a(f's_add_u32 s{sT0}, s{sWv}, {1 + i}')
        a(f's_and_b32 s{sT0}, s{sT0}, 3')
        a(f's_mul_i32 s{sT0}, s{sT0}, 15360')
        a(f's_add_u32 s{sT0}, s{sT0}, {K2_RED + 5120 * i}')
        a(f'v_add_u32 v{vRW + i}, s{sT0}, v{vL16}')

    def A_mfma(n):
        i, hh = n >> 3, n & 7
        d = tmpk + 8 * (n & 3)
        r = aPQ + 4 * n
        return [f'{M16} v[{d + 4 * tau}:{d + 4 * tau + 3}], v[{kvT + 8 * hh + 4 * tau}:{kvT + 8 * hh + 4 * tau + 3}], a[{r}:{r + 3}], 0' for tau in range(2)]

    def B_valu(n):
        i, hh = n >> 3, n & 7
        d = tmpk + 8 * (n & 3)
        o = ofr[i & 1]
        lst = [f'v_add_f32 v{d + 6}, 0x358637bd, v{d + 5}',
               f'v_rcp_f32 v{d + 6}, v{d + 6}']
        lst.append(f'v_pk_mul_f32 v[{d}:{d + 1}], v[{d}:{d + 1}], v[{d + 6}:{d + 7}] op_sel_hi:[1,0]')
        lst.append(f'v_pk_mul_f32 v[{d + 2}:{d + 3}], v[{d + 2}:{d + 3}], v[{d + 6}:{d + 7}] op_sel_hi:[1,0]')
        t0 = 5 * hh
        if hh % 2 == 0:
            lst.append(f'v_mul_f32 v{vo}, v{d + 4}, v{d + 6}')
            lst.append(f'v_cvt_pk_bf16_f32 v{o + t0 // 2}, v{d}, v{d + 1}')
            lst.append(f'v_cvt_pk_bf16_f32 v{o + t0 // 2 + 1}, v{d + 2}, v{d + 3}')
        else:
            lst.append(f'v_mul_f32 v{d + 4}, v{d + 4}, v{d + 6}')
            lst.append(f'v_cvt_pk_bf16_f32 v{o + (t0 - 1) // 2}, v{vo}, v{d}')
            lst.append(f'v_cvt_pk_bf16_f32 v{o + (t0 + 1) // 2}, v{d + 1}, v{d + 2}')
            lst.append(f'v_cvt_pk_bf16_f32 v{o + (t0 + 3) // 2}, v{d + 3}, v{d + 4}')
        return lst

    def C_mfma(i):
        o = ofr[i & 1]
        lst = []
        for m in range(5):
            for sg in range(5):
                d = acc + 20 * i + 4 * sg
                r = aWO + 4 * (5 * m + sg)
                c = '0' if m == 0 else f'v[{d}:{d + 3}]'
                lst.append(f'{M16} v[{d}:{d + 3}], a[{r}:{r + 3}], v[{o + 4 * m}:{o + 4 * m + 3}], {c}')
        return lst

    def send(i):
        return [f'ds_write_b128 v{vRW + i}, v[{acc + 20 * i + 4 * sg}:{acc + 20 * i + 4 * sg + 3}] offset:{1024 * sg}' for sg in range(5)]

    a.vm_wait('pq0')
    for n in range(2):
        for x in A_mfma(n):
            a(x)
    cq = []
    sq = []
    for n in range(32):
        i, hh = n >> 3, n & 7
        if hh == 0 and i >= 1:
            if i == 1:
                a.vm_wait('wo')
            assert not cq
            cq = C_mfma(i - 1)
            if i >= 2:
                sq = send(i - 2)
        if n + 2 < 32:
            if (n + 2) & 7 == 0:
                tg = f'pq{(n + 2) >> 3}'
                if tg in a.vm:
                    a.vm_wait(tg)
            for x in A_mfma(n + 2):
                a(x)
        bl = B_valu(n)
        k = 4 if hh == 7 else 3
        j = 0
        for x in bl:
            a(x)
            j += 1
            if cq and j % 2 == 0 and k > 0:
                a(cq.pop(0)); k -= 1
        while cq and k > 0:
            a(cq.pop(0)); k -= 1
        if sq and hh >= 1:
            a(sq.pop(0))
    assert not cq and not sq
    cq = C_mfma(3)
    sq = send(2)
    for k, x in enumerate(cq):
        a(x)
        if k >= 3 and k % 3 == 0 and sq:
            a(sq.pop(0))
    assert not sq
    a('s_waitcnt lgkmcnt(0)')
    a('s_barrier')
    a(f's_mul_i32 s{sT0}, s{sWv}, 15360')
    a(f's_add_u32 s{sT0}, s{sT0}, {K2_RED}')
    a(f'v_add_u32 v{vT[0]}, s{sT0}, v{vL16}')
    for k in range(15):
        a(f'ds_read_b128 v[{acc + 4 * k}:{acc + 4 * k + 3}], v{vT[0]} offset:{1024 * k}')
    own = acc + 60
    for p in range(3):
        a(f's_waitcnt lgkmcnt({10 - 5 * p})')
        for k in range(10):
            a(f'v_pk_add_f32 v[{own + 2 * k}:{own + 2 * k + 1}], v[{own + 2 * k}:{own + 2 * k + 1}], v[{acc + 20 * p + 2 * k}:{acc + 20 * p + 2 * k + 1}]')
    a.vm_wait('x')
    hout = kvT
    add_residual(a, own, vRes, hout, tmpk)
    a(f's_lshl_b32 s{sT0}, s{sRb}, 2')
    a(f's_add_u32 s{sT0}, s{sT0}, s{sWv}')
    a(f's_lshr_b32 s{sT1}, s{sT0}, 1')
    a(f's_mul_i32 s{sT1}, s{sT1}, 40960')
    a(f's_and_b32 s{sT2}, s{sT0}, 1')
    a(f's_lshl_b32 s{sT2}, s{sT2}, 10')
    a(f's_add_u32 s{sT1}, s{sT1}, s{sT2}')
    a(f's_add_u32 s{sT1}, s{sT1}, {HP_OFF}')
    a(f's_lshl_b32 s{sT2}, s{sPb}, 11')
    a(f's_add_u32 s{sT2}, s{sT2}, s{sT1}')
    a(f'buffer_store_dwordx4 v[{hout}:{hout + 3}], v{vL16}, s[{sWS}:{sWS + 3}], s{sT2} offen')
    a(f'buffer_store_dwordx4 v[{hout + 4}:{hout + 7}], v{vL16}, s[{sWS}:{sWS + 3}], s{sT2} offen offset:2048')
    a(f's_lshr_b32 s{sT2}, s{sSb}, 1')
    a(f's_lshl_b32 s{sT2}, s{sT2}, 11')
    a(f's_and_b32 s{sT3}, s{sSb}, 1')
    a(f's_lshl_b32 s{sT3}, s{sT3}, 3')
    a(f's_add_u32 s{sT2}, s{sT2}, s{sT3}')
    a(f's_add_u32 s{sT2}, s{sT2}, s{sT1}')
    a(f'buffer_store_dwordx2 v[{hout + 8}:{hout + 9}], v{vL16}, s[{sWS}:{sWS + 3}], s{sT2} offen')
    hf_ = acc
    for i in range(10):
        a(f'v_lshlrev_b32 v{hf_ + 2 * i}, 16, v{hout + i}')
        a(f'v_and_b32 v{hf_ + 2 * i + 1}, 0xffff0000, v{hout + i}')
    sm = tmpk
    a(f'v_pk_add_f32 v[{sm}:{sm + 1}], v[{hf_}:{hf_ + 1}], v[{hf_ + 2}:{hf_ + 3}]')
    for i in range(2, 10):
        a(f'v_pk_add_f32 v[{sm}:{sm + 1}], v[{sm}:{sm + 1}], v[{hf_ + 2 * i}:{hf_ + 2 * i + 1}]')
    a(f'v_add_f32 v{sm}, v{sm}, v{sm + 1}')
    xsum_g(a, sm, sm + 2)
    a(f'v_mul_f32 v{sm}, 0x3c4ccccd, v{sm}')
    a(f'v_sub_f32 v{sm + 2}, 0, v{sm}')
    for i in range(10):
        a(f'v_pk_add_f32 v[{hf_ + 2 * i}:{hf_ + 2 * i + 1}], v[{hf_ + 2 * i}:{hf_ + 2 * i + 1}], v[{sm + 2}:{sm + 3}] op_sel_hi:[1,0]')
    a(f'v_pk_mul_f32 v[{sm + 4}:{sm + 5}], v[{hf_}:{hf_ + 1}], v[{hf_}:{hf_ + 1}]')
    for i in range(1, 10):
        a(f'v_pk_fma_f32 v[{sm + 4}:{sm + 5}], v[{hf_ + 2 * i}:{hf_ + 2 * i + 1}], v[{hf_ + 2 * i}:{hf_ + 2 * i + 1}], v[{sm + 4}:{sm + 5}]')
    a(f'v_add_f32 v{sm + 1}, v{sm + 4}, v{sm + 5}')
    xsum_g(a, sm + 1, sm + 2)
    a(f's_lshl_b32 s{sT1}, s{sT0}, 10')
    a(f's_lshr_b32 s{sT2}, s{sCg}, 1')
    a(f's_lshl_b32 s{sT2}, s{sT2}, 8')
    a(f's_add_u32 s{sT1}, s{sT1}, s{sT2}')
    a(f's_and_b32 s{sT2}, s{sCg}, 1')
    a(f's_lshl_b32 s{sT2}, s{sT2}, 3')
    a(f's_add_u32 s{sT1}, s{sT1}, s{sT2}')
    a(f's_add_u32 s{sT1}, s{sT1}, {ST_OFF}')
    a('s_mov_b64 exec, 0xffff')
    a(f'buffer_store_dwordx2 v[{sm}:{sm + 1}], v{vL16}, s[{sWS}:{sWS + 3}], s{sT1} offen')
    a.label(name + '_end')
    a('s_endpgm')


K3_LDS = 143360


def gen_k3(a, name):
    sWS = 36
    sa = RegAlloc('s', 40, 100)
    sWv = sa.get(); sRb = sa.get(); sJ = sa.get(); sT0 = sa.get(); sT1 = sa.get(); sT2 = sa.get(); sT3 = sa.get()
    sA = sa.get(); sB = sa.get(); sM = sa.get(); sTt = sa.get()
    va = RegAlloc('v', 1, 256)
    vL = va.get(); vG = va.get(); vR = va.get()
    vT = [va.get() for _ in range(8)]
    head(a, name, 256, sWv, vL, vG, vR, vT[0])
    vL16 = va.get()
    a(f's_and_b32 s{sT0}, s2, 7')
    a(f's_lshr_b32 s{sT1}, s2, 3')
    a(f's_lshr_b32 s{sT2}, s{sT0}, 1')
    a(f's_lshl_b32 s{sT2}, s{sT2}, 2')
    a(f's_lshr_b32 s{sT3}, s{sT1}, 3')
    a(f's_add_u32 s{sRb}, s{sT2}, s{sT3}')
    a(f's_and_b32 s{sT2}, s{sT0}, 1')
    a(f's_lshl_b32 s{sT2}, s{sT2}, 3')
    a(f's_and_b32 s{sT3}, s{sT1}, 7')
    a(f's_add_u32 s{sJ}, s{sT2}, s{sT3}')
    a(f'v_lshlrev_b32 v{vL16}, 4, v{vL}')
    a(f's_lshl_b32 s{sT0}, s{sRb}, 2')
    a(f's_add_u32 s{sT0}, s{sT0}, s{sWv}')
    a(f's_mul_i32 s{sA}, s{sT0}, 40960')
    a(f's_add_u32 s{sA}, s{sA}, {HP_OFF}')
    a(f's_mul_i32 s{sM}, s{sWv}, 7168')
    a(f's_mul_i32 s{sB}, s{sJ}, 143360')
    a(f's_add_u32 s{sB}, s{sB}, s{sM}')
    a(f's_add_u32 s{sB}, s{sB}, {W1P_OFF}')
    a('s_waitcnt lgkmcnt(0)')
    srd(a, sWS, P_WS, 0, WS_USED)
    a.vm_reset()

    def issue_chunk(c):
        for i in range(7):
            if i % 4 == 0:
                a(f's_add_u32 m0, s{sM}, {28672 * c + 1024 * i}')
                a(f's_add_u32 s{sTt}, s{sB}, {28672 * c + 1024 * i}')
            a(f'buffer_load_dwordx4 v{vL16}, s[{sWS}:{sWS + 3}], s{sTt} offen offset:{1024 * (i & 3)} lds', tag=f'c{c}')
        for i in range(8):
            if i % 4 == 0:
                a(f's_add_u32 s{sTt}, s{sA}, {8192 * c + 1024 * i}')
            r = 32 * c + 4 * i
            a(f'buffer_load_dwordx4 a[{r}:{r + 3}], v{vL16}, s[{sWS}:{sWS + 3}], s{sTt} offen offset:{1024 * (i & 3)}', tag=f'c{c}')
    for c in range(4):
        issue_chunk(c)
    acc = va.get(56, 4)
    fb = [va.get(28, 4) for _ in range(2)]
    vSt = va.get(8, 4)
    vCs = va.get(28, 4)
    vBa = va.get(3)
    a(f'v_mov_b32 v{vBa}, v{vL16}')
    a(f'v_add_u32 v{vBa + 1}, {57344}, v{vL16}')
    a(f'v_add_u32 v{vBa + 2}, {114688}, v{vL16}')

    def breads(ks):
        f = fb[ks & 1]
        off = ks * 7168
        b, off = vBa + off // 57344, off % 57344
        return [f'ds_read_b128 v[{f + 4 * sg}:{f + 4 * sg + 3}], v{b} offset:{off + 1024 * sg}' for sg in range(7)]

    def mf(ks):
        f = fb[ks & 1]
        lst = []
        for sg in range(7):
            for t in range(2):
                d = acc + 28 * t + 4 * sg
                r = 8 * ks + 4 * t
                c = '0' if ks == 0 else f'v[{d}:{d + 3}]'
                lst.append(f'{M16} v[{d}:{d + 3}], v[{f + 4 * sg}:{f + 4 * sg + 3}], a[{r}:{r + 3}], {c}')
        return lst

    a.vm_wait('c0')
    a('s_barrier')
    for x in breads(0):
        a(x)
    issue_chunk(4)
    a(f's_lshl_b32 s{sT0}, s{sRb}, 2')
    a(f's_add_u32 s{sT0}, s{sT0}, s{sWv}')
    a(f's_lshl_b32 s{sT0}, s{sT0}, 11')
    a(f's_add_u32 s{sT0}, s{sT0}, {ST_OFF}')
    for t in range(2):
        a(f'buffer_load_dwordx4 v[{vSt + 4 * t}:{vSt + 4 * t + 3}], v{vL16}, s[{sWS}:{sWS + 3}], s{sT0} offen offset:{1024 * t}', tag='misc')
    a(f'v_and_b32 v{vT[0]}, 3, v{vL}')
    a(f'v_mul_u32_u24 v{vT[0]}, 7168, v{vT[0]}')
    a(f'v_lshl_add_u32 v{vT[0]}, v{vG}, 4, v{vT[0]}')
    a(f's_mul_i32 s{sT0}, s{sJ}, 448')
    a(f's_add_u32 s{sT0}, s{sT0}, {CS1_OFF}')
    for sg in range(7):
        a(f'buffer_load_dwordx4 v[{vCs + 4 * sg}:{vCs + 4 * sg + 3}], v{vT[0]}, s[{sWS}:{sWS + 3}], s{sT0} offen offset:{64 * sg}', tag='misc')
    for ks in range(20):
        nxt = []
        if ks + 1 < 20:
            if (ks + 1) % 4 == 0:
                a.vm_wait(f'c{(ks + 1) // 4}')
                a('s_barrier')
            nxt = breads(ks + 1)
        a('s_waitcnt lgkmcnt(0)')
        ms = mf(ks)
        for k, m in enumerate(ms):
            a(m)
            if nxt and k % 2 == 0:
                a(nxt.pop(0))
    a.vm_wait('misc')
    for r in range(28):
        a(f'v_add_f32_dpp v{vCs + r}, v{vCs + r}, v{vCs + r} quad_perm:[1,0,3,2] row_mask:0xf bank_mask:0xf')
    for r in range(28):
        a(f'v_add_f32_dpp v{vCs + r}, v{vCs + r}, v{vCs + r} quad_perm:[2,3,0,1] row_mask:0xf bank_mask:0xf')
    ab = fb[0]
    for t in range(2):
        s = vSt + 4 * t
        m, v, x = ab + 4 * t + 2, ab + 8, ab + 9
        a(f'v_add_f32 v{m}, v{s}, v{s + 2}')
        xsum_g(a, m, x)
        a(f'v_mul_f32 v{m}, 0.125, v{m}') if False else a(f'v_mul_f32 v{m}, 0x3e000000, v{m}')
        a(f'v_sub_f32 v{s}, v{s}, v{m}')
        a(f'v_sub_f32 v{s + 2}, v{s + 2}, v{m}')
        a(f'v_mul_f32 v{v}, v{s}, v{s}')
        a(f'v_fmac_f32 v{v}, v{s + 2}, v{s + 2}')
        a(f'v_add_f32 v{s + 1}, v{s + 1}, v{s + 3}')
        a(f'v_fmac_f32 v{s + 1}, 0x42a00000, v{v}')
        xsum_g(a, s + 1, x)
        a(f'v_mul_f32 v{v}, 0x3acccccd, v{s + 1}')
        ln_stats(a, m, v, ab + 4 * t)
    a(f's_and_b32 s{sT0}, s{sJ}, 7')
    a(f's_mul_i32 s{sT1}, s{sT0}, 7')
    a(f's_min_u32 s{sT1}, s{sT1}, 48')
    a(f's_lshr_b32 s{sT2}, s{sJ}, 3')
    a(f's_mul_i32 s{sT2}, s{sT2}, 54')
    a(f's_add_u32 s{sT1}, s{sT1}, s{sT2}')
    a(f's_lshl_b32 s{sT2}, s{sRb}, 1')
    a(f's_lshr_b32 s{sT3}, s{sWv}, 1')
    a(f's_add_u32 s{sT2}, s{sT2}, s{sT3}')
    a(f's_mul_i32 s{sA}, s{sT2}, {54 * 4096}')
    a(f's_and_b32 s{sT3}, s{sWv}, 1')
    a(f's_lshl_b32 s{sT3}, s{sT3}, 11')
    a(f's_add_u32 s{sA}, s{sA}, s{sT3}')
    a(f's_add_u32 s{sA}, s{sA}, {H1P_OFF}')
    a(f's_add_u32 s{sT2}, s{sT1}, 1')
    a(f's_lshr_b32 s{sT2}, s{sT2}, 1')
    a(f's_lshl_b32 s{sT2}, s{sT2}, 12')
    a(f's_add_u32 s{sB}, s{sA}, s{sT2}')
    a(f's_add_u32 s{sT2}, s{sT1}, 6')
    a(f's_bitcmp1_b32 s{sT1}, 0')
    a(f's_cselect_b32 s{sT2}, s{sT1}, s{sT2}')
    a(f's_lshr_b32 s{sT3}, s{sT2}, 1')
    a(f's_lshl_b32 s{sT3}, s{sT3}, 12')
    a(f's_and_b32 s{sT2}, s{sT2}, 1')
    a(f's_lshl_b32 s{sT2}, s{sT2}, 3')
    a(f's_add_u32 s{sT3}, s{sT3}, s{sT2}')
    a(f's_add_u32 s{sM}, s{sA}, s{sT3}')
    a(f's_cmp_ge_u32 s{sT0}, 6')
    a(f's_cselect_b32 s{sM}, 0x{BIG:x}, s{sM}')
    a(f'v_mov_b32 v{vT[1]}, 0')
    o = fb[1]
    tmp = [fb[0] + 12, fb[0] + 14]
    n = 0
    for p in range(4):
        for t in range(2):
            ob = o + 4 * (n % 6); n += 1
            for tt in range(2 if p < 3 else 1):
                sg = 2 * p + tt
                for h in range(2):
                    d = acc + 28 * t + 4 * sg + 2 * h
                    w = tmp[h]
                    a(f'v_pk_mul_f32 v[{w}:{w + 1}], v[{vCs + 4 * sg + 2 * h}:{vCs + 4 * sg + 2 * h + 1}], v[{ab + 4 * t + 2}:{ab + 4 * t + 3}] op_sel_hi:[1,0]')
                    a(f'v_pk_fma_f32 v[{d}:{d + 1}], v[{d}:{d + 1}], v[{ab + 4 * t}:{ab + 4 * t + 1}], v[{w}:{w + 1}] op_sel_hi:[1,0,1]')
                    a(f'v_cvt_pk_bf16_f32 v{ob + 2 * tt + h}, v{d}, v{d + 1}')
                    a(f'v_pk_max_i16 v{ob + 2 * tt + h}, v{ob + 2 * tt + h}, v{vT[1]}')
            if p < 3:
                a(f'buffer_store_dwordx4 v[{ob}:{ob + 3}], v{vL16}, s[{sWS}:{sWS + 3}], s{sB} offen offset:{1024 * t}')
            else:
                a(f'buffer_store_dwordx2 v[{ob}:{ob + 1}], v{vL16}, s[{sWS}:{sWS + 3}], s{sM} offen offset:{1024 * t}')
        if p < 2:
            a(f's_add_u32 s{sB}, s{sB}, 4096')
    a.label(name + '_end')
    a('s_endpgm')


K4_LDS = 61440


def gen_k4(a, name):
    sWS, sO = 36, 40
    sa = RegAlloc('s', 44, 100)
    sWv = sa.get(); sRb = sa.get(); sCg = sa.get(); sPb = sa.get(); sSb = sa.get()
    sT0 = sa.get(); sT1 = sa.get(); sT2 = sa.get(); sT3 = sa.get()
    sA = sa.get(); sB = sa.get()
    va = RegAlloc('v', 1, 256)
    vL = va.get(); vG = va.get(); vR = va.get()
    vT = [va.get() for _ in range(8)]
    head(a, name, 256, sWv, vL, vG, vR, vT[0])
    vL16 = va.get(); vL16b = va.get(); vAo = va.get(4)
    a(f's_and_b32 s{sT0}, s2, 7')
    a(f's_lshr_b32 s{sT1}, s2, 3')
    a(f's_and_b32 s{sCg}, s{sT1}, 7')
    a(f's_lshr_b32 s{sT1}, s{sT1}, 3')
    a(f's_lshl_b32 s{sRb}, s{sT0}, 2')
    a(f's_add_u32 s{sRb}, s{sRb}, s{sT1}')
    a(f'v_lshlrev_b32 v{vL16}, 4, v{vL}')
    a(f'v_add_u32 v{vL16b}, 4096, v{vL16}')
    for i in range(4):
        a(f's_add_u32 s{sT0}, s{sWv}, {1 + i}')
        a(f's_and_b32 s{sT0}, s{sT0}, 3')
        a(f's_lshl_b32 s{sT0}, s{sT0}, 10')
        a(f'v_add_u32 v{vAo + i}, s{sT0}, v{vL16}')
    a(f's_mul_i32 s{sA}, s{sRb}, {54 * 4096}')
    a(f's_lshl_b32 s{sT0}, s{sWv}, 12')
    a(f's_add_u32 s{sA}, s{sA}, s{sT0}')
    a(f's_add_u32 s{sA}, s{sA}, {H1P_OFF}')
    a(f's_mul_i32 s{sB}, s{sCg}, 276480')
    a(f's_mul_i32 s{sT0}, s{sWv}, 5120')
    a(f's_add_u32 s{sB}, s{sB}, s{sT0}')
    a(f's_add_u32 s{sB}, s{sB}, {W2P_OFF}')
    a('s_waitcnt lgkmcnt(0)')
    srd(a, sWS, P_WS, 0, WS_USED)
    srd(a, sO, P_OUT, 0, S * D * 2)
    a.vm_reset()
    NS = 5
    NSTEP = 14

    def issue(i):
        r = 36 * (i % NS)
        if i == NSTEP - 1:
            a(f's_cmp_ge_u32 s{sWv}, 2')
            a(f's_cselect_b32 s{sA}, 0x{BIG:x}, s{sA}')
            a(f's_cselect_b32 s{sB}, 0x{BIG:x}, s{sB}')
        for t in range(4):
            a(f'buffer_load_dwordx4 a[{r + 4 * t}:{r + 4 * t + 3}], v{vAo + t}, s[{sWS}:{sWS + 3}], s{sA} offen', tag=f's{i}')
        for sg in range(5):
            v, off = (vL16, 1024 * sg) if sg < 4 else (vL16b, 0)
            a(f'buffer_load_dwordx4 a[{r + 16 + 4 * sg}:{r + 16 + 4 * sg + 3}], v{v}, s[{sWS}:{sWS + 3}], s{sB} offen offset:{off}', tag=f's{i}')
        a(f's_add_u32 s{sA}, s{sA}, {4 * 4096}')
        a(f's_add_u32 s{sB}, s{sB}, {4 * 5120}')
    for i in range(NS):
        issue(i)
    acc = va.get(80, 4)
    vRes = va.get(12, 4)
    vRW = va.get(3)
    tmp = va.get(8, 4)
    outr = va.get(12, 4)
    cg_blocks(a, sCg, sPb, sSb, sT0)
    for i in range(3):
        a(f's_add_u32 s{sT0}, s{sWv}, {1 + i}')
        a(f's_and_b32 s{sT0}, s{sT0}, 3')
        a(f's_mul_i32 s{sT0}, s{sT0}, 15360')
        a(f's_add_u32 s{sT0}, s{sT0}, {5120 * i}')
        a(f'v_add_u32 v{vRW + i}, s{sT0}, v{vL16}')
    for i in range(NSTEP):
        r = 36 * (i % NS)
        a.vm_wait(f's{i}')
        for t in range(4):
            for sg in range(5):
                d = acc + 20 * t + 4 * sg
                c = '0' if i == 0 else f'v[{d}:{d + 3}]'
                a(f'{M16} v[{d}:{d + 3}], a[{r + 16 + 4 * sg}:{r + 16 + 4 * sg + 3}], a[{r + 4 * t}:{r + 4 * t + 3}], {c}')
        if i + NS < NSTEP:
            issue(i + NS)
        if i + NS == NSTEP:
            a(f's_lshl_b32 s{sT0}, s{sRb}, 2')
            a(f's_add_u32 s{sT0}, s{sT0}, s{sWv}')
            a(f's_lshr_b32 s{sT1}, s{sT0}, 1')
            a(f's_mul_i32 s{sT1}, s{sT1}, 40960')
            a(f's_and_b32 s{sT2}, s{sT0}, 1')
            a(f's_lshl_b32 s{sT2}, s{sT2}, 10')
            a(f's_add_u32 s{sT1}, s{sT1}, s{sT2}')
            a(f's_add_u32 s{sT1}, s{sT1}, {HP_OFF}')
            a(f's_lshl_b32 s{sT2}, s{sPb}, 11')
            a(f's_add_u32 s{sT2}, s{sT2}, s{sT1}')
            a(f'buffer_load_dwordx4 v[{vRes}:{vRes + 3}], v{vL16}, s[{sWS}:{sWS + 3}], s{sT2} offen', tag='h')
            a(f'buffer_load_dwordx4 v[{vRes + 4}:{vRes + 7}], v{vL16}, s[{sWS}:{sWS + 3}], s{sT2} offen offset:2048', tag='h')
            a(f's_lshr_b32 s{sT2}, s{sSb}, 1')
            a(f's_lshl_b32 s{sT2}, s{sT2}, 11')
            a(f's_and_b32 s{sT3}, s{sSb}, 1')
            a(f's_lshl_b32 s{sT3}, s{sT3}, 3')
            a(f's_add_u32 s{sT2}, s{sT2}, s{sT3}')
            a(f's_add_u32 s{sT2}, s{sT2}, s{sT1}')
            a(f'buffer_load_dwordx2 v[{vRes + 8}:{vRes + 9}], v{vL16}, s[{sWS}:{sWS + 3}], s{sT2} offen', tag='h')
    for i in range(3):
        for sg in range(5):
            d = acc + 20 * i + 4 * sg
            a(f'ds_write_b128 v{vRW + i}, v[{d}:{d + 3}] offset:{1024 * sg}')
    a('s_waitcnt lgkmcnt(0)')
    a('s_barrier')
    a(f's_mul_i32 s{sT0}, s{sWv}, 15360')
    a(f'v_add_u32 v{vT[0]}, s{sT0}, v{vL16}')
    for k in range(15):
        a(f'ds_read_b128 v[{acc + 4 * k}:{acc + 4 * k + 3}], v{vT[0]} offset:{1024 * k}')
    own = acc + 60
    vXo = vT[1]
    a(f's_lshl_b32 s{sT0}, s{sRb}, 2')
    a(f's_add_u32 s{sT0}, s{sT0}, s{sWv}')
    a(f's_mul_i32 s{sT1}, s{sT0}, {16 * 1280}')
    a(f'v_mul_u32_u24 v{vXo}, 1280, v{vR}')
    a(f'v_lshl_add_u32 v{vXo}, v{vG}, 4, v{vXo}')
    a(f's_lshl_b32 s{sA}, s{sPb}, 6')
    a(f's_add_u32 s{sA}, s{sA}, s{sT1}')
    a(f's_lshr_b32 s{sT2}, s{sSb}, 1')
    a(f's_lshl_b32 s{sT2}, s{sT2}, 6')
    a(f's_and_b32 s{sT3}, s{sSb}, 1')
    a(f's_lshl_b32 s{sT3}, s{sT3}, 3')
    a(f's_add_u32 s{sT2}, s{sT2}, s{sT3}')
    a(f's_add_u32 s{sB}, s{sT2}, s{sT1}')
    for p in range(3):
        a(f's_waitcnt lgkmcnt({10 - 5 * p})')
        for k in range(10):
            a(f'v_pk_add_f32 v[{own + 2 * k}:{own + 2 * k + 1}], v[{own + 2 * k}:{own + 2 * k + 1}], v[{acc + 20 * p + 2 * k}:{acc + 20 * p + 2 * k + 1}]')
    a.vm_wait('h')
    add_residual(a, own, vRes, outr, tmp)
    a(f'buffer_store_dwordx4 v[{outr}:{outr + 3}], v{vXo}, s[{sO}:{sO + 3}], s{sA} offen')
    a(f'buffer_store_dwordx4 v[{outr + 4}:{outr + 7}], v{vXo}, s[{sO}:{sO + 3}], s{sA} offen offset:64')
    a(f'buffer_store_dwordx2 v[{outr + 8}:{outr + 9}], v{vXo}, s[{sO}:{sO + 3}], s{sB} offen')
    a.label(name + '_end')
    a('s_endpgm')
```

```python
S, D, H, DH, F = 2048, 640, 32, 20, 1728
PQ_OFF = 0x0;        PQ_SZ = 128 * 80 * 256
KV_OFF = 0x280000;   KV_HS = 1792; KV_SZ = 32 * KV_HS
WOP_OFF = 0x290000;  WOP_SZ = 8 * 102400
HP_OFF = 0x360000;   HP_SZ = 128 * 20 * 1024
ST_OFF = 0x5E0000;   ST_SZ = 128 * 1024
W1P_OFF = 0x600000;  W1P_SZ = 16 * 143360
W2P_OFF = 0x830000;  W2P_SZ = 8 * 276480
H1P_OFF = 0xA50000;  H1P_SZ = 128 * 54 * 1024
CS1_OFF = H1P_OFF + H1P_SZ; CS1_SZ = 4 * 7168
WS_USED = CS1_OFF + CS1_SZ
T0_W1 = [0, 7, 14, 21, 28, 35, 42, 48]

def w1_t0(j):
    return 54 * (j >> 3) + T0_W1[j & 7]

def w1_cnt(j):
    return 7 if (j & 7) < 6 else 6

def slot_tiles(t0, cnt, nslots):
    tiles = list(range(t0, t0 + cnt))
    if t0 & 1:
        tiles = tiles[1:] + tiles[:1]
    return tiles + [None] * (nslots - cnt)

def tile_cols(T):
    b, ab = T >> 1, T & 1
    return [32 * b + 8 * (i >> 2) + 4 * ab + (i & 3) for i in range(16)]
```

```python
import sys
from asmlib import *
from layout import *
import k1, k234

NAME = 'sequential_preLN__linear_attn_block__dense_activation_relu__prompt'
HEADER = open('cdna_kernels/' + NAME + '.s.ref').read().split('; Override launch')[0]


def build(kernels):
    out = [HEADER]
    for name, fn, lds in kernels:
        out.append(f'; @launch kernel={name} grid=(256,1,1) block=(256,1,1) lds={lds}\n')
    out.append('.amdgcn_target "amdgcn-amd-amdhsa--gfx950"\n.text\n')
    desc = []
    seen = set()
    for name, fn, lds in kernels:
        if name in seen:
            continue
        seen.add(name)
        a = Asm()
        a.uid = 1000 * len(seen)
        fn(a, name)
        out.append(a.text())
        mv, ma, ms = a.max_regs()
        acc_off = (mv + 1 + 3) // 4 * 4
        nfv = acc_off + ma + 1 if ma >= 0 else mv + 1
        desc.append(f'''.p2align 6
.amdhsa_kernel {name}
  .amdhsa_next_free_vgpr {nfv}
  .amdhsa_next_free_sgpr {ms + 1}
  .amdhsa_accum_offset {acc_off}
  .amdhsa_group_segment_fixed_size 0
  .amdhsa_kernarg_size 72
  .amdhsa_user_sgpr_count 2
  .amdhsa_user_sgpr_kernarg_segment_ptr 1
  .amdhsa_system_sgpr_workgroup_id_x 1
.end_amdhsa_kernel
''')
        print(name, 'vgpr', mv + 1, 'agpr', ma + 1, 'sgpr', ms + 1, 'instrs', sum(isinstance(i, Ins) for i in a.items), file=sys.stderr)
    out.append('.section .rodata,"a"\n')
    out += desc
    return ''.join(out)


KERNELS = [('k1_kernel', k1.gen_k1, k1.K1_LDS), ('k2_kernel', k234.gen_k2, k234.K2_LDS),
           ('k3_kernel', k234.gen_k3, k234.K3_LDS), ('k4_kernel', k234.gen_k4, k234.K4_LDS)]

if __name__ == '__main__':
    path = sys.argv[1] if len(sys.argv) > 1 else 'cdna_kernels/' + NAME + '.s'
    open(path, 'w').write(build(KERNELS))
```

```python
import gen, sys
from gen import *
def gen_empty(a, name):
    a.raw(f'.globl {name}\n.p2align 8\n.type {name},@function')
    a.label(name)
    a('v_mov_b32 v1, 0')
    a('s_mov_b32 s3, 0')
    a('s_endpgm')
E = ('e_kernel', gen_empty, 0)
import os
os.makedirs('var', exist_ok=True)
open('v_base.s', 'w').write(build(KERNELS))
open('v_e1.s', 'w').write(build(KERNELS + [E]))
open('v_e4.s', 'w').write(build(KERNELS + [E] * 4))
open('v_k4x2.s', 'w').write(build(KERNELS + [KERNELS[3]]))
open('v_k3x2.s', 'w').write(build(KERNELS[:3] + [KERNELS[2], KERNELS[3]]))
open('v_k2x2.s', 'w').write(build(KERNELS[:2] + KERNELS[1:]))
```

```python
import re

_REG = re.compile(r'^(-|\|)?(?:abs\()?([vas])(?:(\d+)|\[(\d+):(\d+)\])\)?\|?$')
TRANS = ('v_exp_f32', 'v_log_f32', 'v_rcp_f32', 'v_rsq_f32', 'v_sqrt_f32', 'v_sin_f32', 'v_cos_f32', 'v_rcp_iflag_f32')


def regs_of(tok):
    tok = tok.strip()
    if tok in ('vcc', 'exec', 'm0', 'scc'):
        return {tok}
    if tok in ('vcc_lo', 'vcc_hi'):
        return {'vcc'}
    if tok in ('exec_lo', 'exec_hi'):
        return {'exec'}
    m = _REG.match(tok)
    if not m:
        return set()
    f = m.group(2)
    if m.group(3) is not None:
        return {(f, int(m.group(3)))}
    return {(f, i) for i in range(int(m.group(4)), int(m.group(5)) + 1)}


def split_ops(s):
    ops, depth, cur = [], 0, ''
    for ch in s:
        if ch in '[(':
            depth += 1
        if ch in '])':
            depth -= 1
        if ch == ',' and depth == 0:
            ops.append(cur.strip())
            cur = ''
        else:
            cur += ch
    if cur.strip():
        ops.append(cur.strip())
    return ops


class Ins:
    def __init__(self, text):
        self.text = text
        t = text.split(';')[0].strip()
        parts = t.split(None, 1)
        self.op = parts[0]
        rest = parts[1] if len(parts) > 1 else ''
        ops = split_ops(rest)
        self.mods = []
        clean = []
        for o in ops:
            w = o.split()
            clean.append(w[0])
            self.mods += w[1:]
        self.ops = clean
        op = self.op
        self.w = set()
        self.r = set()
        self.kind = 'other'
        self.passes = 0
        self.srcC = set()
        self.srcAB = set()
        self.store_data = set()
        self.ws = 1
        R = [regs_of(o) for o in clean]
        allr = lambda lst: set().union(*lst) if lst else set()
        if op == 's_nop':
            self.ws = int(clean[0], 0) + 1
            self.kind = 'nop'
        elif op.startswith('v_mfma'):
            self.kind = 'mfma'
            self.w = R[0]
            self.srcAB = R[1] | R[2]
            self.srcC = R[3]
            self.r = self.srcAB | self.srcC
            if '32x32x16' in op or '32x32x8' in op:
                self.passes = 8
            elif '16x16x32' in op or '16x16x16' in op:
                self.passes = 4
            elif '16x16x4_f32' in op:
                self.passes = 8
            else:
                raise ValueError(op)
        elif op.startswith('v_'):
            self.kind = 'trans' if any(op.startswith(x) for x in TRANS) else 'valu'
            if op.startswith('v_cmp'):
                self.w = R[0]
                self.r = allr(R[1:])
                if op.startswith('v_cmpx'):
                    self.w |= {'exec'}
            elif 'permlane' in op and 'swap' in op:
                self.w = R[0] | R[1]
                self.r = R[0] | R[1]
            elif op.startswith(('v_add_co', 'v_sub_co', 'v_addc_co', 'v_subb_co', 'v_subrev_co')):
                self.w = R[0] | R[1]
                self.r = allr(R[2:])
            else:
                self.w = R[0]
                self.r = allr(R[1:])
                if op.startswith(('v_fmac', 'v_dot2c', 'v_pk_fmac')) or op.startswith('v_writelane'):
                    self.r |= R[0]
            self.dpp = op.endswith('_dpp') or any(m.startswith(('row_', 'quad_perm')) for m in self.mods)
        elif op.startswith('ds_'):
            self.kind = 'ds'
            if op.startswith(('ds_read', 'ds_bpermute', 'ds_permute', 'ds_swizzle')) or '_rtn' in op:
                self.w = R[0]
                self.r = allr(R[1:])
            else:
                self.r = allr(R)
        elif op.startswith(('buffer_', 'global_', 'flat_')):
            self.kind = 'vmem'
            lds = 'lds' in self.mods or '_lds_' in op
            self.ldsdma = lds
            if op in ('buffer_wbl2', 'buffer_inv'):
                pass
            elif lds:
                self.r = allr(R) | {'m0'}
            elif '_load' in op:
                self.w = R[0]
                self.r = allr(R[1:])
            elif '_store' in op:
                self.r = allr(R)
                if 'x4' in op or 'x3' in op:
                    self.store_data = R[0] if op.startswith('buffer_') else R[1]
            elif '_atomic' in op:
                if 'sc0' in self.mods:
                    self.w = R[0]
                    self.r = allr(R) if op.startswith('buffer_') else allr(R[1:])
                else:
                    self.r = allr(R)
            else:
                raise ValueError(text)
        elif op.startswith('s_'):
            if op.startswith(('s_branch', 's_cbranch')):
                self.kind = 'branch'
                self.target = clean[0]
            elif op.startswith(('s_load', 's_memtime', 's_memrealtime', 's_atomic', 's_buffer_load')):
                self.kind = 'smem'
                self.w = R[0]
                self.r = allr(R[1:])
            elif op.startswith(('s_waitcnt', 's_barrier', 's_endpgm', 's_sleep', 's_setprio')):
                self.kind = 'other'
            elif op.startswith('s_cmp'):
                self.kind = 'salu'
                self.r = allr(R)
            else:
                self.kind = 'salu'
                self.w = R[0]
                self.r = allr(R[1:])
                if 'saveexec' in op:
                    self.w |= {'exec'}
        else:
            raise ValueError(text)


def is_vreg(x):
    return isinstance(x, tuple) and x[0] in 'va'


def is_sreg(x):
    return x == 'vcc' or (isinstance(x, tuple) and x[0] == 's')


def need(p, c):
    n = 0
    pv = p.kind in ('valu', 'trans')
    cv = c.kind in ('valu', 'trans')
    if pv:
        wv = {x for x in p.w if is_vreg(x)}
        wsg = {x for x in p.w if is_sreg(x)}
        if c.kind == 'mfma' and wv & c.r:
            n = max(n, 2)
        if p.kind == 'trans' and (cv or c.kind in ('vmem', 'ds')) and wv & c.r:
            n = max(n, 1)
        if cv and wv & c.r:
            if c.op.startswith(('v_readfirstlane', 'v_readlane')):
                n = max(n, 1)
            if 'permlane' in c.op or getattr(c, 'dpp', False):
                n = max(n, 2)
        if wsg:
            rd = set(c.r)
            if cv and c.op.startswith(('v_cndmask', 'v_addc', 'v_subb', 'v_div_fmas')):
                pass
            if c.kind == 'vmem' and wsg & rd:
                n = max(n, 5)
            if cv and wsg & rd:
                n = max(n, 4 if c.op.startswith(('v_readlane', 'v_writelane', 'v_div_fmas')) else 2)
            if c.kind in ('salu', 'smem') and wsg & rd:
                n = max(n, 1)
            if c.kind == 'branch' and 'vcc' in wsg and 'vcc' in c.op:
                n = max(n, 5)
        if 'exec' in p.w:
            n = max(n, 5)
    if p.kind == 'mfma':
        t = {4: (6, 8, 8, 3), 8: (10, 12, 12, 7)}[p.passes]
        if c.kind == 'mfma':
            if p.w & c.srcC:
                if not (p.w == c.srcC and p.op == c.op):
                    n = max(n, t[0])
            if p.w & c.srcAB:
                n = max(n, t[1])
            if (p.w & c.w) and not (p.w == c.srcC and p.op == c.op):
                n = max(n, t[0])
        elif cv or c.kind in ('vmem', 'ds'):
            if p.w & (c.r | c.w):
                n = max(n, t[2])
            if cv and p.srcC & c.w:
                n = max(n, t[3])
    if p.kind == 'salu' and 'm0' in p.w and 'm0' in c.r and c.kind in ('vmem', 'ds'):
        n = max(n, 1)
    if p.store_data and (p.store_data & c.w):
        n = max(n, 2)
    return n


class Asm:
    def __init__(self):
        self.items = []
        self.vm = []
        self.uid = 0

    def __call__(self, text, tag=None):
        for line in text.strip().split('\n'):
            line = line.strip()
            if not line or line.startswith(';'):
                continue
            ins = Ins(line)
            self.items.append(ins)
            if ins.kind == 'vmem' and ins.op not in ('buffer_wbl2', 'buffer_inv'):
                self.vm.append(tag)

    diag = None
    TS0 = 4

    def stamp(self, i):
        if self.diag is None:
            return
        assert i < 6
        self(f's_memrealtime s[{4 + 2 * i}:{5 + 2 * i}]')
        if i == 0:
            self('s_memtime s[100:101]')
        self('s_waitcnt lgkmcnt(0)')

    LAPV = 255

    def lap(self, sel):
        if self.diag is None:
            return
        self('s_memrealtime s[98:99]')
        self('s_waitcnt lgkmcnt(0)')
        self(f's_lshl_b64 exec, 1, {sel}')
        self(f'v_mov_b32 v{self.LAPV}, s98')
        self('s_mov_b64 exec, -1')

    slaps = None

    def slap(self, i):
        if self.diag is None:
            return
        self.slaps = max(self.slaps or 0, i + 1)
        self('s_memrealtime s[98:99]')
        self('s_waitcnt lgkmcnt(0)')
        self(f's_mov_b32 s{80 + i}, s98')

    def lap_flush(self, sWv, ws_ptr, off):
        if self.diag is None:
            return
        if self.slaps:
            self(f'v_mov_b32 v{self.LAPV}, 0')
            for i in range(self.slaps):
                self(f'v_writelane_b32 v{self.LAPV}, s{80 + i}, {i}')
        self('s_mov_b64 exec, 0xffff')
        self(f's_lshl_b32 s98, s2, 2')
        self(f's_add_u32 s98, s98, s{sWv}')
        self(f's_lshl_b32 s98, s98, 6')
        self(f's_add_u32 s98, s98, {off + 0x100000 + self.diag * 65536}')
        self('v_mbcnt_lo_u32_b32 v0, -1, 0')
        self('v_lshlrev_b32 v0, 2, v0')
        self('v_add_u32 v0, s98, v0')
        self(f'global_store_dword v0, v{self.LAPV}, s[{ws_ptr}:{ws_ptr + 1}]')

    def stamp_flush(self, sWv, ws_ptr, off):
        if self.diag is None:
            return
        self.stamp(5)
        self.lap_flush(sWv, ws_ptr, off)
        self('s_mov_b64 exec, 1')
        for i in range(6):
            self(f'v_mov_b32 v{2 + i}, s{4 + 2 * i}')
        self('v_mov_b32 v8, s100')
        self('s_memtime s[100:101]')
        self('s_waitcnt lgkmcnt(0)')
        self('v_mov_b32 v9, s100')
        self(f's_lshl_b32 s4, s2, 2')
        self(f's_add_u32 s4, s4, s{sWv}')
        self(f's_lshl_b32 s4, s4, 5')
        self(f's_add_u32 s4, s4, {off + self.diag * 32768}')
        self('v_mov_b32 v0, s4')
        self(f'global_store_dwordx4 v0, v[2:5], s[{ws_ptr}:{ws_ptr + 1}]')
        self(f'global_store_dwordx4 v0, v[6:9], s[{ws_ptr}:{ws_ptr + 1}] offset:16')

    def label(self, name):
        self.items.append(('label', name))

    def raw(self, text):
        self.items.append(('raw', text))

    def newlabel(self, base='L'):
        self.uid += 1
        return f'{base}_{self.uid}'

    def vm_reset(self):
        self.vm = []

    def vm_wait(self, tag, extra=''):
        idx = [i for i, t in enumerate(self.vm) if t == tag]
        assert idx, f'no outstanding op with tag {tag}'
        n = len(self.vm) - 1 - idx[-1]
        n = min(n, 63)
        self(f's_waitcnt vmcnt({n}){extra}')
        self.vm = self.vm[idx[-1] + 1:] if n == len(self.vm) - 1 - idx[-1] else self.vm

    def vm_wait_all(self, extra=''):
        self(f's_waitcnt vmcnt(0){extra}')
        self.vm = []

    def _pad_linear(self):
        out = []
        for it in self.items:
            if isinstance(it, Ins):
                req = 0
                dist = 0
                for p in reversed(out):
                    if not isinstance(p, Ins):
                        continue
                    if dist >= 14:
                        break
                    if p.op in ('s_branch', 's_endpgm'):
                        break
                    k = need(p, it) - dist
                    req = max(req, k)
                    dist += p.ws
                if req > 0:
                    out.append(Ins(f's_nop {req - 1}'))
            out.append(it)
        self.items = out

    def _pad_branches(self):
        labels = {it[1]: i for i, it in enumerate(self.items) if isinstance(it, tuple) and it[0] == 'label'}
        i = 0
        inserts = []
        for i, it in enumerate(self.items):
            if isinstance(it, Ins) and it.kind == 'branch' and it.target in labels:
                pre = []
                d = 0
                for p in reversed(self.items[:i + 1]):
                    if isinstance(p, Ins):
                        if p is not it and p.op in ('s_branch', 's_endpgm'):
                            break
                        pre.append(p)
                        d += p.ws
                        if d >= 14:
                            break
                post = []
                d = 0
                for c in self.items[labels[it.target]:]:
                    if isinstance(c, Ins):
                        post.append(c)
                        d += c.ws
                        if d >= 14 or c.op in ('s_branch', 's_endpgm'):
                            break
                req = 0
                dpost = 0
                for c in post:
                    dpre = 0
                    for p in pre:
                        k = need(p, c) - (dpre + dpost)
                        req = max(req, k)
                        dpre += p.ws
                    dpost += c.ws
                if req > 0:
                    inserts.append((i, req))
        for i, req in reversed(inserts):
            self.items.insert(i, Ins(f's_nop {req - 1}'))

    def text(self):
        self._pad_linear()
        self._pad_branches()
        lines = []
        for it in self.items:
            if isinstance(it, Ins):
                lines.append('    ' + it.text)
            elif it[0] == 'label':
                lines.append(it[1] + ':')
            else:
                lines.append(it[1])
        return '\n'.join(lines) + '\n'

    def max_regs(self):
        mv = ma = ms = -1
        for it in self.items:
            if isinstance(it, Ins):
                for x in it.w | it.r:
                    if isinstance(x, tuple):
                        if x[0] == 'v':
                            mv = max(mv, x[1])
                        elif x[0] == 'a':
                            ma = max(ma, x[1])
                        else:
                            ms = max(ms, x[1])
        return mv, ma, ms


class RegAlloc:
    def __init__(self, f, start, limit):
        self.f = f
        self.n = start
        self.limit = limit

    def get(self, cnt=1, align=1):
        self.n = (self.n + align - 1) // align * align
        b = self.n
        self.n += cnt
        assert self.n <= self.limit, f'out of {self.f} regs'
        return b


def vr(b, n=1, f='v'):
    return f'{f}{b}' if n == 1 else f'{f}[{b}:{b + n - 1}]'


def sr(b, n=1):
    return vr(b, n, 's')


def ar(b, n=1):
    return vr(b, n, 'a')
```

```python
from asmlib import *
from layout import *

import os
EPI = int(os.environ.get('EPI', '0'))
RPST = os.environ.get('RPST', '')
PQST = os.environ.get('PQST', '')
LOG2E = 0x3FB8AA3B
P_X, P_WQKV, P_WO, P_BX, P_W1, P_W2, P_OUT, P_DBG, P_WS = 16, 18, 20, 22, 24, 26, 28, 30, 32


def load_args(a):
    a('s_load_dwordx16 s[16:31], s[0:1], 0')
    a('s_load_dwordx2 s[32:33], s[0:1], 64')


def srd(a, d, ptr, off, size):
    if off:
        a(f's_add_u32 s{d}, s{ptr}, {off}')
        a(f's_addc_u32 s{d + 1}, s{ptr + 1}, 0')
    else:
        a(f's_mov_b32 s{d}, s{ptr}')
        a(f's_mov_b32 s{d + 1}, s{ptr + 1}')
    a(f's_mov_b32 s{d + 2}, {size}')
    a(f's_mov_b32 s{d + 3}, 0x20000')


def bf16r(a, v, tmp=None):
    a(f'v_cvt_pk_bf16_f32 v{v}, v{v}, v{v}')
    a(f'v_lshlrev_b32 v{v}, 16, v{v}')


def ln_stats(a, vm, vvar, vrs):
    a(f'v_max_f32 v{vvar}, 0, v{vvar}')
    bf16r(a, vm)
    bf16r(a, vvar)
    a(f'v_add_f32 v{vvar}, 0x3727c5ac, v{vvar}')
    bf16r(a, vvar)
    a(f'v_sqrt_f32 v{vvar}, v{vvar}')
    bf16r(a, vvar)
    a(f'v_rcp_f32 v{vrs}, v{vvar}')
    a(f'v_mul_f32 v{vm}, v{vm}, v{vrs}')
    a(f'v_sub_f32 v{vm}, 0, v{vm}')


def split5(a, sT, sCg, sSig, sTmp):
    a(f's_mul_i32 s{sCg}, s{sT}, 205')
    a(f's_lshr_b32 s{sCg}, s{sCg}, 10')
    a(f's_mul_i32 s{sTmp}, s{sCg}, 5')
    a(f's_sub_u32 s{sSig}, s{sT}, s{sTmp}')
    a(f's_sub_u32 s{sTmp}, s{sSig}, 1')
    a(f's_cmp_eq_u32 s{sSig}, 0')
    a(f's_cselect_b32 s{sTmp}, 4, s{sTmp}')
    a(f's_bitcmp1_b32 s{sCg}, 0')
    a(f's_cselect_b32 s{sSig}, s{sTmp}, s{sSig}')


RING = 32768
RP_LDS = 131072
KVA_LDS = 32768
K1_LDS = 151552


def k1_table():
    G = int(os.environ.get('K1_G', '5'))
    XS = int(os.environ.get('K1_XS', '1'))
    tab = [None] * 256
    for x in range(8):
        rq, hf = x >> 1, x & 1
        kvl = []
        lo = 11 * (rq >> 1)
        if rq & 1 == 0:
            rbs, shared, part = range(lo, lo + 5), lo + 5, (0, 1)
        else:
            rbs, shared, part = range(lo + 6, lo + 11), lo + 5, (2, 3)
        for hq in range(4):
            for rb in rbs:
                kvl.append((0, rb, 4 * hf + hq))
            if hq in part:
                kvl.append((0, shared, 4 * hf + hq))
        ql = [(1, 4 * rq + r, cg) for cg in ((0, 1) if hf == 0 else (3, 4)) for r in range(4)]
        ql += [(1, 4 * rq + r, 2) for r in ((0, 1) if hf == 0 else (2, 3))]
        grp = kvl + ql
        assert len(kvl) == 22 and len(ql) == 10
        cols = sorted(set((r, c) for r, _, c in grp))
        for i, (role, rb, c) in enumerate(grp):
            sh = [g for g in grp if g[0] == role and g[2] == c]
            ib = sh.index((role, rb, c))
            ia = cols.index((role, c))
            if G == 10:
                rot = int(round(ib * 10.0 / len(sh) + ia * 10.0 / len(cols))) % 10
            else:
                rot = (int(round(((ib + ia) % G) * 10.0 / G)) + XS * (x >> 1)) % 10
            tab[8 * i + x] = (role, rb, c, rot)
    assert len(set(t[:3] for t in tab)) == 256
    bp = blk_pos()
    tab = [((bp[(i - 108) >> 1] if 108 <= i < 216 else 0),) + t[1:] for i, t in enumerate(tab)]
    return tab


def spread(a, ms, first, later, start=None):
    n = len(ms)
    first = list(first)
    s0 = len(first) if start is None else start
    s0 = min(s0, n - 1)
    pos = {}
    for k, g in enumerate(later):
        p = s0 + (k * (n - s0)) // max(1, len(later))
        pos.setdefault(min(n - 1, p), []).append(g)
    for k, m in enumerate(ms):
        a(m)
        if first:
            a(first.pop(0))
        for g in pos.get(k, []):
            for x in g:
                a(x)
    for x in first:
        a(x)


def gen_k1(a, name):
    sX, sW, sR, sWS = 36, 40, 44, 48
    sa = RegAlloc('s', 52, 98)
    sWv = sa.get(); sRh = sa.get(); sCh = sa.get()
    sIt = sa.get(); sSA = sa.get(); sSB = sa.get(); sBA = sa.get(); sBB = sa.get()
    sSlotW = sa.get(); sSlotR = sa.get(); sMA = sa.get(); sMB = sa.get()
    sT0 = sa.get(); sT1 = sa.get(); sT2 = sa.get(); sT3 = sa.get()
    sSrc = sa.get(5); sDst = sa.get(5)
    sTab = sa.get(4, 4)
    sRb, sHg, sKc = sTab + 1, sTab + 2, sTab + 3
    sCsD = sa.get()
    sM0 = sa.get(2, 2); sM1 = sa.get(2, 2); sM2 = sa.get(2, 2); sK = sa.get(2, 2)

    Lend = name + '_end'
    a.raw(f'.globl {name}\n.p2align 8\n.type {name},@function')
    a.label(name)
    a('s_cmp_ge_u32 s2, 256')
    a(f's_cbranch_scc1 {Lend}')
    a.stamp(0)
    load_args(a)
    a(f's_getpc_b64 s[{sM0}:{sM0 + 1}]')
    a.label(name + '_pc')
    a(f's_lshl_b32 s{sT0}, s2, 4')
    a(f's_add_u32 s{sM0}, s{sM0}, {name}_tab-{name}_pc')
    a(f's_addc_u32 s{sM0 + 1}, s{sM0 + 1}, 0')
    a(f's_load_dwordx4 s[{sTab}:{sTab + 3}], s[{sM0}:{sM0 + 1}], s{sT0}')
    va = RegAlloc('v', 1, 255)
    vL = va.get(); vG = va.get(); vR = va.get()
    vT = [va.get() for _ in range(8)]
    vRP = va.get(5)
    vOnes = va.get(4, 4)
    a(f'v_and_b32 v{vL}, 63, v0')
    a(f'v_lshrrev_b32 v{vT[0]}, 6, v0')
    a(f'v_readfirstlane_b32 s{sWv}, v{vT[0]}')
    a(f'v_lshrrev_b32 v{vG}, 4, v{vL}')
    a(f'v_and_b32 v{vR}, 15, v{vL}')
    a(f's_lshr_b32 s{sRh}, s{sWv}, 1')
    a(f's_and_b32 s{sCh}, s{sWv}, 1')
    base_v = va.n
    Lq = name + '_q'
    a('s_cmp_ge_u32 s2, 176')
    a(f's_cbranch_scc1 {Lq}')

    for variant in ('kv', 'q'):
        kv = variant == 'kv'
        va.n = base_v
        if not kv:
            a.label(Lq)
        TR, TC = (3, 5) if kv else (4, 4)
        NA, NB = (3, 5) if kv else (4, 4)
        NST = NA + NB
        BOFF = 12288 if kv else 16384
        vOA = va.get(NA); vOB = va.get(NB)
        a(f's_mul_i32 s{sT1}, s{sWv}, {8 * NA}')
        a(f'v_lshrrev_b32 v{vT[0]}, 3, v{vL}')
        a(f'v_add_u32 v{vT[0]}, s{sT1}, v{vT[0]}')
        a(f'v_and_b32 v{vT[1]}, 7, v{vL}')
        a(f'v_bfe_u32 v{vT[2]}, v{vT[0]}, 1, 3')
        a(f'v_xor_b32 v{vT[2]}, v{vT[2]}, v{vT[1]}')
        a(f'v_lshlrev_b32 v{vT[2]}, 4, v{vT[2]}')
        a(f'v_mul_u32_u24 v{vT[0]}, 1280, v{vT[0]}')
        a(f'v_xor_b32 v{vT[3]}, 64, v{vT[2]}')
        a(f'v_add_u32 v{vOA}, v{vT[0]}, v{vT[2]}')
        a(f'v_add_u32 v{vT[3]}, v{vT[0]}, v{vT[3]}')
        for j in range(1, NA):
            a(f'v_add_u32 v{vOA + j}, {j * (10240 - 1024)}, v{vT[3] if j & 1 else vOA}')
        a(f's_mul_i32 s{sT3}, s{sWv}, {16 * 3840}')
        if kv:
            a(f's_movk_i32 s{sT2}, 3840')
            for j in range(NB):
                a(f'v_add_u32 v{vT[0]}, {64 * j}, v{vL}')
                a(f'v_mul_u32_u24 v{vT[1]}, 3277, v{vT[0]}')
                a(f'v_lshrrev_b32 v{vT[1]}, 16, v{vT[1]}')
                a(f'v_mul_u32_u24 v{vT[2]}, 20, v{vT[1]}')
                a(f'v_sub_u32 v{vT[0]}, v{vT[0]}, v{vT[2]}')
                a(f'v_lshrrev_b32 v{vT[2]}, 2, v{vT[1]}')
                a(f'v_and_b32 v{vT[2]}, 2, v{vT[2]}')
                a(f'v_xor_b32 v{vT[0]}, v{vT[0]}, v{vT[2]}')
                a(f'v_mul_u32_u24 v{vT[2]}, 205, v{vT[0]}')
                a(f'v_lshrrev_b32 v{vT[2]}, 10, v{vT[2]}')
                a(f'v_and_b32 v{vT[3]}, 1, v{vT[2]}')
                a(f'v_mul_u32_u24 v{vT[3]}, 1200, v{vT[3]}')
                a(f'v_lshl_add_u32 v{vT[0]}, v{vT[0]}, 4, v{vT[3]}')
                a(f'v_lshrrev_b32 v{vT[2]}, 1, v{vT[2]}')
                a(f'v_mul_u32_u24 v{vT[2]}, 80, v{vT[2]}')
                a(f'v_sub_u32 v{vT[0]}, v{vT[0]}, v{vT[2]}')
                a(f'v_mad_u32_u24 v{vT[0]}, v{vT[1]}, s{sT2}, v{vT[0]}')
                a(f's_sub_u32 s{sT1}, s{sT3}, {1024 * (j & 3)}')
                a(f'v_add_u32 v{vOB + j}, s{sT1}, v{vT[0]}')
        else:
            a(f'v_lshrrev_b32 v{vT[0]}, 1, v{vR}')
            a(f'v_xor_b32 v{vT[0]}, v{vT[0]}, v{vG}')
            a(f'v_lshlrev_b32 v{vT[0]}, 5, v{vT[0]}')
            a(f'v_and_b32 v{vT[1]}, 1, v{vL}')
            a(f'v_lshl_add_u32 v{vT[0]}, v{vT[1]}, 4, v{vT[0]}')
            a(f'v_mul_u32_u24 v{vT[1]}, 3840, v{vG}')
            a(f'v_add_u32 v{vT[1]}, s{sT3}, v{vT[1]}')
            a(f'v_xor_b32 v{vT[2]}, 128, v{vT[0]}')
            a(f'v_add_u32 v{vOB}, v{vT[0]}, v{vT[1]}')
            a(f'v_add_u32 v{vT[2]}, v{vT[2]}, v{vT[1]}')
            for j in range(1, NB):
                a(f'v_add_u32 v{vOB + j}, {4 * j * 3840 - 1024 * j}, v{vT[2] if j >> 1 else vOB}')
        a(f's_mul_i32 s{sMA}, s{sWv}, {NA * 1024}')
        a(f's_mul_i32 s{sMB}, s{sWv}, {NB * 1024}')
        a(f's_add_u32 s{sMB}, s{sMB}, {BOFF}')
        a(f's_mov_b32 s{sSlotW}, 0')
        a('s_waitcnt lgkmcnt(0)')
        srd(a, sX, P_X, 0, S * D * 2)
        srd(a, sW, P_WQKV, 0, D * 3 * D * 2)
        a(f's_mul_i32 s{sBA}, s{sRb}, {(96 if kv else 128) * 1280}')
        if kv:
            a(f's_mul_i32 s{sBB}, s{sHg}, 160')
            a(f's_add_u32 s{sBB}, s{sBB}, 1280')
        else:
            a(f's_lshl_b32 s{sBB}, s{sHg}, 8')

        def stage_groups():
            g = []
            for j in range(NA):
                pre_ = []
                if j == 0:
                    pre_ = [f's_lshl_b32 s{sSA}, s{sKc}, 7', f's_mul_i32 s{sSB}, s{sKc}, {64 * 3840}',
                            f's_add_u32 s{sSA}, s{sSA}, s{sBA}', f's_add_u32 s{sSB}, s{sSB}, s{sBB}',
                            f's_add_u32 m0, s{sSlotW}, s{sMA}', f's_add_u32 s{sKc}, s{sKc}, 1',
                            f's_cmp_eq_u32 s{sKc}, 10', f's_cselect_b32 s{sKc}, 0, s{sKc}']
                g.append(pre_ + [f'buffer_load_dwordx4 v{vOA + j}, s[{sX}:{sX + 3}], s{sSA} offen offset:{1024 * j} lds'])
            for j in range(NB):
                pre_ = []
                if j == 0:
                    pre_ = [f's_add_u32 m0, s{sSlotW}, s{sMB}', f's_add_u32 s{sSlotW}, s{sSlotW}, {RING}',
                            f's_and_b32 s{sSlotW}, s{sSlotW}, {4 * RING - 1}']
                if j == 4:
                    pre_ = ['s_add_u32 m0, m0, 4096']
                g.append(pre_ + [f'buffer_load_dwordx4 v{vOB + j}, s[{sW}:{sW + 3}], s{sSB} offen offset:{1024 * (j & 3)} lds'])
            return g
        sg = stage_groups()

        def emit(groups):
            for g_ in groups:
                for x in g_:
                    a(x)
        a.stamp(1)
        emit(sg)
        emit(sg)
        srd(a, sWS, P_WS, 0, WS_USED)
        NBA = 2 if kv else 4
        vAb = va.get(2); vBb = va.get(2 * NBA)
        vAc = va.get(2); vBc = va.get(2 * NBA)
        fr = [va.get(4 * (TR + TC), 4) for _ in range(2)]
        acc = va.get(4 * TR * TC, 4)
        s1 = va.get(4 * TR, 4); s2 = va.get(4 * TR, 4); cs = va.get(4 * TC, 4)
        nacc = cs + 4 * TC - acc
        for i in range(4):
            a(f'v_mov_b32 v{vOnes + i}, 0x3f803f80')
        for i in range(nacc):
            a(f'v_mov_b32 v{acc + i}, 0')
        Lnz = a.newlabel('Lnz')
        a(f'v_lshlrev_b32 v{vT[0]}, 4, v{vL}')
        if kv:
            a(f's_cmp_lg_u32 s{sRb}, 21')
            a(f's_cbranch_scc1 {Lnz}')
            a(f's_lshl_b32 s{sT1}, s{sHg}, 2')
            a(f's_add_u32 s{sT1}, s{sT1}, s{sWv}')
            a(f's_mul_i32 s{sT1}, s{sT1}, {KV_HS}')
            a(f's_add_u32 s{sT1}, s{sT1}, {KV_OFF}')
            a(f'buffer_store_dwordx4 v[{acc}:{acc + 3}], v{vT[0]}, s[{sWS}:{sWS + 3}], s{sT1} offen sc1')
            a(f'buffer_store_dwordx4 v[{acc}:{acc + 3}], v{vT[0]}, s[{sWS}:{sWS + 3}], s{sT1} offen offset:768 sc1')
        else:
            a('s_cmp_lg_u32 s2, 255')
            a(f's_cbranch_scc1 {Lnz}')
            a(f's_lshl_b32 s{sT1}, s{sWv}, 12')
            a(f's_add_u32 s{sT1}, s{sT1}, {FL_OFF}')
            for i in range(4):
                a(f'buffer_store_dwordx4 v[{acc}:{acc + 3}], v{vT[0]}, s[{sWS}:{sWS + 3}], s{sT1} offen offset:{1024 * i}')
        a.label(Lnz)
        Lw2 = a.newlabel('Lw2'); Lwo = a.newlabel('Lwo'); Lrd = a.newlabel('Lrd'); Lv12 = a.newlabel('Lv12')
        a(f'v_lshrrev_b32 v{vT[0]}, 3, v{vL}')
        a(f'v_and_b32 v{vT[1]}, 7, v{vL}')
        a(f'v_lshlrev_b32 v{vT[1]}, 4, v{vT[1]}')
        a('s_cmp_ge_u32 s2, 216')
        a(f's_cbranch_scc1 {Lwo}')
        if True:
            a('s_cmp_ge_u32 s2, 108')
            a(f's_cbranch_scc1 {Lw2}')
            srd(a, sR, P_W1, 0, D * F * 2)
            a(f's_mul_i32 s{sT0}, s2, 19')
            a(f's_lshr_b32 s{sT0}, s{sT0}, 9')
            a(f's_mul_i32 s{sT1}, s{sT0}, 27')
            a(f's_sub_u32 s{sT1}, s2, s{sT1}')
            a(f's_mul_i32 s{sSrc}, s{sT0}, {160 * 3456}')
            a(f's_lshl_b32 s{sT2}, s{sT1}, 7')
            a(f's_add_u32 s{sSrc}, s{sSrc}, s{sT2}')
            a(f's_lshl_b32 s{sT1}, s{sT1}, 2')
            a(f's_add_u32 s{sT1}, s{sT1}, s{sWv}')
            a(f's_mul_i32 s{sSB}, s{sT0}, 5')
            a(f's_mov_b32 s{sDst}, {W1P_OFF}')
            a(f's_sub_u32 s{sT2}, s{sT1}, 54')
            a(f's_cmp_ge_u32 s{sT1}, 54')
            a(f's_cselect_b32 s{sT1}, s{sT2}, s{sT1}')
            a(f's_cselect_b32 s{sT2}, {8 * 143360}, 0')
            a(f's_cselect_b32 s{sCsD}, {8 * 448}, 0')
            a(f's_add_u32 s{sCsD}, s{sCsD}, {CS1_OFF}')
            a(f's_add_u32 s{sDst}, s{sDst}, s{sT2}')
            a(f's_mul_i32 s{sT2}, s{sT0}, 7168')
            a(f's_add_u32 s{sCsD}, s{sCsD}, s{sT2}')
            a(f's_mul_i32 s{sT2}, s{sT1}, 37')
            a(f's_lshr_b32 s{sT2}, s{sT2}, 8')
            a(f's_mul_i32 s{sT3}, s{sT2}, 7')
            a(f's_cmp_ge_u32 s{sT1}, 48')
            a(f's_cselect_b32 s{sT2}, 7, s{sT2}')
            a(f's_cselect_b32 s{sT3}, 48, s{sT3}')
            a(f's_mul_i32 s{sT0}, s{sT2}, 448')
            a(f's_add_u32 s{sCsD}, s{sCsD}, s{sT0}')
            a(f's_mul_i32 s{sT2}, s{sT2}, 143360')
            a(f's_add_u32 s{sDst}, s{sDst}, s{sT2}')
            a(f's_sub_u32 s{sT1}, s{sT1}, s{sT3}')
            a(f's_sub_u32 s{sT2}, s{sT1}, 1')
            a(f's_cmp_eq_u32 s{sT1}, 0')
            a(f's_cselect_b32 s{sT2}, 6, s{sT2}')
            a(f's_bitcmp1_b32 s{sT3}, 0')
            a(f's_cselect_b32 s{sT1}, s{sT2}, s{sT1}')
            a(f's_lshl_b32 s{sT0}, s{sT1}, 6')
            a(f's_add_u32 s{sCsD}, s{sCsD}, s{sT0}')
            a(f's_lshl_b32 s{sT0}, s{sT1}, 10')
            a(f's_add_u32 s{sT2}, s{sT0}, {102400 - 4096}')
            a(f's_add_u32 s{sT3}, s{sT0}, {61440 - 2048}')
            a(f's_cmp_lt_u32 s{sT1}, 4')
            a(f's_cselect_b32 s{sT2}, s{sT3}, s{sT2}')
            a(f's_movk_i32 s{sT3}, 2048')
            a(f's_cmp_lt_u32 s{sT1}, 2')
            a(f's_cselect_b32 s{sT2}, s{sT0}, s{sT2}')
            a(f's_cselect_b32 s{sT3}, 3072, s{sT3}')
            a(f's_cmp_eq_u32 s{sT1}, 6')
            a(f's_cselect_b32 s{sT2}, 2048, s{sT2}')
            a(f's_cselect_b32 s{sT3}, 3072, s{sT3}')
            a(f's_add_u32 s{sDst}, s{sDst}, s{sT2}')
            a(f's_mul_i32 s{sT1}, s{sSB}, s{sT3}')
            a(f's_add_u32 s{sDst}, s{sDst}, s{sT1}')
            for i in range(1, 5):
                a(f's_add_u32 s{sSrc + i}, s{sSrc + i - 1}, {32 * 3456}')
                a(f's_add_u32 s{sDst + i}, s{sDst + i - 1}, s{sT3}')
            a(f's_movk_i32 s{sT0}, 3456')
            a(f's_branch {Lv12}')
            a.label(Lw2)
        srd(a, sR, P_W2, 0, D * F * 2)
        a(f's_sub_u32 s{sT0}, s2, 108')
        a(f's_lshr_b32 s{sT1}, s{sT0}, 1')
        a(f's_and_b32 s{sT0}, s{sT0}, 1')
        a(f's_mul_i32 s{sSrc}, s{sT1}, {32 * 1280}')
        a(f's_mul_i32 s{sT2}, s{sT0}, 640')
        a(f's_add_u32 s{sSrc}, s{sSrc}, s{sT2}')
        a(f's_mul_i32 s{sSA}, s{sTab}, 5120')
        a(f's_add_u32 s{sSA}, s{sSA}, {W2P_OFF}')
        a(f's_mul_i32 s{sT0}, s{sT0}, 20')
        a(f's_add_u32 s{sT0}, s{sT0}, s{sWv}')
        for i in range(5):
            if i:
                a(f's_add_u32 s{sSrc + i}, s{sSrc + i - 1}, 128')
                a(f's_add_u32 s{sT0}, s{sT0}, 4')
            split5(a, sT0, sT1, sT2, sT3)
            a(f's_mul_i32 s{sT1}, s{sT1}, {W2G}')
            a(f's_lshl_b32 s{sT2}, s{sT2}, 10')
            a(f's_add_u32 s{sT1}, s{sT1}, s{sT2}')
            a(f's_add_u32 s{sDst + i}, s{sT1}, s{sSA}')
        a(f's_movk_i32 s{sT0}, 1280')
        a.label(Lv12)
        a(f's_lshl_b32 s{sT1}, s{sWv}, 3')
        a(f'v_add_u32 v{vT[0]}, s{sT1}, v{vT[0]}')
        a(f'v_mad_u32_u24 v{vRP}, v{vT[0]}, s{sT0}, v{vT[1]}')
        for i in range(1, 5):
            a(f'v_mov_b32 v{vRP + i}, v{vRP}')
        if True:
            a(f's_branch {Lrd}')
            a.label(Lwo)
            srd(a, sR, P_WO, 0, D * D * 2)
            a(f's_sub_u32 s{sT0}, s2, 216')
            a(f's_mul_i32 s{sT1}, s{sT0}, 205')
            a(f's_lshr_b32 s{sT1}, s{sT1}, 11')
            a(f's_mul_i32 s{sT2}, s{sT1}, 10')
            a(f's_sub_u32 s{sT0}, s{sT0}, s{sT2}')
            a(f's_mul_i32 s{sSrc}, s{sT1}, {160 * 1280}')
            a(f's_mul_i32 s{sT2}, s{sWv}, {5 * 1280}')
            a(f's_add_u32 s{sSrc}, s{sSrc}, s{sT2}')
            a(f's_lshl_b32 s{sT2}, s{sT0}, 7')
            a(f's_add_u32 s{sSrc}, s{sSrc}, s{sT2}')
            a(f's_mul_i32 s{sSA}, s{sT1}, 25600')
            a(f's_add_u32 s{sSA}, s{sSA}, {WOP_OFF}')
            a(f's_lshl_b32 s{sT0}, s{sT0}, 2')
            a(f's_add_u32 s{sT0}, s{sT0}, s{sWv}')
            split5(a, sT0, sT1, sT2, sT3)
            a(f's_mul_i32 s{sT1}, s{sT1}, 102400')
            a(f's_lshl_b32 s{sT2}, s{sT2}, 10')
            a(f's_add_u32 s{sT1}, s{sT1}, s{sT2}')
            a(f's_add_u32 s{sDst}, s{sT1}, s{sSA}')
            a(f's_movk_i32 s{sT0}, 1280')
            for i in range(5):
                if i:
                    a(f's_mov_b32 s{sSrc + i}, s{sSrc}')
                    a(f's_add_u32 s{sDst + i}, s{sDst + i - 1}, 5120')
                a(f'v_add_u32 v{vT[2]}, {8 * i}, v{vT[0]}')
                a(f'v_mul_u32_u24 v{vT[3]}, 205, v{vT[2]}')
                a(f'v_lshrrev_b32 v{vT[3]}, 10, v{vT[3]}')
                a(f'v_mad_u32_u24 v{vT[2]}, v{vT[3]}, 15, v{vT[2]}')
                a(f'v_mad_u32_u24 v{vRP + i}, v{vT[2]}, s{sT0}, v{vT[1]}')
            a.label(Lrd)
        a(f's_xor_b32 s{sT0}, s{sRh}, s{sCh}')
        a(f'v_lshrrev_b32 v{vT[0]}, 3, v{vR}')
        a(f'v_lshlrev_b32 v{vT[0]}, 10, v{vT[0]}')
        a(f'v_and_b32 v{vT[1]}, 7, v{vR}')
        a(f'v_lshl_add_u32 v{vT[0]}, v{vT[1]}, 7, v{vT[0]}')
        a(f's_mul_i32 s{sT1}, s{sRh}, {TR * 2048}')
        a(f'v_add_u32 v{vT[0]}, s{sT1}, v{vT[0]}')
        a(f'v_lshrrev_b32 v{vT[1]}, 1, v{vR}')
        a(f'v_xor_b32 v{vT[1]}, v{vT[1]}, v{vG}')
        a(f's_lshl_b32 s{sT1}, s{sT0}, 2')
        a(f'v_xor_b32 v{vT[1]}, s{sT1}, v{vT[1]}')
        a(f'v_lshl_add_u32 v{vAb}, v{vT[1]}, 4, v{vT[0]}')
        a(f'v_xor_b32 v{vT[1]}, 4, v{vT[1]}')
        a(f'v_lshl_add_u32 v{vAb + 1}, v{vT[1]}, 4, v{vT[0]}')
        a(f'v_bfe_u32 v{vT[0]}, v{vL}, 2, 2')
        a(f'v_and_b32 v{vT[1]}, 3, v{vL}')
        a(f'v_lshl_add_u32 v{vT[2]}, v{vG}, 3, v{vT[0]}')
        a(f'v_and_b32 v{vT[3]}, 1, v{vG}')
        if kv:
            a(f'v_mul_u32_u24 v{vT[2]}, 320, v{vT[2]}')
            a(f'v_lshl_add_u32 v{vT[2]}, v{vT[1]}, 3, v{vT[2]}')
            a(f's_mul_i32 s{sT1}, s{sCh}, 160')
            a(f's_add_u32 s{sT1}, s{sT1}, {BOFF}')
            a(f'v_add_u32 v{vT[2]}, s{sT1}, v{vT[2]}')
            a(f'v_lshlrev_b32 v{vT[3]}, 5, v{vT[3]}')
            a(f'v_add_u32 v{vT[4]}, v{vT[2]}, v{vT[3]}')
            a(f'v_sub_u32 v{vT[5]}, v{vT[2]}, v{vT[3]}')
            a(f's_cmp_eq_u32 s{sCh}, 0')
            a(f's_cselect_b64 s[{sM0}:{sM0 + 1}], -1, 0')
            a(f'v_cndmask_b32 v{vT[2]}, v{vT[5]}, v{vT[4]}, s[{sM0}:{sM0 + 1}]')
            a(f'v_cndmask_b32 v{vT[3]}, v{vT[4]}, v{vT[5]}, s[{sM0}:{sM0 + 1}]')
            a(f's_mul_i32 s{sT1}, s{sT0}, 10240')
            a(f's_sub_u32 s{sT2}, 10240, s{sT1}')
            for o, sreg in ((0, sT1), (1, sT2)):
                a(f'v_add_u32 v{vBb + 2 * o}, s{sreg}, v{vT[2]}')
                a(f'v_add_u32 v{vBb + 2 * o + 1}, s{sreg}, v{vT[3]}')
        else:
            a(f'v_lshl_or_b32 v{vT[0]}, v{vT[3]}, 2, v{vT[0]}')
            a(f's_lshl_b32 s{sT1}, s{sCh}, 2')
            a(f'v_xor_b32 v{vT[0]}, s{sT1}, v{vT[0]}')
            a(f'v_lshlrev_b32 v{vT[2]}, 8, v{vT[2]}')
            a(f'v_lshl_add_u32 v{vT[2]}, v{vT[1]}, 3, v{vT[2]}')
            a(f's_lshl_b32 s{sT1}, s{sT0}, 13')
            a(f's_sub_u32 s{sT2}, {8192 + BOFF}, s{sT1}')
            a(f's_add_u32 s{sT1}, s{sT1}, {BOFF}')
            for t in range(4):
                a(f'v_xor_b32 v{vT[3]}, {t}, v{vT[0]}')
                a(f'v_lshl_add_u32 v{vT[3]}, v{vT[3]}, 5, v{vT[2]}')
                a(f'v_add_u32 v{vBb + t}, s{sT1}, v{vT[3]}')
                a(f'v_add_u32 v{vBb + 4 + t}, s{sT2}, v{vT[3]}')

        def set_cur(order):
            g = [[f'v_add_u32 v{vAc + order}, s{sSlotR}, v{vAb + order}']]
            for t in range(NBA):
                g.append([f'v_add_u32 v{vBc + NBA * order + t}, s{sSlotR}, v{vBb + NBA * order + t}'])
            return g
        adv = [[f's_add_u32 s{sSlotR}, s{sSlotR}, {RING}', f's_and_b32 s{sSlotR}, s{sSlotR}, {4 * RING - 1}']]

        def reads(o):
            f = fr[o]
            lst = []
            for t in range(TR):
                lst.append(f'ds_read_b128 v[{f + 4 * t}:{f + 4 * t + 3}], v{vAc + o} offset:{2048 * t}')
            for t in range(TC):
                b = f + 4 * TR + 4 * t
                for j in range(2):
                    if kv:
                        lst.append(f'ds_read_b64_tr_b16 v[{b + 2 * j}:{b + 2 * j + 1}], v{vBc + 2 * o + (t & 1)} offset:{32 * t + 1280 * j}')
                    else:
                        lst.append(f'ds_read_b64_tr_b16 v[{b + 2 * j}:{b + 2 * j + 1}], v{vBc + 4 * o + t} offset:{1024 * j}')
            return lst

        def mfmas(o, extras_first=False):
            f = fr[o]
            lst = []; ex = []
            A = lambda t: f'v[{f + 4 * t}:{f + 4 * t + 3}]'
            B = lambda t: f'v[{f + 4 * TR + 4 * t}:{f + 4 * TR + 4 * t + 3}]'
            ones = f'v[{vOnes}:{vOnes + 3}]'
            M = 'v_mfma_f32_16x16x32_bf16'
            for tc in range(TC):
                for tr in range(TR):
                    d = acc + 4 * (tr * TC + tc)
                    x, y = (A(tr), B(tc)) if kv else (B(tc), A(tr))
                    lst.append(f'{M} v[{d}:{d + 3}], {x}, {y}, v[{d}:{d + 3}]')
            if o == 0:
                for tr in range(TR):
                    d = s1 + 4 * tr
                    x, y = (A(tr), ones) if kv else (ones, A(tr))
                    ex.append(f'{M} v[{d}:{d + 3}], {x}, {y}, v[{d}:{d + 3}]')
                    d = s2 + 4 * tr
                    ex.append(f'{M} v[{d}:{d + 3}], {A(tr)}, {A(tr)}, v[{d}:{d + 3}]')
            else:
                for tc in range(TC):
                    d = cs + 4 * tc
                    x, y = (ones, B(tc)) if kv else (B(tc), ones)
                    ex.append(f'{M} v[{d}:{d + 3}], {x}, {y}, v[{d}:{d + 3}]')
            return ex + lst if extras_first else lst + ex

        a(f's_mov_b32 s{sSlotR}, 0')
        a(f's_lshl_b32 s{sIt}, s{sRb}, 8')
        emit(set_cur(0))
        emit(set_cur(1))
        emit(sg)
        a.stamp(2)
        a(f's_waitcnt vmcnt({2 * NST})')
        a('s_barrier')
        a.stamp(3)
        for r_ in reads(0):
            a(r_)
        H = NST // 2
        emit(sg[:H])

        def mix(x, y):
            out = []
            x = list(x); y = list(y)
            while x or y:
                if x: out.append(x.pop(0))
                if y: out.append(y.pop(0))
            return out
        LA = a.newlabel('LA'); Lb = a.newlabel('Lb')
        a('s_waitcnt lgkmcnt(0)')
        a.label(LA)
        spread(a, mfmas(0), reads(1), mix(sg[H:], adv + set_cur(0)), start=2)
        a(f's_waitcnt vmcnt({2 * NST}) lgkmcnt(0)')
        a('s_barrier')
        if kv:
            a(f's_cmp_lg_u32 s{sIt}, 0x{21 << 8 | 2:x}')
            a(f's_cbranch_scc1 {Lb}')
            a(f's_lshl_b32 s{sT1}, s{sHg}, 2')
            a(f's_add_u32 s{sT1}, s{sT1}, s{sWv}')
            a(f's_lshl_b32 s{sT1}, s{sT1}, 2')
            a(f'v_mov_b32 v{vT[0]}, s{sT1}')
            a(f'v_mov_b32 v{vT[1]}, 1')
            a('s_mov_b64 exec, 1')
            a(f'global_store_dword v{vT[0]}, v{vT[1]}, s[{P_DBG}:{P_DBG + 1}] sc1')
            a('s_mov_b64 exec, -1')
            a.label(Lb)
        tail = [[f's_add_u32 s{sIt}, s{sIt}, 1', f's_and_b32 s{sT0}, s{sIt}, 0xff']]
        spread(a, mfmas(1), reads(0), mix(sg[:H], set_cur(1) + tail), start=2)
        a.lap(f's{sT0}')
        a(f's_cmp_lt_u32 s{sT0}, 6')
        a('s_waitcnt lgkmcnt(0)')
        a(f's_cbranch_scc1 {LA}')
        rl = []
        for i in range(5):
            rl.append(([f's_lshl_b32 s{sT1}, s{sWv}, 10'] if i == 0 else []) +
                      [f's_add_u32 m0, s{sT1}, {RP_LDS + 4096 * i}', 's_nop 0',
                       f'buffer_load_dwordx4 v{vRP + i}, s[{sR}:{sR + 3}], s{sSrc + i} offen lds'])
        NR = 16 * TR * 2
        NC = 16 * TC * 2
        ST1, ST2, CSP, AA, BB = 0, 1024, 2048, 4096, 4608
        for it in range(6, 9):
            spread(a, mfmas(0), reads(1), mix(sg[H:] if it == 6 else [], adv + set_cur(0)), start=2)
            n = {6: 2 * NST, 7: NST + 5, 8: 5}[it]
            a(f's_waitcnt vmcnt({n}) lgkmcnt(0)')
            a('s_barrier')
            spread(a, mfmas(1), reads(0), mix(rl if it == 6 else [], set_cur(1)), start=2)
            a.lap(it + 1)
            a('s_waitcnt lgkmcnt(0)')
        g1 = [[f's_mov_b32 s{sM0}, 0x22222222', f's_mov_b32 s{sM0 + 1}, 0x22222222', f's_mov_b32 s{sM1}, 0x44444444',
               f's_mov_b32 s{sM1 + 1}, 0x44444444', f's_mov_b32 s{sM2}, 0x88888888', f's_mov_b32 s{sM2 + 1}, 0x88888888'],
              [f's_mul_i32 s{sT1}, s{sCh}, {NR * 4}', f's_mul_i32 s{sT2}, s{sRh}, {TR * 64}', f's_add_u32 s{sT1}, s{sT1}, s{sT2}',
               f'v_lshl_add_u32 v{vT[0]}, v{vR}, 2, s{sT1}', f'v_lshl_add_u32 v{vT[1]}, v{vG}, 4, s{sT1}']]
        for t in range(TR):
            d = s2 + 4 * t
            g1.append([f'v_cndmask_b32 v{d}, v{d}, v{d + 1}, s[{sM0}:{sM0 + 1}]',
                       f'v_cndmask_b32 v{d}, v{d}, v{d + 2}, s[{sM1}:{sM1 + 1}]',
                       f'v_cndmask_b32 v{d}, v{d}, v{d + 3}, s[{sM2}:{sM2 + 1}]'])
        w = ['s_mov_b32 exec_lo, 0x00F0000F', 's_mov_b32 exec_hi, 0xF0000F00']
        w += [f'ds_write_b32 v{vT[0]}, v{s2 + 4 * t} offset:{ST2 + 64 * t}' for t in range(TR)]
        if kv:
            w += ['s_mov_b32 exec_lo, 0x00010001', 's_mov_b32 exec_hi, 0x00010001']
            w += [f'ds_write_b128 v{vT[1]}, v[{s1 + 4 * t}:{s1 + 4 * t + 3}] offset:{ST1 + 64 * t}' for t in range(TR)]
        else:
            w += ['s_mov_b64 exec, 0xffff']
            w += [f'ds_write_b32 v{vT[0]}, v{s1 + 4 * t} offset:{ST1 + 64 * t}' for t in range(TR)]
        w += ['s_mov_b64 exec, -1']
        g1.append(w)
        spread(a, mfmas(0, True), reads(1), g1, start=len(reads(1)))
        a('s_waitcnt vmcnt(0) lgkmcnt(0)')
        a('s_barrier')
        e = fr[0] + 24
        first = [f'v_lshlrev_b32 v{vT[0]}, 2, v0',
                 f'ds_read_b32 v{e}, v{vT[0]} offset:{ST1}', f'ds_read_b32 v{e + 1}, v{vT[0]} offset:{ST1 + NR * 4}',
                 f'ds_read_b32 v{e + 2}, v{vT[0]} offset:{ST2}', f'ds_read_b32 v{e + 3}, v{vT[0]} offset:{ST2 + NR * 4}']
        g2 = [[f'v_lshlrev_b32 v{vT[4]}, 10, v{vG}', f'v_bfe_u32 v{vT[5]}, v{vL}, 2, 2', f'v_lshl_add_u32 v{vT[4]}, v{vT[5]}, 7, v{vT[4]}'],
              [f'v_and_b32 v{vT[5]}, 3, v{vL}', f'v_lshl_add_u32 v{vT[4]}, v{vT[5]}, 4, v{vT[4]}',
               f's_lshl_b32 s{sT1}, s{sRh}, 6', f's_lshl_b32 s{sT2}, s{sCh}, 3', f's_add_u32 s{sT1}, s{sT1}, s{sT2}',
               f's_add_u32 s{sT1}, s{sT1}, {RP_LDS}', f'v_add_u32 v{vT[4]}, s{sT1}, v{vT[4]}']]
        sub = Asm()
        sub('s_waitcnt lgkmcnt(0)')
        sub(f'v_add_f32 v{e}, v{e}, v{e + 1}')
        sub(f'v_add_f32 v{e + 2}, v{e + 2}, v{e + 3}')
        sub(f'v_mul_f32 v{e}, 0x3acccccd, v{e}')
        sub(f'v_mul_f32 v{e + 2}, 0x3acccccd, v{e + 2}')
        sub(f'v_fma_f32 v{e + 2}, -v{e}, v{e}, v{e + 2}')
        ln_stats(sub, e, e + 2, e + 1)
        st = [i.text for i in sub.items]
        rr = []
        for i in range(5):
            for j in range(2):
                b = fr[0] + 4 * i + 2 * j
                rr.append(f'ds_read_b64_tr_b16 v[{b}:{b + 1}], v{vT[4]} offset:{4096 * i + 512 * j}')
        k = 0
        while st or rr:
            g_ = st[:3] + rr[:2]
            st = st[3:]; rr = rr[2:]
            g2.append(g_)
        cw = [f's_mul_i32 s{sT1}, s{sRh}, {NC * 4}', f's_mul_i32 s{sT2}, s{sCh}, {TC * 64}', f's_add_u32 s{sT1}, s{sT1}, s{sT2}']
        if kv:
            cw += [f'v_lshl_add_u32 v{vT[2]}, v{vR}, 2, s{sT1}', 's_mov_b64 exec, 0xffff']
            cw += [f'ds_write_b32 v{vT[2]}, v{cs + 4 * t} offset:{CSP + 64 * t}' for t in range(TC)]
        else:
            cw += [f'v_lshl_add_u32 v{vT[2]}, v{vG}, 4, s{sT1}', 's_mov_b32 exec_lo, 0x00010001', 's_mov_b32 exec_hi, 0x00010001']
            cw += [f'ds_write_b128 v{vT[2]}, v[{cs + 4 * t}:{cs + 4 * t + 3}] offset:{CSP + 64 * t}' for t in range(TC)]
        cw += ['s_mov_b64 exec, -1']
        g2.append(cw)
        g2.append([f'v_cmp_gt_u32 vcc, {NR}, v0', f's_and_saveexec_b64 s[{sM0}:{sM0 + 1}], vcc',
                   f'ds_write_b32 v{vT[0]}, v{e + 1} offset:{AA}', f'ds_write_b32 v{vT[0]}, v{e} offset:{BB}', 's_mov_b64 exec, -1'])
        spread(a, mfmas(1, True), first, g2, start=5)
        a.stamp(4)
        if kv:
            a(f's_lshl_b32 s{sT1}, s{sHg}, 2')
            a(f's_add_u32 s{sT1}, s{sT1}, s{sWv}')
            a(f's_lshl_b32 s{sT1}, s{sT1}, 2')
            a(f'v_mov_b32 v{vT[6]}, s{sT1}')
            a(f'global_load_dword v{vT[7]}, v{vT[6]}, s[{P_DBG}:{P_DBG + 1}] sc1')
        a(f'v_lshlrev_b32 v{vT[1]}, 4, v{vL}')
        a('s_waitcnt lgkmcnt(0)')
        a('s_barrier')
        for i in range(5):
            b = fr[0] + 4 * i
            a(f'buffer_store_dwordx4 v[{b}:{b + 3}], v{vT[1]}, s[{sWS}:{sWS + 3}], s{sDst + i} offen{RPST}')
        Lncs = a.newlabel('Lncs')
        a('s_cmp_ge_u32 s2, 108')
        a(f's_cbranch_scc1 {Lncs}')
        dd = fr[0] + 20
        for i in range(5):
            b = fr[0] + 4 * i
            c = '0' if i == 0 else f'v[{dd}:{dd + 3}]'
            a(f'v_mfma_f32_16x16x32_bf16 v[{dd}:{dd + 3}], v[{b}:{b + 3}], v[{vOnes}:{vOnes + 3}], {c}')
        a(f'v_lshlrev_b32 v{vT[0]}, 4, v{vG}')
        a('s_mov_b32 exec_lo, 0x00010001'); a('s_mov_b32 exec_hi, 0x00010001')
        a(f'buffer_store_dwordx4 v[{dd}:{dd + 3}], v{vT[0]}, s[{sWS}:{sWS + 3}], s{sCsD} offen{RPST}')
        a('s_mov_b64 exec, -1')
        a.label(Lncs)
        a('s_nop 1')
        if EPI:
            a.stamp(1)
        vC = va.get(6, 2)
        for i, c in enumerate((LOG2E, LOG2E, 0x3f800000, 0x3f800000, 0x358637bd, 0x358637bd)):
            a(f'v_mov_b32 v{vC + i}, 0x{c:x}')

        def phi_pair(t, u, p):
            a(f'v_pk_mul_f32 v[{u}:{u + 1}], v[{t}:{t + 1}], v[{vC}:{vC + 1}]')
            a(f'v_pk_add_f32 v[{p}:{p + 1}], v[{t}:{t + 1}], v[{vC + 2}:{vC + 3}]')
            a(f'v_exp_f32 v{u}, v{u}')
            a(f'v_exp_f32 v{u + 1}, v{u + 1}')
            a(f'v_med3_f32 v{u}, v{u}, v{p}, 1.0')
            a(f'v_med3_f32 v{u + 1}, v{u + 1}, v{p + 1}, 1.0')

        if kv:
            ra = fr[0]; rb_ = fr[0] + 12; rc = fr[1]
            a(f's_mul_i32 s{sT1}, s{sRh}, {TR * 64}')
            a(f'v_lshl_add_u32 v{vT[0]}, v{vG}, 4, s{sT1}')
            a(f's_mul_i32 s{sT1}, s{sCh}, {TC * 64}')
            a(f'v_lshl_add_u32 v{vT[1]}, v{vR}, 2, s{sT1}')
            for t in range(TR):
                a(f'ds_read_b128 v[{ra + 4 * t}:{ra + 4 * t + 3}], v{vT[0]} offset:{AA + 64 * t}')
                a(f'ds_read_b128 v[{rb_ + 4 * t}:{rb_ + 4 * t + 3}], v{vT[0]} offset:{BB + 64 * t}')
            for t in range(TC):
                a(f'ds_read_b32 v{rc + 2 * t}, v{vT[1]} offset:{CSP + 64 * t}')
                a(f'ds_read_b32 v{rc + 2 * t + 1}, v{vT[1]} offset:{CSP + NC * 4 + 64 * t}')
            tmp = fr[1] + 12
            pk = s1
            a(f's_mov_b32 s{sK}, 0x00ff00ff'); a(f's_mov_b32 s{sK + 1}, 0x00ff00ff')
            a('s_waitcnt lgkmcnt(0)')
            for t in range(TC):
                a(f'v_add_f32 v{rc + 2 * t}, v{rc + 2 * t}, v{rc + 2 * t + 1}')
            for tc in range(TC):
                for tr in range(TR):
                    for h in range(2):
                        d = acc + 4 * (tr * TC + tc) + 2 * h
                        w = tmp
                        a(f'v_pk_mul_f32 v[{w}:{w + 1}], v[{rb_ + 4 * tr + 2 * h}:{rb_ + 4 * tr + 2 * h + 1}], v[{rc + 2 * tc}:{rc + 2 * tc + 1}] op_sel_hi:[1,0]')
                        a(f'v_pk_fma_f32 v[{d}:{d + 1}], v[{d}:{d + 1}], v[{ra + 4 * tr + 2 * h}:{ra + 4 * tr + 2 * h + 1}], v[{w}:{w + 1}]')
                        dst = pk + 8 * tc + 2 * tr + h
                        if tc <= 2:
                            u, p = tmp + 2, tmp + 4
                            phi_pair(d, u, p)
                            a(f'v_pk_add_f32 v[{u}:{u + 1}], v[{u}:{u + 1}], v[{vC + 4}:{vC + 5}]')
                            if tc == 2:
                                a(f'v_cndmask_b32 v{u}, v{d}, v{u}, s[{sK}:{sK + 1}]')
                                a(f'v_cndmask_b32 v{u + 1}, v{d + 1}, v{u + 1}, s[{sK}:{sK + 1}]')
                            a(f'v_cvt_pk_bf16_f32 v{dst}, v{u}, v{u + 1}')
                        else:
                            a(f'v_cvt_pk_bf16_f32 v{dst}, v{d}, v{d + 1}')
            pairs = [(0, 2), (0, 3), (1, 2), (1, 3), (1, 4), (2, 3), (2, 4)]
            kd = acc
            Lval = a.newlabel('Lval'); Lno16 = a.newlabel('Lno16')
            a(f's_cmp_eq_u32 s{sRb}, 21')
            a(f's_cselect_b32 s{sT1}, 1, 0')
            a(f's_and_b32 s{sT2}, s{sT1}, s{sRh}')
            a(f's_cmp_eq_u32 s{sT2}, 1')
            a(f's_cbranch_scc0 {Lval}')
            for i in range(40):
                a(f'v_mov_b32 v{kd + i}, 0')
            a(f's_branch {Lno16}')
            a.label(Lval)
            P4 = lambda t: f'v[{pk + 8 * t}:{pk + 8 * t + 3}]'
            P2 = lambda t: f'v[{pk + 8 * t + 4}:{pk + 8 * t + 5}]'
            for n, (tk, tv) in enumerate(pairs):
                d = kd + 4 * n
                a(f'v_mfma_f32_16x16x32_bf16 v[{d}:{d + 3}], {P4(tv)}, {P4(tk)}, 0')
            for tk in range(3):
                d = kd + 4 * (7 + tk)
                a(f'v_mfma_f32_16x16x32_bf16 v[{d}:{d + 3}], v[{vOnes}:{vOnes + 3}], {P4(tk)}, 0')
            a(f's_cmp_eq_u32 s{sT1}, 1')
            a(f's_cbranch_scc1 {Lno16}')
            for n, (tk, tv) in enumerate(pairs):
                d = kd + 4 * n
                a(f'v_mfma_f32_16x16x16_bf16 v[{d}:{d + 3}], {P2(tv)}, {P2(tk)}, v[{d}:{d + 3}]')
            for tk in range(3):
                d = kd + 4 * (7 + tk)
                a(f'v_mfma_f32_16x16x16_bf16 v[{d}:{d + 3}], v[{vOnes}:{vOnes + 1}], {P2(tk)}, v[{d}:{d + 3}]')
            a.label(Lno16)
            cp = fr[0]; rp = fr[0] + 3; ad = fr[0] + 6
            a(f's_mul_i32 s{sT1}, s{sWv}, {2 * KV_HS}')
            a(f's_add_u32 s{sT1}, s{sT1}, {KVA_LDS}')

            def lane_mask(fn):
                m = 0
                for l in range(64):
                    if fn(l >> 4, l & 15):
                        m |= 1 << l
                return m
            for tk in range(3):
                a(f'v_add_u32 v{cp + tk}, {16 * tk}, v{vR}')
                a(f'v_subrev_u32 v{vT[0]}, 20, v{cp + tk}')
                a(f'v_min_u32 v{cp + tk}, v{cp + tk}, v{vT[0]}')
                a(f'v_lshl_add_u32 v{cp + tk}, v{cp + tk}, 2, s{sT1}')
            for tv in range(2, 5):
                x = rp + tv - 2
                a(f'v_lshlrev_b32 v{x}, 2, v{vG}')
                a(f'v_add_u32 v{x}, {16 * tv - 40}, v{x}')
                a(f'v_cmp_le_i32 vcc, 20, v{x}')
                a(f'v_mul_i32_i24 v{x}, 80, v{x}')
                a(f'v_add_u32 v{vT[0]}, 192, v{x}')
                a(f'v_cndmask_b32 v{x}, v{x}, v{vT[0]}, vcc')
            for n, (tk, tv) in enumerate(pairs):
                m = lane_mask(lambda g, j: (16 * tk + j) < 40 and 0 <= (16 * tv + 4 * g - 40) and (16 * tk + j) // 20 == (16 * tv + 4 * g - 40) // 20)
                a(f'v_add_u32 v{ad}, v{cp + tk}, v{rp + tv - 2}')
                a(f's_mov_b32 exec_lo, 0x{m & 0xffffffff:x}'); a(f's_mov_b32 exec_hi, 0x{m >> 32:x}')
                for r in range(4):
                    a(f'ds_write_b32 v{ad}, v{kd + 4 * n + r} offset:{80 * r}')
                a('s_mov_b64 exec, -1')
            for tk in range(3):
                for hh in range(2):
                    m = lane_mask(lambda g, j: g == 0 and (16 * tk + j) < 40 and (16 * tk + j) // 20 == hh)
                    if not m:
                        continue
                    a(f's_mov_b32 exec_lo, 0x{m & 0xffffffff:x}'); a(f's_mov_b32 exec_hi, 0x{m >> 32:x}')
                    a(f'ds_write_b32 v{cp + tk}, v{kd + 4 * (7 + tk)} offset:{1600 + hh * KV_HS}')
            a('s_mov_b64 exec, -1')
            if EPI:
                a.stamp(2)
            a('s_waitcnt lgkmcnt(0)')
            a('s_barrier')
            a(f's_mul_i32 s{sT1}, s{sWv}, {KV_HS}')
            a(f's_add_u32 s{sT2}, s{sT1}, {KVA_LDS}')
            a(f'v_lshlrev_b32 v{vT[0]}, 2, v{vL}')
            a(f'v_add_u32 v{vT[1]}, s{sT2}, v{vT[0]}')
            for i in range(7):
                a(f'ds_read_b32 v{fr[0] + i}, v{vT[1]} offset:{256 * i}')
                a(f'ds_read_b32 v{fr[0] + 8 + i}, v{vT[1]} offset:{256 * i + 4 * KV_HS}')
            a(f's_mul_i32 s{sT2}, s{sHg}, {4 * KV_HS}')
            a(f's_add_u32 s{sT1}, s{sT1}, s{sT2}')
            a(f's_add_u32 s{sT1}, s{sT1}, {KV_OFF}')
            Lpoll = a.newlabel('Lpoll'); Lgo = a.newlabel('Lgo')
            a(f's_mov_b32 s{sIt}, 0')
            a.label(Lpoll)
            a('s_waitcnt vmcnt(0)')
            a(f'v_readfirstlane_b32 s{sT2}, v{vT[7]}')
            a(f's_cmp_eq_u32 s{sT2}, 1')
            a(f's_cbranch_scc1 {Lgo}')
            a(f's_add_u32 s{sIt}, s{sIt}, 1')
            a(f's_cmp_ge_u32 s{sIt}, 100000')
            a(f's_cbranch_scc1 {Lgo}')
            a('s_sleep 2')
            a(f'global_load_dword v{vT[7]}, v{vT[6]}, s[{P_DBG}:{P_DBG + 1}] sc1')
            a(f's_branch {Lpoll}')
            a.label(Lgo)
            a('s_waitcnt lgkmcnt(0)')
            if EPI:
                a.stamp(3)
            for i in range(7):
                a(f'v_add_f32 v{fr[0] + i}, v{fr[0] + i}, v{fr[0] + 8 + i}')
            for i in range(7):
                if i == 6:
                    a('s_mov_b32 exec_lo, -1'); a('s_mov_b32 exec_hi, 0xf')
                a(f'buffer_atomic_add_f32 v{fr[0] + i}, v{vT[0]}, s[{sWS}:{sWS + 3}], s{sT1} offen offset:{256 * i}')
            if a.diag is not None:
                a('s_waitcnt vmcnt(0)')
            a.stamp_flush(sWv, P_WS, TS_OFF)
            a('s_endpgm')
        else:
            ra = fr[0]; rb_ = fr[0] + 8; rc = fr[1]
            a(f's_mul_i32 s{sT1}, s{sRh}, {TR * 64}')
            a(f'v_lshl_add_u32 v{vT[0]}, v{vR}, 2, s{sT1}')
            a(f's_mul_i32 s{sT1}, s{sCh}, {TC * 64}')
            a(f'v_lshl_add_u32 v{vT[1]}, v{vG}, 4, s{sT1}')
            for t in range(TR):
                a(f'ds_read_b32 v{ra + 2 * t}, v{vT[0]} offset:{AA + 64 * t}')
                a(f'ds_read_b32 v{rb_ + 2 * t}, v{vT[0]} offset:{BB + 64 * t}')
            for t in range(TC):
                a(f'ds_read_b128 v[{rc + 4 * t}:{rc + 4 * t + 3}], v{vT[1]} offset:{CSP + 64 * t}')
                a(f'ds_read_b128 v[{cs + 4 * t}:{cs + 4 * t + 3}], v{vT[1]} offset:{CSP + NC * 4 + 64 * t}')
            a(f'v_and_b32 v{vT[2]}, 1, v{vG}')
            a(f'v_lshrrev_b32 v{vT[3]}, 1, v{vG}')
            a(f'v_lshl_or_b32 v{vT[2]}, v{vT[2]}, 1, v{vT[3]}')
            a(f'v_lshlrev_b32 v{vT[2]}, 8, v{vT[2]}')
            a(f'v_lshl_add_u32 v{vT[2]}, v{vR}, 4, v{vT[2]}')
            a(f's_lshl_b32 s{sT1}, s{sRb}, 3')
            a(f's_lshl_b32 s{sT2}, s{sRh}, 2')
            a(f's_add_u32 s{sT1}, s{sT1}, s{sT2}')
            a(f's_mul_i32 s{sT1}, s{sT1}, 20480')
            a(f's_lshl_b32 s{sT2}, s{sHg}, 12')
            a(f's_add_u32 s{sT1}, s{sT1}, s{sT2}')
            a(f's_lshl_b32 s{sT2}, s{sCh}, 11')
            a(f's_add_u32 s{sT1}, s{sT1}, s{sT2}')
            if PQ_OFF:
                a(f's_add_u32 s{sT1}, s{sT1}, {PQ_OFF}')
            tmp = fr[1] + 16
            a('s_waitcnt lgkmcnt(0)')
            for t in range(2 * TC):
                a(f'v_pk_add_f32 v[{rc + 2 * t}:{rc + 2 * t + 1}], v[{rc + 2 * t}:{rc + 2 * t + 1}], v[{cs + 2 * t}:{cs + 2 * t + 1}]')
            for tr in range(TR):
                for pr in range(2):
                    o = s1 + 4 * ((2 * tr + pr) % 8)
                    for tt in range(2):
                        tc = 2 * pr + tt
                        for h in range(2):
                            d = acc + 4 * (tr * TC + tc) + 2 * h
                            w = tmp + 6 * h
                            a(f'v_pk_mul_f32 v[{w}:{w + 1}], v[{rc + 4 * tc + 2 * h}:{rc + 4 * tc + 2 * h + 1}], v[{rb_ + 2 * tr}:{rb_ + 2 * tr + 1}] op_sel_hi:[1,0]')
                            a(f'v_pk_fma_f32 v[{d}:{d + 1}], v[{d}:{d + 1}], v[{ra + 2 * tr}:{ra + 2 * tr + 1}], v[{w}:{w + 1}] op_sel_hi:[1,0,1]')
                            u, p = w + 2, w + 4
                            phi_pair(d, u, p)
                            a(f'v_pk_add_f32 v[{u}:{u + 1}], v[{u}:{u + 1}], v[{vC + 4}:{vC + 5}]')
                            a(f'v_cvt_pk_bf16_f32 v{o + 2 * tt + h}, v{u}, v{u + 1}')
                    a(f'v_permlane16_swap_b32 v{o}, v{o + 2}')
                    a(f'v_permlane16_swap_b32 v{o + 1}, v{o + 3}')
                    a(f'buffer_store_dwordx4 v[{o}:{o + 3}], v{vT[2]}, s[{sWS}:{sWS + 3}], s{sT1} offen offset:{1024 * pr}{PQST}')
                if tr < TR - 1:
                    a(f's_add_u32 s{sT1}, s{sT1}, 20480')
            if a.diag is not None:
                a('s_waitcnt vmcnt(0)')
            a.stamp_flush(sWv, P_WS, TS_OFF)
            a.label(Lend)
            a('s_endpgm')
    a.raw(f'.p2align 4\n.type {name}_tab,@object\n{name}_tab:')
    for e in k1_table():
        a.raw('.long ' + ', '.join(str(x) for x in e))
```

```python
import os
from asmlib import *
from layout import *
from k1 import *

M16 = 'v_mfma_f32_16x16x32_bf16'
BIG = 0x7ff00000


def head(a, name, nwg, sWv, vL, vG, vR, vt):
    a.raw(f'.globl {name}\n.p2align 8\n.type {name},@function')
    a.label(name)
    a(f's_cmp_ge_u32 s2, {nwg}')
    a(f's_cbranch_scc1 {name}_end')
    a.stamp(0)
    load_args(a)
    a(f'v_and_b32 v{vL}, 63, v0')
    a(f'v_lshrrev_b32 v{vt}, 6, v0')
    a(f'v_readfirstlane_b32 s{sWv}, v{vt}')
    a(f'v_lshrrev_b32 v{vG}, 4, v{vL}')
    a(f'v_and_b32 v{vR}, 15, v{vL}')


def xsum_g(a, v, t):
    a(f'v_mov_b32 v{t}, v{v}')
    a(f'v_permlane32_swap_b32 v{v}, v{t}')
    a(f'v_add_f32 v{v}, v{v}, v{t}')
    a(f'v_mov_b32 v{t}, v{v}')
    a(f'v_permlane16_swap_b32 v{v}, v{t}')
    a(f'v_add_f32 v{v}, v{v}, v{t}')


def cg_blocks(a, sCg, sPb, sSb, sT):
    a(f's_mul_i32 s{sT}, s{sCg}, 5')
    a(f's_add_u32 s{sPb}, s{sT}, 1')
    a(f's_lshr_b32 s{sPb}, s{sPb}, 1')
    a(f's_add_u32 s{sSb}, s{sT}, 4')
    a(f's_bitcmp1_b32 s{sCg}, 0')
    a(f's_cselect_b32 s{sSb}, s{sT}, s{sSb}')


def add_residual(a, acc, res, out, tmp):
    for i in range(10):
        t = tmp + 4 * (i & 1)
        a(f'v_cvt_pk_bf16_f32 v{out + i}, v{acc + 2 * i}, v{acc + 2 * i + 1}')
        a(f'v_lshlrev_b32 v{t}, 16, v{out + i}')
        a(f'v_and_b32 v{t + 1}, 0xffff0000, v{out + i}')
        a(f'v_lshlrev_b32 v{t + 2}, 16, v{res + i}')
        a(f'v_and_b32 v{t + 3}, 0xffff0000, v{res + i}')
        a(f'v_pk_add_f32 v[{t}:{t + 1}], v[{t}:{t + 1}], v[{t + 2}:{t + 3}]')
        a(f'v_cvt_pk_bf16_f32 v{out + i}, v{t}, v{t + 1}')


K2_KV = 0
K2_RED = 4 * 14336
K2_LDS = K2_RED + 61440


def gen_k2(a, name):
    sX, sWS, sPQ = 36, 40, 44
    sa = RegAlloc('s', 48, 100)
    sWv = sa.get(); sRb = sa.get(); sCg = sa.get(); sPb = sa.get(); sSb = sa.get()
    sT0 = sa.get(); sT1 = sa.get(); sT2 = sa.get(); sT3 = sa.get()
    sRt = sa.get(4)
    va = RegAlloc('v', 1, 256)
    vL = va.get(); vG = va.get(); vR = va.get()
    vT = [va.get() for _ in range(8)]
    head(a, name, 256, sWv, vL, vG, vR, vT[0])
    vL16 = va.get(); vPQo = va.get()
    a(f's_and_b32 s{sT0}, s2, 7')
    a(f's_lshr_b32 s{sT1}, s2, 3')
    a(f's_and_b32 s{sCg}, s{sT1}, 7')
    a(f's_lshr_b32 s{sT1}, s{sT1}, 3')
    a(f's_lshl_b32 s{sRb}, s{sT0}, 2')
    a(f's_add_u32 s{sRb}, s{sRb}, s{sT1}')
    a(f'v_lshlrev_b32 v{vL16}, 4, v{vL}')
    a(f'v_mov_b32 v{vT[0]}, 0x{BIG:x}')
    a(f'v_cmp_gt_u32 vcc, 48, v{vL}')
    a(f'v_cndmask_b32 v{vPQo}, v{vT[0]}, v{vL16}, vcc')
    for i in range(4):
        a(f's_add_u32 s{sT0}, s{sWv}, {1 + i}')
        a(f's_and_b32 s{sT0}, s{sT0}, 3')
        a(f's_lshl_b32 s{sT1}, s{sRb}, 2')
        a(f's_add_u32 s{sT0}, s{sT0}, s{sT1}')
        a(f's_mul_i32 s{sT0}, s{sT0}, 20480')
        a(f's_mul_i32 s{sT1}, s{sWv}, 5120')
        a(f's_add_u32 s{sRt + i}, s{sT0}, s{sT1}')
    a('s_waitcnt lgkmcnt(0)')
    srd(a, sWS, P_WS, 0, WS_USED)
    srd(a, sPQ, P_WS, PQ_OFF, PQ_SZ)
    srd(a, sX, P_X, 0, S * D * 2)
    a.vm_reset()
    a.stamp(1)
    a(f's_mul_i32 s{sT0}, s{sWv}, 14336')
    a(f's_add_u32 s{sT1}, s{sT0}, {KV_OFF}')
    for i in range(14):
        if i % 4 == 0:
            a(f's_add_u32 m0, s{sT0}, {K2_KV + 1024 * i}')
            if i:
                a(f's_add_u32 s{sT1}, s{sT1}, 4096')
        a(f'buffer_load_dwordx4 v{vL16}, s[{sWS}:{sWS + 3}], s{sT1} offen offset:{1024 * (i & 3)} lds', tag='kv')
    aPQ = 0
    aWO = 128

    def load_pq(i):
        for hh in range(8):
            c = (20 * hh) // 8
            off = c * 256
            r = aPQ + 4 * (8 * i + hh)
            if off < 4096:
                a(f'buffer_load_dwordx4 a[{r}:{r + 3}], v{vPQo}, s[{sPQ}:{sPQ + 3}], s{sRt + i} offen offset:{off}', tag=f'pq{i}')
            else:
                a(f's_add_u32 s{sT0}, s{sRt + i}, 4096')
                a(f'buffer_load_dwordx4 a[{r}:{r + 3}], v{vPQo}, s[{sPQ}:{sPQ + 3}], s{sT0} offen offset:{off - 4096}', tag=f'pq{i}')
    load_pq(0)
    load_pq(1)
    a(f's_mul_i32 s{sT1}, s{sCg}, 102400')
    a(f's_mul_i32 s{sT2}, s{sWv}, 25600')
    a(f's_add_u32 s{sT1}, s{sT1}, s{sT2}')
    a(f's_add_u32 s{sT1}, s{sT1}, {WOP_OFF}')
    for f in range(25):
        if f and f % 4 == 0:
            a(f's_add_u32 s{sT1}, s{sT1}, 4096')
        r = aWO + 4 * f
        a(f'buffer_load_dwordx4 a[{r}:{r + 3}], v{vL16}, s[{sWS}:{sWS + 3}], s{sT1} offen offset:{1024 * (f & 3)}', tag='wo')
    load_pq(2)
    vKA = va.get(8)
    a(f'v_lshrrev_b32 v{vT[0]}, 2, v{vR}')
    a(f'v_and_b32 v{vT[1]}, 3, v{vR}')
    a(f'v_mad_u32_u24 v{vT[2]}, v{vT[0]}, 5, v{vT[1]}')
    a(f'v_mul_u32_u24 v{vT[2]}, 80, v{vT[2]}')
    a(f'v_mad_u32_u24 v{vT[3]}, v{vT[0]}, 5, 4')
    a(f'v_mov_b32 v{vT[4]}, 20')
    a(f'v_cmp_eq_u32 vcc, 1, v{vT[1]}')
    a(f'v_cndmask_b32 v{vT[3]}, v{vT[3]}, v{vT[4]}, vcc')
    a(f'v_mul_u32_u24 v{vT[3]}, 80, v{vT[3]}')
    a(f's_mul_i32 s{sT0}, s{sWv}, 14336')
    a(f's_add_u32 s{sT0}, s{sT0}, {K2_KV}')
    a(f's_add_u32 s{sT1}, s{sT0}, 1680')
    a(f'v_mov_b32 v{vT[5]}, s{sT1}')
    for tau in range(2):
        for par in range(2):
            for hf in range(2):
                x = vKA + tau * 4 + par * 2 + hf
                m = 0
                for l in range(64):
                    g, i = l >> 4, l & 15
                    uu = 2 * g - par + hf
                    ok = 0 <= uu <= 4 and (tau == 0 or (i & 3) < 2)
                    if ok:
                        m |= 1 << l
                a(f'v_lshl_add_u32 v{x}, v{vG}, 5, v{vT[2 + tau]}')
                a(f's_add_u32 s{sT1}, s{sT0}, {(hf - par) * 16 & 0xffffffff}')
                a(f'v_add_u32 v{x}, s{sT1}, v{x}')
                a(f's_mov_b32 vcc_lo, 0x{m & 0xffffffff:x}')
                a(f's_mov_b32 vcc_hi, 0x{m >> 32:x}')
                a(f'v_cndmask_b32 v{x}, v{vT[5]}, v{x}, vcc')
    load_pq(3)
    cg_blocks(a, sCg, sPb, sSb, sT0)
    vRes = va.get(12, 4)
    vXo = va.get()
    a(f's_lshl_b32 s{sT0}, s{sRb}, 2')
    a(f's_add_u32 s{sT0}, s{sT0}, s{sWv}')
    a(f's_mul_i32 s{sT1}, s{sT0}, {16 * 1280}')
    a(f'v_mul_u32_u24 v{vXo}, 1280, v{vR}')
    a(f'v_lshl_add_u32 v{vXo}, v{vG}, 4, v{vXo}')
    a(f's_lshl_b32 s{sT2}, s{sPb}, 6')
    a(f's_add_u32 s{sT2}, s{sT2}, s{sT1}')
    a(f'buffer_load_dwordx4 v[{vRes}:{vRes + 3}], v{vXo}, s[{sX}:{sX + 3}], s{sT2} offen', tag='x')
    a(f'buffer_load_dwordx4 v[{vRes + 4}:{vRes + 7}], v{vXo}, s[{sX}:{sX + 3}], s{sT2} offen offset:64', tag='x')
    a(f's_lshr_b32 s{sT2}, s{sSb}, 1')
    a(f's_lshl_b32 s{sT2}, s{sT2}, 6')
    a(f's_and_b32 s{sT3}, s{sSb}, 1')
    a(f's_lshl_b32 s{sT3}, s{sT3}, 3')
    a(f's_add_u32 s{sT2}, s{sT2}, s{sT3}')
    a(f's_add_u32 s{sT2}, s{sT2}, s{sT1}')
    a(f'buffer_load_dwordx2 v[{vRes + 8}:{vRes + 9}], v{vXo}, s[{sX}:{sX + 3}], s{sT2} offen', tag='x')

    acc = va.get(80, 4)
    kvT = va.get(64, 4)
    tmpk = va.get(32, 4)
    ofr = [va.get(20, 4) for _ in range(2)]
    vo = vT[6]
    a.stamp(2)
    a.vm_wait('kv')
    a.stamp(3)
    for hp in range(4):
        for hq in range(2):
            hh = 2 * hp + hq
            for tau in range(2):
                for hf in range(2):
                    t = tmpk + 16 * hq + 8 * tau + 4 * hf
                    a(f'ds_read_b128 v[{t}:{t + 3}], v{vKA + tau * 4 + (hh & 1) * 2 + hf} offset:{hh * KV_HS}')
        a('s_waitcnt lgkmcnt(0)')
        for hq in range(2):
            hh = 2 * hp + hq
            for tau in range(2):
                for q in range(4):
                    t = tmpk + 16 * hq + 8 * tau + 2 * q
                    a(f'v_cvt_pk_bf16_f32 v{kvT + 8 * hh + 4 * tau + q}, v{t}, v{t + 1}')
    vRW = vKA
    for i in range(3):
        a(f's_add_u32 s{sT0}, s{sWv}, {1 + i}')
        a(f's_and_b32 s{sT0}, s{sT0}, 3')
        a(f's_mul_i32 s{sT0}, s{sT0}, 15360')
        a(f's_add_u32 s{sT0}, s{sT0}, {K2_RED + 5120 * i}')
        a(f'v_add_u32 v{vRW + i}, s{sT0}, v{vL16}')

    def A_mfma(n):
        i, hh = n >> 3, n & 7
        d = tmpk + 8 * (n & 3)
        r = aPQ + 4 * n
        return [f'{M16} v[{d + 4 * tau}:{d + 4 * tau + 3}], v[{kvT + 8 * hh + 4 * tau}:{kvT + 8 * hh + 4 * tau + 3}], a[{r}:{r + 3}], 0' for tau in range(2)]

    def B_valu(n):
        i, hh = n >> 3, n & 7
        d = tmpk + 8 * (n & 3)
        o = ofr[i & 1]
        lst = [f'v_add_f32 v{d + 6}, 0x358637bd, v{d + 5}',
               f'v_rcp_f32 v{d + 6}, v{d + 6}']
        lst.append(f'v_pk_mul_f32 v[{d}:{d + 1}], v[{d}:{d + 1}], v[{d + 6}:{d + 7}] op_sel_hi:[1,0]')
        lst.append(f'v_pk_mul_f32 v[{d + 2}:{d + 3}], v[{d + 2}:{d + 3}], v[{d + 6}:{d + 7}] op_sel_hi:[1,0]')
        t0 = 5 * hh
        if hh % 2 == 0:
            lst.append(f'v_mul_f32 v{vo}, v{d + 4}, v{d + 6}')
            lst.append(f'v_cvt_pk_bf16_f32 v{o + t0 // 2}, v{d}, v{d + 1}')
            lst.append(f'v_cvt_pk_bf16_f32 v{o + t0 // 2 + 1}, v{d + 2}, v{d + 3}')
        else:
            lst.append(f'v_mul_f32 v{d + 4}, v{d + 4}, v{d + 6}')
            lst.append(f'v_cvt_pk_bf16_f32 v{o + (t0 - 1) // 2}, v{vo}, v{d}')
            lst.append(f'v_cvt_pk_bf16_f32 v{o + (t0 + 1) // 2}, v{d + 1}, v{d + 2}')
            lst.append(f'v_cvt_pk_bf16_f32 v{o + (t0 + 3) // 2}, v{d + 3}, v{d + 4}')
        return lst

    def C_mfma(i):
        o = ofr[i & 1]
        lst = []
        for m in range(5):
            for sg in range(5):
                d = acc + 20 * i + 4 * sg
                r = aWO + 4 * (5 * m + sg)
                c = '0' if m == 0 else f'v[{d}:{d + 3}]'
                lst.append(f'{M16} v[{d}:{d + 3}], a[{r}:{r + 3}], v[{o + 4 * m}:{o + 4 * m + 3}], {c}')
        return lst

    def send(i):
        return [f'ds_write_b128 v{vRW + i}, v[{acc + 20 * i + 4 * sg}:{acc + 20 * i + 4 * sg + 3}] offset:{1024 * sg}' for sg in range(5)]

    a.vm_wait('pq0')
    for n in range(2):
        for x in A_mfma(n):
            a(x)
    cq = []
    sq = []
    for n in range(32):
        i, hh = n >> 3, n & 7
        if hh == 0 and i >= 1:
            if i == 1:
                a.vm_wait('wo')
            assert not cq
            cq = C_mfma(i - 1)
            if i >= 2:
                sq = send(i - 2)
        if n + 2 < 32:
            if (n + 2) & 7 == 0:
                tg = f'pq{(n + 2) >> 3}'
                if tg in a.vm:
                    a.vm_wait(tg)
            for x in A_mfma(n + 2):
                a(x)
        bl = B_valu(n)
        k = 4 if hh == 7 else 3
        j = 0
        for x in bl:
            a(x)
            j += 1
            if cq and j % 2 == 0 and k > 0:
                a(cq.pop(0)); k -= 1
        while cq and k > 0:
            a(cq.pop(0)); k -= 1
        if sq and hh >= 1:
            a(sq.pop(0))
    assert not cq and not sq
    cq = C_mfma(3)
    sq = send(2)
    for k, x in enumerate(cq):
        a(x)
        if k >= 3 and k % 3 == 0 and sq:
            a(sq.pop(0))
    assert not sq
    a.stamp(4)
    a('s_waitcnt lgkmcnt(0)')
    a('s_barrier')
    a(f's_mul_i32 s{sT0}, s{sWv}, 15360')
    a(f's_add_u32 s{sT0}, s{sT0}, {K2_RED}')
    a(f'v_add_u32 v{vT[0]}, s{sT0}, v{vL16}')
    for k in range(15):
        a(f'ds_read_b128 v[{acc + 4 * k}:{acc + 4 * k + 3}], v{vT[0]} offset:{1024 * k}')
    own = acc + 60
    for p in range(3):
        a(f's_waitcnt lgkmcnt({10 - 5 * p})')
        for k in range(10):
            a(f'v_pk_add_f32 v[{own + 2 * k}:{own + 2 * k + 1}], v[{own + 2 * k}:{own + 2 * k + 1}], v[{acc + 20 * p + 2 * k}:{acc + 20 * p + 2 * k + 1}]')
    a.vm_wait('x')
    hout = kvT
    add_residual(a, own, vRes, hout, tmpk)
    a(f's_lshl_b32 s{sT0}, s{sRb}, 2')
    a(f's_add_u32 s{sT0}, s{sT0}, s{sWv}')
    a(f's_lshr_b32 s{sT1}, s{sT0}, 1')
    a(f's_mul_i32 s{sT1}, s{sT1}, 40960')
    a(f's_and_b32 s{sT2}, s{sT0}, 1')
    a(f's_lshl_b32 s{sT2}, s{sT2}, 10')
    a(f's_add_u32 s{sT1}, s{sT1}, s{sT2}')
    a(f's_add_u32 s{sT1}, s{sT1}, {HP_OFF}')
    a(f's_lshl_b32 s{sT2}, s{sPb}, 11')
    a(f's_add_u32 s{sT2}, s{sT2}, s{sT1}')
    a(f'buffer_store_dwordx4 v[{hout}:{hout + 3}], v{vL16}, s[{sWS}:{sWS + 3}], s{sT2} offen')
    a(f'buffer_store_dwordx4 v[{hout + 4}:{hout + 7}], v{vL16}, s[{sWS}:{sWS + 3}], s{sT2} offen offset:2048')
    a(f's_lshr_b32 s{sT2}, s{sSb}, 1')
    a(f's_lshl_b32 s{sT2}, s{sT2}, 11')
    a(f's_and_b32 s{sT3}, s{sSb}, 1')
    a(f's_lshl_b32 s{sT3}, s{sT3}, 3')
    a(f's_add_u32 s{sT2}, s{sT2}, s{sT3}')
    a(f's_add_u32 s{sT2}, s{sT2}, s{sT1}')
    a(f'buffer_store_dwordx2 v[{hout + 8}:{hout + 9}], v{vL16}, s[{sWS}:{sWS + 3}], s{sT2} offen')
    hf_ = acc
    for i in range(10):
        a(f'v_lshlrev_b32 v{hf_ + 2 * i}, 16, v{hout + i}')
        a(f'v_and_b32 v{hf_ + 2 * i + 1}, 0xffff0000, v{hout + i}')
    sm = tmpk
    a(f'v_pk_add_f32 v[{sm}:{sm + 1}], v[{hf_}:{hf_ + 1}], v[{hf_ + 2}:{hf_ + 3}]')
    for i in range(2, 10):
        a(f'v_pk_add_f32 v[{sm}:{sm + 1}], v[{sm}:{sm + 1}], v[{hf_ + 2 * i}:{hf_ + 2 * i + 1}]')
    a(f'v_add_f32 v{sm}, v{sm}, v{sm + 1}')
    xsum_g(a, sm, sm + 2)
    a(f'v_mul_f32 v{sm}, 0x3c4ccccd, v{sm}')
    a(f'v_sub_f32 v{sm + 2}, 0, v{sm}')
    for i in range(10):
        a(f'v_pk_add_f32 v[{hf_ + 2 * i}:{hf_ + 2 * i + 1}], v[{hf_ + 2 * i}:{hf_ + 2 * i + 1}], v[{sm + 2}:{sm + 3}] op_sel_hi:[1,0]')
    a(f'v_pk_mul_f32 v[{sm + 4}:{sm + 5}], v[{hf_}:{hf_ + 1}], v[{hf_}:{hf_ + 1}]')
    for i in range(1, 10):
        a(f'v_pk_fma_f32 v[{sm + 4}:{sm + 5}], v[{hf_ + 2 * i}:{hf_ + 2 * i + 1}], v[{hf_ + 2 * i}:{hf_ + 2 * i + 1}], v[{sm + 4}:{sm + 5}]')
    a(f'v_add_f32 v{sm + 1}, v{sm + 4}, v{sm + 5}')
    xsum_g(a, sm + 1, sm + 2)
    a(f's_lshl_b32 s{sT1}, s{sT0}, 10')
    a(f's_lshr_b32 s{sT2}, s{sCg}, 1')
    a(f's_lshl_b32 s{sT2}, s{sT2}, 8')
    a(f's_add_u32 s{sT1}, s{sT1}, s{sT2}')
    a(f's_and_b32 s{sT2}, s{sCg}, 1')
    a(f's_lshl_b32 s{sT2}, s{sT2}, 3')
    a(f's_add_u32 s{sT1}, s{sT1}, s{sT2}')
    a(f's_add_u32 s{sT1}, s{sT1}, {ST_OFF}')
    a('s_mov_b64 exec, 0xffff')
    a(f'buffer_store_dwordx2 v[{sm}:{sm + 1}], v{vL16}, s[{sWS}:{sWS + 3}], s{sT1} offen')
    if a.diag is not None:
        a('s_waitcnt vmcnt(0)')
    a.stamp_flush(sWv, P_WS, TS_OFF)
    a.label(name + '_end')
    a('s_endpgm')


K3_LDS = 143360


K3_MAP = os.environ.get('K3_MAP', 'row')


def gen_k3(a, name):
    sWS = 36
    sa = RegAlloc('s', 40, 100)
    sWv = sa.get(); sRb = sa.get(); sJ = sa.get(); sT0 = sa.get(); sT1 = sa.get(); sT2 = sa.get(); sT3 = sa.get()
    sA = sa.get(); sB = sa.get(); sM = sa.get(); sTt = sa.get(); sKc = sa.get(); sTa = sa.get()
    va = RegAlloc('v', 1, 256)
    vL = va.get(); vG = va.get(); vR = va.get()
    vT = [va.get() for _ in range(8)]
    head(a, name, 256, sWv, vL, vG, vR, vT[0])
    vL16 = va.get()
    a(f's_and_b32 s{sT0}, s2, 7')
    a(f's_lshr_b32 s{sT1}, s2, 3')
    if K3_MAP == '2d':
        a(f's_lshr_b32 s{sT2}, s{sT0}, 1')
        a(f's_lshl_b32 s{sT2}, s{sT2}, 2')
        a(f's_lshr_b32 s{sT3}, s{sT1}, 3')
        a(f's_add_u32 s{sRb}, s{sT2}, s{sT3}')
        a(f's_and_b32 s{sT2}, s{sT0}, 1')
        a(f's_lshl_b32 s{sT2}, s{sT2}, 3')
        a(f's_and_b32 s{sT1}, s{sT1}, 7')
        a(f's_add_u32 s{sJ}, s{sT2}, s{sT1}')
        a(f's_mul_i32 s{sT3}, s{sT3}, 10')
        a(f's_mul_i32 s{sT1}, s{sT1}, 5')
        a(f's_add_u32 s{sKc}, s{sT3}, s{sT1}')
        a(f's_lshr_b32 s{sKc}, s{sKc}, 2')
    else:
        a(f's_lshr_b32 s{sT3}, s{sT1}, 4')
        a(f's_lshl_b32 s{sRb}, s{sT0}, 1')
        a(f's_add_u32 s{sRb}, s{sRb}, s{sT3}')
        a(f's_and_b32 s{sJ}, s{sT1}, 15')
        a(f's_mul_i32 s{sT3}, s{sT3}, 40')
        a(f's_mul_i32 s{sT1}, s{sJ}, 5')
        a(f's_add_u32 s{sKc}, s{sT3}, s{sT1}')
        a(f's_lshr_b32 s{sKc}, s{sKc}, 3')
    a(f's_sub_u32 s{sT1}, s{sKc}, 10')
    a(f's_cmp_ge_u32 s{sKc}, 10')
    a(f's_cselect_b32 s{sKc}, s{sT1}, s{sKc}')
    a(f'v_lshlrev_b32 v{vL16}, 4, v{vL}')
    a(f's_lshl_b32 s{sT0}, s{sRb}, 2')
    a(f's_add_u32 s{sT0}, s{sT0}, s{sWv}')
    a(f's_mul_i32 s{sA}, s{sT0}, 40960')
    a(f's_add_u32 s{sA}, s{sA}, {HP_OFF}')
    a(f's_mul_i32 s{sM}, s{sWv}, 3584')
    a(f's_mul_i32 s{sB}, s{sJ}, 143360')
    a(f's_add_u32 s{sB}, s{sB}, s{sM}')
    a(f's_add_u32 s{sB}, s{sB}, {W1P_OFF}')
    a('s_waitcnt lgkmcnt(0)')
    srd(a, sWS, P_WS, 0, WS_USED)
    a.vm_reset()

    def chunk_ops(c):
        g = []
        pre = [f's_mul_i32 s{sTt}, s{sKc}, 14336', f's_lshl_b32 s{sTa}, s{sKc}, 12', f's_add_u32 s{sTt}, s{sTt}, s{sB}',
               f's_add_u32 s{sTa}, s{sTa}, s{sA}', f's_add_u32 m0, s{sM}, {14336 * c}', f's_add_u32 s{sKc}, s{sKc}, 1',
               f's_cmp_eq_u32 s{sKc}, 10', f's_cselect_b32 s{sKc}, 0, s{sKc}']
        for i in range(4):
            ld = f'buffer_load_dwordx4 v{vL16}, s[{sWS}:{sWS + 3}], s{sTt} offen offset:{1024 * i} lds'
            if i == 3:
                g.append(['s_mov_b32 exec_hi, 0', ld, 's_mov_b32 exec_hi, -1'])
            else:
                g.append((pre if i == 0 else []) + [ld])
        for i in range(4):
            r = 16 * c + 4 * i
            g.append([f'buffer_load_dwordx4 a[{r}:{r + 3}], v{vL16}, s[{sWS}:{sWS + 3}], s{sTa} offen offset:{1024 * i}'])
        return g

    def emit_group(grp, c):
        for x in grp:
            a(x, tag=f'c{c}')
    a.stamp(1)
    AHEAD = 3
    for c in range(AHEAD):
        for grp in chunk_ops(c):
            emit_group(grp, c)
    acc = va.get(56, 4)
    fb = [va.get(28, 4) for _ in range(2)]
    vSt = va.get(8, 4)
    vCs = va.get(28, 4)
    vBa = va.get(3)
    a(f'v_mov_b32 v{vBa}, v{vL16}')
    a(f'v_add_u32 v{vBa + 1}, {57344}, v{vL16}')
    a(f'v_add_u32 v{vBa + 2}, {114688}, v{vL16}')

    def breads(ks):
        f = fb[ks & 1]
        off = ks * 7168
        b, off = vBa + off // 57344, off % 57344
        return [f'ds_read_b128 v[{f + 4 * sg}:{f + 4 * sg + 3}], v{b} offset:{off + 1024 * sg}' for sg in range(7)]

    def mf(ks):
        f = fb[ks & 1]
        lst = []
        for sg in range(7):
            for t in range(2):
                d = acc + 28 * t + 4 * sg
                r = 8 * ks + 4 * t
                c = '0' if ks == 0 else f'v[{d}:{d + 3}]'
                lst.append(f'{M16} v[{d}:{d + 3}], v[{f + 4 * sg}:{f + 4 * sg + 3}], a[{r}:{r + 3}], {c}')
        return lst

    def misc_ops():
        g = [[f's_lshl_b32 s{sT0}, s{sRb}, 2', f's_add_u32 s{sT0}, s{sT0}, s{sWv}', f's_lshl_b32 s{sT0}, s{sT0}, 11',
              f's_add_u32 s{sT0}, s{sT0}, {ST_OFF}',
              f'buffer_load_dwordx4 v[{vSt}:{vSt + 3}], v{vL16}, s[{sWS}:{sWS + 3}], s{sT0} offen'],
             [f'buffer_load_dwordx4 v[{vSt + 4}:{vSt + 7}], v{vL16}, s[{sWS}:{sWS + 3}], s{sT0} offen offset:1024']]
        pre = [f'v_and_b32 v{vT[0]}, 3, v{vL}', f'v_mul_u32_u24 v{vT[0]}, 7168, v{vT[0]}', f'v_lshl_add_u32 v{vT[0]}, v{vG}, 4, v{vT[0]}',
               f's_mul_i32 s{sT0}, s{sJ}, 448', f's_add_u32 s{sT0}, s{sT0}, {CS1_OFF}']
        for sg in range(7):
            g.append((pre if sg == 0 else []) + [f'buffer_load_dwordx4 v[{vCs + 4 * sg}:{vCs + 4 * sg + 3}], v{vT[0]}, s[{sWS}:{sWS + 3}], s{sT0} offen offset:{64 * sg}'])
        return g

    a.stamp(2)
    a.vm_wait('c0')
    a('s_barrier')
    a.stamp(3)
    for x in breads(0):
        a(x)
    pend = []
    for ks in range(20):
        c = ks >> 1
        nxt = []
        if ks & 1 == 0:
            assert not pend
            if c + AHEAD < 10:
                pend = [(g_, f'c{c + AHEAD}') for g_ in chunk_ops(c + AHEAD)]
            elif c + AHEAD == 10:
                pend = [(g_, 'misc') for g_ in misc_ops()]
            a('s_waitcnt lgkmcnt(0)')
        else:
            if ks + 1 < 20:
                a.vm_wait(f'c{c + 1}', ' lgkmcnt(0)')
                a('s_barrier')
            else:
                a('s_waitcnt lgkmcnt(0)')
        if ks + 1 < 20:
            nxt = breads(ks + 1)
        ms = mf(ks)
        for k, m in enumerate(ms):
            a(m)
            if nxt:
                a(nxt.pop(0))
            elif pend and (k % 2 == 1 or (ks & 1 and len(pend) > (13 - k) // 2)):
                g_, tg = pend.pop(0)
                for x in g_:
                    a(x, tag=tg)
        if ks & 1:
            while pend:
                g_, tg = pend.pop(0)
                for x in g_:
                    a(x, tag=tg)
    a.stamp(4)
    a.vm_wait('misc')
    for r in range(28):
        a(f'v_add_f32_dpp v{vCs + r}, v{vCs + r}, v{vCs + r} quad_perm:[1,0,3,2] row_mask:0xf bank_mask:0xf')
    for r in range(28):
        a(f'v_add_f32_dpp v{vCs + r}, v{vCs + r}, v{vCs + r} quad_perm:[2,3,0,1] row_mask:0xf bank_mask:0xf')
    ab = fb[0]
    for t in range(2):
        s = vSt + 4 * t
        m, v, x = ab + 4 * t + 2, ab + 8, ab + 9
        a(f'v_add_f32 v{m}, v{s}, v{s + 2}')
        xsum_g(a, m, x)
        a(f'v_mul_f32 v{m}, 0.125, v{m}') if False else a(f'v_mul_f32 v{m}, 0x3e000000, v{m}')
        a(f'v_sub_f32 v{s}, v{s}, v{m}')
        a(f'v_sub_f32 v{s + 2}, v{s + 2}, v{m}')
        a(f'v_mul_f32 v{v}, v{s}, v{s}')
        a(f'v_fmac_f32 v{v}, v{s + 2}, v{s + 2}')
        a(f'v_add_f32 v{s + 1}, v{s + 1}, v{s + 3}')
        a(f'v_fmac_f32 v{s + 1}, 0x42a00000, v{v}')
        xsum_g(a, s + 1, x)
        a(f'v_mul_f32 v{v}, 0x3acccccd, v{s + 1}')
        ln_stats(a, m, v, ab + 4 * t)
    a(f's_and_b32 s{sT0}, s{sJ}, 7')
    a(f's_mul_i32 s{sT1}, s{sT0}, 7')
    a(f's_min_u32 s{sT1}, s{sT1}, 48')
    a(f's_lshr_b32 s{sT2}, s{sJ}, 3')
    a(f's_mul_i32 s{sT2}, s{sT2}, 54')
    a(f's_add_u32 s{sT1}, s{sT1}, s{sT2}')
    a(f's_lshl_b32 s{sT2}, s{sRb}, 1')
    a(f's_lshr_b32 s{sT3}, s{sWv}, 1')
    a(f's_add_u32 s{sT2}, s{sT2}, s{sT3}')
    a(f's_mul_i32 s{sA}, s{sT2}, {54 * 4096}')
    a(f's_and_b32 s{sT3}, s{sWv}, 1')
    a(f's_lshl_b32 s{sT3}, s{sT3}, 11')
    a(f's_add_u32 s{sA}, s{sA}, s{sT3}')
    a(f's_add_u32 s{sA}, s{sA}, {H1P_OFF}')
    a(f's_add_u32 s{sT2}, s{sT1}, 1')
    a(f's_lshr_b32 s{sT2}, s{sT2}, 1')
    a(f's_lshl_b32 s{sT2}, s{sT2}, 12')
    a(f's_add_u32 s{sB}, s{sA}, s{sT2}')
    a(f's_add_u32 s{sT2}, s{sT1}, 6')
    a(f's_bitcmp1_b32 s{sT1}, 0')
    a(f's_cselect_b32 s{sT2}, s{sT1}, s{sT2}')
    a(f's_lshr_b32 s{sT3}, s{sT2}, 1')
    a(f's_lshl_b32 s{sT3}, s{sT3}, 12')
    a(f's_and_b32 s{sT2}, s{sT2}, 1')
    a(f's_lshl_b32 s{sT2}, s{sT2}, 3')
    a(f's_add_u32 s{sT3}, s{sT3}, s{sT2}')
    a(f's_add_u32 s{sM}, s{sA}, s{sT3}')
    a(f's_cmp_ge_u32 s{sT0}, 6')
    a(f's_cselect_b32 s{sM}, 0x{BIG:x}, s{sM}')
    a(f'v_mov_b32 v{vT[1]}, 0')
    o = fb[1]
    tmp = [fb[0] + 12, fb[0] + 14]
    n = 0
    for p in range(4):
        for t in range(2):
            ob = o + 4 * (n % 6); n += 1
            for tt in range(2 if p < 3 else 1):
                sg = 2 * p + tt
                for h in range(2):
                    d = acc + 28 * t + 4 * sg + 2 * h
                    w = tmp[h]
                    a(f'v_pk_mul_f32 v[{w}:{w + 1}], v[{vCs + 4 * sg + 2 * h}:{vCs + 4 * sg + 2 * h + 1}], v[{ab + 4 * t + 2}:{ab + 4 * t + 3}] op_sel_hi:[1,0]')
                    a(f'v_pk_fma_f32 v[{d}:{d + 1}], v[{d}:{d + 1}], v[{ab + 4 * t}:{ab + 4 * t + 1}], v[{w}:{w + 1}] op_sel_hi:[1,0,1]')
                    a(f'v_cvt_pk_bf16_f32 v{ob + 2 * tt + h}, v{d}, v{d + 1}')
                    a(f'v_pk_max_i16 v{ob + 2 * tt + h}, v{ob + 2 * tt + h}, v{vT[1]}')
            if p < 3:
                a(f'buffer_store_dwordx4 v[{ob}:{ob + 3}], v{vL16}, s[{sWS}:{sWS + 3}], s{sB} offen offset:{1024 * t}')
            else:
                a(f'buffer_store_dwordx2 v[{ob}:{ob + 1}], v{vL16}, s[{sWS}:{sWS + 3}], s{sM} offen offset:{1024 * t}')
        if p < 2:
            a(f's_add_u32 s{sB}, s{sB}, 4096')
    if a.diag is not None:
        a('s_waitcnt vmcnt(0)')
    a.stamp_flush(sWv, P_WS, TS_OFF)
    a.label(name + '_end')
    a('s_endpgm')


K4_LDS = 61440


def gen_k4(a, name):
    sWS, sO = 36, 40
    sa = RegAlloc('s', 44, 100)
    sWv = sa.get(); sRb = sa.get(); sCg = sa.get(); sPb = sa.get(); sSb = sa.get()
    sT0 = sa.get(); sT1 = sa.get(); sT2 = sa.get(); sT3 = sa.get()
    sA = sa.get(); sB = sa.get(); sKi = sa.get(); sTa = sa.get(); sTb = sa.get(); sLim = sa.get()
    va = RegAlloc('v', 1, 256)
    vL = va.get(); vG = va.get(); vR = va.get()
    vT = [va.get() for _ in range(8)]
    head(a, name, 256, sWv, vL, vG, vR, vT[0])
    vL16 = va.get(); vL16b = va.get(); vAo = va.get(4)
    a(f's_and_b32 s{sT0}, s2, 7')
    a(f's_lshr_b32 s{sT1}, s2, 3')
    a(f's_and_b32 s{sCg}, s{sT1}, 7')
    a(f's_lshr_b32 s{sT1}, s{sT1}, 3')
    a(f's_lshl_b32 s{sRb}, s{sT0}, 2')
    a(f's_add_u32 s{sRb}, s{sRb}, s{sT1}')
    a(f'v_lshlrev_b32 v{vL16}, 4, v{vL}')
    a(f'v_add_u32 v{vL16b}, 4096, v{vL16}')
    a(f's_mul_i32 s{sKi}, s{sCg}, 7')
    a(f's_mul_i32 s{sT1}, s{sT1}, 14')
    a(f's_add_u32 s{sKi}, s{sKi}, s{sT1}')
    a(f's_lshr_b32 s{sKi}, s{sKi}, 2')
    a(f's_sub_u32 s{sT1}, s{sKi}, 14')
    a(f's_cmp_ge_u32 s{sKi}, 14')
    a(f's_cselect_b32 s{sKi}, s{sT1}, s{sKi}')
    a(f's_cmp_ge_u32 s{sWv}, 2')
    a(f's_cselect_b32 s{sLim}, 13, 14')
    for i in range(4):
        a(f's_add_u32 s{sT0}, s{sWv}, {1 + i}')
        a(f's_and_b32 s{sT0}, s{sT0}, 3')
        a(f's_lshl_b32 s{sT0}, s{sT0}, 10')
        a(f'v_add_u32 v{vAo + i}, s{sT0}, v{vL16}')
    a(f's_mul_i32 s{sA}, s{sRb}, {54 * 4096}')
    a(f's_lshl_b32 s{sT0}, s{sWv}, 12')
    a(f's_add_u32 s{sA}, s{sA}, s{sT0}')
    a(f's_add_u32 s{sA}, s{sA}, {H1P_OFF}')
    a(f's_mul_i32 s{sB}, s{sCg}, 276480')
    a(f's_mul_i32 s{sT0}, s{sWv}, 5120')
    a(f's_add_u32 s{sB}, s{sB}, s{sT0}')
    a(f's_add_u32 s{sB}, s{sB}, {W2P_OFF}')
    a('s_waitcnt lgkmcnt(0)')
    srd(a, sWS, P_WS, 0, WS_USED)
    srd(a, sO, P_OUT, 0, S * D * 2)
    a.vm_reset()
    NS = int(os.environ.get('K4_NS', '4'))
    NSTEP = 14

    def issue(i):
        r = 36 * (i % NS)
        a(f's_lshl_b32 s{sTa}, s{sKi}, 14')
        a(f's_mul_i32 s{sTb}, s{sKi}, 20480')
        a(f's_add_u32 s{sTa}, s{sTa}, s{sA}')
        a(f's_add_u32 s{sTb}, s{sTb}, s{sB}')
        a(f's_cmp_ge_u32 s{sKi}, s{sLim}')
        a(f's_cselect_b32 s{sTa}, 0x{BIG:x}, s{sTa}')
        a(f's_cselect_b32 s{sTb}, 0x{BIG:x}, s{sTb}')
        a(f's_add_u32 s{sKi}, s{sKi}, 1')
        a(f's_cmp_eq_u32 s{sKi}, 14')
        a(f's_cselect_b32 s{sKi}, 0, s{sKi}')
        for t in range(4):
            a(f'buffer_load_dwordx4 a[{r + 4 * t}:{r + 4 * t + 3}], v{vAo + t}, s[{sWS}:{sWS + 3}], s{sTa} offen', tag=f's{i}')
        for sg in range(5):
            v, off = (vL16, 1024 * sg) if sg < 4 else (vL16b, 0)
            a(f'buffer_load_dwordx4 a[{r + 16 + 4 * sg}:{r + 16 + 4 * sg + 3}], v{v}, s[{sWS}:{sWS + 3}], s{sTb} offen offset:{off}', tag=f's{i}')
    a.stamp(1)
    for i in range(NS):
        issue(i)
    acc = va.get(80, 4)
    vRes = va.get(12, 4)
    vRW = va.get(3)
    tmp = va.get(8, 4)
    outr = va.get(12, 4)
    cg_blocks(a, sCg, sPb, sSb, sT0)
    for i in range(3):
        a(f's_add_u32 s{sT0}, s{sWv}, {1 + i}')
        a(f's_and_b32 s{sT0}, s{sT0}, 3')
        a(f's_mul_i32 s{sT0}, s{sT0}, 15360')
        a(f's_add_u32 s{sT0}, s{sT0}, {5120 * i}')
        a(f'v_add_u32 v{vRW + i}, s{sT0}, v{vL16}')
    for i in range(NSTEP):
        r = 36 * (i % NS)
        if i == 0:
            a.stamp(2)
        a.vm_wait(f's{i}')
        if i == 0:
            a.stamp(3)
        for t in range(4):
            for sg in range(5):
                d = acc + 20 * t + 4 * sg
                c = '0' if i == 0 else f'v[{d}:{d + 3}]'
                a(f'{M16} v[{d}:{d + 3}], a[{r + 16 + 4 * sg}:{r + 16 + 4 * sg + 3}], a[{r + 4 * t}:{r + 4 * t + 3}], {c}')
        if i + NS < NSTEP:
            issue(i + NS)
        if i + NS == NSTEP:
            a(f's_lshl_b32 s{sT0}, s{sRb}, 2')
            a(f's_add_u32 s{sT0}, s{sT0}, s{sWv}')
            a(f's_lshr_b32 s{sT1}, s{sT0}, 1')
            a(f's_mul_i32 s{sT1}, s{sT1}, 40960')
            a(f's_and_b32 s{sT2}, s{sT0}, 1')
            a(f's_lshl_b32 s{sT2}, s{sT2}, 10')
            a(f's_add_u32 s{sT1}, s{sT1}, s{sT2}')
            a(f's_add_u32 s{sT1}, s{sT1}, {HP_OFF}')
            a(f's_lshl_b32 s{sT2}, s{sPb}, 11')
            a(f's_add_u32 s{sT2}, s{sT2}, s{sT1}')
            a(f'buffer_load_dwordx4 v[{vRes}:{vRes + 3}], v{vL16}, s[{sWS}:{sWS + 3}], s{sT2} offen', tag='h')
            a(f'buffer_load_dwordx4 v[{vRes + 4}:{vRes + 7}], v{vL16}, s[{sWS}:{sWS + 3}], s{sT2} offen offset:2048', tag='h')
            a(f's_lshr_b32 s{sT2}, s{sSb}, 1')
            a(f's_lshl_b32 s{sT2}, s{sT2}, 11')
            a(f's_and_b32 s{sT3}, s{sSb}, 1')
            a(f's_lshl_b32 s{sT3}, s{sT3}, 3')
            a(f's_add_u32 s{sT2}, s{sT2}, s{sT3}')
            a(f's_add_u32 s{sT2}, s{sT2}, s{sT1}')
            a(f'buffer_load_dwordx2 v[{vRes + 8}:{vRes + 9}], v{vL16}, s[{sWS}:{sWS + 3}], s{sT2} offen', tag='h')
    a.stamp(4)
    for i in range(3):
        for sg in range(5):
            d = acc + 20 * i + 4 * sg
            a(f'ds_write_b128 v{vRW + i}, v[{d}:{d + 3}] offset:{1024 * sg}')
    a('s_waitcnt lgkmcnt(0)')
    a('s_barrier')
    a(f's_mul_i32 s{sT0}, s{sWv}, 15360')
    a(f'v_add_u32 v{vT[0]}, s{sT0}, v{vL16}')
    for k in range(15):
        a(f'ds_read_b128 v[{acc + 4 * k}:{acc + 4 * k + 3}], v{vT[0]} offset:{1024 * k}')
    own = acc + 60
    vXo = vT[1]
    a(f's_lshl_b32 s{sT0}, s{sRb}, 2')
    a(f's_add_u32 s{sT0}, s{sT0}, s{sWv}')
    a(f's_mul_i32 s{sT1}, s{sT0}, {16 * 1280}')
    a(f'v_mul_u32_u24 v{vXo}, 1280, v{vR}')
    a(f'v_lshl_add_u32 v{vXo}, v{vG}, 4, v{vXo}')
    a(f's_lshl_b32 s{sA}, s{sPb}, 6')
    a(f's_add_u32 s{sA}, s{sA}, s{sT1}')
    a(f's_lshr_b32 s{sT2}, s{sSb}, 1')
    a(f's_lshl_b32 s{sT2}, s{sT2}, 6')
    a(f's_and_b32 s{sT3}, s{sSb}, 1')
    a(f's_lshl_b32 s{sT3}, s{sT3}, 3')
    a(f's_add_u32 s{sT2}, s{sT2}, s{sT3}')
    a(f's_add_u32 s{sB}, s{sT2}, s{sT1}')
    for p in range(3):
        a(f's_waitcnt lgkmcnt({10 - 5 * p})')
        for k in range(10):
            a(f'v_pk_add_f32 v[{own + 2 * k}:{own + 2 * k + 1}], v[{own + 2 * k}:{own + 2 * k + 1}], v[{acc + 20 * p + 2 * k}:{acc + 20 * p + 2 * k + 1}]')
    a.vm_wait('h')
    add_residual(a, own, vRes, outr, tmp)
    a(f'buffer_store_dwordx4 v[{outr}:{outr + 3}], v{vXo}, s[{sO}:{sO + 3}], s{sA} offen')
    a(f'buffer_store_dwordx4 v[{outr + 4}:{outr + 7}], v{vXo}, s[{sO}:{sO + 3}], s{sA} offen offset:64')
    a(f'buffer_store_dwordx2 v[{outr + 8}:{outr + 9}], v{vXo}, s[{sO}:{sO + 3}], s{sB} offen')
    if a.diag is not None:
        a('s_waitcnt vmcnt(0)')
    a.stamp_flush(sWv, P_WS, TS_OFF)
    a.label(name + '_end')
    a('s_endpgm')
```

```python
import os
from asmlib import *
from layout import *
from k1 import *
from k234 import head, xsum_g, cg_blocks, M16, BIG

KF_LDS = 163840
P2L = 102400
W1_EARLY = 102400


def R(f, b, n=4):
    return f'{f}[{b}:{b + n - 1}]'


def gen_kf(a, name):
    sX, sWS, sPQ, sO = 36, 40, 44, 48
    sa = RegAlloc('s', 52, 80)
    sWv = sa.get(); sRb = sa.get(); sCg = sa.get(); sPb = sa.get(); sSb = sa.get(); sJ = sa.get(); sC = sa.get()
    sT0 = sa.get(); sT1 = sa.get(); sT2 = sa.get(); sT3 = sa.get()
    sRt = sa.get(4)
    sW1 = sa.get(); sW1m = sa.get(); sW2 = sa.get(); sA = sa.get(); sB = sa.get(); sM = sa.get(); sCnt = sa.get()
    sOa = sa.get(); sOb = sa.get(); sFo = sRt; sFi = sRt + 1; sH = sRt + 2; sHs = sRt + 3; sA4 = sW1m
    WS = f's[{sWS}:{sWS + 3}]'
    lapn = [0]
    LSET = os.environ.get('F_LAPS', 'A')

    def lap(kind='A'):
        if kind in LSET and lapn[0] < 16:
            a.slap(lapn[0])
            lapn[0] += 1
    vL, vG, vR, vL16, vL16b, vPQo = 1, 2, 3, 4, 5, 6
    vT = [7, 8, 9, 10, 11]
    hres = 12
    X, Y, Z = 24, 104, 176
    vR4 = [Y + 68, Y + 69]
    head(a, name, 256, sWv, vL, vG, vR, vT[0])
    a(f's_and_b32 s{sT0}, s2, 7')
    a(f's_lshr_b32 s{sT1}, s2, 3')
    a(f's_and_b32 s{sJ}, s{sT1}, 15')
    a(f's_lshr_b32 s{sT1}, s{sT1}, 4')
    a(f's_lshl_b32 s{sC}, s{sT0}, 1')
    a(f's_add_u32 s{sC}, s{sC}, s{sT1}')
    a(f's_and_b32 s{sCg}, s{sJ}, 7')
    a(f's_lshr_b32 s{sT1}, s{sJ}, 3')
    a(f's_lshl_b32 s{sRb}, s{sC}, 1')
    a(f's_add_u32 s{sRb}, s{sRb}, s{sT1}')
    a(f'v_lshlrev_b32 v{vL16}, 4, v{vL}')
    a(f'v_add_u32 v{vL16b}, 4096, v{vL16}')
    a(f'v_mov_b32 v{vT[0]}, 0x{BIG:x}')
    a(f'v_cmp_gt_u32 vcc, 48, v{vL}')
    a(f'v_cndmask_b32 v{vPQo}, v{vT[0]}, v{vL16}, vcc')
    for i in range(4):
        a(f's_add_u32 s{sT0}, s{sWv}, {1 + i}')
        a(f's_and_b32 s{sT0}, s{sT0}, 3')
        a(f's_lshl_b32 s{sT1}, s{sRb}, 2')
        a(f's_add_u32 s{sT0}, s{sT0}, s{sT1}')
        a(f's_mul_i32 s{sT0}, s{sT0}, 20480')
        a(f's_mul_i32 s{sT1}, s{sWv}, 5120')
        a(f's_add_u32 s{sRt + i}, s{sT0}, s{sT1}')
    a(f's_mul_i32 s{sM}, s{sWv}, 14336')
    a(f's_add_u32 s{sT1}, s{sM}, {KV_OFF}')
    a('s_waitcnt lgkmcnt(0)')
    srd(a, sWS, P_WS, 0, WS_USED)
    a.vm_reset()
    a.stamp(1)
    for i in range(14):
        if i % 4 == 0:
            a(f's_add_u32 m0, s{sM}, {P2L + 1024 * i}')
            if i:
                a(f's_add_u32 s{sT1}, s{sT1}, 4096')
        a(f'buffer_load_dwordx4 v{vL16}, {WS}, s{sT1} offen offset:{1024 * (i & 3)} lds', tag='kv')
    srd(a, sPQ, P_WS, PQ_OFF, PQ_SZ)
    aPQ, aWO = 0, 128

    def pq_groups(i):
        g = []
        for hh in range(8):
            off = ((20 * hh) // 8) * 256
            r = aPQ + 4 * (8 * i + hh)
            if off < 4096:
                g.append(([f'buffer_load_dwordx4 {R("a", r)}, v{vPQo}, s[{sPQ}:{sPQ + 3}], s{sRt + i} offen offset:{off}'], f'q{8 * i + hh}'))
            else:
                g.append(([f's_add_u32 s{sT0}, s{sRt + i}, 4096',
                           f'buffer_load_dwordx4 {R("a", r)}, v{vPQo}, s[{sPQ}:{sPQ + 3}], s{sT0} offen offset:{off - 4096}'], f'q{8 * i + hh}'))
        return g

    def emit(g):
        for x in g[0]:
            a(x, tag=g[1])
    for g in pq_groups(0):
        emit(g)
    srd(a, sX, P_X, 0, S * D * 2)
    srd(a, sO, P_OUT, 0, S * D * 2)
    acc, kvT, vKA, tmpk = X, Y, Y + 64, Z
    ofr = [Z + 32, Z + 52]
    vo = Z + 72
    vRc = Z + 73
    t2, t3, t5 = hres, hres + 1, hres + 2
    a(f'v_lshrrev_b32 v{vT[0]}, 2, v{vR}')
    a(f'v_and_b32 v{vT[1]}, 3, v{vR}')
    a(f'v_mad_u32_u24 v{t2}, v{vT[0]}, 5, v{vT[1]}')
    a(f'v_mul_u32_u24 v{t2}, 80, v{t2}')
    a(f'v_mad_u32_u24 v{t3}, v{vT[0]}, 5, 4')
    a(f'v_mov_b32 v{vT[2]}, 20')
    a(f'v_cmp_eq_u32 vcc, 1, v{vT[1]}')
    a(f'v_cndmask_b32 v{t3}, v{t3}, v{vT[2]}, vcc')
    a(f'v_mul_u32_u24 v{t3}, 80, v{t3}')
    a(f's_add_u32 s{sT0}, s{sM}, {P2L}')
    a(f's_add_u32 s{sT1}, s{sT0}, 1680')
    a(f'v_mov_b32 v{t5}, s{sT1}')
    for tau in range(2):
        for par in range(2):
            for hf in range(2):
                x = vKA + tau * 4 + par * 2 + hf
                m = 0
                for l in range(64):
                    g, i = l >> 4, l & 15
                    uu = 2 * g - par + hf
                    if 0 <= uu <= 4 and (tau == 0 or (i & 3) < 2):
                        m |= 1 << l
                a(f'v_lshl_add_u32 v{x}, v{vG}, 5, v{(t2, t3)[tau]}')
                a(f's_add_u32 s{sT1}, s{sT0}, {(hf - par) * 16 & 0xffffffff}')
                a(f'v_add_u32 v{x}, s{sT1}, v{x}')
                a(f's_mov_b32 vcc_lo, 0x{m & 0xffffffff:x}')
                a(f's_mov_b32 vcc_hi, 0x{m >> 32:x}')
                a(f'v_cndmask_b32 v{x}, v{t5}, v{x}, vcc')
    a(f's_mul_i32 s{sB}, s{sCg}, 102400')
    a(f's_mul_i32 s{sT2}, s{sWv}, 25600')
    a(f's_add_u32 s{sB}, s{sB}, s{sT2}')
    a(f's_add_u32 s{sB}, s{sB}, {WOP_OFF}')
    cg_blocks(a, sCg, sPb, sSb, sT0)
    a(f's_lshl_b32 s{sT0}, s{sRb}, 2')
    a(f's_add_u32 s{sT0}, s{sT0}, s{sWv}')
    a(f's_mul_i32 s{sT1}, s{sT0}, {16 * 1280}')
    a(f's_lshl_b32 s{sOa}, s{sPb}, 6')
    a(f's_add_u32 s{sOa}, s{sOa}, s{sT1}')
    a(f's_lshr_b32 s{sT2}, s{sSb}, 1')
    a(f's_lshl_b32 s{sT2}, s{sT2}, 6')
    a(f's_and_b32 s{sT3}, s{sSb}, 1')
    a(f's_lshl_b32 s{sT3}, s{sT3}, 3')
    a(f's_add_u32 s{sT2}, s{sT2}, s{sT3}')
    a(f's_add_u32 s{sOb}, s{sT2}, s{sT1}')
    vXo = hres + 10
    a(f'v_mul_u32_u24 v{vXo}, 1280, v{vR}')
    a(f'v_lshl_add_u32 v{vXo}, v{vG}, 4, v{vXo}')
    a(f's_lshl_b32 s{sW1m}, s{sWv}, 12')
    a(f's_mul_i32 s{sW1}, s{sJ}, 143360')
    a(f's_add_u32 s{sW1}, s{sW1}, s{sW1m}')
    a(f's_add_u32 s{sW1}, s{sW1}, {W1P_OFF}')
    a(f's_mul_i32 s{sW2}, s{sCg}, {W2G}')
    a(f's_mul_i32 s{sT0}, s{sWv}, 5120')
    a(f's_add_u32 s{sW2}, s{sW2}, s{sT0}')
    a(f's_add_u32 s{sW2}, s{sW2}, {W2P_OFF}')

    def wo_groups():
        g = []
        for f in range(25):
            pre_ = [f's_add_u32 s{sB}, s{sB}, 4096'] if f and f % 4 == 0 else []
            g.append((pre_ + [f'buffer_load_dwordx4 {R("a", aWO + 4 * f)}, v{vL16}, {WS}, s{sB} offen offset:{1024 * (f & 3)}'], f'wo{f // 5}'))
        return g

    def x_groups():
        sx = f's[{sX}:{sX + 3}]'
        return [([f'buffer_load_dwordx4 {R("v", hres)}, v{vXo}, {sx}, s{sOa} offen'], 'x'),
                ([f'buffer_load_dwordx4 {R("v", hres + 4)}, v{vXo}, {sx}, s{sOa} offen offset:64'], 'x'),
                ([f'buffer_load_dwordx2 {R("v", hres + 8, 2)}, v{vXo}, {sx}, s{sOb} offen'], 'x')]

    def w1_groups(lo, hi, tag):
        g = []
        off = lo
        while off + 16384 <= hi:
            for i in range(4):
                pre_ = [f's_add_u32 m0, s{sW1m}, {off}', f's_add_u32 s{sT3}, s{sW1}, {off}'] if i == 0 else []
                g.append((pre_ + [f'buffer_load_dwordx4 v{vL16}, {WS}, s{sT3} offen offset:{1024 * i} lds'], tag))
            off += 16384
        while off < hi:
            g.append(([f's_lshl_b32 s{sT2}, s{sWv}, 10', f's_add_u32 m0, s{sT2}, {off}', f's_sub_u32 s{sT3}, s{sW1}, s{sW1m}',
                       f's_add_u32 s{sT3}, s{sT3}, s{sT2}', f's_add_u32 s{sT3}, s{sT3}, {off}',
                       f'buffer_load_dwordx4 v{vL16}, {WS}, s{sT3} offen lds'], tag))
            off += 4096
        return g

    for g in pq_groups(1):
        emit(g)
    W1E = int(os.environ.get('F_W1E', '64')) * 1024
    wg_ = wo_groups(); q2 = pq_groups(2)
    pend = wg_[:20] + q2[:2] + wg_[20:] + q2[2:] + pq_groups(3) + x_groups() + w1_groups(0, W1E, 'w1e')

    def pull(n=1):
        for _ in range(n):
            if pend:
                emit(pend.pop(0))

    def need_tag(tag):
        while any(g[1] == tag for g in pend):
            pull()
        if tag in a.vm:
            a.vm_wait(tag)
    pull(int(os.environ.get('F_P2PRE', '0')))
    a.stamp(2)
    a.vm_wait('kv')
    a.stamp(3)
    for hp in range(4):
        for hq in range(2):
            hh = 2 * hp + hq
            for tau in range(2):
                for hf in range(2):
                    t = tmpk + 16 * hq + 8 * tau + 4 * hf
                    a(f'ds_read_b128 {R("v", t)}, v{vKA + tau * 4 + (hh & 1) * 2 + hf} offset:{hh * KV_HS}')
        pull(int(os.environ.get('F_P2KV', '3')))
        a('s_waitcnt lgkmcnt(0)')
        for hq in range(2):
            hh = 2 * hp + hq
            for tau in range(2):
                for q in range(4):
                    t = tmpk + 16 * hq + 8 * tau + 2 * q
                    a(f'v_cvt_pk_bf16_f32 v{kvT + 8 * hh + 4 * tau + q}, v{t}, v{t + 1}')
    lap('B')
    a('s_barrier')
    vRW = vKA
    for i in range(3):
        a(f's_add_u32 s{sT0}, s{sWv}, {1 + i}')
        a(f's_and_b32 s{sT0}, s{sT0}, 3')
        a(f's_mul_i32 s{sT0}, s{sT0}, 15360')
        a(f's_add_u32 s{sT0}, s{sT0}, {5120 * i}')
        a(f'v_add_u32 v{vRW + i}, s{sT0}, v{vL16}')
        a(f'v_add_u32 v{vRW + 3 + i}, {P2L}, v{vRW + i}')

    def A_mfma(n):
        hh = n & 7
        d = tmpk + 8 * (n & 3)
        return [f'{M16} {R("v", d + 4 * tau)}, {R("v", kvT + 8 * hh + 4 * tau)}, {R("a", aPQ + 4 * n)}, 0' for tau in range(2)]

    def B1(n):
        d = tmpk + 8 * (n & 3)
        r = vRc + (n & 3)
        return [f'v_add_f32 v{r}, 0x358637bd, v{d + 5}', f'v_rcp_f32 v{r}, v{r}']

    def B2(n):
        i, hh = n >> 3, n & 7
        d = tmpk + 8 * (n & 3)
        r = vRc + (n & 3)
        o = ofr[i & 1]
        t0 = 5 * hh
        lst = [f'v_mul_f32 v{d + k}, v{d + k}, v{r}' for k in range(4)]
        if hh % 2 == 0:
            lst += [f'v_mul_f32 v{vo}, v{d + 4}, v{r}',
                    f'v_cvt_pk_bf16_f32 v{o + t0 // 2}, v{d}, v{d + 1}',
                    f'v_cvt_pk_bf16_f32 v{o + t0 // 2 + 1}, v{d + 2}, v{d + 3}']
        else:
            lst += [f'v_mul_f32 v{d + 4}, v{d + 4}, v{r}',
                    f'v_cvt_pk_bf16_f32 v{o + (t0 - 1) // 2}, v{vo}, v{d}',
                    f'v_cvt_pk_bf16_f32 v{o + (t0 + 1) // 2}, v{d + 1}, v{d + 2}',
                    f'v_cvt_pk_bf16_f32 v{o + (t0 + 3) // 2}, v{d + 3}, v{d + 4}']
        return lst

    def C_mfma(i):
        o = ofr[i & 1]
        lst = []
        for m in range(5):
            for sg in range(5):
                d = acc + 20 * i + 4 * sg
                c = '0' if m == 0 else R('v', d)
                lst.append(f'{M16} {R("v", d)}, {R("a", aWO + 4 * (5 * m + sg))}, {R("v", o + 4 * m)}, {c}')
        return lst

    def send(i, base):
        return [f'ds_write_b128 v{base + i}, {R("v", acc + 20 * i + 4 * sg)} offset:{1024 * sg}' for sg in range(5)]

    for n in range(3):
        need_tag(f'q{n}')
        for x in A_mfma(n):
            a(x)
    for x in B1(0):
        a(x)
    cq, sq = [], []
    for n in range(32):
        i, hh = n >> 3, n & 7
        if hh == 0 and i >= 1:
            lap('B')
            assert not cq
            cq = C_mfma(i - 1)
            if i >= 2:
                sq = send(i - 2, vRW + 3)
        vl = B2(n)
        if n + 1 < 32:
            b1 = B1(n + 1)
            vl = [b1[0]] + vl[:2] + [b1[1]] + vl[2:]
        if i == 1:
            need_tag(f'wo{min(4, (25 - len(cq) + (3 if hh == 7 else 2)) // 5)}')
        ml = [cq.pop(0) for _ in range(min(len(cq), 4 if hh == 7 else 3))]
        am = []
        if n + 3 < 32:
            need_tag(f'q{n + 3}')
            am = A_mfma(n + 3)
        ml = am + ml
        while ml or vl:
            if ml:
                a(ml.pop(0))
            for _ in range(2):
                if vl:
                    a(vl.pop(0))
        if sq and hh >= 1:
            a(sq.pop(0))
        pull(2 if n % int(os.environ.get('F_P2X', '3')) == 0 else 1)
    assert not cq and not sq
    cq = C_mfma(3)
    sq = send(2, vRW + 3)
    for k, x in enumerate(cq):
        a(x)
        if k >= 3 and k % 3 == 0 and sq:
            a(sq.pop(0))
        if k % 3 == 1:
            pull()
    while pend:
        pull()
    a.stamp(4)

    def reduce_own(base):
        a('s_waitcnt lgkmcnt(0)')
        a('s_barrier')
        a(f's_mul_i32 s{sT0}, s{sWv}, 15360')
        a(f's_add_u32 s{sT0}, s{sT0}, {base}')
        a(f'v_add_u32 v{vT[0]}, s{sT0}, v{vL16}')
        for k in range(15):
            a(f'ds_read_b128 {R("v", acc + 4 * k)}, v{vT[0]} offset:{1024 * k}')
        own = acc + 60
        for p in range(3):
            a(f's_waitcnt lgkmcnt({10 - 5 * p})')
            for k in range(10):
                a(f'v_pk_add_f32 {R("v", own + 2 * k, 2)}, {R("v", own + 2 * k, 2)}, {R("v", acc + 20 * p + 2 * k, 2)}')
        return own

    def residual(own, out, tmp):
        chains = []
        for i in range(10):
            t = tmp + 6 * (i % 3)
            chains.append([f'v_cvt_pk_bf16_f32 v{t + 4}, v{own + 2 * i}, v{own + 2 * i + 1}',
                           f'v_lshlrev_b32 v{t + 2}, 16, v{hres + i}',
                           f'v_and_b32 v{t + 3}, 0xffff0000, v{hres + i}',
                           f'v_lshlrev_b32 v{t}, 16, v{t + 4}',
                           f'v_and_b32 v{t + 1}, 0xffff0000, v{t + 4}',
                           f'v_pk_add_f32 {R("v", t, 2)}, {R("v", t, 2)}, {R("v", t + 2, 2)}',
                           f'v_cvt_pk_bf16_f32 v{out + i}, v{t}, v{t + 1}'])
        for b in range(0, 10, 3):
            grp = chains[b:b + 3]
            for k in range(7):
                for c in grp:
                    a(c[k])

    lap('B')
    own = reduce_own(P2L)
    lap('B')
    a.vm_wait('x')
    residual(own, hres, tmpk)
    a(f's_lshl_b32 s{sT0}, s{sRb}, 2')
    a(f's_add_u32 s{sT0}, s{sT0}, s{sWv}')
    a(f's_lshr_b32 s{sT1}, s{sT0}, 1')
    a(f's_mul_i32 s{sT1}, s{sT1}, 40960')
    a(f's_and_b32 s{sT2}, s{sT0}, 1')
    a(f's_lshl_b32 s{sT2}, s{sT2}, 10')
    a(f's_add_u32 s{sT1}, s{sT1}, s{sT2}')
    a(f's_add_u32 s{sT1}, s{sT1}, {HP_OFF}')
    a(f's_lshl_b32 s{sT2}, s{sPb}, 11')
    a(f's_add_u32 s{sT2}, s{sT2}, s{sT1}')
    a(f'buffer_store_dwordx4 {R("v", hres)}, v{vL16}, {WS}, s{sT2} offen sc1', tag='hst')
    a(f'buffer_store_dwordx4 {R("v", hres + 4)}, v{vL16}, {WS}, s{sT2} offen offset:2048 sc1', tag='hst')
    a(f's_lshr_b32 s{sT2}, s{sSb}, 1')
    a(f's_lshl_b32 s{sT2}, s{sT2}, 11')
    a(f's_and_b32 s{sT3}, s{sSb}, 1')
    a(f's_lshl_b32 s{sT3}, s{sT3}, 3')
    a(f's_add_u32 s{sT2}, s{sT2}, s{sT3}')
    a(f's_add_u32 s{sT2}, s{sT2}, s{sT1}')
    a(f'buffer_store_dwordx2 {R("v", hres + 8, 2)}, v{vL16}, {WS}, s{sT2} offen sc1', tag='hst')
    hf_ = acc
    for i in range(10):
        a(f'v_lshlrev_b32 v{hf_ + 2 * i}, 16, v{hres + i}')
        a(f'v_and_b32 v{hf_ + 2 * i + 1}, 0xffff0000, v{hres + i}')
    sm = tmpk
    a(f'v_pk_add_f32 {R("v", sm + 2, 2)}, {R("v", hf_, 2)}, {R("v", hf_ + 2, 2)}')
    a(f'v_pk_mul_f32 {R("v", sm + 4, 2)}, {R("v", hf_, 2)}, {R("v", hf_, 2)}')
    a(f'v_pk_mul_f32 {R("v", sm + 6, 2)}, {R("v", hf_ + 2, 2)}, {R("v", hf_ + 2, 2)}')
    for i in range(2, 10):
        d = sm + 4 + 2 * (i & 1)
        a(f'v_pk_add_f32 {R("v", sm + 2, 2)}, {R("v", sm + 2, 2)}, {R("v", hf_ + 2 * i, 2)}')
        a(f'v_pk_fma_f32 {R("v", d, 2)}, {R("v", hf_ + 2 * i, 2)}, {R("v", hf_ + 2 * i, 2)}, {R("v", d, 2)}')
    a(f'v_pk_add_f32 {R("v", sm + 4, 2)}, {R("v", sm + 4, 2)}, {R("v", sm + 6, 2)}')
    a(f'v_add_f32 v{sm}, v{sm + 2}, v{sm + 3}')
    a(f'v_add_f32 v{sm + 1}, v{sm + 4}, v{sm + 5}')
    s1_, s2_ = Asm(), Asm()
    xsum_g(s1_, sm, sm + 2)
    xsum_g(s2_, sm + 1, sm + 3)
    for x, y in zip(s1_.items, s2_.items):
        a(x.text); a(y.text)
    a(f's_lshl_b32 s{sT1}, s{sT0}, 10')
    a(f's_lshr_b32 s{sT2}, s{sCg}, 1')
    a(f's_lshl_b32 s{sT2}, s{sT2}, 8')
    a(f's_add_u32 s{sT1}, s{sT1}, s{sT2}')
    a(f's_and_b32 s{sT2}, s{sCg}, 1')
    a(f's_lshl_b32 s{sT2}, s{sT2}, 3')
    a(f's_add_u32 s{sT1}, s{sT1}, s{sT2}')
    a(f's_add_u32 s{sT1}, s{sT1}, {ST_OFF}')
    a('s_mov_b64 exec, 0xffff')
    a(f'buffer_store_dwordx2 {R("v", sm, 2)}, v{vL16}, {WS}, s{sT1} offen sc1', tag='hst')
    a('s_mov_b64 exec, -1')

    lap('B')
    vOne, vZero = vT[3], vT[4]
    a(f'v_mov_b32 v{vOne}, 1')
    a(f'v_mov_b32 v{vZero}, 0')

    a(f's_lshl_b32 s{sFo}, s{sC}, 9')
    a(f's_add_u32 s{sFo}, s{sFo}, {FL_OFF}')
    a(f's_cmp_eq_u32 s{sWv}, 0')
    a(f's_cselect_b32 s{sFo}, s{sFo}, 0x{BIG:x}')

    def publish(k, tag):
        if tag in a.vm:
            a.vm_wait(tag)
        a('s_barrier')
        a('s_mov_b64 exec, 1')
        a(f'buffer_atomic_add v{vOne}, v{vZero}, {WS}, s{sFo} offen offset:{128 * k} sc1', tag='flag')
        a('s_mov_b64 exec, -1')

    def poll_issue(k):
        a('s_mov_b64 exec, 1')
        a(f'buffer_load_dword v{vT[1]}, v{vZero}, {WS}, s{sFo} offen offset:{128 * k} sc1', tag='poll')
        a('s_mov_b64 exec, -1')

    def poll_wait(k):
        Lp = a.newlabel('Lp'); Lok = a.newlabel('Lok')
        keep = list(a.vm)
        a(f's_cmp_lg_u32 s{sWv}, 0')
        a(f's_cbranch_scc1 {Lok}')
        a.vm_wait('poll')
        a(f's_mov_b32 s{sCnt}, 0')
        a('s_mov_b64 exec, 1')
        a.label(Lp)
        a(f'v_readfirstlane_b32 s{sFi}, v{vT[1]}')
        a(f's_add_u32 s{sCnt}, s{sCnt}, 1')
        a(f's_cmp_ge_u32 s{sFi}, 16')
        a(f's_cbranch_scc1 {Lok}')
        a(f's_cmp_ge_u32 s{sCnt}, 200000')
        a(f's_cbranch_scc1 {Lok}')
        a('s_sleep 1')
        a(f'buffer_load_dword v{vT[1]}, v{vZero}, {WS}, s{sFo} offen offset:{128 * k} sc1')
        a('s_waitcnt vmcnt(0)')
        a(f's_branch {Lp}')
        a.label(Lok)
        a.vm = keep
        a('s_mov_b64 exec, -1')
        a('s_barrier')

    acc3, otmp = X, X + 56
    fb = [Y, Y + 16]
    vCs, vSt, ab = Y + 32, Y + 60, Y + 60
    W2R = [('v', Z + 20 * i) for i in range(4)] + [('a', 160 + 20 * i) for i in range(4)] + [('a', 20 * i) for i in range(6)]

    def w2_groups(i):
        f, r = W2R[i]
        g = []
        for sg in range(5):
            pre_ = []
            if sg == 0:
                pre_ = [f's_add_u32 s{sB}, s{sW2}, {20480 * i}']
                if i == 5:
                    pre_ += [f's_cmp_ge_u32 s{sWv}, 2', f's_cselect_b32 s{sB}, 0x{BIG:x}, s{sB}']
            v, off = (vL16, 1024 * sg) if sg < 4 else (vL16b, 0)
            g.append((pre_ + [f'buffer_load_dwordx4 {R(f, r + 4 * sg)}, v{v}, {WS}, s{sB} offen offset:{off}'], f'w2_{i}'))
        return g
    W1M = int(os.environ.get('F_W1M', '100')) * 1024
    csg = []
    for sg in range(7):
        pre_ = []
        if sg == 0:
            pre_ = [f'v_and_b32 v{vT[0]}, 3, v{vL}', f'v_mul_u32_u24 v{vT[0]}, 7168, v{vT[0]}', f'v_lshl_add_u32 v{vT[0]}, v{vG}, 4, v{vT[0]}',
                    f's_mul_i32 s{sT0}, s{sJ}, 448', f's_add_u32 s{sT0}, s{sT0}, {CS1_OFF}']
        csg.append((pre_ + [f'buffer_load_dwordx4 {R("v", vCs + 4 * sg)}, v{vT[0]}, {WS}, s{sT0} offen offset:{64 * sg}'], 'cs'))
    NW2S = int(os.environ.get('F_NW2S', '5'))
    mid = w1_groups(W1E, W1M, 'w1m') + csg
    for i in range(NW2S):
        mid += w2_groups(i)
    nb4 = min(len(mid), int(os.environ.get('F_NB4', '10')))
    for g in mid[:nb4]:
        emit(g)
    publish(0, 'hst')
    lap()
    for g in mid[nb4:]:
        emit(g)
    poll_issue(0)
    a(f's_lshl_b32 s{sT0}, s{sC}, 2')
    a(f's_add_u32 s{sT0}, s{sT0}, s{sWv}')
    a(f's_mul_i32 s{sA}, s{sT0}, 40960')
    a(f's_add_u32 s{sA}, s{sA}, {HP_OFF}')
    a(f's_lshl_b32 s{sT0}, s{sT0}, 11')
    a(f's_add_u32 s{sT0}, s{sT0}, {ST_OFF}')
    vBa = [vL16, vT[2], hres + 10]
    a(f'v_add_u32 v{vT[2]}, {65536}, v{vL16}')
    a(f'v_add_u32 v{hres + 10}, {131072}, v{vL16}')
    a(f's_lshl_b32 s{sT2}, s{sC}, 1')
    a(f's_lshr_b32 s{sT3}, s{sWv}, 1')
    a(f's_add_u32 s{sT2}, s{sT2}, s{sT3}')
    a(f's_mul_i32 s{sH}, s{sT2}, {H1G}')
    a(f's_and_b32 s{sT3}, s{sWv}, 1')
    a(f's_lshl_b32 s{sT3}, s{sT3}, 11')
    a(f's_add_u32 s{sH}, s{sH}, s{sT3}')
    a(f's_add_u32 s{sH}, s{sH}, {H1P_OFF}')
    a(f's_lshr_b32 s{sHs}, s{sJ}, 3')
    a(f's_mul_i32 s{sHs}, s{sHs}, 3')
    a(f's_and_b32 s{sT2}, s{sJ}, 7')
    a(f's_lshr_b32 s{sT3}, s{sT2}, 1')
    a(f's_add_u32 s{sHs}, s{sHs}, s{sT3}')
    a(f's_lshl_b32 s{sHs}, s{sHs}, 12')
    a(f's_and_b32 s{sT3}, s{sJ}, 1')
    a(f's_lshl_b32 s{sT3}, s{sT3}, 3')
    a(f's_add_u32 s{sHs}, s{sHs}, s{sT3}')
    a(f's_add_u32 s{sHs}, s{sHs}, s{sH}')
    a(f's_add_u32 s{sHs}, s{sHs}, {16 * 4096}')
    a(f's_cmp_ge_u32 s{sT2}, 6')
    a(f's_cselect_b32 s{sHs}, 0x{BIG:x}, s{sHs}')
    a(f's_lshl_b32 s{sT2}, s{sJ}, 12')
    a(f's_add_u32 s{sH}, s{sH}, s{sT2}')
    a.vm_wait('cs')
    poll_wait(0)
    lap()

    def a3_groups():
        g = [([f'buffer_load_dwordx4 {R("v", vSt)}, v{vL16}, {WS}, s{sT0} offen sc1'], 'st'),
             ([f'buffer_load_dwordx4 {R("v", vSt + 4)}, v{vL16}, {WS}, s{sT0} offen offset:1024 sc1'], 'st')]
        for f in range(40):
            pre_ = [f's_add_u32 s{sA}, s{sA}, 4096'] if f and f % 4 == 0 else []
            g.append((pre_ + [f'buffer_load_dwordx4 {R("a", 4 * f)}, v{vL16}, {WS}, s{sA} offen offset:{1024 * (f & 3)} sc1'], f'h{f // 2}'))
        return g
    pend = a3_groups() + w1_groups(W1M, 143360, 'w1l')
    NW2A = int(os.environ.get('F_NW2A', '8'))
    for i in range(NW2S, NW2A):
        pend += w2_groups(i)
    pull(int(os.environ.get('F_H0', '18')))

    PART = {0: ([0, 1, 6], 0, 3072), 1: ([2, 3], 61440, 2048), 2: ([4, 5], 102400, 2048)}

    def steps(part):
        sl = PART[part][0]
        if part == 0:
            return [[(ks, q, s_) for q, s_ in enumerate(sl)] for ks in range(20)]
        return [[(ks, q, s_) for ks in (2 * m, 2 * m + 1) for q, s_ in enumerate(sl)] for m in range(10)]
    allsteps = [(p, st) for p in range(3) for st in steps(p)]

    def breads(n):
        p, st = allsteps[n]
        f = fb[n & 1]
        out = []
        for k, (ks, q, s_) in enumerate(st):
            o = PART[p][1] + ks * PART[p][2] + 1024 * q
            out.append(f'ds_read_b128 {R("v", f + 4 * k)}, v{vBa[o >> 16]} offset:{o & 0xffff}')
        return out

    def mf3(n):
        p, st = allsteps[n]
        f = fb[n & 1]
        lst = []
        for k, (ks, q, s_) in enumerate(st):
            for t in range(2):
                d = acc3 + 28 * t + 4 * s_
                c = '0' if ks == 0 else R('v', d)
                lst.append(f'{M16} {R("v", d)}, {R("v", f + 4 * k)}, {R("a", 8 * ks + 4 * t)}, {c}')
        return lst

    dpp = [f'v_add_f32_dpp v{vCs + r}, v{vCs + r}, v{vCs + r} quad_perm:[1,0,3,2] row_mask:0xf bank_mask:0xf' for r in range(28)]
    dpp += [f'v_add_f32_dpp v{vCs + r}, v{vCs + r}, v{vCs + r} quad_perm:[2,3,0,1] row_mask:0xf bank_mask:0xf' for r in range(28)]
    sub = Asm()
    for t in range(2):
        s_ = vSt + 4 * t
        m, v, x = otmp + 4 * t + 2, otmp + 8 + 2 * t, otmp + 9 + 2 * t
        sub(f'v_add_f32 v{m}, v{s_}, v{s_ + 2}')
        sub(f'v_add_f32 v{v}, v{s_ + 1}, v{s_ + 3}')
        xsum_g(sub, m, x)
        xsum_g(sub, v, x)
        sub(f'v_mul_f32 v{m}, 0x3acccccd, v{m}')
        sub(f'v_mul_f32 v{v}, 0x3acccccd, v{v}')
        sub(f'v_fma_f32 v{v}, -v{m}, v{m}, v{v}')
        ln_stats(sub, m, v, otmp + 4 * t)
        sub(f'v_mov_b32 v{ab + 4 * t}, v{otmp + 4 * t}')
        sub(f'v_mov_b32 v{ab + 4 * t + 1}, v{m}')
    half_n = len(sub.items) // 2
    stl = [None] * len(sub.items)
    stl[0::2] = [i.text for i in sub.items[:half_n]]
    stl[1::2] = [i.text for i in sub.items[half_n:]]

    def epi_tile(t, sg, ob):
        lst = []
        d = acc3 + 28 * t + 4 * sg
        for r in range(4):
            lst.append(f'v_mul_f32 v{d + r}, v{d + r}, v{ab + 4 * t}')
        for r in range(4):
            lst.append(f'v_fmac_f32 v{d + r}, v{vCs + 4 * sg + r}, v{ab + 4 * t + 1}')
        for h in range(2):
            lst.append(f'v_cvt_pk_bf16_f32 v{ob + h}, v{d + 2 * h}, v{d + 2 * h + 1}')
        for h in range(2):
            lst.append(f'v_pk_max_i16 v{ob + h}, v{ob + h}, v{vZero}')
        return lst

    def epi_part(p):
        out = []
        base = otmp + (0, 12, 0)[p]
        if p:
            out.append(f's_add_u32 s{sH}, s{sH}, {(24 if p == 1 else 16) * 4096}')
        for t in range(2):
            ob = base + 4 * t
            out += epi_tile(t, 2 * p, ob) + epi_tile(t, 2 * p + 1, ob + 2)
            out.append(('vm', f'buffer_store_dwordx4 {R("v", ob)}, v{vL16}, {WS}, s{sH} offen offset:{1024 * t} sc1', f'h1_{p}'))
        if p == 0:
            for t in range(2):
                ob = base + 8 + 2 * t
                out += epi_tile(t, 6, ob)
                out.append(('vm', f'buffer_store_dwordx2 {R("v", ob, 2)}, v{vL16}, {WS}, s{sHs} offen offset:{1024 * t} sc1', 'h1_0'))
        return out

    AR = [('a', 240), ('a', 120), ('a', 136), ('v', Y), ('v', Y + 16), ('v', Y + 32), ('v', Y + 48)]
    NR_ = len(AR)
    vAo = [vT[0], vR4[0], vR4[1], vPQo]
    a4pre = []
    for i in range(4):
        a4pre += [f's_add_u32 s{sT2}, s{sWv}, {1 + i}', f's_and_b32 s{sT2}, s{sT2}, 3', f's_lshl_b32 s{sT2}, s{sT2}, 10',
                  f'v_add_u32 v{vAo[i]}, s{sT2}, v{vL16}']
    a4pre += [f's_mul_i32 s{sA4}, s{sRb}, {H1G}', f's_lshl_b32 s{sT2}, s{sWv}, 12', f's_add_u32 s{sA4}, s{sA4}, s{sT2}',
              f's_add_u32 s{sA4}, s{sA4}, {H1P_OFF}']

    def a4_groups(i):
        f, r = AR[i % NR_]
        g = []
        for t in range(4):
            pre_ = []
            if t == 0:
                pre_ = [f's_add_u32 s{sA}, s{sA4}, {16384 * i}']
                if i == 5:
                    pre_ += [f's_cmp_ge_u32 s{sWv}, 2', f's_cselect_b32 s{sA}, 0x{BIG:x}, s{sA}']
            g.append((pre_ + [f'buffer_load_dwordx4 {R(f, r + 4 * t)}, v{vAo[t]}, {WS}, s{sA} offen sc1'], f'a{i}'))
        return g

    for x in breads(0):
        a(x)
    side = list(dpp)
    st_added = False
    PUB_A = int(os.environ.get('F_PUBA', '31'))
    POLL_A = int(os.environ.get('F_POLLA', '38'))
    PUB_B = int(os.environ.get('F_PUBB', '39'))
    NS_ = len(allsteps)
    for n in range(NS_):
        p, st = allsteps[n]
        if p == 0:
            need_tag(f'h{n}')
            if n == 6:
                side += stl
        if n == 20:
            while side:
                a(side.pop(0))
            lap()
            side = epi_part(0)
        if n == 29:
            lap('C')
            need_tag('w1l')
            a('s_barrier')
        if n == 30:
            assert not side
            side = epi_part(1) + a4pre
        a('s_waitcnt lgkmcnt(0)')
        nxt = breads(n + 1) if n + 1 < NS_ else []
        ms = mf3(n)
        for k, m in enumerate(ms):
            a(m)
            cnt = 2
            if nxt:
                a(nxt.pop(0))
                cnt = 1
            elif pend and k == len(ms) - 2:
                pull()
                cnt = 0
            elif pend and p == 0 and k == len(ms) - 1:
                pull()
                cnt = 0
            for _ in range(cnt):
                if side:
                    x = side.pop(0)
                    if isinstance(x, tuple):
                        a(x[1], tag=x[2])
                        if not any(isinstance(y, tuple) for y in side) and x[2] == 'h1_0':
                            for i in range(NW2A, 8):
                                pend += w2_groups(i)
                    else:
                        a(x)
        if n == PUB_A:
            lap('C')
            publish(1, 'h1_0')
            lap('C')
        if n == POLL_A:
            lap('C')
            while pend:
                pull()
            lap('C')
            poll_issue(1)
        if n == PUB_B:
            assert not side
            lap('C')
            publish(2, 'h1_1')
    lap()
    poll_wait(1)
    lap()
    for i in range(5):
        for g in a4_groups(i):
            emit(g)
    ec = epi_part(2)
    for x in ec:
        if isinstance(x, tuple):
            a(x[1], tag=x[2])
        else:
            a(x)
    acc4 = X
    pend = a4_groups(5) + w2_groups(8) + w2_groups(9)
    PUB_C = int(os.environ.get('F_PUBC', '1'))
    POLL_B = int(os.environ.get('F_POLLB', '1'))
    POLL_C = int(os.environ.get('F_POLLC', '5'))
    avail = 6
    nexta = 6
    for i in range(14):
        need_tag(f'a{i}')
        need_tag(f'w2_{i}')
        lap('D')
        fa, ra = AR[i % NR_]
        fw, rw = W2R[i]
        k = 0
        for t in range(4):
            for sg in range(5):
                d = acc4 + 20 * t + 4 * sg
                c = '0' if i == 0 else R('v', d)
                a(f'{M16} {R("v", d)}, {R(fw, rw + 4 * sg)}, {R(fa, ra + 4 * t)}, {c}')
                k += 1
                if k % 2 == 0:
                    pull()
        if i == PUB_C:
            publish(3, 'h1_2')
        if i in (POLL_B, POLL_C):
            poll_issue(2 if i == POLL_B else 3)
        if i in (POLL_B + 1, POLL_C + 1):
            poll_wait(2 if i == POLL_B + 1 else 3)
            lap()
            avail += 4
        newa = []
        while nexta < avail and nexta <= i + NR_:
            newa += a4_groups(nexta)
            nexta += 1
        k_ = 0
        while k_ < len(pend) and not (pend[k_][1].startswith('w2') and len(pend[k_][0]) > 1):
            k_ += 1
        pend = pend[:k_] + newa + pend[k_:]
        if i == POLL_B + 1:
            pend += w2_groups(10) + w2_groups(11) + w2_groups(12) + w2_groups(13)
    assert not pend
    lap()
    vRW = Y
    for i in range(3):
        a(f's_add_u32 s{sT0}, s{sWv}, {1 + i}')
        a(f's_and_b32 s{sT0}, s{sT0}, 3')
        a(f's_mul_i32 s{sT0}, s{sT0}, 15360')
        a(f's_add_u32 s{sT0}, s{sT0}, {5120 * i}')
        a(f'v_add_u32 v{vRW + i}, s{sT0}, v{vL16}')
    for i in range(3):
        for x in send(i, vRW):
            a(x)
    vXo = vT[2]
    a(f'v_mul_u32_u24 v{vXo}, 1280, v{vR}')
    a(f'v_lshl_add_u32 v{vXo}, v{vG}, 4, v{vXo}')
    own = reduce_own(0)
    outr = Y + 8
    residual(own, outr, Y + 24)
    so = f's[{sO}:{sO + 3}]'
    a(f'buffer_store_dwordx4 {R("v", outr)}, v{vXo}, {so}, s{sOa} offen')
    a(f'buffer_store_dwordx4 {R("v", outr + 4)}, v{vXo}, {so}, s{sOa} offen offset:64')
    a(f'buffer_store_dwordx2 {R("v", outr + 8, 2)}, v{vXo}, {so}, s{sOb} offen')
    if a.diag is not None:
        a('s_waitcnt vmcnt(0)')
    a.stamp_flush(sWv, P_WS, TS_OFF)
    a.label(name + '_end')
    a('s_endpgm')
```

```python
import os
from asmlib import *
from layout import *
from k1 import load_args, srd, ln_stats, spread, LOG2E, P_X, P_WQKV, P_WO, P_W1, P_W2, P_OUT, P_DBG, P_WS
from k234 import xsum_g, cg_blocks, M16, BIG

KG_LDS = 163840
RB = 81920
SA = 143360
P2L = 102400
OP_OFF = PQ_OFF
FL_C, FL_O, FL_KV, FL_RP = 0, 64, 96, 104


def E(name, default):
    return int(os.environ.get(name, str(default)))


def R(f, b, n=4):
    return f'{f}[{b}:{b + n - 1}]'


def sig5(T):
    cg, rel = T // 5, T % 5
    return cg, ((4 if rel == 0 else rel - 1) if cg & 1 else rel)


def kg_table():
    bp = blk_pos()
    inv = {}
    for j in range(16):
        for sg, T in enumerate(slot_tiles(w1_t0(j), w1_cnt(j), 7)):
            if T is not None:
                inv[T] = (j, sg)
    tab = []
    for r in range(256):
        for w in range(4):
            if r < 108:
                p, nb = r // 27, r % 27
                j, sg = inv[4 * nb + w]
                e = [160 * p * 3456 + 128 * nb, 32 * 3456] + [W1P_OFF + w1_frag_off(j, 5 * p + i, sg) for i in range(5)]
                e.append(CS1_OFF + p * 7168 + (j * 7 + sg) * 64)
            elif r < 216:
                ks, hf = (r - 108) >> 1, (r - 108) & 1
                e = [32 * ks * 1280 + 640 * hf, 128]
                for i in range(5):
                    cg, sg = sig5(20 * hf + 4 * i + w)
                    e.append(W2P_OFF + cg * W2G + bp[ks] * 5120 + sg * 1024)
                e.append(BIG)
            else:
                ks, hf = (r - 216) >> 1, (r - 216) & 1
                e = [32 * ks * 1280 + 640 * hf, 128]
                for i in range(5):
                    cg, sg = sig5(20 * hf + 4 * i + w)
                    e.append(WOP_OFF + cg * 102400 + ks * 5120 + sg * 1024)
                e.append(BIG)
            tab.append(e)
    return tab


def lane_mask(fn):
    m = 0
    for l in range(64):
        if fn(l >> 4, l & 15):
            m |= 1 << l
    return m


def set_exec(m):
    return [f's_mov_b32 exec_lo, 0x{m & 0xffffffff:x}', f's_mov_b32 exec_hi, 0x{m >> 32:x}']


def gen_kg(a, name):
    sX, sW, sWS, sR = 36, 40, 44, 48
    sO = sR
    sa = RegAlloc('s', 52, 80 if a.diag is not None else 100)
    sTab = sa.get(8, 4)
    sWv = sa.get(); sRh = sa.get(); sCh = sa.get(); sR1 = sa.get(); sHg = sa.get()
    sT0 = sa.get(); sT1 = sa.get(); sT2 = sa.get(); sT3 = sa.get()
    sKc = sa.get(); sSA = sa.get(); sSB = sa.get(); sMA = sa.get(); sMB = sa.get()
    sFw = sa.get(); sCnt = sa.get()
    sM0, sM1, sM2 = 22, 34, 28
    sRb, sCg, sPb, sSb, sJ, sC, sOa, sOb = [sTab + i for i in range(8)]
    sW1, sW1m, sW2, sA, sB = sKc, sSA, sSB, sMA, sMB
    sH, sHs, sA4 = sRh, sCh, sR1
    sFc = sHg
    WS = f's[{sWS}:{sWS + 3}]'
    lapn = [0]
    LSET = os.environ.get('G_LAPS', 'A')

    def lap(kind='A'):
        if kind in LSET and lapn[0] < 16:
            a.slap(lapn[0])
            lapn[0] += 1

    vL, vG, vR, vL16, vL16b, vL128 = 1, 2, 3, 4, 5, 6
    vT = [7, 8, 9, 10, 11]
    vOne, vZero = vT[3], vT[4]
    hres = 12
    X, Y, Z = 24, 104, 176
    Lend = name + '_end'
    a.raw(f'.globl {name}\n.p2align 8\n.type {name},@function')
    a.label(name)
    a('s_cmp_ge_u32 s2, 256')
    a(f's_cbranch_scc1 {Lend}')
    a.stamp(0)
    load_args(a)
    a(f'v_and_b32 v{vL}, 63, v0')
    a(f'v_lshrrev_b32 v{vT[0]}, 6, v0')
    a(f'v_readfirstlane_b32 s{sWv}, v{vT[0]}')
    a(f'v_lshrrev_b32 v{vG}, 4, v{vL}')
    a(f'v_and_b32 v{vR}, 15, v{vL}')
    a(f's_lshr_b32 s{sRh}, s{sWv}, 1')
    a(f's_and_b32 s{sCh}, s{sWv}, 1')
    a(f's_and_b32 s{sT0}, s2, 7')
    a(f's_lshr_b32 s{sT1}, s2, 3')
    a(f's_lshr_b32 s{sT2}, s{sT0}, 1')
    a(f's_lshl_b32 s{sR1}, s{sT2}, 3')
    a(f's_lshr_b32 s{sT3}, s{sT1}, 2')
    a(f's_add_u32 s{sR1}, s{sR1}, s{sT3}')
    a(f's_and_b32 s{sT0}, s{sT0}, 1')
    a(f's_lshl_b32 s{sHg}, s{sT0}, 2')
    a(f's_and_b32 s{sT1}, s{sT1}, 3')
    a(f's_add_u32 s{sHg}, s{sHg}, s{sT1}')
    a(f's_add_u32 s{sKc}, s{sT3}, s{sT1}')
    a(f's_lshl_b32 s{sKc}, s{sKc}, 1')
    a(f's_add_u32 s{sKc}, s{sKc}, s{sT2}')
    for _ in range(2):
        a(f's_sub_u32 s{sT0}, s{sKc}, 10')
        a(f's_cmp_ge_u32 s{sKc}, 10')
        a(f's_cselect_b32 s{sKc}, s{sT0}, s{sKc}')
    va = RegAlloc('v', 24, 256)
    vOA = va.get(2); vOB = va.get(5); vOQ = va.get(5); vRP = va.get()
    t = [hres + i for i in range(6)]
    a(f's_lshl_b32 s{sT1}, s{sWv}, 4')
    a(f'v_lshrrev_b32 v{t[0]}, 3, v{vL}')
    a(f'v_add_u32 v{t[0]}, s{sT1}, v{t[0]}')
    a(f'v_and_b32 v{t[1]}, 7, v{vL}')
    a(f'v_xor_b32 v{t[2]}, v{vG}, v{t[1]}')
    a(f'v_lshlrev_b32 v{t[2]}, 4, v{t[2]}')
    a(f'v_mul_u32_u24 v{t[0]}, 1280, v{t[0]}')
    a(f'v_add_u32 v{vOA}, v{t[0]}, v{t[2]}')
    a(f'v_xor_b32 v{t[2]}, 64, v{t[2]}')
    a(f'v_add3_u32 v{vOA + 1}, v{t[0]}, v{t[2]}, 0') if False else None
    a(f'v_add_u32 v{vOA + 1}, v{t[0]}, v{t[2]}')
    a(f'v_add_u32 v{vOA + 1}, {10240 - 1024}, v{vOA + 1}')
    a(f's_mul_i32 s{sT3}, s{sWv}, {16 * 3840}')
    a(f's_movk_i32 s{sT2}, 3840')
    for j in range(5):
        a(f'v_add_u32 v{t[0]}, {64 * j}, v{vL}')
        a(f'v_mul_u32_u24 v{t[1]}, 3277, v{t[0]}')
        a(f'v_lshrrev_b32 v{t[1]}, 16, v{t[1]}')
        a(f'v_mul_u32_u24 v{t[2]}, 20, v{t[1]}')
        a(f'v_sub_u32 v{t[0]}, v{t[0]}, v{t[2]}')
        a(f'v_lshrrev_b32 v{t[2]}, 2, v{t[1]}')
        a(f'v_and_b32 v{t[2]}, 2, v{t[2]}')
        a(f'v_xor_b32 v{t[0]}, v{t[0]}, v{t[2]}')
        a(f'v_mul_u32_u24 v{t[2]}, 205, v{t[0]}')
        a(f'v_lshrrev_b32 v{t[2]}, 10, v{t[2]}')
        a(f'v_and_b32 v{t[3]}, 1, v{t[2]}')
        a(f'v_mul_u32_u24 v{t[3]}, 1200, v{t[3]}')
        a(f'v_lshl_add_u32 v{t[0]}, v{t[0]}, 4, v{t[3]}')
        a(f'v_lshrrev_b32 v{t[2]}, 1, v{t[2]}')
        a(f'v_mul_u32_u24 v{t[2]}, 80, v{t[2]}')
        a(f'v_sub_u32 v{t[0]}, v{t[0]}, v{t[2]}')
        a(f'v_mad_u32_u24 v{t[0]}, v{t[1]}, s{sT2}, v{t[0]}')
        a(f's_sub_u32 s{sT1}, s{sT3}, {1024 * (j & 3)}')
        a(f'v_add_u32 v{vOB + j}, s{sT1}, v{t[0]}')
    a(f's_lshl_b32 s{sMA}, s{sWv}, 11')
    a(f's_mul_i32 s{sMB}, s{sWv}, 5120')
    a(f's_add_u32 s{sMB}, s{sMB}, {RB}')
    a(f's_mul_i32 s{sT0}, s{sR1}, {64 * 1280}')
    a(f's_mul_i32 s{sT1}, s{sHg}, 160')
    a('s_waitcnt lgkmcnt(0)')
    a(f's_add_u32 s{sX}, s{P_X}, s{sT0}')
    a(f's_addc_u32 s{sX + 1}, s{P_X + 1}, 0')
    a(f's_sub_u32 s{sX + 2}, {S * D * 2}, s{sT0}')
    a(f's_mov_b32 s{sX + 3}, 0x20000')
    a(f's_add_u32 s{sW}, s{P_WQKV}, s{sT1}')
    a(f's_addc_u32 s{sW + 1}, s{P_WQKV + 1}, 0')
    a(f's_sub_u32 s{sW + 2}, {D * 3 * D * 2}, s{sT1}')
    a(f's_mov_b32 s{sW + 3}, 0x20000')
    a.vm_reset()

    def stage_groups(n):
        g = []
        slot = RB_slot = (n % 3) * 20480
        adv = [f's_add_u32 s{sKc}, s{sKc}, 1', f's_cmp_eq_u32 s{sKc}, 10', f's_cselect_b32 s{sKc}, 0, s{sKc}']
        if n < 10:
            for j in range(2):
                pre = []
                if j == 0:
                    pre = [f's_lshl_b32 s{sSA}, s{sKc}, 7', f's_mul_i32 s{sSB}, s{sKc}, {64 * 3840}',
                           f's_add_u32 s{sSB}, s{sSB}, 1280', f's_add_u32 m0, s{sMA}, {8192 * n}'] + adv
                g.append((pre + [f'buffer_load_dwordx4 v{vOA + j}, s[{sX}:{sX + 3}], s{sSA} offen offset:{1024 * j} lds'], f's{n}'))
            vo = vOB
        else:
            vo = vOQ
        for j in range(5):
            pre = []
            if j == 0:
                if n >= 10:
                    pre = [f's_add_u32 s{sSB}, s{sKc}, s{sRh}', f's_cmp_eq_u32 s{sSB}, 10', f's_cselect_b32 s{sSB}, 0, s{sSB}',
                           f's_mul_i32 s{sSB}, s{sSB}, {64 * 3840}'] + adv + adv
                pre = pre + [f's_add_u32 m0, s{sMB}, {slot}', 's_nop 0']
            if j == 4:
                pre = [f's_add_u32 m0, s{sMB}, {slot + 4096}', 's_nop 0']
            elif j > 0:
                pre = [f's_add_u32 m0, s{sMB}, {slot}', 's_nop 0'] if j == 2 else []
            g.append((pre + [f'buffer_load_dwordx4 v{vo + j}, s[{sW}:{sW + 3}], s{sSB} offen offset:{1024 * (j & 3)} lds'], f's{n}'))
        return g

    def emit(g):
        for x in g[0]:
            a(x, tag=g[1])
    pend = []

    def pull(n=1):
        for _ in range(n):
            if pend:
                emit(pend.pop(0))

    def need_tag(tag, extra=''):
        while any(g[1] == tag for g in pend):
            pull()
        if tag in a.vm:
            a.vm_wait(tag, extra)
        elif extra:
            a('s_waitcnt' + extra)
    a.stamp(1)
    for n in range(2):
        for g in stage_groups(n):
            emit(g)
    srd(a, sWS, P_WS, 0, WS_USED)
    a(f's_getpc_b64 s[{sM1}:{sM1 + 1}]')
    a.label(name + '_pc')
    a(f's_lshl_b32 s{sT0}, s2, 2')
    a(f's_add_u32 s{sT0}, s{sT0}, s{sWv}')
    a(f's_lshl_b32 s{sT0}, s{sT0}, 5')
    a(f's_add_u32 s{sM1}, s{sM1}, {name}_tab-{name}_pc')
    a(f's_addc_u32 s{sM1 + 1}, s{sM1 + 1}, 0')
    a(f's_load_dwordx8 s[{sTab}:{sTab + 7}], s[{sM1}:{sM1 + 1}], s{sT0}')
    a(f'v_lshlrev_b32 v{vL16}, 4, v{vL}')
    a(f'v_add_u32 v{vL16b}, 4096, v{vL16}')
    a(f'v_lshlrev_b32 v{vL128}, 7, v{vL}')
    a(f'v_mov_b32 v{vOne}, 1')
    a(f'v_mov_b32 v{vZero}, 0')
    vOnes = va.get(4, 4)
    vA = va.get(4); vB = va.get(4); vQ = va.get(2)
    fr = [va.get(40, 4) for _ in range(2)]
    acc = va.get(40, 4); s1 = va.get(8, 4); s2 = va.get(8, 4); cs = va.get(20, 4)
    pad_ = va.get(4, 4)
    qacc = va.get(24, 4); qcs = va.get(12, 4)
    vC = hres + 6
    for i in range(4):
        a(f'v_mov_b32 v{vOnes + i}, 0x3f803f80')
        a(f'v_mov_b32 v{pad_ + i}, 0')
    Lnz = a.newlabel('Lnz')
    a(f's_lshl_b32 s{sT1}, s{sHg}, 2')
    a(f's_add_u32 s{sT1}, s{sT1}, s{sWv}')
    a(f's_mul_i32 s{sT2}, s{sT1}, {KV_HS}')
    a(f's_add_u32 s{sT2}, s{sT2}, {KV_OFF}')
    a(f's_lshl_b32 s{sT3}, s{sT1}, 9')
    a(f's_add_u32 s{sT3}, s{sT3}, {FL_OFF}')
    a(f's_cmp_eq_u32 s{sR1}, 0')
    a(f's_cselect_b32 s{sT2}, s{sT2}, 0x{BIG:x}')
    a(f's_cselect_b32 s{sT3}, s{sT3}, 0x{BIG:x}')
    a(f'v_lshlrev_b32 v{t[0]}, 3, v{vL}')
    a(f'buffer_store_dwordx4 {R("v", pad_)}, v{vL16}, {WS}, s{sT2} offen sc1', tag='z')
    a(f'buffer_store_dwordx4 {R("v", pad_)}, v{vL16}, {WS}, s{sT2} offen offset:768 sc1', tag='z')
    a(f'buffer_store_dwordx2 {R("v", pad_, 2)}, v{t[0]}, {WS}, s{sT3} offen sc1', tag='z')
    a(f's_mul_i32 s{sT3}, s{sCh}, {32 * 3840}')
    a(f's_movk_i32 s{sT2}, 3840')
    for j in range(5):
        a(f'v_add_u32 v{t[0]}, {64 * j}, v{vL}')
        a(f'v_mul_u32_u24 v{t[1]}, 6554, v{t[0]}')
        a(f'v_lshrrev_b32 v{t[1]}, 16, v{t[1]}')
        a(f'v_mul_u32_u24 v{t[2]}, 10, v{t[1]}')
        a(f'v_sub_u32 v{t[0]}, v{t[0]}, v{t[2]}')
        a(f'v_and_b32 v{t[2]}, 0x13, v{t[1]}')
        a(f'v_bfe_u32 v{t[3]}, v{t[1]}, 2, 1')
        a(f'v_lshl_or_b32 v{t[2]}, v{t[3]}, 3, v{t[2]}')
        a(f'v_bfe_u32 v{t[3]}, v{t[1]}, 3, 1')
        a(f'v_lshl_or_b32 v{t[2]}, v{t[3]}, 2, v{t[2]}')
        a(f'v_lshlrev_b32 v{t[0]}, 4, v{t[0]}')
        a(f'v_mad_u32_u24 v{t[0]}, v{t[2]}, s{sT2}, v{t[0]}')
        a(f's_sub_u32 s{sT1}, s{sT3}, {1024 * (j & 3)}')
        a(f'v_add_u32 v{vOQ + j}, s{sT1}, v{t[0]}')
    a('s_cmp_lt_u32 s2, 216')
    a(f's_cselect_b32 s{sR}, s{P_W2}, s{P_WO}')
    a(f's_cselect_b32 s{sR + 1}, s{P_W2 + 1}, s{P_WO + 1}')
    a(f's_mov_b32 s{sR + 2}, {D * D * 2}')
    a(f's_cselect_b32 s{sR + 2}, {D * F * 2}, s{sR + 2}')
    a(f's_movk_i32 s{sT0}, 1280')
    a('s_cmp_lt_u32 s2, 108')
    a(f's_cselect_b32 s{sR}, s{P_W1}, s{sR}')
    a(f's_cselect_b32 s{sR + 1}, s{P_W1 + 1}, s{sR + 1}')
    a(f's_cselect_b32 s{sT0}, 3456, s{sT0}')
    a(f's_mov_b32 s{sR + 3}, 0x20000')
    a(f's_lshl_b32 s{sT1}, s{sWv}, 3')
    a(f'v_lshrrev_b32 v{t[0]}, 3, v{vL}')
    a(f'v_add_u32 v{t[0]}, s{sT1}, v{t[0]}')
    a(f'v_and_b32 v{t[1]}, 7, v{vL}')
    a(f'v_lshlrev_b32 v{t[1]}, 4, v{t[1]}')
    a(f'v_mad_u32_u24 v{vRP}, v{t[0]}, s{sT0}, v{t[1]}')
    a(f's_xor_b32 s{sT0}, s{sRh}, s{sCh}')
    a(f'v_lshrrev_b32 v{t[0]}, 3, v{vR}')
    a(f'v_lshlrev_b32 v{t[0]}, 10, v{t[0]}')
    a(f'v_and_b32 v{t[1]}, 7, v{vR}')
    a(f'v_lshl_add_u32 v{t[0]}, v{t[1]}, 7, v{t[0]}')
    a(f's_lshl_b32 s{sT1}, s{sRh}, 12')
    a(f'v_add_u32 v{t[0]}, s{sT1}, v{t[0]}')
    a(f'v_lshrrev_b32 v{t[1]}, 1, v{vR}')
    a(f'v_xor_b32 v{t[1]}, v{t[1]}, v{vG}')
    a(f's_lshl_b32 s{sT1}, s{sT0}, 2')
    a(f'v_xor_b32 v{t[1]}, s{sT1}, v{t[1]}')
    a(f'v_lshl_add_u32 v{vA}, v{t[1]}, 4, v{t[0]}')
    a(f'v_xor_b32 v{t[1]}, 4, v{t[1]}')
    a(f'v_lshl_add_u32 v{vA + 1}, v{t[1]}, 4, v{t[0]}')
    a(f'v_add_u32 v{vA + 2}, 40960, v{vA}')
    a(f'v_add_u32 v{vA + 3}, 40960, v{vA + 1}')
    a(f'v_bfe_u32 v{t[0]}, v{vL}, 2, 2')
    a(f'v_and_b32 v{t[1]}, 3, v{vL}')
    a(f'v_lshl_add_u32 v{t[2]}, v{vG}, 3, v{t[0]}')
    a(f'v_and_b32 v{t[3]}, 1, v{vG}')
    a(f'v_mul_u32_u24 v{t[2]}, 320, v{t[2]}')
    a(f'v_lshl_add_u32 v{t[2]}, v{t[1]}, 3, v{t[2]}')
    a(f's_mul_i32 s{sT1}, s{sCh}, 160')
    a(f's_add_u32 s{sT1}, s{sT1}, {RB}')
    a(f'v_add_u32 v{t[2]}, s{sT1}, v{t[2]}')
    a(f'v_lshlrev_b32 v{t[4]}, 5, v{t[3]}')
    a(f'v_sub_u32 v{t[5]}, v{t[2]}, v{t[4]}')
    a(f'v_add_u32 v{t[4]}, v{t[2]}, v{t[4]}')
    a(f's_cmp_eq_u32 s{sCh}, 0')
    a('s_cselect_b64 vcc, -1, 0')
    a(f'v_cndmask_b32 v{t[2]}, v{t[5]}, v{t[4]}, vcc')
    a(f'v_cndmask_b32 v{t[4]}, v{t[4]}, v{t[5]}, vcc')
    a(f's_mul_i32 s{sT1}, s{sT0}, 10240')
    a(f's_sub_u32 s{sT2}, 10240, s{sT1}')
    for o, sreg in ((0, sT1), (1, sT2)):
        a(f'v_add_u32 v{vB + 2 * o}, s{sreg}, v{t[2]}')
        a(f'v_add_u32 v{vB + 2 * o + 1}, s{sreg}, v{t[4]}')
    a(f'v_lshl_add_u32 v{t[0]}, v{t[3]}, 2, v{t[0]}')
    a(f'v_lshrrev_b32 v{t[3]}, 1, v{vG}')
    a(f'v_lshl_add_u32 v{t[0]}, v{t[3]}, 4, v{t[0]}')
    a(f'v_mul_u32_u24 v{t[0]}, 160, v{t[0]}')
    a(f'v_lshl_add_u32 v{t[0]}, v{t[1]}, 3, v{t[0]}')
    a(f's_mul_i32 s{sT1}, s{sCh}, 80')
    a(f's_add_u32 s{sT1}, s{sT1}, {RB}')
    a(f's_mul_i32 s{sT2}, s{sT0}, 5120')
    a(f's_add_u32 s{sT3}, s{sT1}, s{sT2}')
    a(f'v_add_u32 v{vQ}, s{sT3}, v{t[0]}')
    a(f's_sub_u32 s{sT3}, s{sT1}, s{sT2}')
    a(f's_add_u32 s{sT3}, s{sT3}, 5120')
    a(f'v_add_u32 v{vQ + 1}, s{sT3}, v{t[0]}')
    for i, c in enumerate((LOG2E, LOG2E, 0x3f800000, 0x3f800000, 0x358637bd, 0x358637bd)):
        a(f'v_mov_b32 v{vC + i}, 0x{c:x}')
    a(f's_cmp_eq_u32 s{sWv}, 0')
    a(f's_mov_b32 s{sFw}, 0x{BIG:x}')
    a(f's_cselect_b32 s{sFw}, {FL_OFF}, s{sFw}')
    ones = R('v', vOnes)

    def a_read(dst, slot, o, tr):
        hi = slot >= 5
        return f'ds_read_b128 {R("v", dst)}, v{vA + 2 * hi + o} offset:{8192 * (slot - 5 * hi) + 2048 * tr}'

    def reads_kv(n, o):
        f = fr[o]
        lst = [a_read(f + 4 * tr, n, o, tr) for tr in range(2)]
        for tc in range(5):
            for j in range(2):
                b = f + 8 + 4 * tc + 2 * j
                lst.append(f'ds_read_b64_tr_b16 {R("v", b, 2)}, v{vB + 2 * o + (tc & 1)} offset:{(n % 3) * 20480 + 32 * tc + 1280 * j}')
        return lst

    def mf_kv(n, o, extras_first=False):
        f = fr[o]
        A = lambda tr: R('v', f + 4 * tr)
        B = lambda tc: R('v', f + 8 + 4 * tc)
        z = lambda d, first: '0' if first else R('v', d)
        lst, ex = [], []
        for tc in range(5):
            for tr in range(2):
                d = acc + 4 * (tr * 5 + tc)
                lst.append(f'{M16} {R("v", d)}, {A(tr)}, {B(tc)}, {z(d, n == 0 and o == 0)}')
        if o == 0:
            for tr in range(2):
                ex.append(f'{M16} {R("v", s1 + 4 * tr)}, {A(tr)}, {ones}, {z(s1 + 4 * tr, n == 0)}')
                ex.append(f'{M16} {R("v", s2 + 4 * tr)}, {A(tr)}, {A(tr)}, {z(s2 + 4 * tr, n == 0)}')
        else:
            for tc in range(5):
                ex.append(f'{M16} {R("v", cs + 4 * tc)}, {ones}, {B(tc)}, {z(cs + 4 * tc, n == 0)}')
        return ex + lst if extras_first else lst + ex

    def sched(ms, first, later, start=1):
        n = len(ms)
        first = list(first)
        pos = {}
        for k, g in enumerate(later):
            pos.setdefault(min(n - 1, start + (k * (n - start)) // max(1, len(later))), []).append(g)
        for k, m in enumerate(ms):
            a(m)
            if first:
                a(first.pop(0))
            for g in pos.get(k, []):
                if isinstance(g, tuple):
                    emit(g)
                else:
                    for x in g:
                        a(x)
        for x in first:
            a(x)

    def publish(sOff, line, tag, barrier=True):
        if tag in a.vm:
            a.vm_wait(tag)
        if barrier:
            a('s_barrier')
        a('s_mov_b64 exec, 1')
        a(f'buffer_atomic_add v{vOne}, v{vZero}, {WS}, s{sOff} offen offset:{128 * line} sc1', tag='flag')
        a('s_mov_b64 exec, -1')

    def poll_issue(sOff, line, nl=1):
        a(f's_mov_b64 exec, {(1 << nl) - 1}')
        a(f'buffer_load_dword v{vT[1]}, v{vL128}, {WS}, s{sOff} offen offset:{128 * line} sc1', tag='poll')
        a('s_mov_b64 exec, -1')

    def poll_wait(sOff, line, expect, nl=1, barrier=True):
        Lp = a.newlabel('Lp'); Lok = a.newlabel('Lok')
        keep = list(a.vm)
        a(f's_cmp_lg_u32 s{sWv}, 0')
        a(f's_cbranch_scc1 {Lok}')
        a.vm_wait('poll')
        a(f's_mov_b32 s{sCnt}, 0')
        a(f's_mov_b64 exec, {(1 << nl) - 1}')
        a.label(Lp)
        a(f'v_cmp_gt_u32 vcc, {expect}, v{vT[1]}')
        a(f's_add_u32 s{sCnt}, s{sCnt}, 1')
        a('s_cmp_eq_u64 vcc, 0')
        a(f's_cbranch_scc1 {Lok}')
        a(f's_cmp_ge_u32 s{sCnt}, 200000')
        a(f's_cbranch_scc1 {Lok}')
        a('s_sleep 1')
        a(f'buffer_load_dword v{vT[1]}, v{vL128}, {WS}, s{sOff} offen offset:{128 * line} sc1')
        a('s_waitcnt vmcnt(0)')
        a(f's_branch {Lp}')
        a.label(Lok)
        a.vm = keep
        a('s_mov_b64 exec, -1')
        if barrier:
            a('s_barrier')

    ST1, ST2, CSP, AA, BB, QCS, KVA = SA, SA + 512, SA + 1024, SA + 2304, SA + 2560, SA + 2816, SA + 4096
    sg2 = stage_groups(2)
    for g in sg2[:4]:
        emit(g)
    a.stamp(2)
    a.vm_wait('s0', ' lgkmcnt(0)')
    a('s_barrier')
    a.stamp(3)
    for x in reads_kv(0, 0):
        a(x)
    carry = sg2[4:]
    R_IT = E('G_RIT', 3)
    R2_IT = E('G_R2IT', 7)
    rp = fr[0] + 28
    rpr = [fr[0] + 28, fr[0] + 32, fr[0] + 36, fr[1] + 28, fr[1] + 32]
    dd = fr[1] + 36
    for it in range(10):
        last = it == 9
        later = list(carry)
        if it == 3:
            later.append(('zf', 'zf'))
        if it == R2_IT + 1:
            st = [([f'buffer_store_dwordx4 {R("v", rpr[i])}, v{vL16}, {WS}, s{sTab + 2 + i} offen sc1'], 'rst') for i in range(5)]
            cm = [f'{M16} {R("v", dd)}, {R("v", rpr[i])}, {ones}, {"0" if i == 0 else R("v", dd)}' for i in range(5)]
            later += st + [cm]
        g1 = []
        if last:
            g1 = [[f's_mov_b32 s{sM0}, 0x22222222', f's_mov_b32 s{sM0 + 1}, 0x22222222', f's_mov_b32 s{sM1}, 0x44444444',
                   f's_mov_b32 s{sM1 + 1}, 0x44444444', 's_mov_b32 vcc_lo, 0x88888888', 's_mov_b32 vcc_hi, 0x88888888',
                   f's_lshl_b32 s{sT1}, s{sCh}, 8', f's_lshl_b32 s{sT2}, s{sRh}, 7', f's_add_u32 s{sT1}, s{sT1}, s{sT2}',
                   f's_add_u32 s{sT1}, s{sT1}, {SA}',
                   f'v_lshl_add_u32 v{t[0]}, v{vR}, 2, s{sT1}', f'v_lshl_add_u32 v{t[1]}, v{vG}, 4, s{sT1}']]
            for tr in range(2):
                d = s2 + 4 * tr
                g1.append([f'v_cndmask_b32 v{d}, v{d}, v{d + 1}, s[{sM0}:{sM0 + 1}]',
                           f'v_cndmask_b32 v{d}, v{d}, v{d + 2}, s[{sM1}:{sM1 + 1}]',
                           f'v_cndmask_b32 v{d}, v{d}, v{d + 3}, vcc'])
            w = ['s_mov_b32 exec_lo, 0x00F0000F', 's_mov_b32 exec_hi, 0xF0000F00']
            w += [f'ds_write_b32 v{t[0]}, v{s2 + 4 * tr} offset:{512 + 64 * tr}' for tr in range(2)]
            w += ['s_mov_b32 exec_lo, 0x00010001', 's_mov_b32 exec_hi, 0x00010001']
            w += [f'ds_write_b128 v{t[1]}, {R("v", s1 + 4 * tr)} offset:{64 * tr}' for tr in range(2)]
            w += ['s_mov_b64 exec, -1']
            g1.append(w)
        a('s_waitcnt lgkmcnt(0)')
        zf = [g for g in later if g == ('zf', 'zf')]
        later = [g for g in later if g != ('zf', 'zf')]
        if last:
            ms = mf_kv(it, 0, True)
            sched(ms[:8], reads_kv(it, 1), later)
            sched(ms[8:], [], g1, start=2)
        else:
            sched(mf_kv(it, 0), reads_kv(it, 1), later)
        if zf:
            Lz = a.newlabel('Lz')
            assert 'z' not in a.vm
            a(f's_cmp_lg_u32 s{sR1}, 0')
            a(f's_cbranch_scc1 {Lz}')
            a(f's_lshl_b32 s{sT1}, s{sHg}, 2')
            a(f's_add_u32 s{sT1}, s{sT1}, s{sWv}')
            a(f's_lshl_b32 s{sT1}, s{sT1}, 2')
            a(f'v_mov_b32 v{t[0]}, s{sT1}')
            a('s_mov_b64 exec, 1')
            keep = list(a.vm)
            a(f'global_store_dword v{t[0]}, v{vOne}, s[{P_DBG}:{P_DBG + 1}] sc1')
            a.vm = keep
            a('s_mov_b64 exec, -1')
            a.label(Lz)
        if it == R2_IT:
            a.vm_wait('r') if 'r' in a.vm else None
        if not last:
            need_tag(f's{it + 1}', ' lgkmcnt(0)')
        else:
            a('s_waitcnt lgkmcnt(0)')
        a('s_barrier')
        nx = stage_groups(it + 3)
        h = 4 if it + 3 < 10 else 3
        later = nx[:h]
        carry = nx[h:]
        first = reads_kv(it + 1, 0) if not last else []
        if it == R_IT:
            for i in range(5):
                pre = [f's_lshl_b32 s{sT1}, s{sWv}, 10', f's_mov_b32 s{sT2}, s{sTab}'] if i == 0 else [f's_add_u32 s{sT2}, s{sT2}, s{sTab + 1}']
                carry.append((pre + [f's_add_u32 m0, s{sT1}, {SA + 4096 * i}', 's_nop 0',
                                     f'buffer_load_dwordx4 v{vRP}, s[{sR}:{sR + 3}], s{sT2} offen lds'], 'r'))
        if it == R2_IT:
            later.insert(0, [f'v_lshlrev_b32 v{t[4]}, 10, v{vG}', f'v_bfe_u32 v{t[5]}, v{vL}, 2, 2', f'v_lshl_add_u32 v{t[4]}, v{t[5]}, 7, v{t[4]}',
                             f'v_and_b32 v{t[5]}, 3, v{vL}', f'v_lshl_add_u32 v{t[4]}, v{t[5]}, 4, v{t[4]}',
                             f's_lshl_b32 s{sT1}, s{sRh}, 6', f's_lshl_b32 s{sT2}, s{sCh}, 3', f's_add_u32 s{sT1}, s{sT1}, s{sT2}',
                             f's_add_u32 s{sT1}, s{sT1}, {SA}', f'v_add_u32 v{t[4]}, s{sT1}, v{t[4]}'])
            for i in range(5):
                later.append([f'ds_read_b64_tr_b16 {R("v", rpr[i] + 2 * j, 2)}, v{t[4]} offset:{4096 * i + 512 * j}' for j in range(2)])
        if it == R2_IT + 1:
            later.append(([f'v_lshlrev_b32 v{t[4]}, 4, v{vG}', 's_mov_b32 exec_lo, 0x00010001', 's_mov_b32 exec_hi, 0x00010001',
                           f'buffer_store_dwordx4 {R("v", dd)}, v{t[4]}, {WS}, s{sTab + 7} offen sc1', 's_mov_b64 exec, -1'], 'rst'))
            later.append(([f'v_lshlrev_b32 v{t[5]}, 2, v{vL}', 's_mov_b32 exec_hi, 0',
                           f'global_load_dword v{vT[2]}, v{t[5]}, s[{P_DBG}:{P_DBG + 1}] sc1', 's_mov_b64 exec, -1'], 'zpoll'))
        if last:
            e = fr[0]
            first = [f'v_lshlrev_b32 v{t[0]}, 2, v{vL}', f'v_add_u32 v{t[0]}, {SA}, v{t[0]}',
                     f'ds_read_b32 v{e}, v{t[0]}', f'ds_read_b32 v{e + 1}, v{t[0]} offset:256',
                     f'ds_read_b32 v{e + 2}, v{t[0]} offset:512', f'ds_read_b32 v{e + 3}, v{t[0]} offset:768']
            sub = Asm()
            sub('s_waitcnt lgkmcnt(0)')
            sub(f'v_add_f32 v{e}, v{e}, v{e + 1}')
            sub(f'v_add_f32 v{e + 2}, v{e + 2}, v{e + 3}')
            sub(f'v_mul_f32 v{e}, 0x3acccccd, v{e}')
            sub(f'v_mul_f32 v{e + 2}, 0x3acccccd, v{e + 2}')
            sub(f'v_fma_f32 v{e + 2}, -v{e}, v{e}, v{e + 2}')
            ln_stats(sub, e, e + 2, e + 1)
            st = [i.text for i in sub.items]
            g2 = []
            while st:
                g2.append(st[:4]); st = st[4:]
            cw = [f's_mul_i32 s{sT1}, s{sRh}, 640', f's_mul_i32 s{sT2}, s{sCh}, 320', f's_add_u32 s{sT1}, s{sT1}, s{sT2}',
                  f's_add_u32 s{sT1}, s{sT1}, {CSP}', f'v_lshl_add_u32 v{t[2]}, v{vR}, 2, s{sT1}', 's_mov_b64 exec, 0xffff']
            cw += [f'ds_write_b32 v{t[2]}, v{cs + 4 * tc} offset:{64 * tc}' for tc in range(5)] + ['s_mov_b64 exec, -1']
            g2.append(cw)
            g2.append([f'ds_write_b32 v{t[0]}, v{e + 1} offset:{AA - SA}', f'ds_write_b32 v{t[0]}, v{e} offset:{BB - SA}'])
            ms = mf_kv(it, 1, True)
            sched(ms[:7], first, later + carry)
            carry = []
            sched(ms[7:], [], g2, start=0)
        else:
            sched(mf_kv(it, 1), first, later)
        lap('K')
    a.stamp(4)
    lap()
    a('s_waitcnt lgkmcnt(0)')
    a('s_barrier')
    ra, rb_, rc = fr[0], fr[0] + 8, fr[0] + 16
    a(f's_lshl_b32 s{sT1}, s{sRh}, 7')
    a(f's_add_u32 s{sT1}, s{sT1}, {AA}')
    a(f'v_lshl_add_u32 v{t[0]}, v{vG}, 4, s{sT1}')
    a(f's_mul_i32 s{sT1}, s{sCh}, 320')
    a(f's_add_u32 s{sT1}, s{sT1}, {CSP}')
    a(f'v_lshl_add_u32 v{t[1]}, v{vR}, 2, s{sT1}')
    for tr in range(2):
        a(f'ds_read_b128 {R("v", ra + 4 * tr)}, v{t[0]} offset:{64 * tr}')
        a(f'ds_read_b128 {R("v", rb_ + 4 * tr)}, v{t[0]} offset:{256 + 64 * tr}')
    for tc in range(5):
        a(f'ds_read_b32 v{rc + 2 * tc}, v{t[1]} offset:{64 * tc}')
        a(f'ds_read_b32 v{rc + 2 * tc + 1}, v{t[1]} offset:{640 + 64 * tc}')
    cp, rpz, ad = fr[1] + 24, fr[1] + 27, fr[1] + 30
    a(f's_mul_i32 s{sT1}, s{sWv}, {2 * KV_HS}')
    a(f's_add_u32 s{sT1}, s{sT1}, {KVA}')
    for tk in range(3):
        a(f'v_add_u32 v{cp + tk}, {16 * tk}, v{vR}')
        a(f'v_subrev_u32 v{t[2]}, 20, v{cp + tk}')
        a(f'v_min_u32 v{cp + tk}, v{cp + tk}, v{t[2]}')
        a(f'v_lshl_add_u32 v{cp + tk}, v{cp + tk}, 2, s{sT1}')
    for tv in range(2, 5):
        x = rpz + tv - 2
        a(f'v_lshlrev_b32 v{x}, 2, v{vG}')
        a(f'v_add_u32 v{x}, {(16 * tv - 40) & 0xffffffff}, v{x}')
        a(f'v_cmp_le_i32 vcc, 20, v{x}')
        a(f'v_mul_i32_i24 v{x}, 80, v{x}')
        a(f'v_add_u32 v{t[2]}, 192, v{x}')
        a(f'v_cndmask_b32 v{x}, v{x}, v{t[2]}, vcc')
    pairs = [(0, 2), (0, 3), (1, 2), (1, 3), (1, 4), (2, 3), (2, 4)]
    for n, (tk, tv) in enumerate(pairs):
        a(f'v_add_u32 v{ad + n}, v{cp + tk}, v{rpz + tv - 2}')
    a(f's_mov_b32 s{sM0}, 0x00ff00ff'); a(f's_mov_b32 s{sM0 + 1}, 0x00ff00ff')
    a('s_waitcnt lgkmcnt(0)')
    for tc in range(5):
        a(f'v_add_f32 v{rc + 2 * tc}, v{rc + 2 * tc}, v{rc + 2 * tc + 1}')
    pk = cs

    def phi_chain(d, u, p):
        return [f'v_pk_mul_f32 {R("v", u, 2)}, {R("v", d, 2)}, {R("v", vC, 2)}',
                f'v_pk_add_f32 {R("v", p, 2)}, {R("v", d, 2)}, {R("v", vC + 2, 2)}',
                f'v_exp_f32 v{u}, v{u}', f'v_exp_f32 v{u + 1}, v{u + 1}',
                f'v_med3_f32 v{u}, v{u}, v{p}, 1.0', f'v_med3_f32 v{u + 1}, v{u + 1}, v{p + 1}, 1.0',
                f'v_pk_add_f32 {R("v", u, 2)}, {R("v", u, 2)}, {R("v", vC + 4, 2)}']

    def weave(chains, k):
        for b in range(0, len(chains), k):
            grp = chains[b:b + k]
            for i in range(max(len(c) for c in grp)):
                for c in grp:
                    if i < len(c):
                        a(c[i])
    chains = []
    for tc in range(5):
        for tr in range(2):
            for h in range(2):
                d = acc + 4 * (tr * 5 + tc) + 2 * h
                w = fr[1] + 6 * (len(chains) % 4)
                c = [f'v_pk_mul_f32 {R("v", w, 2)}, {R("v", rb_ + 4 * tr + 2 * h, 2)}, {R("v", rc + 2 * tc, 2)} op_sel_hi:[1,0]',
                     f'v_pk_fma_f32 {R("v", d, 2)}, {R("v", d, 2)}, {R("v", ra + 4 * tr + 2 * h, 2)}, {R("v", w, 2)}']
                dst = pk + 4 * tc + 2 * tr + h
                if tc <= 2:
                    u, p = w + 2, w + 4
                    c += phi_chain(d, u, p)
                    if tc == 2:
                        c += [f'v_cndmask_b32 v{u}, v{d}, v{u}, s[{sM0}:{sM0 + 1}]', f'v_cndmask_b32 v{u + 1}, v{d + 1}, v{u + 1}, s[{sM0}:{sM0 + 1}]']
                    c.append(f'v_cvt_pk_bf16_f32 v{dst}, v{u}, v{u + 1}')
                else:
                    c.append(f'v_cvt_pk_bf16_f32 v{dst}, v{d}, v{d + 1}')
                chains.append(c)
    weave(chains, 4)
    kd = acc
    for n, (tk, tv) in enumerate(pairs):
        a(f'{M16} {R("v", kd + 4 * n)}, {R("v", pk + 4 * tv)}, {R("v", pk + 4 * tk)}, 0')
    for tk in range(3):
        a(f'{M16} {R("v", kd + 28 + 4 * tk)}, {ones}, {R("v", pk + 4 * tk)}, 0')
    for n, (tk, tv) in enumerate(pairs):
        m = lane_mask(lambda g, j: (16 * tk + j) < 40 and 0 <= (16 * tv + 4 * g - 40) and (16 * tk + j) // 20 == (16 * tv + 4 * g - 40) // 20)
        for x in set_exec(m):
            a(x)
        for r in range(4):
            a(f'ds_write_b32 v{ad + n}, v{kd + 4 * n + r} offset:{80 * r}')
    for tk in range(3):
        for hh in range(2):
            m = lane_mask(lambda g, j: g == 0 and (16 * tk + j) < 40 and (16 * tk + j) // 20 == hh)
            if m:
                for x in set_exec(m):
                    a(x)
                a(f'ds_write_b32 v{cp + tk}, v{kd + 28 + 4 * tk} offset:{1600 + hh * KV_HS}')
    a('s_mov_b64 exec, -1')
    Lp = a.newlabel('Lzp'); Lok = a.newlabel('Lzok')
    a.vm_wait('zpoll')
    keep = list(a.vm)
    a(f's_mov_b32 s{sCnt}, 0')
    a('s_mov_b32 exec_hi, 0')
    a.label(Lp)
    a(f'v_cmp_ne_u32 vcc, 1, v{vT[2]}')
    a(f's_add_u32 s{sCnt}, s{sCnt}, 1')
    a('s_cmp_eq_u64 vcc, 0')
    a(f's_cbranch_scc1 {Lok}')
    a(f's_cmp_ge_u32 s{sCnt}, 200000')
    a(f's_cbranch_scc1 {Lok}')
    a('s_sleep 2')
    a(f'global_load_dword v{vT[2]}, v{t[5]}, s[{P_DBG}:{P_DBG + 1}] sc1')
    a('s_waitcnt vmcnt(0)')
    a(f's_branch {Lp}')
    a.label(Lok)
    a.vm = keep
    a('s_mov_b64 exec, -1')
    need_tag('s10', ' lgkmcnt(0)')
    a(f's_and_b32 s{sT1}, s2, 7')
    a(f's_lshl_b32 s{sT1}, s{sT1}, 7')
    a(f's_add_u32 s{sT1}, s{sT1}, {FL_RP * 128}')
    a(f's_add_u32 s{sT1}, s{sT1}, s{sFw}')
    publish(sT1, 0, 'rst')
    a(f's_mul_i32 s{sT1}, s{sWv}, {KV_HS}')
    a(f's_add_u32 s{sT2}, s{sT1}, {KVA}')
    a(f'v_add_u32 v{t[1]}, s{sT2}, v{t[5]}')
    kt = acc
    for i in range(7):
        a(f'ds_read_b32 v{kt + i}, v{t[1]} offset:{256 * i}')
        a(f'ds_read_b32 v{kt + 8 + i}, v{t[1]} offset:{256 * i + 4 * KV_HS}')
    a(f's_mul_i32 s{sT2}, s{sHg}, {4 * KV_HS}')
    a(f's_add_u32 s{sT1}, s{sT1}, s{sT2}')
    a(f's_add_u32 s{sT1}, s{sT1}, {KV_OFF}')

    TOFF = (0, 32, 48)

    def reads_q(m):
        f = fr[m & 1]
        n = 10 + (m >> 1)
        lst = []
        for o in range(2):
            b0 = f + 20 * o
            lst += [a_read(b0 + 4 * tr, m, o, tr) for tr in range(2)]
            for tc in range(3):
                for j in range(2):
                    lst.append(f'ds_read_b64_tr_b16 {R("v", b0 + 8 + 4 * tc + 2 * j, 2)}, v{vQ + o} offset:{(n % 3) * 20480 + (m & 1) * 10240 + 1280 * j + TOFF[tc]}')
        return lst

    def mf_q(m):
        f = fr[m & 1]
        lst = []
        for o in range(2):
            b0 = f + 20 * o
            if o == 0:
                for tc in range(3):
                    d = qcs + 4 * tc
                    lst.append(f'{M16} {R("v", d)}, {R("v", b0 + 8 + 4 * tc)}, {ones}, {"0" if m == 0 else R("v", d)}')
            for tc in range(3):
                for tr in range(2):
                    d = qacc + 4 * (tr * 3 + tc)
                    lst.append(f'{M16} {R("v", d)}, {R("v", b0 + 8 + 4 * tc)}, {R("v", b0 + 4 * tr)}, {"0" if m == 0 and o == 0 else R("v", d)}')
        return lst
    a('s_waitcnt lgkmcnt(0)')
    for x in reads_q(0)[:15]:
        a(x)
    for i in range(7):
        a(f'v_add_f32 v{kt + i}, v{kt + i}, v{kt + 8 + i}')
    a(reads_q(0)[15])
    for i in range(7):
        if i == 6:
            a('s_mov_b32 exec_hi, 0xf')
        a(f'buffer_atomic_add_f32 v{kt + i}, v{t[5]}, {WS}, s{sT1} offen offset:{256 * i}', tag='kva')
    a('s_mov_b64 exec, -1')
    lap()
    p2s = [f's_and_b32 s{sT0}, s2, 7', f's_lshr_b32 s{sT1}, s2, 3', f's_and_b32 s{sJ}, s{sT1}, 15', f's_lshr_b32 s{sT1}, s{sT1}, 4',
           f's_lshl_b32 s{sC}, s{sT0}, 1', f's_add_u32 s{sC}, s{sC}, s{sT1}', f's_and_b32 s{sCg}, s{sJ}, 7', f's_lshr_b32 s{sT1}, s{sJ}, 3',
           f's_lshl_b32 s{sRb}, s{sC}, 1', f's_add_u32 s{sRb}, s{sRb}, s{sT1}']
    sub = Asm()
    cg_blocks(sub, sCg, sPb, sSb, sT0)
    p2s += [i.text for i in sub.items]
    p2s += [f's_lshl_b32 s{sT0}, s{sRb}, 2', f's_add_u32 s{sT0}, s{sT0}, s{sWv}', f's_mul_i32 s{sT1}, s{sT0}, {16 * 1280}',
            f's_lshl_b32 s{sOa}, s{sPb}, 6', f's_add_u32 s{sOa}, s{sOa}, s{sT1}', f's_lshr_b32 s{sT2}, s{sSb}, 1',
            f's_lshl_b32 s{sT2}, s{sT2}, 6', f's_and_b32 s{sT3}, s{sSb}, 1', f's_lshl_b32 s{sT3}, s{sT3}, 3',
            f's_add_u32 s{sT2}, s{sT2}, s{sT3}', f's_add_u32 s{sOb}, s{sT2}, s{sT1}']
    for x in p2s:
        a(x)
    srd(a, sX, P_X, 0, S * D * 2)
    srd(a, sO, P_OUT, 0, S * D * 2)
    aWO = 0
    sWo = sM0
    a(f's_mul_i32 s{sWo}, s{sCg}, 102400')
    a(f's_mul_i32 s{sT2}, s{sWv}, 25600')
    a(f's_add_u32 s{sWo}, s{sWo}, s{sT2}')
    a(f's_add_u32 s{sWo}, s{sWo}, {WOP_OFF}')
    sKvc, sRpc, sW2b = sM0 + 1, sM1, sM1 + 1
    a(f's_lshl_b32 s{sKvc}, s{sHg}, 7')
    a(f's_add_u32 s{sKvc}, s{sKvc}, {FL_KV * 128}')
    a(f's_add_u32 s{sKvc}, s{sKvc}, s{sFw}')
    a(f's_add_u32 s{sRpc}, s{sFw}, {FL_RP * 128}')
    a(f's_mul_i32 s{sW2b}, s{sCg}, {W2G}')
    a(f's_mul_i32 s{sT0}, s{sWv}, 5120')
    a(f's_add_u32 s{sW2b}, s{sW2b}, s{sT0}')
    a(f's_add_u32 s{sW2b}, s{sW2b}, {W2P_OFF}')

    def wo_groups():
        g = []
        for f in range(25):
            pre = [f's_add_u32 s{sWo}, s{sWo}, 4096'] if f and f % 4 == 0 else []
            g.append((pre + [f'buffer_load_dwordx4 {R("a", aWO + 4 * f)}, v{vL16}, {WS}, s{sWo} offen offset:{1024 * (f & 3)} sc1'], 'wo'))
        return g
    W2R = [('v', Z + 20 * i) for i in range(4)] + [('a', 160 + 20 * i) for i in range(4)] + [('a', 20 * i) for i in range(6)]

    def w2_groups(i):
        f, r = W2R[i]
        g = []
        for sg in range(5):
            pre = []
            if sg == 0:
                pre = [f's_add_u32 s{sM2}, s{sW2b}, {20480 * i}']
                if i == 5:
                    pre += [f's_cmp_ge_u32 s{sWv}, 2', f's_cselect_b32 s{sM2}, 0x{BIG:x}, s{sM2}']
            v, off = (vL16, 1024 * sg) if sg < 4 else (vL16b, 0)
            g.append((pre + [f'buffer_load_dwordx4 {R(f, r + 4 * sg)}, v{v}, {WS}, s{sM2} offen offset:{off} sc1'], f'w2_{i}'))
        return g
    PUB_KV = E('G_PUBKV', 2)
    POLL_RP = E('G_POLLRP', 4)
    carry = []
    for m in range(10):
        a('s_waitcnt lgkmcnt(0)')
        later = list(carry)
        carry = []
        if m & 1:
            n = 10 + (m >> 1)
            if m - 1 == PUB_KV:
                if 'kva' in a.vm:
                    a.vm_wait('kva')
            if m - 1 == POLL_RP:
                poll_wait(sRpc, 0, 32, nl=8, barrier=False)
            if n + 1 <= 14:
                need_tag(f's{n + 1}')
            a('s_barrier')
            if m - 1 == PUB_KV:
                publish(sKvc, 0, 'kva', barrier=False)
            if n + 3 <= 14:
                nx = stage_groups(n + 3)
                later += nx[:3]
                carry = nx[3:]
            if m - 1 == POLL_RP:
                pend += wo_groups()
        if m == POLL_RP - 1:
            later.append((['s_mov_b64 exec, 0xff', f'buffer_load_dword v{vT[1]}, v{vL128}, {WS}, s{sRpc} offen sc1', 's_mov_b64 exec, -1'], 'poll'))
        k = E('G_QPULL', 5)
        while pend and k > 0 and len(later) < 6:
            later.append(pend.pop(0)); k -= 1
        if m == 9:
            later.append((['s_mov_b64 exec, 1', f'buffer_load_dword v{vT[1]}, v{vL128}, {WS}, s{sKvc} offen sc1', 's_mov_b64 exec, -1'], 'poll'))
            cw = [f's_mul_i32 s{sT1}, s{sRh}, 384', f's_mul_i32 s{sT2}, s{sCh}, 192', f's_add_u32 s{sT1}, s{sT1}, s{sT2}',
                  f's_add_u32 s{sT1}, s{sT1}, {QCS}', f'v_lshl_add_u32 v{t[2]}, v{vG}, 4, s{sT1}',
                  's_mov_b32 exec_lo, 0x00010001', 's_mov_b32 exec_hi, 0x00010001']
            cw += [f'ds_write_b128 v{t[2]}, {R("v", qcs + 4 * tc)} offset:{64 * tc}' for tc in range(3)] + ['s_mov_b64 exec, -1']
            later.append(cw)
        nxt = reads_q(m + 1) if m < 9 else []
        ms = mf_q(m)
        if len(nxt) > 15:
            pass
        sched(ms, nxt, later)
        lap('Q')
    lap()
    a('s_waitcnt lgkmcnt(0)')
    poll_wait(sKvc, 0, 32)
    lap()
    kraw = acc
    a(f'v_lshrrev_b32 v{t[0]}, 2, v{vR}')
    a(f'v_and_b32 v{t[1]}, 3, v{vR}')
    a(f'v_mad_u32_u24 v{t[2]}, v{t[0]}, 5, v{t[1]}')
    a(f'v_mul_u32_u24 v{t[2]}, 80, v{t[2]}')
    a(f'v_mad_u32_u24 v{t[3]}, v{t[0]}, 5, 4')
    a(f'v_mov_b32 v{t[4]}, 20')
    a(f'v_cmp_eq_u32 vcc, 1, v{t[1]}')
    a(f'v_cndmask_b32 v{t[3]}, v{t[3]}, v{t[4]}, vcc')
    a(f'v_mul_u32_u24 v{t[3]}, 80, v{t[3]}')
    a(f'v_mov_b32 v{t[4]}, 0x{BIG:x}')
    a(f's_lshl_b32 s{sT0}, s{sHg}, 2')
    a(f's_lshl_b32 s{sT1}, s{sCh}, 1')
    a(f's_add_u32 s{sT0}, s{sT0}, s{sT1}')
    a(f's_mul_i32 s{sT0}, s{sT0}, {KV_HS}')
    a(f's_add_u32 s{sT0}, s{sT0}, {KV_OFF}')
    ka = s1
    for tau in range(2):
        rowok = lambda i: tau == 0 or (i & 3) < 2
        m = lane_mask(lambda g, i: rowok(i))
        a(f'v_lshl_add_u32 v{ka + 4 * tau}, v{vG}, 4, v{t[2 + tau]}')
        a(f's_mov_b32 vcc_lo, 0x{m & 0xffffffff:x}'); a(f's_mov_b32 vcc_hi, 0x{m >> 32:x}')
        a(f'v_cndmask_b32 v{ka + 4 * tau}, v{t[4]}, v{ka + 4 * tau}, vcc')
        for gsel in range(2):
            m = lane_mask(lambda g, i: rowok(i) and g == gsel)
            a(f's_mov_b32 vcc_lo, 0x{m & 0xffffffff:x}'); a(f's_mov_b32 vcc_hi, 0x{m >> 32:x}')
            a(f'v_cndmask_b32 v{ka + 4 * tau + 1 + gsel}, v{t[4]}, v{t[2 + tau]}, vcc')
    for tau in range(2):
        b = kraw + 8 * tau
        a(f'buffer_load_dwordx4 {R("v", b)}, v{ka + 4 * tau}, {WS}, s{sT0} offen sc1', tag='kvl')
        a(f'buffer_load_dwordx4 {R("v", b + 4)}, v{ka + 4 * tau + 1}, {WS}, s{sT0} offen offset:64 sc1', tag='kvl')
        b = kraw + 16 + 8 * tau
        a(f'buffer_load_dwordx4 {R("v", b)}, v{ka + 4 * tau + 2}, {WS}, s{sT0} offen offset:{KV_HS} sc1', tag='kvl')
        a(f'buffer_load_dwordx4 {R("v", b + 4)}, v{ka + 4 * tau}, {WS}, s{sT0} offen offset:{KV_HS + 16} sc1', tag='kvl')
    a(f's_lshl_b32 s{sW1m}, s{sWv}, 12')
    a(f's_mul_i32 s{sW1}, s{sJ}, 143360')
    a(f's_add_u32 s{sW1}, s{sW1}, s{sW1m}')
    a(f's_add_u32 s{sW1}, s{sW1}, {W1P_OFF}')

    def w1_groups(lo, hi, tag):
        g = []
        off = lo
        while off + 16384 <= hi:
            for i in range(4):
                pre = [f's_add_u32 m0, s{sW1m}, {off}', f's_add_u32 s{sM2 + 1}, s{sW1}, {off}'] if i == 0 else []
                g.append((pre + [f'buffer_load_dwordx4 v{vL16}, {WS}, s{sM2 + 1} offen offset:{1024 * i} sc1 lds'], tag))
            off += 16384
        while off < hi:
            g.append(([f's_lshl_b32 s{sCnt}, s{sWv}, 10', f's_add_u32 m0, s{sCnt}, {off}', f's_sub_u32 s{sM2 + 1}, s{sW1}, s{sW1m}',
                       f's_add_u32 s{sM2 + 1}, s{sM2 + 1}, s{sCnt}', f's_add_u32 s{sM2 + 1}, s{sM2 + 1}, {off}',
                       f'buffer_load_dwordx4 v{vL16}, {WS}, s{sM2 + 1} offen sc1 lds'], tag))
            off += 4096
        return g
    W1E = E('G_W1E', 32) * 1024
    pend += w1_groups(0, W1E, 'w1e')
    while pend:
        pull()
    ra, rb_, rc = fr[0], fr[0] + 4, fr[0] + 8
    a(f's_lshl_b32 s{sT1}, s{sRh}, 7')
    a(f's_add_u32 s{sT1}, s{sT1}, {AA}')
    a(f'v_lshl_add_u32 v{t[0]}, v{vR}, 2, s{sT1}')
    a(f's_mul_i32 s{sT1}, s{sCh}, 192')
    a(f's_add_u32 s{sT1}, s{sT1}, {QCS}')
    a(f'v_lshl_add_u32 v{t[1]}, v{vG}, 4, s{sT1}')
    for tr in range(2):
        a(f'ds_read_b32 v{ra + 2 * tr}, v{t[0]} offset:{64 * tr}')
        a(f'ds_read_b32 v{rb_ + 2 * tr}, v{t[0]} offset:{256 + 64 * tr}')
    for tc in range(3):
        a(f'ds_read_b128 {R("v", rc + 4 * tc)}, v{t[1]} offset:{64 * tc}')
        a(f'ds_read_b128 {R("v", rc + 12 + 4 * tc)}, v{t[1]} offset:{384 + 64 * tc}')
    a(f's_mul_i32 s{sT1}, s{sRh}, {32 * 160}')
    a(f's_mul_i32 s{sT2}, s{sCh}, 80')
    a(f's_add_u32 s{sT1}, s{sT1}, s{sT2}')
    a(f's_add_u32 s{sT1}, s{sT1}, {KVA}')
    a(f'v_mul_u32_u24 v{t[2]}, 160, v{vR}')
    a(f'v_mad_u32_u24 v{t[3]}, v{vG}, 10, v{t[2]}')
    a(f'v_add_u32 v{t[3]}, s{sT1}, v{t[3]}')
    a(f's_mul_i32 s{sT1}, s{sWv}, {16 * 160}')
    a(f's_add_u32 s{sT1}, s{sT1}, {KVA}')
    a(f'v_lshl_add_u32 v{t[2]}, v{vG}, 4, v{t[2]}')
    a(f'v_add_u32 v{t[2]}, s{sT1}, v{t[2]}')
    vOd = s2
    a(f's_mul_i32 s{sT1}, s{sHg}, 10')
    for u in range(3):
        a(f's_add_u32 s{sT2}, s{sT1}, {4 * u}')
        a(f'v_add_u32 v{t[5]}, s{sT2}, v{vG}')
        a(f'v_lshrrev_b32 v{vOd + u}, 2, v{t[5]}')
        a(f'v_lshlrev_b32 v{vOd + u}, 12, v{vOd + u}')
        a(f'v_and_b32 v{t[5]}, 3, v{t[5]}')
        a(f'v_lshl_add_u32 v{vOd + u}, v{t[5]}, 8, v{vOd + u}')
        a(f'v_lshl_add_u32 v{vOd + u}, v{vR}, 4, v{vOd + u}')
    a(f's_mul_i32 s{sT0}, s{sR1}, {20 * 4096}')
    a(f's_lshl_b32 s{sT1}, s{sWv}, 10')
    a(f's_add_u32 s{sT0}, s{sT0}, s{sT1}')
    if OP_OFF:
        a(f's_add_u32 s{sT0}, s{sT0}, {OP_OFF}')
    a('s_waitcnt lgkmcnt(0)')
    for k in range(6):
        a(f'v_pk_add_f32 {R("v", rc + 2 * k, 2)}, {R("v", rc + 2 * k, 2)}, {R("v", rc + 12 + 2 * k, 2)}')
    pq = cs
    chains = []
    for tr in range(2):
        for tc in range(3):
            for h in range(2):
                d = qacc + 4 * (tr * 3 + tc) + 2 * h
                w = fr[1] + 6 * (len(chains) % 4)
                c = [f'v_pk_mul_f32 {R("v", w, 2)}, {R("v", rc + 4 * tc + 2 * h, 2)}, {R("v", rb_ + 2 * tr, 2)} op_sel_hi:[1,0]',
                     f'v_pk_fma_f32 {R("v", d, 2)}, {R("v", d, 2)}, {R("v", ra + 2 * tr, 2)}, {R("v", w, 2)} op_sel_hi:[1,0,1]']
                c += phi_chain(d, w + 2, w + 4)
                c.append(f'v_cvt_pk_bf16_f32 v{pq + 8 * tr + 2 * tc + h}, v{w + 2}, v{w + 3}')
                chains.append(c)
    weave(chains, 4)
    a.vm_wait('kvl')
    kT = fr[0]
    for k in range(16):
        a(f'v_cvt_pk_bf16_f32 v{kT + k}, v{kraw + 2 * k}, v{kraw + 2 * k + 1}')
    od = acc
    for tr in range(2):
        for hd in range(2):
            for tau in range(2):
                d = od + 16 * tr + 8 * hd + 4 * tau
                a(f'{M16} {R("v", d)}, {R("v", kT + 8 * hd + 4 * tau)}, {R("v", pq + 8 * tr + 2 * hd)}, 0')
    chains = []
    for tr in range(2):
        for hd in range(2):
            d = od + 16 * tr + 8 * hd
            c = [f'v_add_f32 v{d + 6}, 0x358637bd, v{d + 5}', f'v_rcp_f32 v{d + 6}, v{d + 6}']
            c += [f'v_mul_f32 v{d + k}, v{d + k}, v{d + 6}' for k in range(5)]
            c += [f'v_cvt_pk_bf16_f32 v{d}, v{d}, v{d + 1}', f'v_cvt_pk_bf16_f32 v{d + 2}, v{d + 2}, v{d + 3}',
                  f'v_cvt_pk_bf16_f32 v{d + 4}, v{d + 4}, v{d + 4}']
            o = 2560 * tr + 40 * hd
            c += [f'ds_write_b16 v{t[3]}, v{d} offset:{o}', f'ds_write_b16_d16_hi v{t[3]}, v{d} offset:{o + 2}',
                  f'ds_write_b16 v{t[3]}, v{d + 2} offset:{o + 4}', f'ds_write_b16_d16_hi v{t[3]}, v{d + 2} offset:{o + 6}',
                  f'ds_write_b16 v{t[3]}, v{d + 4} offset:{o + 8}']
            chains.append(c)
    weave(chains, 4)
    a('s_waitcnt lgkmcnt(0)')
    a('s_barrier')
    ob = fr[1]
    for u in range(3):
        a(f'ds_read_b128 {R("v", ob + 4 * u)}, v{t[2]} offset:{64 * u}')
    a('s_waitcnt lgkmcnt(0)')
    for u in range(3):
        if u == 2:
            a('s_mov_b32 exec_hi, 0')
        a(f'buffer_store_dwordx4 {R("v", ob + 4 * u)}, v{vOd + u}, {WS}, s{sT0} offen sc1', tag='ost')
    a('s_mov_b64 exec, -1')
    lap()
    vXo = hres + 10
    a(f'v_mul_u32_u24 v{vXo}, 1280, v{vR}')
    a(f'v_lshl_add_u32 v{vXo}, v{vG}, 4, v{vXo}')
    sx = f's[{sX}:{sX + 3}]'
    mid = [([f'buffer_load_dwordx4 {R("v", hres)}, v{vXo}, {sx}, s{sOa} offen'], 'x'),
           ([f'buffer_load_dwordx4 {R("v", hres + 4)}, v{vXo}, {sx}, s{sOa} offen offset:64'], 'x'),
           ([f'buffer_load_dwordx2 {R("v", hres + 8, 2)}, v{vXo}, {sx}, s{sOb} offen'], 'x')]
    W1M = E('G_W1M', 100) * 1024
    mid += w1_groups(W1E, W1M, 'w1m')
    nb4 = min(len(mid), E('G_NB4', 8))
    for g in mid[:nb4]:
        emit(g)
    a(f's_lshl_b32 s{sT1}, s{sR1}, 7')
    a(f's_add_u32 s{sT1}, s{sT1}, {FL_O * 128}')
    a(f's_add_u32 s{sT1}, s{sT1}, s{sFw}')
    publish(sT1, 0, 'ost')
    lap()
    for g in mid[nb4:]:
        emit(g)
    a(f's_lshl_b32 s{sT1}, s{sRb}, 7')
    a(f's_add_u32 s{sT1}, s{sT1}, {FL_O * 128}')
    a(f's_add_u32 s{sT1}, s{sT1}, s{sFw}')
    poll_issue(sT1, 0)
    a(f's_lshl_b32 s{sFc}, s{sC}, 9')
    a(f's_add_u32 s{sFc}, s{sFc}, s{sFw}')
    vR4 = [Y + 68, Y + 69, Y + 70, Y + 71]
    vAo = vR4
    vRW = Y + 60
    for i in range(4):
        a(f's_add_u32 s{sT2}, s{sWv}, {1 + i}')
        a(f's_and_b32 s{sT2}, s{sT2}, 3')
        a(f's_lshl_b32 s{sT3}, s{sT2}, 10')
        a(f'v_add_u32 v{vAo[i]}, s{sT3}, v{vL16}')
        if i < 3:
            a(f's_mul_i32 s{sT2}, s{sT2}, 15360')
            a(f's_add_u32 s{sT2}, s{sT2}, {P2L + 5120 * i}')
            a(f'v_add_u32 v{vRW + i}, s{sT2}, v{vL16}')
    a(f's_mul_i32 s{sA}, s{sRb}, {20 * 4096}')
    a(f's_mul_i32 s{sT2}, s{sWv}, {5 * 4096}')
    a(f's_add_u32 s{sA}, s{sA}, s{sT2}')
    if OP_OFF:
        a(f's_add_u32 s{sA}, s{sA}, {OP_OFF}')
    poll_wait(sT1, 0, 8)
    lap()
    acc = X
    for i in range(4):
        for m in range(5):
            a(f's_add_u32 s{sT2}, s{sA}, {4096 * m}')
            a(f'buffer_load_dwordx4 {R("v", Z + 20 * i + 4 * m)}, v{vAo[i]}, {WS}, s{sT2} offen sc1', tag=f'o{i}')
    for i in range(4, 4 + E('G_NW2P2', 3)):
        pend += w2_groups(i)
    w2next = [i for i in range(8) if not (4 <= i < 4 + E('G_NW2P2', 3))]

    def send(i, base):
        return [f'ds_write_b128 v{base + i}, {R("v", acc + 20 * i + 4 * sg)} offset:{1024 * sg}' for sg in range(5)]
    sq = []
    for i in range(4):
        a.vm_wait(f'o{i}')
        k = 0
        for m in range(5):
            for sg in range(5):
                d = acc + 20 * i + 4 * sg
                a(f'{M16} {R("v", d)}, {R("a", aWO + 4 * (5 * m + sg))}, {R("v", Z + 20 * i + 4 * m)}, {"0" if m == 0 else R("v", d)}')
                k += 1
                if sq and k >= 4 and k % 3 == 0:
                    a(sq.pop(0))
                if k % 5 == 2:
                    pull()
        assert not sq
        if i < 3:
            sq = send(i, vRW)
    while pend:
        pull()
    lap()

    def reduce_own(base):
        a('s_waitcnt lgkmcnt(0)')
        a('s_barrier')
        a(f's_mul_i32 s{sT0}, s{sWv}, 15360')
        a(f's_add_u32 s{sT0}, s{sT0}, {base}')
        a(f'v_add_u32 v{vT[0]}, s{sT0}, v{vL16}')
        for k in range(15):
            a(f'ds_read_b128 {R("v", acc + 4 * k)}, v{vT[0]} offset:{1024 * k}')
        own = acc + 60
        for p in range(3):
            a(f's_waitcnt lgkmcnt({10 - 5 * p})')
            for k in range(10):
                a(f'v_pk_add_f32 {R("v", own + 2 * k, 2)}, {R("v", own + 2 * k, 2)}, {R("v", acc + 20 * p + 2 * k, 2)}')
        return own

    def residual(own, out, tmp):
        chains = []
        for i in range(10):
            q = tmp + 6 * (i % 4)
            chains.append([f'v_cvt_pk_bf16_f32 v{q + 4}, v{own + 2 * i}, v{own + 2 * i + 1}',
                           f'v_lshlrev_b32 v{q + 2}, 16, v{hres + i}',
                           f'v_and_b32 v{q + 3}, 0xffff0000, v{hres + i}',
                           f'v_lshlrev_b32 v{q}, 16, v{q + 4}',
                           f'v_and_b32 v{q + 1}, 0xffff0000, v{q + 4}',
                           f'v_pk_add_f32 {R("v", q, 2)}, {R("v", q, 2)}, {R("v", q + 2, 2)}',
                           f'v_cvt_pk_bf16_f32 v{out + i}, v{q}, v{q + 1}'])
        weave(chains, 4)

    a(f's_lshl_b32 s{sT3}, s{sRb}, 2')
    a(f's_add_u32 s{sT3}, s{sT3}, s{sWv}')
    a(f's_lshr_b32 s{sT1}, s{sT3}, 1')
    a(f's_mul_i32 s{sT1}, s{sT1}, 40960')
    a(f's_and_b32 s{sT2}, s{sT3}, 1')
    a(f's_lshl_b32 s{sT2}, s{sT2}, 10')
    a(f's_add_u32 s{sT1}, s{sT1}, s{sT2}')
    a(f's_add_u32 s{sT1}, s{sT1}, {HP_OFF}')
    a(f's_lshl_b32 s{sA}, s{sPb}, 11')
    a(f's_add_u32 s{sA}, s{sA}, s{sT1}')
    a(f's_lshr_b32 s{sB}, s{sSb}, 1')
    a(f's_lshl_b32 s{sB}, s{sB}, 11')
    a(f's_and_b32 s{sT2}, s{sSb}, 1')
    a(f's_lshl_b32 s{sT2}, s{sT2}, 3')
    a(f's_add_u32 s{sB}, s{sB}, s{sT2}')
    a(f's_add_u32 s{sB}, s{sB}, s{sT1}')
    a(f's_lshl_b32 s{sT1}, s{sT3}, 10')
    a(f's_lshr_b32 s{sT2}, s{sCg}, 1')
    a(f's_lshl_b32 s{sT2}, s{sT2}, 8')
    a(f's_add_u32 s{sT1}, s{sT1}, s{sT2}')
    a(f's_and_b32 s{sT2}, s{sCg}, 1')
    a(f's_lshl_b32 s{sT2}, s{sT2}, 3')
    a(f's_add_u32 s{sT1}, s{sT1}, s{sT2}')
    a(f's_add_u32 s{sT1}, s{sT1}, {ST_OFF}')
    own = reduce_own(P2L)
    tmpk = Y
    residual(own, hres, tmpk)
    a(f'buffer_store_dwordx4 {R("v", hres)}, v{vL16}, {WS}, s{sA} offen sc1', tag='hst')
    a(f'buffer_store_dwordx4 {R("v", hres + 4)}, v{vL16}, {WS}, s{sA} offen offset:2048 sc1', tag='hst')
    a(f'buffer_store_dwordx2 {R("v", hres + 8, 2)}, v{vL16}, {WS}, s{sB} offen sc1', tag='hst')
    hf_ = acc
    for i in range(10):
        a(f'v_lshlrev_b32 v{hf_ + 2 * i}, 16, v{hres + i}')
        a(f'v_and_b32 v{hf_ + 2 * i + 1}, 0xffff0000, v{hres + i}')
    sm = tmpk
    a(f'v_pk_add_f32 {R("v", sm + 2, 2)}, {R("v", hf_, 2)}, {R("v", hf_ + 2, 2)}')
    a(f'v_pk_mul_f32 {R("v", sm + 4, 2)}, {R("v", hf_, 2)}, {R("v", hf_, 2)}')
    a(f'v_pk_mul_f32 {R("v", sm + 6, 2)}, {R("v", hf_ + 2, 2)}, {R("v", hf_ + 2, 2)}')
    for i in range(2, 10):
        d = sm + 4 + 2 * (i & 1)
        a(f'v_pk_add_f32 {R("v", sm + 2, 2)}, {R("v", sm + 2, 2)}, {R("v", hf_ + 2 * i, 2)}')
        a(f'v_pk_fma_f32 {R("v", d, 2)}, {R("v", hf_ + 2 * i, 2)}, {R("v", hf_ + 2 * i, 2)}, {R("v", d, 2)}')
    a(f'v_pk_add_f32 {R("v", sm + 4, 2)}, {R("v", sm + 4, 2)}, {R("v", sm + 6, 2)}')
    a(f'v_add_f32 v{sm}, v{sm + 2}, v{sm + 3}')
    a(f'v_add_f32 v{sm + 1}, v{sm + 4}, v{sm + 5}')
    s1_, s2_ = Asm(), Asm()
    xsum_g(s1_, sm, sm + 2)
    xsum_g(s2_, sm + 1, sm + 3)
    for x, y in zip(s1_.items, s2_.items):
        a(x.text); a(y.text)
    a('s_mov_b64 exec, 0xffff')
    a(f'buffer_store_dwordx2 {R("v", sm, 2)}, v{vL16}, {WS}, s{sT1} offen sc1', tag='hst')
    a('s_mov_b64 exec, -1')
    lap('B')
    acc3, otmp = X, X + 56
    fb = [Y, Y + 16]
    vCs, vSt, ab = Y + 32, Y + 60, Y + 60
    csg = []
    for sg in range(7):
        pre = []
        if sg == 0:
            pre = [f'v_and_b32 v{vT[0]}, 3, v{vL}', f'v_mul_u32_u24 v{vT[0]}, 7168, v{vT[0]}', f'v_lshl_add_u32 v{vT[0]}, v{vG}, 4, v{vT[0]}',
                   f's_mul_i32 s{sT0}, s{sJ}, 448', f's_add_u32 s{sT0}, s{sT0}, {CS1_OFF}']
        csg.append((pre + [f'buffer_load_dwordx4 {R("v", vCs + 4 * sg)}, v{vT[0]}, {WS}, s{sT0} offen offset:{64 * sg} sc1'], 'cs'))
    mid = w1_groups(W1M, 102400, 'w1m') + csg
    NW2S = E('G_NW2S', 3)
    for i in w2next[:NW2S]:
        mid += w2_groups(i)
    w2next = w2next[NW2S:]
    nb4 = min(len(mid), E('G_NB4B', 7))
    for g in mid[:nb4]:
        emit(g)
    publish(sFc, 0, 'hst')
    lap()
    for g in mid[nb4:]:
        emit(g)
    poll_issue(sFc, 0)
    a(f's_lshl_b32 s{sT0}, s{sC}, 2')
    a(f's_add_u32 s{sT0}, s{sT0}, s{sWv}')
    a(f's_mul_i32 s{sA}, s{sT0}, 40960')
    a(f's_add_u32 s{sA}, s{sA}, {HP_OFF}')
    a(f's_lshl_b32 s{sT0}, s{sT0}, 11')
    a(f's_add_u32 s{sT0}, s{sT0}, {ST_OFF}')
    vBa = [vL16, vT[2], hres + 10]
    a(f'v_add_u32 v{vT[2]}, {65536}, v{vL16}')
    a(f'v_add_u32 v{hres + 10}, {131072}, v{vL16}')
    a(f's_lshl_b32 s{sT2}, s{sC}, 1')
    a(f's_lshr_b32 s{sT3}, s{sWv}, 1')
    a(f's_add_u32 s{sT2}, s{sT2}, s{sT3}')
    a(f's_mul_i32 s{sH}, s{sT2}, {H1G}')
    a(f's_and_b32 s{sT3}, s{sWv}, 1')
    a(f's_lshl_b32 s{sT3}, s{sT3}, 11')
    a(f's_add_u32 s{sH}, s{sH}, s{sT3}')
    a(f's_add_u32 s{sH}, s{sH}, {H1P_OFF}')
    a(f's_lshr_b32 s{sHs}, s{sJ}, 3')
    a(f's_mul_i32 s{sHs}, s{sHs}, 3')
    a(f's_and_b32 s{sT2}, s{sJ}, 7')
    a(f's_lshr_b32 s{sT3}, s{sT2}, 1')
    a(f's_add_u32 s{sHs}, s{sHs}, s{sT3}')
    a(f's_lshl_b32 s{sHs}, s{sHs}, 12')
    a(f's_and_b32 s{sT3}, s{sJ}, 1')
    a(f's_lshl_b32 s{sT3}, s{sT3}, 3')
    a(f's_add_u32 s{sHs}, s{sHs}, s{sT3}')
    a(f's_add_u32 s{sHs}, s{sHs}, s{sH}')
    a(f's_add_u32 s{sHs}, s{sHs}, {16 * 4096}')
    a(f's_cmp_ge_u32 s{sT2}, 6')
    a(f's_cselect_b32 s{sHs}, 0x{BIG:x}, s{sHs}')
    a(f's_lshl_b32 s{sT2}, s{sJ}, 12')
    a(f's_add_u32 s{sH}, s{sH}, s{sT2}')
    a(f's_mul_i32 s{sA4}, s{sRb}, {H1G}')
    a(f's_lshl_b32 s{sT2}, s{sWv}, 12')
    a(f's_add_u32 s{sA4}, s{sA4}, s{sT2}')
    a(f's_add_u32 s{sA4}, s{sA4}, {H1P_OFF}')
    if 'cs' in a.vm:
        a.vm_wait('cs')
    poll_wait(sFc, 0, 16)
    lap()

    def a3_groups():
        g = [([f'buffer_load_dwordx4 {R("v", vSt)}, v{vL16}, {WS}, s{sT0} offen sc1'], 'st'),
             ([f'buffer_load_dwordx4 {R("v", vSt + 4)}, v{vL16}, {WS}, s{sT0} offen offset:1024 sc1'], 'st')]
        for f in range(40):
            pre = [f's_add_u32 s{sA}, s{sA}, 4096'] if f and f % 4 == 0 else []
            g.append((pre + [f'buffer_load_dwordx4 {R("a", 4 * f)}, v{vL16}, {WS}, s{sA} offen offset:{1024 * (f & 3)} sc1'], f'h{f // 2}'))
        return g
    pend += a3_groups() + w1_groups(102400, 143360, 'w1l')
    for i in w2next:
        pend += w2_groups(i)
    pull(E('G_H0', 18))
    PART = {0: ([0, 1, 6], 0, 3072), 1: ([2, 3], 61440, 2048), 2: ([4, 5], 102400, 2048)}

    def steps(part):
        sl = PART[part][0]
        if part == 0:
            return [[(ks, q, s_) for q, s_ in enumerate(sl)] for ks in range(20)]
        return [[(ks, q, s_) for ks in (2 * m, 2 * m + 1) for q, s_ in enumerate(sl)] for m in range(10)]
    allsteps = [(p, st) for p in range(3) for st in steps(p)]

    def breads(n):
        p, st = allsteps[n]
        f = fb[n & 1]
        out = []
        for k, (ks, q, s_) in enumerate(st):
            o = PART[p][1] + ks * PART[p][2] + 1024 * q
            out.append(f'ds_read_b128 {R("v", f + 4 * k)}, v{vBa[o >> 16]} offset:{o & 0xffff}')
        return out

    def mf3(n):
        p, st = allsteps[n]
        f = fb[n & 1]
        lst = []
        for k, (ks, q, s_) in enumerate(st):
            for t_ in range(2):
                d = acc3 + 28 * t_ + 4 * s_
                c = '0' if ks == 0 else R('v', d)
                lst.append(f'{M16} {R("v", d)}, {R("v", f + 4 * k)}, {R("a", 8 * ks + 4 * t_)}, {c}')
        return lst

    dpp = [f'v_add_f32_dpp v{vCs + r}, v{vCs + r}, v{vCs + r} quad_perm:[1,0,3,2] row_mask:0xf bank_mask:0xf' for r in range(28)]
    dpp += [f'v_add_f32_dpp v{vCs + r}, v{vCs + r}, v{vCs + r} quad_perm:[2,3,0,1] row_mask:0xf bank_mask:0xf' for r in range(28)]
    sub = Asm()
    for t_ in range(2):
        s_ = vSt + 4 * t_
        m, v, x = otmp + 4 * t_ + 2, otmp + 8 + 2 * t_, otmp + 9 + 2 * t_
        sub(f'v_add_f32 v{m}, v{s_}, v{s_ + 2}')
        sub(f'v_add_f32 v{v}, v{s_ + 1}, v{s_ + 3}')
        xsum_g(sub, m, x)
        xsum_g(sub, v, x)
        sub(f'v_mul_f32 v{m}, 0x3acccccd, v{m}')
        sub(f'v_mul_f32 v{v}, 0x3acccccd, v{v}')
        sub(f'v_fma_f32 v{v}, -v{m}, v{m}, v{v}')
        ln_stats(sub, m, v, otmp + 4 * t_)
        sub(f'v_mov_b32 v{ab + 4 * t_}, v{otmp + 4 * t_}')
        sub(f'v_mov_b32 v{ab + 4 * t_ + 1}, v{m}')
    half_n = len(sub.items) // 2
    stl = [None] * len(sub.items)
    stl[0::2] = [i.text for i in sub.items[:half_n]]
    stl[1::2] = [i.text for i in sub.items[half_n:]]

    def epi_tile(t_, sg, ob):
        lst = []
        d = acc3 + 28 * t_ + 4 * sg
        for r in range(4):
            lst.append(f'v_mul_f32 v{d + r}, v{d + r}, v{ab + 4 * t_}')
        for r in range(4):
            lst.append(f'v_fmac_f32 v{d + r}, v{vCs + 4 * sg + r}, v{ab + 4 * t_ + 1}')
        for h in range(2):
            lst.append(f'v_cvt_pk_bf16_f32 v{ob + h}, v{d + 2 * h}, v{d + 2 * h + 1}')
        for h in range(2):
            lst.append(f'v_pk_max_i16 v{ob + h}, v{ob + h}, v{vZero}')
        return lst

    def epi_part(p):
        out = []
        base = otmp + (0, 12, 0)[p]
        if p:
            out.append(f's_add_u32 s{sH}, s{sH}, {(24 if p == 1 else 16) * 4096}')
        for t_ in range(2):
            ob = base + 4 * t_
            out += epi_tile(t_, 2 * p, ob) + epi_tile(t_, 2 * p + 1, ob + 2)
            out.append(('vm', f'buffer_store_dwordx4 {R("v", ob)}, v{vL16}, {WS}, s{sH} offen offset:{1024 * t_} sc1', f'h1_{p}'))
        if p == 0:
            for t_ in range(2):
                ob = base + 8 + 2 * t_
                out += epi_tile(t_, 6, ob)
                out.append(('vm', f'buffer_store_dwordx2 {R("v", ob, 2)}, v{vL16}, {WS}, s{sHs} offen offset:{1024 * t_} sc1', 'h1_0'))
        return out

    AR = [('a', 240), ('a', 120), ('a', 136), ('v', Y), ('v', Y + 16), ('v', Y + 32), ('v', Y + 48)]
    NR_ = len(AR)

    def a4_groups(i):
        f, r = AR[i % NR_]
        g = []
        for t_ in range(4):
            pre = []
            if t_ == 0:
                pre = [f's_add_u32 s{sA}, s{sA4}, {16384 * i}']
                if i == 5:
                    pre += [f's_cmp_ge_u32 s{sWv}, 2', f's_cselect_b32 s{sA}, 0x{BIG:x}, s{sA}']
            g.append((pre + [f'buffer_load_dwordx4 {R(f, r + 4 * t_)}, v{vAo[t_]}, {WS}, s{sA} offen sc1'], f'a{i}'))
        return g

    for x in breads(0):
        a(x)
    side = list(dpp)
    PUB_A, POLL_A, PUB_B = E('G_PUBA', 31), E('G_POLLA', 38), E('G_PUBB', 39)
    NS_ = len(allsteps)
    for n in range(NS_):
        p, st = allsteps[n]
        if p == 0:
            need_tag(f'h{n}')
            if n == 6:
                side += stl
        if n == 20:
            while side:
                a(side.pop(0))
            lap()
            side = epi_part(0)
        if n == 29:
            need_tag('w1l')
            a('s_barrier')
        if n == 30:
            assert not side
            side = epi_part(1)
        a('s_waitcnt lgkmcnt(0)')
        nxt = breads(n + 1) if n + 1 < NS_ else []
        ms = mf3(n)
        for k, m in enumerate(ms):
            a(m)
            cnt = 2
            if nxt:
                a(nxt.pop(0))
                cnt = 1
            elif pend and (k == len(ms) - 2 or (p == 0 and k == len(ms) - 1)):
                pull()
                cnt = 0
            for _ in range(cnt):
                if side:
                    x = side.pop(0)
                    if isinstance(x, tuple):
                        a(x[1], tag=x[2])
                    else:
                        a(x)
        if n == PUB_A:
            lap('C')
            publish(sFc, 1, 'h1_0')
            lap('C')
        if n == POLL_A:
            while pend:
                pull()
            poll_issue(sFc, 1)
        if n == PUB_B:
            assert not side
            lap('C')
            publish(sFc, 2, 'h1_1')
    lap()
    poll_wait(sFc, 1, 16)
    lap()
    for i in range(5):
        for g in a4_groups(i):
            emit(g)
    for x in epi_part(2):
        if isinstance(x, tuple):
            a(x[1], tag=x[2])
        else:
            a(x)
    acc4 = X
    pend += a4_groups(5) + w2_groups(8) + w2_groups(9)
    PUB_C, POLL_B, POLL_C = E('G_PUBC', 1), E('G_POLLB', 1), E('G_POLLC', 5)
    avail, nexta = 6, 6
    for i in range(14):
        need_tag(f'a{i}')
        need_tag(f'w2_{i}')
        lap('D')
        fa, ra_ = AR[i % NR_]
        fw, rw = W2R[i]
        k = 0
        for t_ in range(4):
            for sg in range(5):
                d = acc4 + 20 * t_ + 4 * sg
                c = '0' if i == 0 else R('v', d)
                a(f'{M16} {R("v", d)}, {R(fw, rw + 4 * sg)}, {R(fa, ra_ + 4 * t_)}, {c}')
                k += 1
                if k % 2 == 0:
                    pull()
        if i == PUB_C:
            publish(sFc, 3, 'h1_2')
        if i in (POLL_B, POLL_C):
            poll_issue(sFc, 2 if i == POLL_B else 3)
        if i in (POLL_B + 1, POLL_C + 1):
            poll_wait(sFc, 2 if i == POLL_B + 1 else 3, 16)
            avail += 4
        newa = []
        while nexta < avail and nexta <= i + NR_:
            newa += a4_groups(nexta)
            nexta += 1
        k_ = 0
        while k_ < len(pend) and not (pend[k_][1].startswith('w2') and len(pend[k_][0]) > 1):
            k_ += 1
        pend[k_:k_] = newa
        if i == POLL_B + 1:
            pend += w2_groups(10) + w2_groups(11) + w2_groups(12) + w2_groups(13)
    assert not pend
    lap()
    vRW = Y
    for i in range(3):
        a(f's_add_u32 s{sT0}, s{sWv}, {1 + i}')
        a(f's_and_b32 s{sT0}, s{sT0}, 3')
        a(f's_mul_i32 s{sT0}, s{sT0}, 15360')
        a(f's_add_u32 s{sT0}, s{sT0}, {5120 * i}')
        a(f'v_add_u32 v{vRW + i}, s{sT0}, v{vL16}')
    for i in range(3):
        for x in send(i, vRW):
            a(x)
    vXo = vT[2]
    a(f'v_mul_u32_u24 v{vXo}, 1280, v{vR}')
    a(f'v_lshl_add_u32 v{vXo}, v{vG}, 4, v{vXo}')
    own = reduce_own(0)
    outr = Y + 8
    residual(own, outr, Y + 24)
    so = f's[{sO}:{sO + 3}]'
    a(f'buffer_store_dwordx4 {R("v", outr)}, v{vXo}, {so}, s{sOa} offen')
    a(f'buffer_store_dwordx4 {R("v", outr + 4)}, v{vXo}, {so}, s{sOa} offen offset:64')
    a(f'buffer_store_dwordx2 {R("v", outr + 8, 2)}, v{vXo}, {so}, s{sOb} offen')
    if a.diag is not None:
        a('s_waitcnt vmcnt(0)')
    a.stamp_flush(sWv, P_WS, TS_OFF)
    a.label(Lend)
    a('s_endpgm')
    a.raw(f'.p2align 5\n.type {name}_tab,@object\n{name}_tab:')
    for e in kg_table():
        a.raw('.long ' + ', '.join(str(x) for x in e))
```

```python
S, D, H, DH, F = 2048, 640, 32, 20, 1728
PQ_OFF = 0x0;        PQ_SZ = 128 * 80 * 256
KV_OFF = 0x280000;   KV_HS = 1792; KV_SZ = 32 * KV_HS
WOP_OFF = 0x290000;  WOP_SZ = 8 * 102400
HP_OFF = 0x360000;   HP_SZ = 128 * 20 * 1024
ST_OFF = 0x5E0000;   ST_SZ = 128 * 1024
W1P_OFF = 0x600000;  W1P_SZ = 16 * 143360
W2P_OFF = 0x830000;  W2G = 56 * 5120; W2P_SZ = 8 * W2G
H1P_OFF = 0xA60000;  H1G = 56 * 4096; H1P_SZ = 32 * H1G
CS1_OFF = H1P_OFF + H1P_SZ; CS1_SZ = 5 * 7168
FL_OFF = CS1_OFF + 0x9000; FL_SZ = 16384
WS_USED = FL_OFF + FL_SZ
T0_W1 = [0, 7, 14, 21, 28, 35, 42, 48]

def w1_t0(j):
    return 54 * (j >> 3) + T0_W1[j & 7]

def w1_cnt(j):
    return 7 if (j & 7) < 6 else 6

def slot_tiles(t0, cnt, nslots):
    tiles = list(range(t0, t0 + cnt))
    if t0 & 1:
        tiles = tiles[1:] + tiles[:1]
    return tiles + [None] * (nslots - cnt)

def tile_cols(T):
    b, ab = T >> 1, T & 1
    return [32 * b + 8 * (i >> 2) + 4 * ab + (i & 3) for i in range(16)]

TS_OFF = 0x1800000


def w1_frag_off(j, ks, sg):
    if sg in (0, 1, 6):
        o = ks * 3072 + (2 if sg == 6 else sg) * 1024
    elif sg < 4:
        o = 61440 + ks * 2048 + (sg - 2) * 1024
    else:
        o = 102400 + ks * 2048 + (sg - 4) * 1024
    return j * 143360 + o


def blk_pos():
    pos = {}
    for j in range(16):
        t0 = w1_t0(j)
        pb = (t0 + 1) >> 1
        pos[pb] = j
        pos[pb + 1] = 24 + j
        pos[pb + 2] = 40 + j
        if w1_cnt(j) == 7:
            ts = t0 if t0 & 1 else t0 + 6
            pos[ts >> 1] = 16 + 3 * (j >> 3) + ((j & 7) >> 1)
    assert sorted(pos) == list(range(54)) and len(set(pos.values())) == 54
    return [pos[b] for b in range(54)]


assert W2P_OFF + W2P_SZ <= H1P_OFF
```

```python
import sys
from asmlib import *
from layout import *
import k1, k234, kf, kg

NAME = 'sequential_preLN__linear_attn_block__dense_activation_relu__prompt'
HEADER = open('cdna_kernels/' + NAME + '.s.ref').read().split('; Override launch')[0]


def build(kernels, diag=False):
    out = [HEADER]
    for name, fn, lds in kernels:
        out.append(f'; @launch kernel={name} grid=(256,1,1) block=(256,1,1) lds={lds}\n')
    out.append('.amdgcn_target "amdgcn-amd-amdhsa--gfx950"\n.text\n')
    desc = []
    seen = set()
    for name, fn, lds in kernels:
        if name in seen:
            continue
        seen.add(name)
        a = Asm()
        a.uid = 1000 * len(seen)
        if diag:
            a.diag = len(seen) - 1
        fn(a, name)
        out.append(a.text())
        mv, ma, ms = a.max_regs()
        acc_off = (mv + 1 + 3) // 4 * 4
        nfv = acc_off + ma + 1 if ma >= 0 else mv + 1
        desc.append(f'''.p2align 6
.amdhsa_kernel {name}
  .amdhsa_next_free_vgpr {nfv}
  .amdhsa_next_free_sgpr {ms + 1}
  .amdhsa_accum_offset {acc_off}
  .amdhsa_group_segment_fixed_size 0
  .amdhsa_kernarg_size 72
  .amdhsa_user_sgpr_count 2
  .amdhsa_user_sgpr_kernarg_segment_ptr 1
  .amdhsa_system_sgpr_workgroup_id_x 1
.end_amdhsa_kernel
''')
        print(name, 'vgpr', mv + 1, 'agpr', ma + 1, 'sgpr', ms + 1, 'instrs', sum(isinstance(i, Ins) for i in a.items), file=sys.stderr)
    out.append('.section .rodata,"a"\n')
    out += desc
    return ''.join(out)


KERNELS = [('kg_kernel', kg.gen_kg, kg.KG_LDS)]

if __name__ == '__main__':
    path = sys.argv[1] if len(sys.argv) > 1 else 'cdna_kernels/' + NAME + '.s'
    open(path, 'w').write(build(KERNELS))
    open('diag.s', 'w').write(build(KERNELS, diag=True))
```

```python
import sys
from asmlib import *
from layout import *
import os
import k1, k234, kf, kg, kh

NAME = 'sequential_preLN__linear_attn_block__dense_activation_relu__prompt'
HEADER = open('cdna_kernels/' + NAME + '.s.ref').read().split('; Override launch')[0]


def build(kernels, diag=False):
    out = [HEADER]
    for name, fn, lds in kernels:
        if name == NAME + '_kernel' and len(kernels) == 1:
            out.append(f'; @launch grid=(256,1,1) block=(256,1,1) lds={lds}\n')
        else:
            out.append(f'; @launch kernel={name} grid=(256,1,1) block=(256,1,1) lds={lds}\n')
    out.append('.amdgcn_target "amdgcn-amd-amdhsa--gfx950"\n.text\n')
    desc = []
    seen = set()
    for name, fn, lds in kernels:
        if name in seen:
            continue
        seen.add(name)
        a = Asm()
        a.uid = 1000 * len(seen)
        if diag:
            a.diag = len(seen) - 1
        fn(a, name)
        out.append(a.text())
        mv, ma, ms = a.max_regs()
        acc_off = (mv + 1 + 3) // 4 * 4
        nfv = acc_off + ma + 1 if ma >= 0 else mv + 1
        desc.append(f'''.p2align 6
.amdhsa_kernel {name}
  .amdhsa_next_free_vgpr {nfv}
  .amdhsa_next_free_sgpr {ms + 1}
  .amdhsa_accum_offset {acc_off}
  .amdhsa_group_segment_fixed_size 0
  .amdhsa_kernarg_size 72
  .amdhsa_user_sgpr_count 2
  .amdhsa_user_sgpr_kernarg_segment_ptr 1
  .amdhsa_system_sgpr_workgroup_id_x 1
.end_amdhsa_kernel
''')
        print(name, 'vgpr', mv + 1, 'agpr', ma + 1, 'sgpr', ms + 1, 'instrs', sum(isinstance(i, Ins) for i in a.items), file=sys.stderr)
    out.append('.section .rodata,"a"\n')
    out += desc
    return ''.join(out)


KERNELS = [(NAME + '_kernel', kg.gen_kg, kg.KG_LDS)] if not os.environ.get('USE_H') else [(NAME + '_kernel', kh.gen_kh, kh.KH_LDS)]

if __name__ == '__main__':
    path = sys.argv[1] if len(sys.argv) > 1 else 'cdna_kernels/' + NAME + '.s'
    open(path, 'w').write(build(KERNELS))
    open('diag.s', 'w').write(build(KERNELS, diag=True))
```

```python
import re

_REG = re.compile(r'^(-|\|)?(?:abs\()?([vas])(?:(\d+)|\[(\d+):(\d+)\])\)?\|?$')
TRANS = ('v_exp_f32', 'v_log_f32', 'v_rcp_f32', 'v_rsq_f32', 'v_sqrt_f32', 'v_sin_f32', 'v_cos_f32', 'v_rcp_iflag_f32')


def regs_of(tok):
    tok = tok.strip()
    if tok in ('vcc', 'exec', 'm0', 'scc'):
        return {tok}
    if tok in ('vcc_lo', 'vcc_hi'):
        return {'vcc'}
    if tok in ('exec_lo', 'exec_hi'):
        return {'exec'}
    m = _REG.match(tok)
    if not m:
        return set()
    f = m.group(2)
    if m.group(3) is not None:
        return {(f, int(m.group(3)))}
    return {(f, i) for i in range(int(m.group(4)), int(m.group(5)) + 1)}


def split_ops(s):
    ops, depth, cur = [], 0, ''
    for ch in s:
        if ch in '[(':
            depth += 1
        if ch in '])':
            depth -= 1
        if ch == ',' and depth == 0:
            ops.append(cur.strip())
            cur = ''
        else:
            cur += ch
    if cur.strip():
        ops.append(cur.strip())
    return ops


class Ins:
    def __init__(self, text):
        self.text = text
        t = text.split(';')[0].strip()
        parts = t.split(None, 1)
        self.op = parts[0]
        rest = parts[1] if len(parts) > 1 else ''
        ops = split_ops(rest)
        self.mods = []
        clean = []
        for o in ops:
            w = o.split()
            clean.append(w[0])
            self.mods += w[1:]
        self.ops = clean
        op = self.op
        self.w = set()
        self.r = set()
        self.kind = 'other'
        self.passes = 0
        self.srcC = set()
        self.srcAB = set()
        self.store_data = set()
        self.ws = 1
        R = [regs_of(o) for o in clean]
        allr = lambda lst: set().union(*lst) if lst else set()
        if op == 's_nop':
            self.ws = int(clean[0], 0) + 1
            self.kind = 'nop'
        elif op.startswith('v_mfma'):
            self.kind = 'mfma'
            self.w = R[0]
            self.srcAB = R[1] | R[2]
            self.srcC = R[3]
            self.r = self.srcAB | self.srcC
            if '32x32x16' in op or '32x32x8' in op:
                self.passes = 8
            elif '16x16x32' in op or '16x16x16' in op:
                self.passes = 4
            elif '16x16x4_f32' in op:
                self.passes = 8
            else:
                raise ValueError(op)
        elif op.startswith('v_'):
            self.kind = 'trans' if any(op.startswith(x) for x in TRANS) else 'valu'
            if op.startswith('v_cmp'):
                self.w = R[0]
                self.r = allr(R[1:])
                if op.startswith('v_cmpx'):
                    self.w |= {'exec'}
            elif 'permlane' in op and 'swap' in op:
                self.w = R[0] | R[1]
                self.r = R[0] | R[1]
            elif op.startswith(('v_add_co', 'v_sub_co', 'v_addc_co', 'v_subb_co', 'v_subrev_co')):
                self.w = R[0] | R[1]
                self.r = allr(R[2:])
            else:
                self.w = R[0]
                self.r = allr(R[1:])
                if op.startswith(('v_fmac', 'v_dot2c', 'v_pk_fmac')) or op.startswith('v_writelane'):
                    self.r |= R[0]
            self.dpp = op.endswith('_dpp') or any(m.startswith(('row_', 'quad_perm')) for m in self.mods)
        elif op.startswith('ds_'):
            self.kind = 'ds'
            if op.startswith(('ds_read', 'ds_bpermute', 'ds_permute', 'ds_swizzle')) or '_rtn' in op:
                self.w = R[0]
                self.r = allr(R[1:])
            else:
                self.r = allr(R)
        elif op.startswith(('buffer_', 'global_', 'flat_')):
            self.kind = 'vmem'
            lds = 'lds' in self.mods or '_lds_' in op
            self.ldsdma = lds
            if op in ('buffer_wbl2', 'buffer_inv'):
                pass
            elif lds:
                self.r = allr(R) | {'m0'}
            elif '_load' in op:
                self.w = R[0]
                self.r = allr(R[1:])
            elif '_store' in op:
                self.r = allr(R)
                if 'x4' in op or 'x3' in op:
                    self.store_data = R[0] if op.startswith('buffer_') else R[1]
            elif '_atomic' in op:
                if 'sc0' in self.mods:
                    self.w = R[0]
                    self.r = allr(R) if op.startswith('buffer_') else allr(R[1:])
                else:
                    self.r = allr(R)
            else:
                raise ValueError(text)
        elif op.startswith('s_'):
            if op.startswith(('s_branch', 's_cbranch')):
                self.kind = 'branch'
                self.target = clean[0]
            elif op.startswith(('s_load', 's_memtime', 's_memrealtime', 's_atomic', 's_buffer_load')):
                self.kind = 'smem'
                self.w = R[0]
                self.r = allr(R[1:])
            elif op.startswith(('s_waitcnt', 's_barrier', 's_endpgm', 's_sleep', 's_setprio')):
                self.kind = 'other'
            elif op.startswith('s_cmp'):
                self.kind = 'salu'
                self.r = allr(R)
            else:
                self.kind = 'salu'
                self.w = R[0]
                self.r = allr(R[1:])
                if 'saveexec' in op:
                    self.w |= {'exec'}
        else:
            raise ValueError(text)


def is_vreg(x):
    return isinstance(x, tuple) and x[0] in 'va'


def is_sreg(x):
    return x == 'vcc' or (isinstance(x, tuple) and x[0] == 's')


def need(p, c):
    n = 0
    pv = p.kind in ('valu', 'trans')
    cv = c.kind in ('valu', 'trans')
    if pv:
        wv = {x for x in p.w if is_vreg(x)}
        wsg = {x for x in p.w if is_sreg(x)}
        if c.kind == 'mfma' and wv & c.r:
            n = max(n, 2)
        if p.kind == 'trans' and (cv or c.kind in ('vmem', 'ds')) and wv & c.r:
            n = max(n, 1)
        if cv and wv & c.r:
            if c.op.startswith(('v_readfirstlane', 'v_readlane')):
                n = max(n, 1)
            if 'permlane' in c.op or getattr(c, 'dpp', False):
                n = max(n, 2)
        if wsg:
            rd = set(c.r)
            if cv and c.op.startswith(('v_cndmask', 'v_addc', 'v_subb', 'v_div_fmas')):
                pass
            if c.kind == 'vmem' and wsg & rd:
                n = max(n, 5)
            if cv and wsg & rd:
                n = max(n, 4 if c.op.startswith(('v_readlane', 'v_writelane', 'v_div_fmas')) else 2)
            if c.kind in ('salu', 'smem') and wsg & rd:
                n = max(n, 1)
            if c.kind == 'branch' and 'vcc' in wsg and 'vcc' in c.op:
                n = max(n, 5)
        if 'exec' in p.w:
            n = max(n, 5)
    if p.kind == 'mfma':
        t = {4: (6, 8, 8, 3), 8: (10, 12, 12, 7)}[p.passes]
        if c.kind == 'mfma':
            if p.w & c.srcC:
                if not (p.w == c.srcC and p.op == c.op):
                    n = max(n, t[0])
            if p.w & c.srcAB:
                n = max(n, t[1])
            if (p.w & c.w) and not (p.w == c.srcC and p.op == c.op):
                n = max(n, t[0])
        elif cv or c.kind in ('vmem', 'ds'):
            if p.w & (c.r | c.w):
                n = max(n, t[2])
            if cv and p.srcC & c.w:
                n = max(n, t[3])
    if p.kind == 'salu' and 'm0' in p.w and 'm0' in c.r and c.kind in ('vmem', 'ds'):
        n = max(n, 1)
    if p.store_data and (p.store_data & c.w):
        n = max(n, 2)
    return n


class Asm:
    def __init__(self):
        self.items = []
        self.vm = []
        self.uid = 0

    def __call__(self, text, tag=None):
        for line in text.strip().split('\n'):
            line = line.strip()
            if not line or line.startswith(';'):
                continue
            ins = Ins(line)
            self.items.append(ins)
            if ins.kind == 'vmem' and ins.op not in ('buffer_wbl2', 'buffer_inv'):
                self.vm.append(tag)

    diag = None
    TS0 = 4

    def stamp(self, i):
        if self.diag is None:
            return
        assert i < 6
        self('s_memrealtime s[98:99]')
        if i == 0:
            self('s_memtime s[100:101]')
        self('s_waitcnt lgkmcnt(0)')
        self(f's_mov_b32 s{76 + i}, s98')

    LAPV = 255

    def lap(self, sel):
        if self.diag is None:
            return
        self('s_memrealtime s[98:99]')
        self('s_waitcnt lgkmcnt(0)')
        self(f's_lshl_b64 exec, 1, {sel}')
        self(f'v_mov_b32 v{self.LAPV}, s98')
        self('s_mov_b64 exec, -1')

    slaps = None

    def slap(self, i):
        if self.diag is None:
            return
        self.slaps = max(self.slaps or 0, i + 1)
        self('s_memrealtime s[98:99]')
        self('s_waitcnt lgkmcnt(0)')
        self(f's_mov_b32 s{82 + i}, s98')

    def lap_flush(self, sWv, ws_ptr, off):
        if self.diag is None:
            return
        if self.slaps:
            self(f'v_mov_b32 v{self.LAPV}, 0')
            for i in range(self.slaps):
                self(f'v_writelane_b32 v{self.LAPV}, s{82 + i}, {i}')
        self('s_mov_b64 exec, 0xffff')
        self(f's_lshl_b32 s98, s2, 2')
        self(f's_add_u32 s98, s98, s{sWv}')
        self(f's_lshl_b32 s98, s98, 6')
        self(f's_add_u32 s98, s98, {off + 0x100000 + self.diag * 65536}')
        self('v_mbcnt_lo_u32_b32 v0, -1, 0')
        self('v_lshlrev_b32 v0, 2, v0')
        self('v_add_u32 v0, s98, v0')
        self(f'global_store_dword v0, v{self.LAPV}, s[{ws_ptr}:{ws_ptr + 1}]')

    def stamp_flush(self, sWv, ws_ptr, off):
        if self.diag is None:
            return
        self.stamp(5)
        self.lap_flush(sWv, ws_ptr, off)
        self('s_mov_b64 exec, 1')
        for i in range(6):
            self(f'v_mov_b32 v{2 + i}, s{76 + i}')
        self('v_mov_b32 v8, s100')
        self('s_memtime s[100:101]')
        self('s_waitcnt lgkmcnt(0)')
        self('v_mov_b32 v9, s100')
        self(f's_lshl_b32 s4, s2, 2')
        self(f's_add_u32 s4, s4, s{sWv}')
        self(f's_lshl_b32 s4, s4, 5')
        self(f's_add_u32 s4, s4, {off + self.diag * 32768}')
        self('v_mov_b32 v0, s4')
        self(f'global_store_dwordx4 v0, v[2:5], s[{ws_ptr}:{ws_ptr + 1}]')
        self(f'global_store_dwordx4 v0, v[6:9], s[{ws_ptr}:{ws_ptr + 1}] offset:16')

    def label(self, name):
        self.items.append(('label', name))

    def raw(self, text):
        self.items.append(('raw', text))

    def newlabel(self, base='L'):
        self.uid += 1
        return f'{base}_{self.uid}'

    def vm_reset(self):
        self.vm = []

    def vm_wait(self, tag, extra=''):
        idx = [i for i, t in enumerate(self.vm) if t == tag]
        assert idx, f'no outstanding op with tag {tag}'
        n = len(self.vm) - 1 - idx[-1]
        n = min(n, 63)
        self(f's_waitcnt vmcnt({n}){extra}')
        self.vm = self.vm[idx[-1] + 1:] if n == len(self.vm) - 1 - idx[-1] else self.vm

    def vm_wait_all(self, extra=''):
        self(f's_waitcnt vmcnt(0){extra}')
        self.vm = []

    def _pad_linear(self):
        out = []
        for it in self.items:
            if isinstance(it, Ins):
                req = 0
                dist = 0
                for p in reversed(out):
                    if not isinstance(p, Ins):
                        continue
                    if dist >= 14:
                        break
                    if p.op in ('s_branch', 's_endpgm'):
                        break
                    k = need(p, it) - dist
                    req = max(req, k)
                    dist += p.ws
                if req > 0:
                    out.append(Ins(f's_nop {req - 1}'))
            out.append(it)
        self.items = out

    def _pad_branches(self):
        labels = {it[1]: i for i, it in enumerate(self.items) if isinstance(it, tuple) and it[0] == 'label'}
        i = 0
        inserts = []
        for i, it in enumerate(self.items):
            if isinstance(it, Ins) and it.kind == 'branch' and it.target in labels:
                pre = []
                d = 0
                for p in reversed(self.items[:i + 1]):
                    if isinstance(p, Ins):
                        if p is not it and p.op in ('s_branch', 's_endpgm'):
                            break
                        pre.append(p)
                        d += p.ws
                        if d >= 14:
                            break
                post = []
                d = 0
                for c in self.items[labels[it.target]:]:
                    if isinstance(c, Ins):
                        post.append(c)
                        d += c.ws
                        if d >= 14 or c.op in ('s_branch', 's_endpgm'):
                            break
                req = 0
                dpost = 0
                for c in post:
                    dpre = 0
                    for p in pre:
                        k = need(p, c) - (dpre + dpost)
                        req = max(req, k)
                        dpre += p.ws
                    dpost += c.ws
                if req > 0:
                    inserts.append((i, req))
        for i, req in reversed(inserts):
            self.items.insert(i, Ins(f's_nop {req - 1}'))

    def text(self):
        self._pad_linear()
        self._pad_branches()
        lines = []
        for it in self.items:
            if isinstance(it, Ins):
                lines.append('    ' + it.text)
            elif it[0] == 'label':
                lines.append(it[1] + ':')
            else:
                lines.append(it[1])
        return '\n'.join(lines) + '\n'

    def max_regs(self):
        mv = ma = ms = -1
        for it in self.items:
            if isinstance(it, Ins):
                for x in it.w | it.r:
                    if isinstance(x, tuple):
                        if x[0] == 'v':
                            mv = max(mv, x[1])
                        elif x[0] == 'a':
                            ma = max(ma, x[1])
                        else:
                            ms = max(ms, x[1])
        return mv, ma, ms


class RegAlloc:
    def __init__(self, f, start, limit):
        self.f = f
        self.n = start
        self.limit = limit

    def get(self, cnt=1, align=1):
        self.n = (self.n + align - 1) // align * align
        b = self.n
        self.n += cnt
        assert self.n <= self.limit, f'out of {self.f} regs'
        return b


def vr(b, n=1, f='v'):
    return f'{f}{b}' if n == 1 else f'{f}[{b}:{b + n - 1}]'


def sr(b, n=1):
    return vr(b, n, 's')


def ar(b, n=1):
    return vr(b, n, 'a')
```

```python
import os
from asmlib import *
from layout import *
from k1 import load_args, srd, ln_stats, spread, LOG2E, P_X, P_WQKV, P_WO, P_W1, P_W2, P_OUT, P_DBG, P_WS
from k234 import xsum_g, cg_blocks, M16, BIG

KG_LDS = 163840
RB = 81920
SA = 143360
P2L = 102400
OP_OFF = PQ_OFF
FL_C, FL_O, FL_KV, FL_RP, FL_RP2 = 0, 64, 96, 104, 112


def E(name, default):
    return int(os.environ.get(name, str(default)))


def R(f, b, n=4):
    return f'{f}[{b}:{b + n - 1}]'


def sig5(T):
    cg, rel = T // 5, T % 5
    return cg, ((4 if rel == 0 else rel - 1) if cg & 1 else rel)


def kg_table():
    bp = blk_pos()
    inv = {}
    for j in range(16):
        for sg, T in enumerate(slot_tiles(w1_t0(j), w1_cnt(j), 7)):
            if T is not None:
                inv[T] = (j, sg)

    def w2u(u, w):
        ks, nb = u // 10, u % 10
        cg, sg = sig5(4 * nb + w)
        return 32 * ks * 1280 + 128 * nb, W2P_OFF + cg * W2G + bp[ks] * 5120 + sg * 1024
    tab = []
    for r in range(256):
        for w in range(4):
            if r < 200:
                ks, nb = r // 10, r % 10
                cg, sg = sig5(4 * nb + w)
                e = [32 * ks * 1280 + 128 * nb, WOP_OFF + cg * 102400 + ks * 5120 + sg * 1024]
            else:
                e = list(w2u(484 + r - 200, w))
            if r < 135:
                p, nb = r // 27, r % 27
                j, sg = inv[4 * nb + w]
                e += [(128 * p + 32 * i) * 3456 + 128 * nb for i in range(4)]
                e += [W1P_OFF + w1_frag_off(j, 4 * p + i, sg) for i in range(4)]
                e.append(CS1_OFF + p * 7168 + (j * 7 + sg) * 64)
            else:
                us = [w2u(4 * (r - 135) + i, w) for i in range(4)]
                e += [u[0] for u in us] + [u[1] for u in us] + [BIG]
            e += [0] * (16 - len(e))
            tab.append(e)
    return tab


def lane_mask(fn):
    m = 0
    for l in range(64):
        if fn(l >> 4, l & 15):
            m |= 1 << l
    return m


def set_exec(m):
    return [f's_mov_b32 exec_lo, 0x{m & 0xffffffff:x}', f's_mov_b32 exec_hi, 0x{m >> 32:x}']


def gen_kg(a, name):
    sX, sW, sWS, sR = 36, 40, 44, 48
    sO = sR
    sa = RegAlloc('s', 52, 76)
    sTab = 4
    sP = sa.get(8, 4)
    sWv = sa.get(); sRh = sa.get(); sCh = sa.get(); sR1 = sa.get(); sHg = sa.get()
    sT0 = sa.get(); sT1 = sa.get(); sT2 = sa.get(); sT3 = sa.get()
    sKc = sa.get(); sSA = sa.get(); sSB = sa.get(); sMA = sa.get(); sMB = sa.get()
    sFw = sa.get(); sCnt = sa.get()
    sM0, sM1, sM2 = 22, 34, 28
    sRb, sCg, sPb, sSb, sJ, sC, sOa, sOb = [sP + i for i in range(8)]
    sW1, sW1m, sW2, sA, sB = sKc, sSA, sSB, sMA, sMB
    sH, sHs, sA4 = sRh, sCh, sR1
    sC3, sF3 = sTab, sTab + 1
    sFc = sHg
    sRpc = 3
    WS = f's[{sWS}:{sWS + 3}]'
    lapn = [0]
    LSET = os.environ.get('G_LAPS', 'A')

    def lap(kind='A'):
        if any(k_ in LSET for k_ in kind) and lapn[0] < 14:
            a.slap(lapn[0])
            lapn[0] += 1

    vL, vG, vR, vL16, vL16b, vL128 = 1, 2, 3, 4, 5, 6
    vT = [7, 8, 9, 10, 11]
    vOne, vZero = vT[3], vT[4]
    hres = 12
    X, Y, Z = 24, 104, 176
    Lend = name + '_end'
    a.raw(f'.globl {name}\n.p2align 8\n.type {name},@function')
    a.label(name)
    a('s_cmp_ge_u32 s2, 256')
    a(f's_cbranch_scc1 {Lend}')
    a.stamp(0)
    load_args(a)
    a(f'v_and_b32 v{vL}, 63, v0')
    a(f'v_lshrrev_b32 v{vT[0]}, 6, v0')
    a(f'v_readfirstlane_b32 s{sWv}, v{vT[0]}')
    a(f'v_lshrrev_b32 v{vG}, 4, v{vL}')
    a(f'v_and_b32 v{vR}, 15, v{vL}')
    a(f's_lshr_b32 s{sRh}, s{sWv}, 1')
    a(f's_and_b32 s{sCh}, s{sWv}, 1')
    a(f's_and_b32 s{sT0}, s2, 7')
    a(f's_lshr_b32 s{sT1}, s2, 3')
    a(f's_lshr_b32 s{sT2}, s{sT0}, 1')
    a(f's_lshl_b32 s{sR1}, s{sT2}, 3')
    a(f's_lshr_b32 s{sT3}, s{sT1}, 2')
    a(f's_add_u32 s{sR1}, s{sR1}, s{sT3}')
    a(f's_and_b32 s{sT0}, s{sT0}, 1')
    a(f's_lshl_b32 s{sHg}, s{sT0}, 2')
    a(f's_and_b32 s{sT1}, s{sT1}, 3')
    a(f's_add_u32 s{sHg}, s{sHg}, s{sT1}')
    a(f's_add_u32 s{sKc}, s{sT3}, s{sT1}')
    a(f's_lshl_b32 s{sKc}, s{sKc}, 1')
    a(f's_add_u32 s{sKc}, s{sKc}, s{sT2}')
    for _ in range(2):
        a(f's_sub_u32 s{sT0}, s{sKc}, 10')
        a(f's_cmp_ge_u32 s{sKc}, 10')
        a(f's_cselect_b32 s{sKc}, s{sT0}, s{sKc}')
    va = RegAlloc('v', 24, 256)
    vOA = va.get(2); vOB = va.get(5); vOQ = va.get(5); vRP = va.get(); vRT = va.get()
    t = [hres + i for i in range(6)]
    a(f's_lshl_b32 s{sT1}, s{sWv}, 4')
    a(f'v_lshrrev_b32 v{t[0]}, 3, v{vL}')
    a(f'v_add_u32 v{t[0]}, s{sT1}, v{t[0]}')
    a(f'v_and_b32 v{t[1]}, 7, v{vL}')
    a(f'v_xor_b32 v{t[2]}, v{vG}, v{t[1]}')
    a(f'v_lshlrev_b32 v{t[2]}, 4, v{t[2]}')
    a(f'v_mul_u32_u24 v{t[0]}, 1280, v{t[0]}')
    a(f'v_add_u32 v{vOA}, v{t[0]}, v{t[2]}')
    a(f'v_xor_b32 v{t[2]}, 64, v{t[2]}')
    a(f'v_add3_u32 v{vOA + 1}, v{t[0]}, v{t[2]}, 0') if False else None
    a(f'v_add_u32 v{vOA + 1}, v{t[0]}, v{t[2]}')
    a(f'v_add_u32 v{vOA + 1}, {10240 - 1024}, v{vOA + 1}')
    a(f's_mul_i32 s{sT3}, s{sWv}, {16 * 3840}')
    a(f's_movk_i32 s{sT2}, 3840')
    for j in range(5):
        a(f'v_add_u32 v{t[0]}, {64 * j}, v{vL}')
        a(f'v_mul_u32_u24 v{t[1]}, 3277, v{t[0]}')
        a(f'v_lshrrev_b32 v{t[1]}, 16, v{t[1]}')
        a(f'v_mul_u32_u24 v{t[2]}, 20, v{t[1]}')
        a(f'v_sub_u32 v{t[0]}, v{t[0]}, v{t[2]}')
        a(f'v_lshrrev_b32 v{t[2]}, 2, v{t[1]}')
        a(f'v_and_b32 v{t[2]}, 2, v{t[2]}')
        a(f'v_xor_b32 v{t[0]}, v{t[0]}, v{t[2]}')
        a(f'v_mul_u32_u24 v{t[2]}, 205, v{t[0]}')
        a(f'v_lshrrev_b32 v{t[2]}, 10, v{t[2]}')
        a(f'v_and_b32 v{t[3]}, 1, v{t[2]}')
        a(f'v_mul_u32_u24 v{t[3]}, 1200, v{t[3]}')
        a(f'v_lshl_add_u32 v{t[0]}, v{t[0]}, 4, v{t[3]}')
        a(f'v_lshrrev_b32 v{t[2]}, 1, v{t[2]}')
        a(f'v_mul_u32_u24 v{t[2]}, 80, v{t[2]}')
        a(f'v_sub_u32 v{t[0]}, v{t[0]}, v{t[2]}')
        a(f'v_mad_u32_u24 v{t[0]}, v{t[1]}, s{sT2}, v{t[0]}')
        a(f's_sub_u32 s{sT1}, s{sT3}, {1024 * (j & 3)}')
        a(f'v_add_u32 v{vOB + j}, s{sT1}, v{t[0]}')
    a(f's_lshl_b32 s{sMA}, s{sWv}, 11')
    a(f's_mul_i32 s{sMB}, s{sWv}, 5120')
    a(f's_add_u32 s{sMB}, s{sMB}, {RB}')
    a(f's_mul_i32 s{sT0}, s{sR1}, {64 * 1280}')
    a(f's_mul_i32 s{sT1}, s{sHg}, 160')
    a('s_waitcnt lgkmcnt(0)')
    a(f's_add_u32 s{sX}, s{P_X}, s{sT0}')
    a(f's_addc_u32 s{sX + 1}, s{P_X + 1}, 0')
    a(f's_sub_u32 s{sX + 2}, {S * D * 2}, s{sT0}')
    a(f's_mov_b32 s{sX + 3}, 0x20000')
    a(f's_add_u32 s{sW}, s{P_WQKV}, s{sT1}')
    a(f's_addc_u32 s{sW + 1}, s{P_WQKV + 1}, 0')
    a(f's_sub_u32 s{sW + 2}, {D * 3 * D * 2}, s{sT1}')
    a(f's_mov_b32 s{sW + 3}, 0x20000')
    a.vm_reset()

    def stage_groups(n):
        g = []
        slot = RB_slot = (n % 3) * 20480
        adv = [f's_add_u32 s{sKc}, s{sKc}, 1', f's_cmp_eq_u32 s{sKc}, 10', f's_cselect_b32 s{sKc}, 0, s{sKc}']
        if n < 10:
            for j in range(2):
                pre = []
                if j == 0:
                    pre = [f's_lshl_b32 s{sSA}, s{sKc}, 7', f's_mul_i32 s{sSB}, s{sKc}, {64 * 3840}',
                           f's_add_u32 s{sSB}, s{sSB}, 1280', f's_add_u32 m0, s{sMA}, {8192 * n}'] + adv
                g.append((pre + [f'buffer_load_dwordx4 v{vOA + j}, s[{sX}:{sX + 3}], s{sSA} offen offset:{1024 * j} lds'], f's{n}'))
            vo = vOB
        else:
            vo = vOQ
        for j in range(5):
            pre = []
            if j == 0:
                if n >= 10:
                    pre = [f's_add_u32 s{sSB}, s{sKc}, s{sRh}', f's_cmp_eq_u32 s{sSB}, 10', f's_cselect_b32 s{sSB}, 0, s{sSB}',
                           f's_mul_i32 s{sSB}, s{sSB}, {64 * 3840}'] + adv + adv
                pre = pre + [f's_add_u32 m0, s{sMB}, {slot}', 's_nop 0']
            if j == 4:
                pre = [f's_add_u32 m0, s{sMB}, {slot + 4096}', 's_nop 0']
            elif j > 0:
                pre = [f's_add_u32 m0, s{sMB}, {slot}', 's_nop 0'] if j == 2 else []
            g.append((pre + [f'buffer_load_dwordx4 v{vo + j}, s[{sW}:{sW + 3}], s{sSB} offen offset:{1024 * (j & 3)} lds'], f's{n}'))
        return g

    def emit(g):
        for x in g[0]:
            a(x, tag=g[1])
    pend = []

    def pull(n=1):
        for _ in range(n):
            if pend:
                emit(pend.pop(0))

    def need_tag(tag, extra=''):
        while any(g[1] == tag for g in pend):
            pull()
        if tag in a.vm:
            a.vm_wait(tag, extra)
        elif extra:
            a('s_waitcnt' + extra)
    a.stamp(1)
    for n in range(2):
        for g in stage_groups(n):
            emit(g)
    srd(a, sWS, P_WS, 0, WS_USED)
    a(f's_getpc_b64 s[{sM1}:{sM1 + 1}]')
    a.label(name + '_pc')
    if E('G_CODEPF', 1):
        a(f's_lshr_b32 s{sT0}, s2, 3')
        a(f's_lshl_b32 s{sT0}, s{sT0}, 2')
        a(f's_add_u32 s{sT0}, s{sT0}, s{sWv}')
        a(f's_lshl_b32 s{sT0}, s{sT0}, 10')
        a(f's_min_u32 s{sT0}, s{sT0}, {name}_tab-{name}_pc')
        a(f'v_lshl_add_u32 v{t[0]}, v{vL}, 4, s{sT0}')
        a(f'global_load_dwordx4 a[0:3], v{t[0]}, s[{sM1}:{sM1 + 1}]', tag='cpf')
    a(f's_lshl_b32 s{sT0}, s2, 2')
    a(f's_add_u32 s{sT0}, s{sT0}, s{sWv}')
    a(f's_lshl_b32 s{sT0}, s{sT0}, 6')
    a(f's_add_u32 s{sM1}, s{sM1}, {name}_tab-{name}_pc')
    a(f's_addc_u32 s{sM1 + 1}, s{sM1 + 1}, 0')
    a(f's_add_u32 s{sM1}, s{sM1}, s{sT0}')
    a(f's_addc_u32 s{sM1 + 1}, s{sM1 + 1}, 0')
    a(f's_load_dwordx8 s[{sTab}:{sTab + 7}], s[{sM1}:{sM1 + 1}], 0')
    a(f's_load_dwordx4 s[{sTab + 8}:{sTab + 11}], s[{sM1}:{sM1 + 1}], 32')
    a(f'v_lshlrev_b32 v{vL16}, 4, v{vL}')
    a(f'v_add_u32 v{vL16b}, 4096, v{vL16}')
    a(f'v_lshlrev_b32 v{vL128}, 7, v{vL}')
    a(f'v_mov_b32 v{vOne}, 1')
    a(f'v_mov_b32 v{vZero}, 0')
    vOnes = va.get(4, 4)
    vA = va.get(4); vB = va.get(4); vQ = va.get(2)
    fr = [va.get(40, 4) for _ in range(2)]
    acc = va.get(40, 4); s1 = va.get(8, 4); s2 = va.get(8, 4); cs = va.get(20, 4)
    pad_ = va.get(4, 4)
    qacc = va.get(24, 4); qcs = va.get(12, 4)
    vC = hres + 6
    for i in range(4):
        a(f'v_mov_b32 v{vOnes + i}, 0x3f803f80')
        a(f'v_mov_b32 v{pad_ + i}, 0')
    Lnz = a.newlabel('Lnz')
    a(f's_lshl_b32 s{sT1}, s{sHg}, 2')
    a(f's_add_u32 s{sT1}, s{sT1}, s{sWv}')
    a(f's_mul_i32 s{sT2}, s{sT1}, {KV_HS}')
    a(f's_add_u32 s{sT2}, s{sT2}, {KV_OFF}')
    a(f's_lshl_b32 s{sT3}, s{sT1}, 9')
    a(f's_add_u32 s{sT3}, s{sT3}, {FL_OFF}')
    a(f's_cmp_eq_u32 s{sR1}, 0')
    a(f's_cselect_b32 s{sT2}, s{sT2}, 0x{BIG:x}')
    a(f's_cselect_b32 s{sT3}, s{sT3}, 0x{BIG:x}')
    a(f'v_lshlrev_b32 v{t[0]}, 3, v{vL}')
    a(f'buffer_store_dwordx4 {R("v", pad_)}, v{vL16}, {WS}, s{sT2} offen sc1', tag='z')
    a(f'buffer_store_dwordx4 {R("v", pad_)}, v{vL16}, {WS}, s{sT2} offen offset:768 sc1', tag='z')
    a(f'buffer_store_dwordx2 {R("v", pad_, 2)}, v{t[0]}, {WS}, s{sT3} offen sc1', tag='z')
    a(f's_mul_i32 s{sT3}, s{sCh}, {32 * 3840}')
    a(f's_movk_i32 s{sT2}, 3840')
    for j in range(5):
        a(f'v_add_u32 v{t[0]}, {64 * j}, v{vL}')
        a(f'v_mul_u32_u24 v{t[1]}, 6554, v{t[0]}')
        a(f'v_lshrrev_b32 v{t[1]}, 16, v{t[1]}')
        a(f'v_mul_u32_u24 v{t[2]}, 10, v{t[1]}')
        a(f'v_sub_u32 v{t[0]}, v{t[0]}, v{t[2]}')
        a(f'v_and_b32 v{t[2]}, 0x13, v{t[1]}')
        a(f'v_bfe_u32 v{t[3]}, v{t[1]}, 2, 1')
        a(f'v_lshl_or_b32 v{t[2]}, v{t[3]}, 3, v{t[2]}')
        a(f'v_bfe_u32 v{t[3]}, v{t[1]}, 3, 1')
        a(f'v_lshl_or_b32 v{t[2]}, v{t[3]}, 2, v{t[2]}')
        a(f'v_lshlrev_b32 v{t[0]}, 4, v{t[0]}')
        a(f'v_mad_u32_u24 v{t[0]}, v{t[2]}, s{sT2}, v{t[0]}')
        a(f's_sub_u32 s{sT1}, s{sT3}, {1024 * (j & 3)}')
        a(f'v_add_u32 v{vOQ + j}, s{sT1}, v{t[0]}')
    a('s_cmp_lt_u32 s2, 200')
    a(f's_cselect_b32 s{sR}, s{P_WO}, s{P_W2}')
    a(f's_cselect_b32 s{sR + 1}, s{P_WO + 1}, s{P_W2 + 1}')
    a(f's_mov_b32 s{sR + 2}, {D * F * 2}')
    a(f's_cselect_b32 s{sR + 2}, {D * D * 2}, s{sR + 2}')
    a(f's_mov_b32 s{sR + 3}, 0x20000')
    a(f's_movk_i32 s{sT0}, 1280')
    a('s_cmp_lt_u32 s2, 135')
    a(f's_cselect_b32 s{sT2}, 3456, s{sT0}')
    a(f's_lshl_b32 s{sT1}, s{sWv}, 3')
    a(f'v_lshrrev_b32 v{t[0]}, 3, v{vL}')
    a(f'v_add_u32 v{t[0]}, s{sT1}, v{t[0]}')
    a(f'v_and_b32 v{t[1]}, 7, v{vL}')
    a(f'v_lshlrev_b32 v{t[1]}, 4, v{t[1]}')
    a(f'v_mad_u32_u24 v{vRP}, v{t[0]}, s{sT2}, v{t[1]}')
    a(f'v_mad_u32_u24 v{t[0]}, v{t[0]}, s{sT0}, v{t[1]}')
    a(f's_lshl_b32 s{sT1}, s{sWv}, 10')
    a(f's_add_u32 m0, s{sT1}, {SA}')
    a('s_waitcnt lgkmcnt(0)')
    a(f'buffer_load_dwordx4 v{t[0]}, s[{sR}:{sR + 3}], s{sTab} offen lds', tag='r')
    a(f'v_lshlrev_b32 v{vRT}, 10, v{vG}')
    a(f'v_bfe_u32 v{t[5]}, v{vL}, 2, 2')
    a(f'v_lshl_add_u32 v{vRT}, v{t[5]}, 7, v{vRT}')
    a(f'v_and_b32 v{t[5]}, 3, v{vL}')
    a(f'v_lshl_add_u32 v{vRT}, v{t[5]}, 4, v{vRT}')
    a(f's_lshl_b32 s{sT1}, s{sRh}, 6')
    a(f's_lshl_b32 s{sT2}, s{sCh}, 3')
    a(f's_add_u32 s{sT1}, s{sT1}, s{sT2}')
    a(f's_add_u32 s{sT1}, s{sT1}, {RB}')
    a(f'v_add_u32 v{vRT}, s{sT1}, v{vRT}')
    a('s_cmp_lt_u32 s2, 135')
    a(f's_cselect_b32 s{sR}, s{P_W1}, s{P_W2}')
    a(f's_cselect_b32 s{sR + 1}, s{P_W1 + 1}, s{P_W2 + 1}')
    a(f's_mov_b32 s{sR + 2}, {D * F * 2}')
    a(f's_xor_b32 s{sT0}, s{sRh}, s{sCh}')
    a(f'v_lshrrev_b32 v{t[0]}, 3, v{vR}')
    a(f'v_lshlrev_b32 v{t[0]}, 10, v{t[0]}')
    a(f'v_and_b32 v{t[1]}, 7, v{vR}')
    a(f'v_lshl_add_u32 v{t[0]}, v{t[1]}, 7, v{t[0]}')
    a(f's_lshl_b32 s{sT1}, s{sRh}, 12')
    a(f'v_add_u32 v{t[0]}, s{sT1}, v{t[0]}')
    a(f'v_lshrrev_b32 v{t[1]}, 1, v{vR}')
    a(f'v_xor_b32 v{t[1]}, v{t[1]}, v{vG}')
    a(f's_lshl_b32 s{sT1}, s{sT0}, 2')
    a(f'v_xor_b32 v{t[1]}, s{sT1}, v{t[1]}')
    a(f'v_lshl_add_u32 v{vA}, v{t[1]}, 4, v{t[0]}')
    a(f'v_xor_b32 v{t[1]}, 4, v{t[1]}')
    a(f'v_lshl_add_u32 v{vA + 1}, v{t[1]}, 4, v{t[0]}')
    a(f'v_add_u32 v{vA + 2}, 40960, v{vA}')
    a(f'v_add_u32 v{vA + 3}, 40960, v{vA + 1}')
    a(f'v_bfe_u32 v{t[0]}, v{vL}, 2, 2')
    a(f'v_and_b32 v{t[1]}, 3, v{vL}')
    a(f'v_lshl_add_u32 v{t[2]}, v{vG}, 3, v{t[0]}')
    a(f'v_and_b32 v{t[3]}, 1, v{vG}')
    a(f'v_mul_u32_u24 v{t[2]}, 320, v{t[2]}')
    a(f'v_lshl_add_u32 v{t[2]}, v{t[1]}, 3, v{t[2]}')
    a(f's_mul_i32 s{sT1}, s{sCh}, 160')
    a(f's_add_u32 s{sT1}, s{sT1}, {RB}')
    a(f'v_add_u32 v{t[2]}, s{sT1}, v{t[2]}')
    a(f'v_lshlrev_b32 v{t[4]}, 5, v{t[3]}')
    a(f'v_sub_u32 v{t[5]}, v{t[2]}, v{t[4]}')
    a(f'v_add_u32 v{t[4]}, v{t[2]}, v{t[4]}')
    a(f's_cmp_eq_u32 s{sCh}, 0')
    a('s_cselect_b64 vcc, -1, 0')
    a(f'v_cndmask_b32 v{t[2]}, v{t[5]}, v{t[4]}, vcc')
    a(f'v_cndmask_b32 v{t[4]}, v{t[4]}, v{t[5]}, vcc')
    a(f's_mul_i32 s{sT1}, s{sT0}, 10240')
    a(f's_sub_u32 s{sT2}, 10240, s{sT1}')
    for o, sreg in ((0, sT1), (1, sT2)):
        a(f'v_add_u32 v{vB + 2 * o}, s{sreg}, v{t[2]}')
        a(f'v_add_u32 v{vB + 2 * o + 1}, s{sreg}, v{t[4]}')
    a(f'v_lshl_add_u32 v{t[0]}, v{t[3]}, 2, v{t[0]}')
    a(f'v_lshrrev_b32 v{t[3]}, 1, v{vG}')
    a(f'v_lshl_add_u32 v{t[0]}, v{t[3]}, 4, v{t[0]}')
    a(f'v_mul_u32_u24 v{t[0]}, 160, v{t[0]}')
    a(f'v_lshl_add_u32 v{t[0]}, v{t[1]}, 3, v{t[0]}')
    a(f's_mul_i32 s{sT1}, s{sCh}, 80')
    a(f's_add_u32 s{sT1}, s{sT1}, {RB}')
    a(f's_mul_i32 s{sT2}, s{sT0}, 5120')
    a(f's_add_u32 s{sT3}, s{sT1}, s{sT2}')
    a(f'v_add_u32 v{vQ}, s{sT3}, v{t[0]}')
    a(f's_sub_u32 s{sT3}, s{sT1}, s{sT2}')
    a(f's_add_u32 s{sT3}, s{sT3}, 5120')
    a(f'v_add_u32 v{vQ + 1}, s{sT3}, v{t[0]}')
    for i, c in enumerate((LOG2E, LOG2E, 0x3f800000, 0x3f800000, 0x358637bd, 0x358637bd)):
        a(f'v_mov_b32 v{vC + i}, 0x{c:x}')
    a(f's_cmp_eq_u32 s{sWv}, 0')
    a(f's_mov_b32 s{sFw}, 0x{BIG:x}')
    a(f's_cselect_b32 s{sFw}, {FL_OFF}, s{sFw}')
    ones = R('v', vOnes)

    def a_read(dst, slot, o, tr):
        hi = slot >= 5
        return f'ds_read_b128 {R("v", dst)}, v{vA + 2 * hi + o} offset:{8192 * (slot - 5 * hi) + 2048 * tr}'

    def reads_kv(n, o):
        f = fr[o]
        lst = [a_read(f + 4 * tr, n, o, tr) for tr in range(2)]
        for tc in range(5):
            for j in range(2):
                b = f + 8 + 4 * tc + 2 * j
                lst.append(f'ds_read_b64_tr_b16 {R("v", b, 2)}, v{vB + 2 * o + (tc & 1)} offset:{(n % 3) * 20480 + 32 * tc + 1280 * j}')
        return lst

    def mf_kv(n, o, extras_first=False):
        f = fr[o]
        A = lambda tr: R('v', f + 4 * tr)
        B = lambda tc: R('v', f + 8 + 4 * tc)
        z = lambda d, first: '0' if first else R('v', d)
        lst, ex = [], []
        for tc in range(5):
            for tr in range(2):
                d = acc + 4 * (tr * 5 + tc)
                lst.append(f'{M16} {R("v", d)}, {A(tr)}, {B(tc)}, {z(d, n == 0 and o == 0)}')
        if o == 0:
            for tr in range(2):
                ex.append(f'{M16} {R("v", s1 + 4 * tr)}, {A(tr)}, {ones}, {z(s1 + 4 * tr, n == 0)}')
                ex.append(f'{M16} {R("v", s2 + 4 * tr)}, {A(tr)}, {A(tr)}, {z(s2 + 4 * tr, n == 0)}')
        else:
            for tc in range(5):
                ex.append(f'{M16} {R("v", cs + 4 * tc)}, {ones}, {B(tc)}, {z(cs + 4 * tc, n == 0)}')
        return ex + lst if extras_first else lst + ex

    def sched(ms, first, later, start=1):
        n = len(ms)
        first = list(first)
        pos = {}
        for k, g in enumerate(later):
            pos.setdefault(min(n - 1, start + (k * (n - start)) // max(1, len(later))), []).append(g)
        for k, m in enumerate(ms):
            a(m)
            if first:
                a(first.pop(0))
            for g in pos.get(k, []):
                if isinstance(g, tuple):
                    emit(g)
                else:
                    for x in g:
                        a(x)
        for x in first:
            a(x)

    def publish(sOff, line, tag, barrier=True):
        if tag in a.vm:
            a.vm_wait(tag)
        if barrier:
            a('s_barrier')
        a('s_mov_b64 exec, 1')
        a(f'buffer_atomic_add v{vOne}, v{vZero}, {WS}, s{sOff} offen offset:{128 * line} sc1', tag='flag')
        a('s_mov_b64 exec, -1')

    def poll_issue(sOff, line, nl=1):
        a(f's_mov_b64 exec, {(1 << nl) - 1}')
        a(f'buffer_load_dword v{vT[1]}, v{vL128}, {WS}, s{sOff} offen offset:{128 * line} sc1', tag='poll')
        a('s_mov_b64 exec, -1')

    def poll_wait(sOff, line, expect, nl=1, barrier=True):
        Lp = a.newlabel('Lp'); Lok = a.newlabel('Lok')
        keep = list(a.vm)
        a(f's_cmp_lg_u32 s{sWv}, 0')
        a(f's_cbranch_scc1 {Lok}')
        a.vm_wait('poll')
        a(f's_mov_b32 s{sCnt}, 0')
        a(f's_mov_b64 exec, {(1 << nl) - 1}')
        a.label(Lp)
        a(f'v_cmp_gt_u32 vcc, {expect}, v{vT[1]}')
        a(f's_add_u32 s{sCnt}, s{sCnt}, 1')
        a('s_cmp_eq_u64 vcc, 0')
        a(f's_cbranch_scc1 {Lok}')
        a(f's_cmp_ge_u32 s{sCnt}, 200000')
        a(f's_cbranch_scc1 {Lok}')
        a('s_sleep 1')
        a(f'buffer_load_dword v{vT[1]}, v{vL128}, {WS}, s{sOff} offen offset:{128 * line} sc1')
        a('s_waitcnt vmcnt(0)')
        a(f's_branch {Lp}')
        a.label(Lok)
        a.vm = keep
        a('s_mov_b64 exec, -1')
        if barrier:
            a('s_barrier')

    ZP_IT = E('G_ZPIT', 4)
    aRP = 240

    def zero_check():
        Lp = a.newlabel('Lzp'); Lok = a.newlabel('Lzok')
        a.vm_wait('zpoll')
        keep = list(a.vm)
        a(f's_mov_b32 s{sCnt}, 0')
        a('s_mov_b32 exec_hi, 0')
        a.label(Lp)
        a(f'v_cmp_ne_u32 vcc, 1, v{vT[2]}')
        a(f's_add_u32 s{sCnt}, s{sCnt}, 1')
        a('s_cmp_eq_u64 vcc, 0')
        a(f's_cbranch_scc1 {Lok}')
        a(f's_cmp_ge_u32 s{sCnt}, 200000')
        a(f's_cbranch_scc1 {Lok}')
        a('s_sleep 2')
        a(f'global_load_dword v{vT[2]}, v{t[5]}, s[{P_DBG}:{P_DBG + 1}] sc1')
        a('s_waitcnt vmcnt(0)')
        a(f's_branch {Lp}')
        a.label(Lok)
        a.vm = keep
        a('s_mov_b64 exec, -1')


    ST1, ST2, CSP, AA, BB, QCS, KVA = SA, SA + 512, SA + 1024, SA + 2304, SA + 2560, SA + 2816, SA + 4096
    sg2 = stage_groups(2)
    for g in sg2[:4]:
        emit(g)
    a.stamp(2)
    a.vm_wait('s0', ' lgkmcnt(0)')
    a('s_barrier')
    a.stamp(3)
    for x in reads_kv(0, 0):
        a(x)
    carry = sg2[4:]
    R2_IT = E('G_R2IT', 2)
    rpr = fr[0] + 28
    for it in range(10):
        last = it == 9
        later = list(carry)
        if it == E('G_ZFIT', 2):
            later.append(('zf', 'zf'))
        if it == R2_IT + 1:
            later.append(([f'buffer_store_dwordx4 {R("v", rpr)}, v{vL16}, {WS}, s{sTab + 1} offen sc1'], 'rst'))
        if it == ZP_IT + 1:
            later.append(('zchk', 'zchk'))
        g1 = []
        if last:
            g1 = [[f's_mov_b32 s{sM0}, 0x22222222', f's_mov_b32 s{sM0 + 1}, 0x22222222', f's_mov_b32 s{sM1}, 0x44444444',
                   f's_mov_b32 s{sM1 + 1}, 0x44444444', 's_mov_b32 vcc_lo, 0x88888888', 's_mov_b32 vcc_hi, 0x88888888',
                   f's_lshl_b32 s{sT1}, s{sCh}, 8', f's_lshl_b32 s{sT2}, s{sRh}, 7', f's_add_u32 s{sT1}, s{sT1}, s{sT2}',
                   f's_add_u32 s{sT1}, s{sT1}, {SA}',
                   f'v_lshl_add_u32 v{t[0]}, v{vR}, 2, s{sT1}', f'v_lshl_add_u32 v{t[1]}, v{vG}, 4, s{sT1}']]
            for tr in range(2):
                d = s2 + 4 * tr
                g1.append([f'v_cndmask_b32 v{d}, v{d}, v{d + 1}, s[{sM0}:{sM0 + 1}]',
                           f'v_cndmask_b32 v{d}, v{d}, v{d + 2}, s[{sM1}:{sM1 + 1}]',
                           f'v_cndmask_b32 v{d}, v{d}, v{d + 3}, vcc'])
            w = ['s_mov_b32 exec_lo, 0x00F0000F', 's_mov_b32 exec_hi, 0xF0000F00']
            w += [f'ds_write_b32 v{t[0]}, v{s2 + 4 * tr} offset:{512 + 64 * tr}' for tr in range(2)]
            w += ['s_mov_b32 exec_lo, 0x00010001', 's_mov_b32 exec_hi, 0x00010001']
            w += [f'ds_write_b128 v{t[1]}, {R("v", s1 + 4 * tr)} offset:{64 * tr}' for tr in range(2)]
            w += ['s_mov_b64 exec, -1']
            g1.append(w)
        a('s_waitcnt lgkmcnt(0)')
        zf = [g for g in later if g == ('zf', 'zf')]
        zchk = [g for g in later if g == ('zchk', 'zchk')]
        later = [g for g in later if g not in (('zf', 'zf'), ('zchk', 'zchk'))]
        if last:
            ms = mf_kv(it, 0, True)
            sched(ms[:8], reads_kv(it, 1), later)
            sched(ms[8:], [], g1, start=2)
        else:
            sched(mf_kv(it, 0), reads_kv(it, 1), later)
        if zf:
            Lz = a.newlabel('Lz')
            assert 'z' not in a.vm
            a(f's_cmp_lg_u32 s{sR1}, 0')
            a(f's_cbranch_scc1 {Lz}')
            a(f's_lshl_b32 s{sT1}, s{sHg}, 2')
            a(f's_add_u32 s{sT1}, s{sT1}, s{sWv}')
            a(f's_lshl_b32 s{sT1}, s{sT1}, 2')
            a(f'v_mov_b32 v{t[0]}, s{sT1}')
            a('s_mov_b64 exec, 1')
            keep = list(a.vm)
            a(f'global_store_dword v{t[0]}, v{vOne}, s[{P_DBG}:{P_DBG + 1}] sc1')
            a.vm = keep
            a('s_mov_b64 exec, -1')
            a.label(Lz)
        if it == R2_IT:
            a.vm_wait('r') if 'r' in a.vm else None
        if zchk:
            zero_check()
            assert 'rst' not in a.vm
        if not last:
            need_tag(f's{it + 1}', ' lgkmcnt(0)')
        else:
            a('s_waitcnt lgkmcnt(0)')
        a('s_barrier')
        if zchk:
            a(f's_and_b32 s{sT1}, s2, 7')
            a(f's_lshl_b32 s{sT1}, s{sT1}, 7')
            a(f's_add_u32 s{sT1}, s{sT1}, {FL_RP * 128}')
            a(f's_add_u32 s{sT1}, s{sT1}, s{sFw}')
            publish(sT1, 0, 'rst', barrier=False)
        nx = stage_groups(it + 3)
        h = 4 if it + 3 < 10 else 3
        later = nx[:h]
        carry = nx[h:]
        first = reads_kv(it + 1, 0) if not last else []
        if it == R2_IT:
            later.append([f'ds_read_b64_tr_b16 {R("v", rpr + 2 * j, 2)}, v{vRT} offset:{SA - RB + 512 * j}' for j in range(2)])
        if it == ZP_IT:
            later.append(([f'v_lshlrev_b32 v{t[5]}, 2, v{vL}', 's_mov_b32 exec_hi, 0',
                           f'global_load_dword v{vT[2]}, v{t[5]}, s[{P_DBG}:{P_DBG + 1}] sc1', 's_mov_b64 exec, -1'], 'zpoll'))
        if it == E('G_RPIT', 8):
            later.insert(0, ([f's_add_u32 s{sRpc}, s{sFw}, {FL_RP * 128}', 's_mov_b64 exec, 0xff',
                              f'buffer_load_dword v{vT[1]}, v{vL128}, {WS}, s{sRpc} offen sc1', 's_mov_b64 exec, -1'], 'poll'))
        if last:
            for i in range(4):
                carry.append(([f'buffer_load_dwordx4 {R("a", aRP + 4 * i)}, v{vRP}, s[{sR}:{sR + 3}], s{sTab + 2 + i} offen'], 'r2'))
        if last:
            e = fr[0]
            first = [f'v_lshlrev_b32 v{t[0]}, 2, v{vL}', f'v_add_u32 v{t[0]}, {SA}, v{t[0]}',
                     f'ds_read_b32 v{e}, v{t[0]}', f'ds_read_b32 v{e + 1}, v{t[0]} offset:256',
                     f'ds_read_b32 v{e + 2}, v{t[0]} offset:512', f'ds_read_b32 v{e + 3}, v{t[0]} offset:768']
            sub = Asm()
            sub('s_waitcnt lgkmcnt(0)')
            sub(f'v_add_f32 v{e}, v{e}, v{e + 1}')
            sub(f'v_add_f32 v{e + 2}, v{e + 2}, v{e + 3}')
            sub(f'v_mul_f32 v{e}, 0x3acccccd, v{e}')
            sub(f'v_mul_f32 v{e + 2}, 0x3acccccd, v{e + 2}')
            sub(f'v_fma_f32 v{e + 2}, -v{e}, v{e}, v{e + 2}')
            ln_stats(sub, e, e + 2, e + 1)
            st = [i.text for i in sub.items]
            g2 = []
            while st:
                g2.append(st[:4]); st = st[4:]
            cw = [f's_mul_i32 s{sT1}, s{sRh}, 640', f's_mul_i32 s{sT2}, s{sCh}, 320', f's_add_u32 s{sT1}, s{sT1}, s{sT2}',
                  f's_add_u32 s{sT1}, s{sT1}, {CSP}', f'v_lshl_add_u32 v{t[2]}, v{vR}, 2, s{sT1}', 's_mov_b64 exec, 0xffff']
            cw += [f'ds_write_b32 v{t[2]}, v{cs + 4 * tc} offset:{64 * tc}' for tc in range(5)] + ['s_mov_b64 exec, -1']
            g2.append(cw)
            g2.append([f'ds_write_b32 v{t[0]}, v{e + 1} offset:{AA - SA}', f'ds_write_b32 v{t[0]}, v{e} offset:{BB - SA}'])
            ms = mf_kv(it, 1, True)
            sched(ms[:7], first, later + carry)
            carry = []
            sched(ms[7:], [], g2, start=0)
        else:
            sched(mf_kv(it, 1), first, later)
        lap('K')
    a.stamp(4)
    lap()
    a('s_waitcnt lgkmcnt(0)')
    a('s_barrier')
    ra, rb_, rc = fr[0], fr[0] + 8, fr[0] + 16
    a(f's_lshl_b32 s{sT1}, s{sRh}, 7')
    a(f's_add_u32 s{sT1}, s{sT1}, {AA}')
    a(f'v_lshl_add_u32 v{t[0]}, v{vG}, 4, s{sT1}')
    a(f's_mul_i32 s{sT1}, s{sCh}, 320')
    a(f's_add_u32 s{sT1}, s{sT1}, {CSP}')
    a(f'v_lshl_add_u32 v{t[1]}, v{vR}, 2, s{sT1}')
    for tr in range(2):
        a(f'ds_read_b128 {R("v", ra + 4 * tr)}, v{t[0]} offset:{64 * tr}')
        a(f'ds_read_b128 {R("v", rb_ + 4 * tr)}, v{t[0]} offset:{256 + 64 * tr}')
    for tc in range(5):
        a(f'ds_read_b32 v{rc + 2 * tc}, v{t[1]} offset:{64 * tc}')
        a(f'ds_read_b32 v{rc + 2 * tc + 1}, v{t[1]} offset:{640 + 64 * tc}')
    cp, rpz, ad = fr[1] + 24, fr[1] + 27, fr[1] + 30
    a(f's_mul_i32 s{sT1}, s{sWv}, {2 * KV_HS}')
    a(f's_add_u32 s{sT1}, s{sT1}, {KVA}')
    for tk in range(3):
        a(f'v_add_u32 v{cp + tk}, {16 * tk}, v{vR}')
        a(f'v_subrev_u32 v{t[2]}, 20, v{cp + tk}')
        a(f'v_min_u32 v{cp + tk}, v{cp + tk}, v{t[2]}')
        a(f'v_lshl_add_u32 v{cp + tk}, v{cp + tk}, 2, s{sT1}')
    for tv in range(2, 5):
        x = rpz + tv - 2
        a(f'v_lshlrev_b32 v{x}, 2, v{vG}')
        a(f'v_add_u32 v{x}, {(16 * tv - 40) & 0xffffffff}, v{x}')
        a(f'v_cmp_le_i32 vcc, 20, v{x}')
        a(f'v_mul_i32_i24 v{x}, 80, v{x}')
        a(f'v_add_u32 v{t[2]}, 192, v{x}')
        a(f'v_cndmask_b32 v{x}, v{x}, v{t[2]}, vcc')
    pairs = [(0, 2), (0, 3), (1, 2), (1, 3), (1, 4), (2, 3), (2, 4)]
    for n, (tk, tv) in enumerate(pairs):
        a(f'v_add_u32 v{ad + n}, v{cp + tk}, v{rpz + tv - 2}')
    a(f's_mov_b32 s{sM0}, 0x00ff00ff'); a(f's_mov_b32 s{sM0 + 1}, 0x00ff00ff')
    a('s_waitcnt lgkmcnt(0)')
    for tc in range(5):
        a(f'v_add_f32 v{rc + 2 * tc}, v{rc + 2 * tc}, v{rc + 2 * tc + 1}')
    pk = cs

    def phi_chain(d, u, p):
        return [f'v_pk_mul_f32 {R("v", u, 2)}, {R("v", d, 2)}, {R("v", vC, 2)}',
                f'v_pk_add_f32 {R("v", p, 2)}, {R("v", d, 2)}, {R("v", vC + 2, 2)}',
                f'v_exp_f32 v{u}, v{u}', f'v_exp_f32 v{u + 1}, v{u + 1}',
                f'v_med3_f32 v{u}, v{u}, v{p}, 1.0', f'v_med3_f32 v{u + 1}, v{u + 1}, v{p + 1}, 1.0',
                f'v_pk_add_f32 {R("v", u, 2)}, {R("v", u, 2)}, {R("v", vC + 4, 2)}']

    def weave(chains, k):
        for b in range(0, len(chains), k):
            grp = chains[b:b + k]
            for i in range(max(len(c) for c in grp)):
                for c in grp:
                    if i < len(c):
                        a(c[i])
    chains = []
    for tc in range(5):
        for tr in range(2):
            for h in range(2):
                d = acc + 4 * (tr * 5 + tc) + 2 * h
                w = fr[1] + 6 * (len(chains) % 4)
                c = [f'v_pk_mul_f32 {R("v", w, 2)}, {R("v", rb_ + 4 * tr + 2 * h, 2)}, {R("v", rc + 2 * tc, 2)} op_sel_hi:[1,0]',
                     f'v_pk_fma_f32 {R("v", d, 2)}, {R("v", d, 2)}, {R("v", ra + 4 * tr + 2 * h, 2)}, {R("v", w, 2)}']
                dst = pk + 4 * tc + 2 * tr + h
                if tc <= 2:
                    u, p = w + 2, w + 4
                    c += phi_chain(d, u, p)
                    if tc == 2:
                        c += [f'v_cndmask_b32 v{u}, v{d}, v{u}, s[{sM0}:{sM0 + 1}]', f'v_cndmask_b32 v{u + 1}, v{d + 1}, v{u + 1}, s[{sM0}:{sM0 + 1}]']
                    c.append(f'v_cvt_pk_bf16_f32 v{dst}, v{u}, v{u + 1}')
                else:
                    c.append(f'v_cvt_pk_bf16_f32 v{dst}, v{d}, v{d + 1}')
                chains.append(c)
    lap('F')
    weave(chains, 4)
    lap('F')
    kd = acc
    for n, (tk, tv) in enumerate(pairs):
        a(f'{M16} {R("v", kd + 4 * n)}, {R("v", pk + 4 * tv)}, {R("v", pk + 4 * tk)}, 0')
    for tk in range(3):
        a(f'{M16} {R("v", kd + 28 + 4 * tk)}, {ones}, {R("v", pk + 4 * tk)}, 0')
    for n, (tk, tv) in enumerate(pairs):
        m = lane_mask(lambda g, j: (16 * tk + j) < 40 and 0 <= (16 * tv + 4 * g - 40) and (16 * tk + j) // 20 == (16 * tv + 4 * g - 40) // 20)
        for x in set_exec(m):
            a(x)
        for r in range(4):
            a(f'ds_write_b32 v{ad + n}, v{kd + 4 * n + r} offset:{80 * r}')
    for tk in range(3):
        for hh in range(2):
            m = lane_mask(lambda g, j: g == 0 and (16 * tk + j) < 40 and (16 * tk + j) // 20 == hh)
            if m:
                for x in set_exec(m):
                    a(x)
                a(f'ds_write_b32 v{cp + tk}, v{kd + 28 + 4 * tk} offset:{1600 + hh * KV_HS}')
    a('s_mov_b64 exec, -1')
    lap('F')
    need_tag('s10', ' lgkmcnt(0)')
    lap('F')
    poll_wait(sRpc, 0, 32, nl=8)
    lap('F')
    a(f's_mul_i32 s{sT1}, s{sWv}, {KV_HS}')
    a(f's_add_u32 s{sT2}, s{sT1}, {KVA}')
    a(f'v_add_u32 v{t[1]}, s{sT2}, v{t[5]}')
    kt = acc
    for i in range(7):
        a(f'ds_read_b32 v{kt + i}, v{t[1]} offset:{256 * i}')
        a(f'ds_read_b32 v{kt + 8 + i}, v{t[1]} offset:{256 * i + 4 * KV_HS}')
    a(f's_mul_i32 s{sT2}, s{sHg}, {4 * KV_HS}')
    a(f's_add_u32 s{sT1}, s{sT1}, s{sT2}')
    a(f's_add_u32 s{sT1}, s{sT1}, {KV_OFF}')

    TOFF = (0, 32, 48)

    def reads_q(m):
        f = fr[m & 1]
        n = 10 + (m >> 1)
        lst = []
        for o in range(2):
            b0 = f + 20 * o
            lst += [a_read(b0 + 4 * tr, m, o, tr) for tr in range(2)]
            for tc in range(3):
                for j in range(2):
                    lst.append(f'ds_read_b64_tr_b16 {R("v", b0 + 8 + 4 * tc + 2 * j, 2)}, v{vQ + o} offset:{(n % 3) * 20480 + (m & 1) * 10240 + 1280 * j + TOFF[tc]}')
        return lst

    def mf_q(m):
        f = fr[m & 1]
        lst = []
        for o in range(2):
            b0 = f + 20 * o
            if o == 0:
                for tc in range(3):
                    d = qcs + 4 * tc
                    lst.append(f'{M16} {R("v", d)}, {R("v", b0 + 8 + 4 * tc)}, {ones}, {"0" if m == 0 else R("v", d)}')
            for tc in range(3):
                for tr in range(2):
                    d = qacc + 4 * (tr * 3 + tc)
                    lst.append(f'{M16} {R("v", d)}, {R("v", b0 + 8 + 4 * tc)}, {R("v", b0 + 4 * tr)}, {"0" if m == 0 and o == 0 else R("v", d)}')
        return lst
    a('s_waitcnt lgkmcnt(0)')
    for x in reads_q(0)[:15]:
        a(x)
    for i in range(7):
        a(f'v_add_f32 v{kt + i}, v{kt + i}, v{kt + 8 + i}')
    a(reads_q(0)[15])
    lap('F')
    for i in range(7):
        if i == 6:
            a('s_mov_b32 exec_hi, 0xf')
        a(f'buffer_atomic_add_f32 v{kt + i}, v{t[5]}, {WS}, s{sT1} offen offset:{256 * i}', tag='kva')
    a('s_mov_b64 exec, -1')
    lap('AF')
    p2s = [f's_and_b32 s{sT0}, s2, 7', f's_lshr_b32 s{sT1}, s2, 3', f's_and_b32 s{sJ}, s{sT1}, 15', f's_lshr_b32 s{sT1}, s{sT1}, 4',
           f's_lshl_b32 s{sC}, s{sT0}, 1', f's_add_u32 s{sC}, s{sC}, s{sT1}', f's_and_b32 s{sCg}, s{sJ}, 7', f's_lshr_b32 s{sT1}, s{sJ}, 3',
           f's_lshl_b32 s{sRb}, s{sC}, 1', f's_add_u32 s{sRb}, s{sRb}, s{sT1}']
    sub = Asm()
    cg_blocks(sub, sCg, sPb, sSb, sT0)
    p2s += [i.text for i in sub.items]
    p2s += [f's_lshl_b32 s{sT0}, s{sRb}, 2', f's_add_u32 s{sT0}, s{sT0}, s{sWv}', f's_mul_i32 s{sT1}, s{sT0}, {16 * 1280}',
            f's_lshl_b32 s{sOa}, s{sPb}, 6', f's_add_u32 s{sOa}, s{sOa}, s{sT1}', f's_lshr_b32 s{sT2}, s{sSb}, 1',
            f's_lshl_b32 s{sT2}, s{sT2}, 6', f's_and_b32 s{sT3}, s{sSb}, 1', f's_lshl_b32 s{sT3}, s{sT3}, 3',
            f's_add_u32 s{sT2}, s{sT2}, s{sT3}', f's_add_u32 s{sOb}, s{sT2}, s{sT1}']
    for x in p2s:
        a(x)
    srd(a, sX, P_X, 0, S * D * 2)
    srd(a, sO, P_OUT, 0, S * D * 2)
    aWO = 0
    sWo = sM0
    a(f's_mul_i32 s{sWo}, s{sCg}, 102400')
    a(f's_mul_i32 s{sT2}, s{sWv}, 25600')
    a(f's_add_u32 s{sWo}, s{sWo}, s{sT2}')
    a(f's_add_u32 s{sWo}, s{sWo}, {WOP_OFF}')
    sKvc, sW2b = sM0 + 1, sM1 + 1
    a(f's_lshl_b32 s{sKvc}, s{sHg}, 7')
    a(f's_add_u32 s{sKvc}, s{sKvc}, {FL_KV * 128}')
    a(f's_add_u32 s{sKvc}, s{sKvc}, s{sFw}')
    a(f's_mul_i32 s{sW2b}, s{sCg}, {W2G}')
    a(f's_mul_i32 s{sT0}, s{sWv}, 5120')
    a(f's_add_u32 s{sW2b}, s{sW2b}, s{sT0}')
    a(f's_add_u32 s{sW2b}, s{sW2b}, {W2P_OFF}')

    def wo_groups():
        g = []
        for f in range(25):
            pre = [f's_add_u32 s{sWo}, s{sWo}, 4096'] if f and f % 4 == 0 else []
            g.append((pre + [f'buffer_load_dwordx4 {R("a", aWO + 4 * f)}, v{vL16}, {WS}, s{sWo} offen offset:{1024 * (f & 3)} sc1'], 'wo'))
        return g
    W2R = [('v', Z + 20 * i) for i in range(4)] + [('a', 160 + 20 * i) for i in range(4)] + [('a', 20 * i) for i in range(6)]
    W2L = {8: SA, 9: 0, 10: 20480, 11: 40960} if E('G_W2LDS', 1) else {}

    def w2l_groups(i):
        g = []
        for sg in range(5):
            pre = []
            if sg == 0:
                pre = [f's_add_u32 s{sM2}, s{sW2b}, {20480 * i}', f's_mul_i32 s{sCnt}, s{sWv}, 5120', f's_add_u32 m0, s{sCnt}, {W2L[i]}', 's_nop 0']
            if sg == 4:
                pre = [f's_mul_i32 s{sCnt}, s{sWv}, 5120', f's_add_u32 m0, s{sCnt}, {W2L[i] + 4096}', 's_nop 0']
            v, off = (vL16, 1024 * sg) if sg < 4 else (vL16b, 0)
            g.append((pre + [f'buffer_load_dwordx4 v{v}, {WS}, s{sM2} offen offset:{off} sc1 lds'], f'w2_{i}'))
        return g

    def w2_groups(i):
        f, r = W2R[i]
        g = []
        for sg in range(5):
            pre = []
            if sg == 0:
                pre = [f's_add_u32 s{sM2}, s{sW2b}, {20480 * i}']
                if i == 5:
                    pre += [f's_cmp_ge_u32 s{sWv}, 2', f's_cselect_b32 s{sM2}, 0x{BIG:x}, s{sM2}']
            v, off = (vL16, 1024 * sg) if sg < 4 else (vL16b, 0)
            g.append((pre + [f'buffer_load_dwordx4 {R(f, r + 4 * sg)}, v{v}, {WS}, s{sM2} offen offset:{off} sc1'], f'w2_{i}'))
        return g
    PUB_KV = E('G_PUBKV', 7)
    rq = acc + 16
    RW_M = E('G_RWM', 1)
    wg_ = wo_groups()
    pend += wg_[:E('G_WOQ', 25)]
    wo_late = wg_[E('G_WOQ', 25):]
    carry = []
    for m in range(10):
        a('s_waitcnt lgkmcnt(0)')
        later = list(carry)
        carry = []
        if m & 1:
            n = 10 + (m >> 1)
            if m == PUB_KV and 'kva' in a.vm:
                a.vm_wait('kva')
            if n + 1 <= 14:
                assert not any(g[1] == f's{n + 1}' for g in pend)
                need_tag(f's{n + 1}')
            a('s_barrier')
            if m == PUB_KV:
                publish(sKvc, 0, 'kva', barrier=False)
            if n + 3 <= 14:
                nx = stage_groups(n + 3)
                later += nx[:3]
                carry = nx[3:]
        if m == RW_M:
            if 'r2' in a.vm:
                a.vm_wait('r2')
            later.append([f's_lshl_b32 s{sT1}, s{sWv}, 10', f's_add_u32 s{sT1}, s{sT1}, {KVA}', f'v_add_u32 v{t[3]}, s{sT1}, v{vL16}'])
            for i in range(4):
                later.append([f'ds_write_b128 v{t[3]}, {R("a", aRP + 4 * i)} offset:{4096 * i}'])
        if m == RW_M + 2:
            later.append([f'v_add_u32 v{t[3]}, {KVA - RB}, v{vRT}'])
            for i in range(4):
                later.append([f'ds_read_b64_tr_b16 {R("v", rq + 4 * i + 2 * j, 2)}, v{t[3]} offset:{4096 * i + 512 * j}' for j in range(2)])
        if m == RW_M + 3:
            for i in range(4):
                later.append(([f'buffer_store_dwordx4 {R("v", rq + 4 * i)}, v{vL16}, {WS}, s{sTab + 6 + i} offen sc1'], 'rst2'))
            later.append([f'{M16} {R("v", rq + 16)}, {R("v", rq + 4 * i)}, {ones}, {"0" if i == 0 else R("v", rq + 16)}' for i in range(4)])
        if m == RW_M + 4:
            later.append(([f'v_lshlrev_b32 v{t[4]}, 4, v{vG}', 's_mov_b32 exec_lo, 0x00010001', 's_mov_b32 exec_hi, 0x00010001',
                           f'buffer_store_dwordx4 {R("v", rq + 16)}, v{t[4]}, {WS}, s{sTab + 10} offen sc1', 's_mov_b64 exec, -1'], 'rst2'))
        if m == 9:
            cw = [f's_mul_i32 s{sT1}, s{sRh}, 384', f's_mul_i32 s{sT2}, s{sCh}, 192', f's_add_u32 s{sT1}, s{sT1}, s{sT2}',
                  f's_add_u32 s{sT1}, s{sT1}, {QCS}', f'v_lshl_add_u32 v{t[2]}, v{vG}, 4, s{sT1}',
                  's_mov_b32 exec_lo, 0x00010001', 's_mov_b32 exec_hi, 0x00010001']
            cw += [f'ds_write_b128 v{t[2]}, {R("v", qcs + 4 * tc)} offset:{64 * tc}' for tc in range(3)] + ['s_mov_b64 exec, -1']
        if m >= E('G_WOM', 5):
            k = E('G_QPULL', 5)
            while pend and k > 0:
                later.append(pend.pop(0)); k -= 1
        nxt = reads_q(m + 1) if m < 9 else []
        if m == 9:
            ms = mf_q(m)
            sched(ms[:9], nxt, later)
            sched(ms[9:], [], [cw], start=2)
        else:
            sched(mf_q(m), nxt, later)
        lap('Q')
    lap()
    while pend:
        pull()
    a('s_waitcnt lgkmcnt(0)')
    a('s_barrier')
    kraw = acc
    a(f'v_lshrrev_b32 v{t[0]}, 2, v{vR}')
    a(f'v_and_b32 v{t[1]}, 3, v{vR}')
    a(f'v_mad_u32_u24 v{t[2]}, v{t[0]}, 5, v{t[1]}')
    a(f'v_mul_u32_u24 v{t[2]}, 80, v{t[2]}')
    a(f'v_mad_u32_u24 v{t[3]}, v{t[0]}, 5, 4')
    a(f'v_mov_b32 v{t[4]}, 20')
    a(f'v_cmp_eq_u32 vcc, 1, v{t[1]}')
    a(f'v_cndmask_b32 v{t[3]}, v{t[3]}, v{t[4]}, vcc')
    a(f'v_mul_u32_u24 v{t[3]}, 80, v{t[3]}')
    a(f'v_mov_b32 v{t[4]}, 0x{BIG:x}')
    a(f's_lshl_b32 s{sSB}, s{sHg}, 2')
    a(f's_lshl_b32 s{sT1}, s{sCh}, 1')
    a(f's_add_u32 s{sSB}, s{sSB}, s{sT1}')
    a(f's_mul_i32 s{sSB}, s{sSB}, {KV_HS}')
    a(f's_add_u32 s{sSB}, s{sSB}, {KV_OFF}')
    ka = s1
    for tau in range(2):
        rowok = lambda i: tau == 0 or (i & 3) < 2
        m = lane_mask(lambda g, i: rowok(i))
        a(f'v_lshl_add_u32 v{ka + 4 * tau}, v{vG}, 4, v{t[2 + tau]}')
        a(f's_mov_b32 vcc_lo, 0x{m & 0xffffffff:x}'); a(f's_mov_b32 vcc_hi, 0x{m >> 32:x}')
        a(f'v_cndmask_b32 v{ka + 4 * tau}, v{t[4]}, v{ka + 4 * tau}, vcc')
        for gsel in range(2):
            m = lane_mask(lambda g, i: rowok(i) and g == gsel)
            a(f's_mov_b32 vcc_lo, 0x{m & 0xffffffff:x}'); a(f's_mov_b32 vcc_hi, 0x{m >> 32:x}')
            a(f'v_cndmask_b32 v{ka + 4 * tau + 1 + gsel}, v{t[4]}, v{t[2 + tau]}, vcc')
    ra, rb_, rc = fr[0], fr[0] + 4, fr[0] + 8
    a(f's_lshl_b32 s{sT1}, s{sRh}, 7')
    a(f's_add_u32 s{sT1}, s{sT1}, {AA}')
    a(f'v_lshl_add_u32 v{t[0]}, v{vR}, 2, s{sT1}')
    a(f's_mul_i32 s{sT1}, s{sCh}, 192')
    a(f's_add_u32 s{sT1}, s{sT1}, {QCS}')
    a(f'v_lshl_add_u32 v{t[1]}, v{vG}, 4, s{sT1}')
    for tr in range(2):
        a(f'ds_read_b32 v{ra + 2 * tr}, v{t[0]} offset:{64 * tr}')
        a(f'ds_read_b32 v{rb_ + 2 * tr}, v{t[0]} offset:{256 + 64 * tr}')
    for tc in range(3):
        a(f'ds_read_b128 {R("v", rc + 4 * tc)}, v{t[1]} offset:{64 * tc}')
        a(f'ds_read_b128 {R("v", rc + 12 + 4 * tc)}, v{t[1]} offset:{384 + 64 * tc}')
    a(f's_mul_i32 s{sT1}, s{sRh}, {32 * 160}')
    a(f's_mul_i32 s{sT2}, s{sCh}, 80')
    a(f's_add_u32 s{sT1}, s{sT1}, s{sT2}')
    a(f's_add_u32 s{sT1}, s{sT1}, {KVA}')
    a(f'v_mul_u32_u24 v{t[2]}, 160, v{vR}')
    a(f'v_mad_u32_u24 v{t[3]}, v{vG}, 10, v{t[2]}')
    a(f'v_add_u32 v{t[3]}, s{sT1}, v{t[3]}')
    a(f's_mul_i32 s{sT1}, s{sWv}, {16 * 160}')
    a(f's_add_u32 s{sT1}, s{sT1}, {KVA}')
    a(f'v_lshl_add_u32 v{t[2]}, v{vG}, 4, v{t[2]}')
    a(f'v_add_u32 v{t[2]}, s{sT1}, v{t[2]}')
    vOd = s2
    a(f's_mul_i32 s{sT1}, s{sHg}, 10')
    for u in range(3):
        a(f's_add_u32 s{sT2}, s{sT1}, {4 * u}')
        a(f'v_add_u32 v{t[5]}, s{sT2}, v{vG}')
        a(f'v_lshrrev_b32 v{vOd + u}, 2, v{t[5]}')
        a(f'v_lshlrev_b32 v{vOd + u}, 12, v{vOd + u}')
        a(f'v_and_b32 v{t[5]}, 3, v{t[5]}')
        a(f'v_lshl_add_u32 v{vOd + u}, v{t[5]}, 8, v{vOd + u}')
        a(f'v_lshl_add_u32 v{vOd + u}, v{vR}, 4, v{vOd + u}')
    a(f's_mul_i32 s{sT0}, s{sR1}, {20 * 4096}')
    a(f's_lshl_b32 s{sT1}, s{sWv}, 10')
    a(f's_add_u32 s{sT0}, s{sT0}, s{sT1}')
    if OP_OFF:
        a(f's_add_u32 s{sT0}, s{sT0}, {OP_OFF}')
    a('s_waitcnt lgkmcnt(0)')
    for k in range(6):
        a(f'v_pk_add_f32 {R("v", rc + 2 * k, 2)}, {R("v", rc + 2 * k, 2)}, {R("v", rc + 12 + 2 * k, 2)}')
    pq = cs
    chains = []
    for tr in range(2):
        for tc in range(3):
            for h in range(2):
                d = qacc + 4 * (tr * 3 + tc) + 2 * h
                w = fr[1] + 6 * (len(chains) % 4)
                c = [f'v_pk_mul_f32 {R("v", w, 2)}, {R("v", rc + 4 * tc + 2 * h, 2)}, {R("v", rb_ + 2 * tr, 2)} op_sel_hi:[1,0]',
                     f'v_pk_fma_f32 {R("v", d, 2)}, {R("v", d, 2)}, {R("v", ra + 2 * tr, 2)}, {R("v", w, 2)} op_sel_hi:[1,0,1]']
                c += phi_chain(d, w + 2, w + 4)
                c.append(f'v_cvt_pk_bf16_f32 v{pq + 8 * tr + 2 * tc + h}, v{w + 2}, v{w + 3}')
                chains.append(c)
    weave(chains, 4)
    lap('F')
    poll_issue(sKvc, 0)
    if 'rst2' in a.vm:
        a.vm_wait('rst2')
    lap('F')
    poll_wait(sKvc, 0, 32)
    lap('AF')
    for tau in range(2):
        b = kraw + 8 * tau
        a(f'buffer_load_dwordx4 {R("v", b)}, v{ka + 4 * tau}, {WS}, s{sSB} offen sc1', tag='kvl')
        a(f'buffer_load_dwordx4 {R("v", b + 4)}, v{ka + 4 * tau + 1}, {WS}, s{sSB} offen offset:64 sc1', tag='kvl')
        b = kraw + 16 + 8 * tau
        a(f'buffer_load_dwordx4 {R("v", b)}, v{ka + 4 * tau + 2}, {WS}, s{sSB} offen offset:{KV_HS} sc1', tag='kvl')
        a(f'buffer_load_dwordx4 {R("v", b + 4)}, v{ka + 4 * tau}, {WS}, s{sSB} offen offset:{KV_HS + 16} sc1', tag='kvl')
    a(f's_and_b32 s{sT1}, s2, 7')
    a(f's_lshl_b32 s{sT1}, s{sT1}, 7')
    a(f's_add_u32 s{sT1}, s{sT1}, s{sRpc}')
    publish(sT1, FL_RP2 - FL_RP, 'rst2', barrier=False)
    if E('G_MAP3', 1):
        a(f's_and_b32 s{sT1}, s2, 7')
        a(f's_lshr_b32 s{sT2}, s2, 3')
        a(f's_lshr_b32 s{sC3}, s{sT1}, 1')
        a(f's_lshl_b32 s{sC3}, s{sC3}, 2')
        a(f's_lshr_b32 s{sT3}, s{sT2}, 3')
        a(f's_add_u32 s{sC3}, s{sC3}, s{sT3}')
        a(f's_and_b32 s{sT1}, s{sT1}, 1')
        a(f's_lshl_b32 s{sT1}, s{sT1}, 3')
        a(f's_and_b32 s{sT2}, s{sT2}, 7')
        a(f's_add_u32 s{sJ}, s{sT1}, s{sT2}')
    else:
        a(f's_mov_b32 s{sC3}, s{sC}')
    a(f's_lshl_b32 s{sF3}, s{sC3}, 9')
    a(f's_add_u32 s{sF3}, s{sF3}, s{sFw}')
    a(f's_lshl_b32 s{sW1m}, s{sWv}, 12')
    a(f's_mul_i32 s{sW1}, s{sJ}, 143360')
    a(f's_add_u32 s{sW1}, s{sW1}, s{sW1m}')
    a(f's_add_u32 s{sW1}, s{sW1}, {W1P_OFF}')

    def w1_groups(lo, hi, tag):
        g = []
        off = lo
        while off + 16384 <= hi:
            for i in range(4):
                pre = [f's_add_u32 m0, s{sW1m}, {off}', f's_add_u32 s{sM2 + 1}, s{sW1}, {off}'] if i == 0 else []
                g.append((pre + [f'buffer_load_dwordx4 v{vL16}, {WS}, s{sM2 + 1} offen offset:{1024 * i} sc1 lds'], tag))
            off += 16384
        while off < hi:
            g.append(([f's_lshl_b32 s{sCnt}, s{sWv}, 10', f's_add_u32 m0, s{sCnt}, {off}', f's_sub_u32 s{sM2 + 1}, s{sW1}, s{sW1m}',
                       f's_add_u32 s{sM2 + 1}, s{sM2 + 1}, s{sCnt}', f's_add_u32 s{sM2 + 1}, s{sM2 + 1}, {off}',
                       f'buffer_load_dwordx4 v{vL16}, {WS}, s{sM2 + 1} offen sc1 lds'], tag))
            off += 4096
        return g
    a.vm_wait('kvl')
    lap('F')
    kT = fr[0]
    for k in range(16):
        a(f'v_cvt_pk_bf16_f32 v{kT + k}, v{kraw + 2 * k}, v{kraw + 2 * k + 1}')
    od = acc
    for tr in range(2):
        for hd in range(2):
            for tau in range(2):
                d = od + 16 * tr + 8 * hd + 4 * tau
                a(f'{M16} {R("v", d)}, {R("v", kT + 8 * hd + 4 * tau)}, {R("v", pq + 8 * tr + 2 * hd)}, 0')
    chains = []
    for tr in range(2):
        for hd in range(2):
            d = od + 16 * tr + 8 * hd
            c = [f'v_add_f32 v{d + 6}, 0x358637bd, v{d + 5}', f'v_rcp_f32 v{d + 6}, v{d + 6}']
            c += [f'v_mul_f32 v{d + k}, v{d + k}, v{d + 6}' for k in range(5)]
            c += [f'v_cvt_pk_bf16_f32 v{d}, v{d}, v{d + 1}', f'v_cvt_pk_bf16_f32 v{d + 2}, v{d + 2}, v{d + 3}',
                  f'v_cvt_pk_bf16_f32 v{d + 4}, v{d + 4}, v{d + 4}']
            o = 2560 * tr + 40 * hd
            c += [f'ds_write_b16 v{t[3]}, v{d} offset:{o}', f'ds_write_b16_d16_hi v{t[3]}, v{d} offset:{o + 2}',
                  f'ds_write_b16 v{t[3]}, v{d + 2} offset:{o + 4}', f'ds_write_b16_d16_hi v{t[3]}, v{d + 2} offset:{o + 6}',
                  f'ds_write_b16 v{t[3]}, v{d + 4} offset:{o + 8}']
            chains.append(c)
    weave(chains, 4)
    a('s_waitcnt lgkmcnt(0)')
    a('s_barrier')
    ob = fr[1]
    for u in range(3):
        a(f'ds_read_b128 {R("v", ob + 4 * u)}, v{t[2]} offset:{64 * u}')
    a('s_waitcnt lgkmcnt(0)')
    for u in range(3):
        if u == 2:
            a('s_mov_b32 exec_hi, 0')
        a(f'buffer_store_dwordx4 {R("v", ob + 4 * u)}, v{vOd + u}, {WS}, s{sT0} offen sc1', tag='ost')
    a('s_mov_b64 exec, -1')
    lap()
    vXo = hres + 10
    a(f'v_mul_u32_u24 v{vXo}, 1280, v{vR}')
    a(f'v_lshl_add_u32 v{vXo}, v{vG}, 4, v{vXo}')
    sx = f's[{sX}:{sX + 3}]'
    mid = [([f'buffer_load_dwordx4 {R("v", hres)}, v{vXo}, {sx}, s{sOa} offen'], 'x'),
           ([f'buffer_load_dwordx4 {R("v", hres + 4)}, v{vXo}, {sx}, s{sOa} offen offset:64'], 'x'),
           ([f'buffer_load_dwordx2 {R("v", hres + 8, 2)}, v{vXo}, {sx}, s{sOb} offen'], 'x')]
    mid += wo_late
    nb4 = min(len(mid), E('G_NB4', 8))
    for g in mid[:nb4]:
        emit(g)
    a(f's_lshl_b32 s{sT1}, s{sR1}, 7')
    a(f's_add_u32 s{sT1}, s{sT1}, {FL_O * 128}')
    a(f's_add_u32 s{sT1}, s{sT1}, s{sFw}')
    poll_issue(sRpc, FL_RP2 - FL_RP, 8)
    publish(sT1, 0, 'ost')
    lap()
    for g in mid[nb4:]:
        emit(g)
    poll_wait(sRpc, FL_RP2 - FL_RP, 32, nl=8)
    W1E = E('G_W1E', 48) * 1024
    for g in w1_groups(0, W1E, 'w1e'):
        emit(g)
    a(f's_lshl_b32 s{sT1}, s{sRb}, 7')
    a(f's_add_u32 s{sT1}, s{sT1}, {FL_O * 128}')
    a(f's_add_u32 s{sT1}, s{sT1}, s{sFw}')
    poll_issue(sT1, 0)
    a(f's_lshl_b32 s{sFc}, s{sC}, 9')
    a(f's_add_u32 s{sFc}, s{sFc}, s{sFw}')
    vR4 = [Y + 68, Y + 69, Y + 70, Y + 71]
    vAo = vR4
    vRW = Y + 60
    for i in range(4):
        a(f's_add_u32 s{sT2}, s{sWv}, {1 + i}')
        a(f's_and_b32 s{sT2}, s{sT2}, 3')
        a(f's_lshl_b32 s{sT3}, s{sT2}, 10')
        a(f'v_add_u32 v{vAo[i]}, s{sT3}, v{vL16}')
        if i < 3:
            a(f's_mul_i32 s{sT2}, s{sT2}, 15360')
            a(f's_add_u32 s{sT2}, s{sT2}, {P2L + 5120 * i}')
            a(f'v_add_u32 v{vRW + i}, s{sT2}, v{vL16}')
    a(f's_mul_i32 s{sA}, s{sRb}, {20 * 4096}')
    a(f's_mul_i32 s{sT2}, s{sWv}, {5 * 4096}')
    a(f's_add_u32 s{sA}, s{sA}, s{sT2}')
    if OP_OFF:
        a(f's_add_u32 s{sA}, s{sA}, {OP_OFF}')
    poll_wait(sT1, 0, 8)
    lap()
    acc = X
    for i in range(4):
        for m in range(5):
            a(f's_add_u32 s{sT2}, s{sA}, {4096 * m}')
            a(f'buffer_load_dwordx4 {R("v", Z + 20 * i + 4 * m)}, v{vAo[i]}, {WS}, s{sT2} offen sc1', tag=f'o{i}')
    W1M = E('G_W1M', 100) * 1024
    pend += w1_groups(W1E, W1M, 'w1m')
    w2next = [4, 5, 6, 7, 0, 1, 2, 3]
    for i in w2next[:E('G_NW2P2', 2)]:
        pend += w2_groups(i)
    w2next = w2next[E('G_NW2P2', 2):]
    w2next.sort()

    def send(i, base):
        return [f'ds_write_b128 v{base + i}, {R("v", acc + 20 * i + 4 * sg)} offset:{1024 * sg}' for sg in range(5)]
    sq = []
    for i in range(4):
        if f'o{i}' in a.vm:
            a.vm_wait(f'o{i}')
        k = 0
        for m in range(5):
            for sg in range(5):
                d = acc + 20 * i + 4 * sg
                a(f'{M16} {R("v", d)}, {R("a", aWO + 4 * (5 * m + sg))}, {R("v", Z + 20 * i + 4 * m)}, {"0" if m == 0 else R("v", d)}')
                k += 1
                if sq and k >= 4 and k % 3 == 0:
                    a(sq.pop(0))
                if k % E('G_P2PULL', 4) == 2:
                    pull()
        assert not sq
        if i < 3:
            sq = send(i, vRW)
    while pend:
        pull()
    lap()

    def reduce_own(base):
        a('s_waitcnt lgkmcnt(0)')
        a('s_barrier')
        a(f's_mul_i32 s{sT0}, s{sWv}, 15360')
        a(f's_add_u32 s{sT0}, s{sT0}, {base}')
        a(f'v_add_u32 v{vT[0]}, s{sT0}, v{vL16}')
        for k in range(15):
            a(f'ds_read_b128 {R("v", acc + 4 * k)}, v{vT[0]} offset:{1024 * k}')
        own = acc + 60
        for p in range(3):
            a(f's_waitcnt lgkmcnt({10 - 5 * p})')
            for k in range(10):
                a(f'v_pk_add_f32 {R("v", own + 2 * k, 2)}, {R("v", own + 2 * k, 2)}, {R("v", acc + 20 * p + 2 * k, 2)}')
        return own

    def residual(own, out, tmp):
        chains = []
        for i in range(10):
            q = tmp + 6 * (i % 4)
            chains.append([f'v_cvt_pk_bf16_f32 v{q + 4}, v{own + 2 * i}, v{own + 2 * i + 1}',
                           f'v_lshlrev_b32 v{q + 2}, 16, v{hres + i}',
                           f'v_and_b32 v{q + 3}, 0xffff0000, v{hres + i}',
                           f'v_lshlrev_b32 v{q}, 16, v{q + 4}',
                           f'v_and_b32 v{q + 1}, 0xffff0000, v{q + 4}',
                           f'v_pk_add_f32 {R("v", q, 2)}, {R("v", q, 2)}, {R("v", q + 2, 2)}',
                           f'v_cvt_pk_bf16_f32 v{out + i}, v{q}, v{q + 1}'])
        weave(chains, 4)

    a(f's_lshl_b32 s{sT3}, s{sRb}, 2')
    a(f's_add_u32 s{sT3}, s{sT3}, s{sWv}')
    a(f's_lshr_b32 s{sT1}, s{sT3}, 1')
    a(f's_mul_i32 s{sT1}, s{sT1}, 40960')
    a(f's_and_b32 s{sT2}, s{sT3}, 1')
    a(f's_lshl_b32 s{sT2}, s{sT2}, 10')
    a(f's_add_u32 s{sT1}, s{sT1}, s{sT2}')
    a(f's_add_u32 s{sT1}, s{sT1}, {HP_OFF}')
    a(f's_lshl_b32 s{sA}, s{sPb}, 11')
    a(f's_add_u32 s{sA}, s{sA}, s{sT1}')
    a(f's_lshr_b32 s{sB}, s{sSb}, 1')
    a(f's_lshl_b32 s{sB}, s{sB}, 11')
    a(f's_and_b32 s{sT2}, s{sSb}, 1')
    a(f's_lshl_b32 s{sT2}, s{sT2}, 3')
    a(f's_add_u32 s{sB}, s{sB}, s{sT2}')
    a(f's_add_u32 s{sB}, s{sB}, s{sT1}')
    a(f's_lshl_b32 s{sT1}, s{sT3}, 10')
    a(f's_lshr_b32 s{sT2}, s{sCg}, 1')
    a(f's_lshl_b32 s{sT2}, s{sT2}, 8')
    a(f's_add_u32 s{sT1}, s{sT1}, s{sT2}')
    a(f's_and_b32 s{sT2}, s{sCg}, 1')
    a(f's_lshl_b32 s{sT2}, s{sT2}, 3')
    a(f's_add_u32 s{sT1}, s{sT1}, s{sT2}')
    a(f's_add_u32 s{sT1}, s{sT1}, {ST_OFF}')
    own = reduce_own(P2L)
    tmpk = Y
    residual(own, hres, tmpk)
    a(f'buffer_store_dwordx4 {R("v", hres)}, v{vL16}, {WS}, s{sA} offen sc1', tag='hst')
    a(f'buffer_store_dwordx4 {R("v", hres + 4)}, v{vL16}, {WS}, s{sA} offen offset:2048 sc1', tag='hst')
    a(f'buffer_store_dwordx2 {R("v", hres + 8, 2)}, v{vL16}, {WS}, s{sB} offen sc1', tag='hst')
    hf_ = acc
    for i in range(10):
        a(f'v_lshlrev_b32 v{hf_ + 2 * i}, 16, v{hres + i}')
        a(f'v_and_b32 v{hf_ + 2 * i + 1}, 0xffff0000, v{hres + i}')
    sm = tmpk
    a(f'v_pk_add_f32 {R("v", sm + 2, 2)}, {R("v", hf_, 2)}, {R("v", hf_ + 2, 2)}')
    a(f'v_pk_mul_f32 {R("v", sm + 4, 2)}, {R("v", hf_, 2)}, {R("v", hf_, 2)}')
    a(f'v_pk_mul_f32 {R("v", sm + 6, 2)}, {R("v", hf_ + 2, 2)}, {R("v", hf_ + 2, 2)}')
    for i in range(2, 10):
        d = sm + 4 + 2 * (i & 1)
        a(f'v_pk_add_f32 {R("v", sm + 2, 2)}, {R("v", sm + 2, 2)}, {R("v", hf_ + 2 * i, 2)}')
        a(f'v_pk_fma_f32 {R("v", d, 2)}, {R("v", hf_ + 2 * i, 2)}, {R("v", hf_ + 2 * i, 2)}, {R("v", d, 2)}')
    a(f'v_pk_add_f32 {R("v", sm + 4, 2)}, {R("v", sm + 4, 2)}, {R("v", sm + 6, 2)}')
    a(f'v_add_f32 v{sm}, v{sm + 2}, v{sm + 3}')
    a(f'v_add_f32 v{sm + 1}, v{sm + 4}, v{sm + 5}')
    s1_, s2_ = Asm(), Asm()
    xsum_g(s1_, sm, sm + 2)
    xsum_g(s2_, sm + 1, sm + 3)
    for x, y in zip(s1_.items, s2_.items):
        a(x.text); a(y.text)
    a('s_mov_b64 exec, 0xffff')
    a(f'buffer_store_dwordx2 {R("v", sm, 2)}, v{vL16}, {WS}, s{sT1} offen sc1', tag='hst')
    a('s_mov_b64 exec, -1')
    lap('B')
    acc3, otmp = X, X + 56
    fb = [Y, Y + 16]
    vCs, vSt, ab = Y + 32, Y + 60, Y + 60
    csg = []
    for sg in range(7):
        pre = []
        if sg == 0:
            pre = [f'v_and_b32 v{vT[0]}, 7, v{vL}', f'v_cmp_gt_u32 vcc, 5, v{vT[0]}', f'v_mul_u32_u24 v{vT[0]}, 7168, v{vT[0]}',
                   f'v_lshl_add_u32 v{vT[0]}, v{vG}, 4, v{vT[0]}', f'v_mov_b32 v{vT[2]}, 0x{BIG:x}', f'v_cndmask_b32 v{vT[0]}, v{vT[2]}, v{vT[0]}, vcc',
                   f's_mul_i32 s{sT0}, s{sJ}, 448', f's_add_u32 s{sT0}, s{sT0}, {CS1_OFF}']
        csg.append((pre + [f'buffer_load_dwordx4 {R("v", vCs + 4 * sg)}, v{vT[0]}, {WS}, s{sT0} offen offset:{64 * sg} sc1'], 'cs'))
    for g in csg + w1_groups(W1M, 102400, 'w1m'):
        emit(g)
    publish(sFc, 0, 'hst')
    lap()
    mid = w1_groups(102400, 143360, 'w1l')
    NW2S = E('G_NW2S', 2)
    for i in w2next[:NW2S]:
        mid += w2_groups(i)
    w2next = w2next[NW2S:]
    for g in mid:
        emit(g)
    poll_issue(sF3, 0)
    a(f's_lshl_b32 s{sT0}, s{sC3}, 2')
    a(f's_add_u32 s{sT0}, s{sT0}, s{sWv}')
    a(f's_mul_i32 s{sA}, s{sT0}, 40960')
    a(f's_add_u32 s{sA}, s{sA}, {HP_OFF}')
    a(f's_lshl_b32 s{sT0}, s{sT0}, 11')
    a(f's_add_u32 s{sT0}, s{sT0}, {ST_OFF}')
    vBa = [vL16, vT[2], hres + 10]
    a(f'v_add_u32 v{vT[2]}, {65536}, v{vL16}')
    a(f'v_add_u32 v{hres + 10}, {131072}, v{vL16}')
    a(f's_lshl_b32 s{sT2}, s{sC3}, 1')
    a(f's_lshr_b32 s{sT3}, s{sWv}, 1')
    a(f's_add_u32 s{sT2}, s{sT2}, s{sT3}')
    a(f's_mul_i32 s{sH}, s{sT2}, {H1G}')
    a(f's_and_b32 s{sT3}, s{sWv}, 1')
    a(f's_lshl_b32 s{sT3}, s{sT3}, 11')
    a(f's_add_u32 s{sH}, s{sH}, s{sT3}')
    a(f's_add_u32 s{sH}, s{sH}, {H1P_OFF}')
    a(f's_lshr_b32 s{sHs}, s{sJ}, 3')
    a(f's_mul_i32 s{sHs}, s{sHs}, 3')
    a(f's_and_b32 s{sT2}, s{sJ}, 7')
    a(f's_lshr_b32 s{sT3}, s{sT2}, 1')
    a(f's_add_u32 s{sHs}, s{sHs}, s{sT3}')
    a(f's_lshl_b32 s{sHs}, s{sHs}, 12')
    a(f's_and_b32 s{sT3}, s{sJ}, 1')
    a(f's_lshl_b32 s{sT3}, s{sT3}, 3')
    a(f's_add_u32 s{sHs}, s{sHs}, s{sT3}')
    a(f's_add_u32 s{sHs}, s{sHs}, s{sH}')
    a(f's_add_u32 s{sHs}, s{sHs}, {16 * 4096}')
    a(f's_cmp_ge_u32 s{sT2}, 6')
    a(f's_cselect_b32 s{sHs}, 0x{BIG:x}, s{sHs}')
    a(f's_lshl_b32 s{sT2}, s{sJ}, 12')
    a(f's_add_u32 s{sH}, s{sH}, s{sT2}')
    a(f's_mul_i32 s{sA4}, s{sRb}, {H1G}')
    a(f's_lshl_b32 s{sT2}, s{sWv}, 12')
    a(f's_add_u32 s{sA4}, s{sA4}, s{sT2}')
    a(f's_add_u32 s{sA4}, s{sA4}, {H1P_OFF}')
    a.vm_wait('w1l')
    poll_wait(sF3, 0, 16)
    lap()

    def a3_groups():
        g = [([f'buffer_load_dwordx4 {R("v", vSt)}, v{vL16}, {WS}, s{sT0} offen sc1'], 'st'),
             ([f'buffer_load_dwordx4 {R("v", vSt + 4)}, v{vL16}, {WS}, s{sT0} offen offset:1024 sc1'], 'st')]
        for f in range(40):
            pre = [f's_add_u32 s{sA}, s{sA}, 4096'] if f and f % 4 == 0 else []
            g.append((pre + [f'buffer_load_dwordx4 {R("a", 4 * f)}, v{vL16}, {WS}, s{sA} offen offset:{1024 * (f & 3)} sc1'], f'h{f // 2}'))
        return g
    pend += a3_groups()
    for i in w2next:
        pend += w2_groups(i)
    if W2L:
        pend += w2l_groups(8)
    pull(E('G_H0', 18))
    PART = {0: ([0, 1, 6], 0, 3072), 1: ([2, 3], 61440, 2048), 2: ([4, 5], 102400, 2048)}

    def steps(part):
        sl = PART[part][0]
        if part == 0:
            return [[(ks, q, s_) for q, s_ in enumerate(sl)] for ks in range(20)]
        return [[(ks, q, s_) for ks in (2 * m, 2 * m + 1) for q, s_ in enumerate(sl)] for m in range(10)]
    allsteps = [(p, st) for p in range(3) for st in steps(p)]

    def breads(n):
        p, st = allsteps[n]
        f = fb[n & 1]
        out = []
        for k, (ks, q, s_) in enumerate(st):
            o = PART[p][1] + ks * PART[p][2] + 1024 * q
            out.append(f'ds_read_b128 {R("v", f + 4 * k)}, v{vBa[o >> 16]} offset:{o & 0xffff}')
        return out

    def mf3(n):
        p, st = allsteps[n]
        f = fb[n & 1]
        lst = []
        for k, (ks, q, s_) in enumerate(st):
            for t_ in range(2):
                d = acc3 + 28 * t_ + 4 * s_
                c = '0' if ks == 0 else R('v', d)
                lst.append(f'{M16} {R("v", d)}, {R("v", f + 4 * k)}, {R("a", 8 * ks + 4 * t_)}, {c}')
        return lst

    dpp = [f'v_add_f32_dpp v{vCs + r}, v{vCs + r}, v{vCs + r} quad_perm:[1,0,3,2] row_mask:0xf bank_mask:0xf' for r in range(28)]
    dpp += [f'v_add_f32_dpp v{vCs + r}, v{vCs + r}, v{vCs + r} quad_perm:[2,3,0,1] row_mask:0xf bank_mask:0xf' for r in range(28)]
    dpp += [f'v_add_f32_dpp v{vCs + r}, v{vCs + r}, v{vCs + r} row_half_mirror row_mask:0xf bank_mask:0xf' for r in range(28)]
    sub = Asm()
    for t_ in range(2):
        s_ = vSt + 4 * t_
        m, v, x = otmp + 4 * t_ + 2, otmp + 8 + 2 * t_, otmp + 9 + 2 * t_
        sub(f'v_add_f32 v{m}, v{s_}, v{s_ + 2}')
        sub(f'v_add_f32 v{v}, v{s_ + 1}, v{s_ + 3}')
        xsum_g(sub, m, x)
        xsum_g(sub, v, x)
        sub(f'v_mul_f32 v{m}, 0x3acccccd, v{m}')
        sub(f'v_mul_f32 v{v}, 0x3acccccd, v{v}')
        sub(f'v_fma_f32 v{v}, -v{m}, v{m}, v{v}')
        ln_stats(sub, m, v, otmp + 4 * t_)
        sub(f'v_mov_b32 v{ab + 4 * t_}, v{otmp + 4 * t_}')
        sub(f'v_mov_b32 v{ab + 4 * t_ + 1}, v{m}')
    half_n = len(sub.items) // 2
    stl = [None] * len(sub.items)
    stl[0::2] = [i.text for i in sub.items[:half_n]]
    stl[1::2] = [i.text for i in sub.items[half_n:]]

    def epi_tile(t_, sg, ob):
        lst = []
        d = acc3 + 28 * t_ + 4 * sg
        for r in range(4):
            lst.append(f'v_mul_f32 v{d + r}, v{d + r}, v{ab + 4 * t_}')
        for r in range(4):
            lst.append(f'v_fmac_f32 v{d + r}, v{vCs + 4 * sg + r}, v{ab + 4 * t_ + 1}')
        for h in range(2):
            lst.append(f'v_cvt_pk_bf16_f32 v{ob + h}, v{d + 2 * h}, v{d + 2 * h + 1}')
        for h in range(2):
            lst.append(f'v_pk_max_i16 v{ob + h}, v{ob + h}, v{vZero}')
        return lst

    def epi_part(p):
        out = []
        base = otmp + (0, 12, 0)[p]
        if p:
            out.append(f's_add_u32 s{sH}, s{sH}, {(24 if p == 1 else 16) * 4096}')
        for t_ in range(2):
            ob = base + 4 * t_
            out += epi_tile(t_, 2 * p, ob) + epi_tile(t_, 2 * p + 1, ob + 2)
            out.append(('vm', f'buffer_store_dwordx4 {R("v", ob)}, v{vL16}, {WS}, s{sH} offen offset:{1024 * t_} sc1', f'h1_{p}'))
        if p == 0:
            for t_ in range(2):
                ob = base + 8 + 2 * t_
                out += epi_tile(t_, 6, ob)
                out.append(('vm', f'buffer_store_dwordx2 {R("v", ob, 2)}, v{vL16}, {WS}, s{sHs} offen offset:{1024 * t_} sc1', 'h1_0'))
        return out

    AR = [('a', 240), ('a', 120), ('a', 136), ('v', Y), ('v', Y + 16), ('v', Y + 32), ('v', Y + 48)]
    NR_ = len(AR)

    def a4_groups(i):
        f, r = AR[i % NR_]
        g = []
        for t_ in range(4):
            pre = []
            if t_ == 0:
                pre = [f's_add_u32 s{sA}, s{sA4}, {16384 * i}']
                if i == 5:
                    pre += [f's_cmp_ge_u32 s{sWv}, 2', f's_cselect_b32 s{sA}, 0x{BIG:x}, s{sA}']
            g.append((pre + [f'buffer_load_dwordx4 {R(f, r + 4 * t_)}, v{vAo[t_]}, {WS}, s{sA} offen sc1'], f'a{i}'))
        return g

    for x in breads(0):
        a(x)
    side = list(dpp)
    PUB_A, POLL_A, PUB_B = E('G_PUBA', 31), E('G_POLLA', 38), E('G_PUBB', 39)
    NS_ = len(allsteps)
    for n in range(NS_):
        p, st = allsteps[n]
        if p == 0:
            need_tag(f'h{n}')
            if n == 6:
                side += stl
        if n == 20:
            while side:
                a(side.pop(0))
            lap()
            side = epi_part(0)
        if n == 30:
            assert not side
            side = epi_part(1)
        if n % 3 == 0:
            lap('E')
        a('s_waitcnt lgkmcnt(0)')
        nxt = breads(n + 1) if n + 1 < NS_ else []
        ms = mf3(n)
        for k, m in enumerate(ms):
            a(m)
            cnt = 2
            if nxt:
                a(nxt.pop(0))
                cnt = 1
            elif pend and k >= len(ms) - E('G_P3PULL', 2):
                pull()
                cnt = 0
            for _ in range(cnt):
                if side:
                    x = side.pop(0)
                    if isinstance(x, tuple):
                        a(x[1], tag=x[2])
                    else:
                        a(x)
        if n == PUB_A:
            lap('C')
            publish(sF3, 1, 'h1_0')
            lap('C')
            if W2L:
                pend += w2l_groups(9) + w2l_groups(10) + w2l_groups(11)
        if n == POLL_A:
            while pend:
                pull()
            poll_issue(sFc, 1)
        if n == PUB_B:
            assert not side
            lap('C')
            publish(sF3, 2, 'h1_1')
    lap()
    poll_wait(sFc, 1, 16)
    lap()
    for i in range(5):
        for g in a4_groups(i):
            emit(g)
    for x in epi_part(2):
        if isinstance(x, tuple):
            a(x[1], tag=x[2])
        else:
            a(x)
    acc4 = X
    pend += a4_groups(5)
    w2late = [i for i in range(8, 14) if i not in W2L]
    for i in w2late[:2]:
        pend += w2_groups(i)
    vWl = [vT[0], vT[2]]
    a(f's_mul_i32 s{sT0}, s{sWv}, 5120')
    a(f'v_add_u32 v{vWl[0]}, s{sT0}, v{vL16}')
    a(f'v_add_u32 v{vWl[1]}, {SA}, v{vWl[0]}')
    PUB_C, POLL_B, POLL_C = E('G_PUBC', 1), E('G_POLLB', 1), E('G_POLLC', 5)
    avail, nexta = 6, 6
    for i in range(14):
        need_tag(f'a{i}')
        need_tag(f'w2_{i}')
        if i in W2L:
            a('s_waitcnt lgkmcnt(0)')
        lrd = []
        if i + 2 in W2L:
            need_tag(f'w2_{i + 2}')
            o_ = W2L[i + 2]
            lrd = [f'ds_read_b128 {R("a", W2R[i + 2][1] + 4 * sg)}, v{vWl[o_ >= SA]} offset:{(o_ - SA if o_ >= SA else o_) + 1024 * sg}' for sg in range(5)]
        lap('D')
        fa, ra_ = AR[i % NR_]
        fw, rw = W2R[i]
        k = 0
        for t_ in range(4):
            for sg in range(5):
                d = acc4 + 20 * t_ + 4 * sg
                c = '0' if i == 0 else R('v', d)
                a(f'{M16} {R("v", d)}, {R(fw, rw + 4 * sg)}, {R(fa, ra_ + 4 * t_)}, {c}')
                k += 1
                if k % 2 == 0:
                    pull()
                elif lrd:
                    a(lrd.pop(0))
        if i == PUB_C:
            publish(sF3, 3, 'h1_2')
        if i in (POLL_B, POLL_C):
            poll_issue(sFc, 2 if i == POLL_B else 3)
        if i in (POLL_B + 1, POLL_C + 1):
            poll_wait(sFc, 2 if i == POLL_B + 1 else 3, 16)
            avail += 4
        newa = []
        while nexta < avail and nexta <= i + NR_:
            newa += a4_groups(nexta)
            nexta += 1
        k_ = 0
        while k_ < len(pend) and not (pend[k_][1].startswith('w2') and len(pend[k_][0]) > 1):
            k_ += 1
        pend[k_:k_] = newa
        if i == POLL_B + 1:
            for q in w2late[2:]:
                pend += w2_groups(q)
    assert not pend
    lap()
    vRW = Y
    for i in range(3):
        a(f's_add_u32 s{sT0}, s{sWv}, {1 + i}')
        a(f's_and_b32 s{sT0}, s{sT0}, 3')
        a(f's_mul_i32 s{sT0}, s{sT0}, 15360')
        a(f's_add_u32 s{sT0}, s{sT0}, {61440 + 5120 * i}')
        a(f'v_add_u32 v{vRW + i}, s{sT0}, v{vL16}')
    for i in range(3):
        for x in send(i, vRW):
            a(x)
    vXo = vT[2]
    a(f'v_mul_u32_u24 v{vXo}, 1280, v{vR}')
    a(f'v_lshl_add_u32 v{vXo}, v{vG}, 4, v{vXo}')
    own = reduce_own(61440)
    outr = Y + 8
    residual(own, outr, Y + 24)
    so = f's[{sO}:{sO + 3}]'
    a(f'buffer_store_dwordx4 {R("v", outr)}, v{vXo}, {so}, s{sOa} offen')
    a(f'buffer_store_dwordx4 {R("v", outr + 4)}, v{vXo}, {so}, s{sOa} offen offset:64')
    a(f'buffer_store_dwordx2 {R("v", outr + 8, 2)}, v{vXo}, {so}, s{sOb} offen')
    if a.diag is not None:
        a('s_waitcnt vmcnt(0)')
    a.stamp_flush(sWv, P_WS, TS_OFF)
    a.label(Lend)
    a('s_endpgm')
    a.raw(f'.p2align 6\n.type {name}_tab,@object\n{name}_tab:')
    for e in kg_table():
        a.raw('.long ' + ', '.join(str(x) for x in e))
```

```python
import os
from asmlib import *
from layout import *
from k1 import load_args, srd, ln_stats, spread, LOG2E, P_X, P_WQKV, P_WO, P_W1, P_W2, P_OUT, P_DBG, P_WS
from k234 import xsum_g, cg_blocks, M16, BIG

KG_LDS = 163840
RB = 81920
SA = 143360
P2L = 102400
OP_OFF = PQ_OFF
FL_C, FL_O, FL_KV, FL_RP, FL_RP2 = 0, 64, 96, 104, 112


def E(name, default):
    return int(os.environ.get(name, str(default)))


def R(f, b, n=4):
    return f'{f}[{b}:{b + n - 1}]'


def sig5(T):
    cg, rel = T // 5, T % 5
    return cg, ((4 if rel == 0 else rel - 1) if cg & 1 else rel)


def kg_table():
    bp = blk_pos()
    inv = {}
    for j in range(16):
        for sg, T in enumerate(slot_tiles(w1_t0(j), w1_cnt(j), 7)):
            if T is not None:
                inv[T] = (j, sg)

    def w2u(u, w):
        ks, nb = u // 10, u % 10
        cg, sg = sig5(4 * nb + w)
        return 32 * ks * 1280 + 128 * nb, W2P_OFF + cg * W2G + bp[ks] * 5120 + sg * 1024
    tab = []
    for r in range(256):
        for w in range(4):
            if r < 200:
                ks, nb = r // 10, r % 10
                cg, sg = sig5(4 * nb + w)
                e = [32 * ks * 1280 + 128 * nb, WOP_OFF + cg * 102400 + ks * 5120 + sg * 1024]
            else:
                e = list(w2u(484 + r - 200, w))
            if r < 135:
                p, nb = r // 27, r % 27
                j, sg = inv[4 * nb + w]
                e += [(128 * p + 32 * i) * 3456 + 128 * nb for i in range(4)]
                e += [W1P_OFF + w1_frag_off(j, 4 * p + i, sg) for i in range(4)]
                e.append(CS1_OFF + p * 7168 + (j * 7 + sg) * 64)
            else:
                us = [w2u(4 * (r - 135) + i, w) for i in range(4)]
                e += [u[0] for u in us] + [u[1] for u in us] + [BIG]
            e += [0] * (16 - len(e))
            tab.append(e)
    return tab


def lane_mask(fn):
    m = 0
    for l in range(64):
        if fn(l >> 4, l & 15):
            m |= 1 << l
    return m


def set_exec(m):
    return [f's_mov_b32 exec_lo, 0x{m & 0xffffffff:x}', f's_mov_b32 exec_hi, 0x{m >> 32:x}']


def gen_kg(a, name):
    sX, sW, sWS, sR = 36, 40, 44, 48
    sO = sR
    sa = RegAlloc('s', 52, 76)
    sTab = 4
    sP = sa.get(8, 4)
    sWv = sa.get(); sRh = sa.get(); sCh = sa.get(); sR1 = sa.get(); sHg = sa.get()
    sT0 = sa.get(); sT1 = sa.get(); sT2 = sa.get(); sT3 = sa.get()
    sKc = sa.get(); sSA = sa.get(); sSB = sa.get(); sMA = sa.get(); sMB = sa.get()
    sFw = sa.get(); sCnt = sa.get()
    sM0, sM1, sM2 = 22, 34, 28
    sRb, sCg, sPb, sSb, sJ, sC, sOa, sOb = [sP + i for i in range(8)]
    sW1, sW1m, sW2, sA, sB = sKc, sSA, sSB, sMA, sMB
    sH, sHs, sA4 = sRh, sCh, sR1
    sC3, sF3 = sTab, sTab + 1
    sFc = sHg
    sM0x = sP
    sRpc = 3
    WS = f's[{sWS}:{sWS + 3}]'
    lapn = [0]
    LSET = os.environ.get('G_LAPS', 'A')

    def lap(kind='A'):
        if any(k_ in LSET for k_ in kind) and lapn[0] < 14:
            a.slap(lapn[0])
            lapn[0] += 1

    vL, vG, vR, vL16, vL16b, vL128 = 1, 2, 3, 4, 5, 6
    vT = [7, 8, 9, 10, 11]
    vOne, vZero = vT[3], vT[4]
    hres = 12
    X, Y, Z = 24, 104, 176
    Lend = name + '_end'
    a.raw(f'.globl {name}\n.p2align 8\n.type {name},@function')
    a.label(name)
    a('s_cmp_ge_u32 s2, 256')
    a(f's_cbranch_scc1 {Lend}')
    a.stamp(0)
    load_args(a)
    a(f'v_and_b32 v{vL}, 63, v0')
    a(f'v_lshrrev_b32 v{vT[0]}, 6, v0')
    a(f'v_readfirstlane_b32 s{sWv}, v{vT[0]}')
    a(f'v_lshrrev_b32 v{vG}, 4, v{vL}')
    a(f'v_and_b32 v{vR}, 15, v{vL}')
    a(f's_lshr_b32 s{sRh}, s{sWv}, 1')
    a(f's_and_b32 s{sCh}, s{sWv}, 1')
    a(f's_getpc_b64 s[{sM1}:{sM1 + 1}]')
    a.label(name + '_pc')
    a(f's_mov_b64 s[{sM0x}:{sM0x + 1}], s[{sM1}:{sM1 + 1}]')
    a(f's_lshl_b32 s{sT0}, s2, 2')
    a(f's_add_u32 s{sT0}, s{sT0}, s{sWv}')
    a(f's_lshl_b32 s{sT0}, s{sT0}, 6')
    a(f's_add_u32 s{sM1}, s{sM1}, {name}_tab-{name}_pc')
    a(f's_addc_u32 s{sM1 + 1}, s{sM1 + 1}, 0')
    a(f's_add_u32 s{sM1}, s{sM1}, s{sT0}')
    a(f's_addc_u32 s{sM1 + 1}, s{sM1 + 1}, 0')
    a(f's_load_dwordx8 s[{sTab}:{sTab + 7}], s[{sM1}:{sM1 + 1}], 0')
    a(f's_load_dwordx4 s[{sTab + 8}:{sTab + 11}], s[{sM1}:{sM1 + 1}], 32')
    a(f's_and_b32 s{sT0}, s2, 7')
    a(f's_lshr_b32 s{sT1}, s2, 3')
    a(f's_lshr_b32 s{sT2}, s{sT0}, 1')
    a(f's_lshl_b32 s{sR1}, s{sT2}, 3')
    a(f's_lshr_b32 s{sT3}, s{sT1}, 2')
    a(f's_add_u32 s{sR1}, s{sR1}, s{sT3}')
    a(f's_and_b32 s{sT0}, s{sT0}, 1')
    a(f's_lshl_b32 s{sHg}, s{sT0}, 2')
    a(f's_and_b32 s{sT1}, s{sT1}, 3')
    a(f's_add_u32 s{sHg}, s{sHg}, s{sT1}')
    ROT = E('G_ROT', 1)
    a(f's_add_u32 s{sKc}, s{sT3}, s{sT1}')
    if ROT == 1:
        a(f's_lshl_b32 s{sKc}, s{sKc}, 1')
        a(f's_add_u32 s{sKc}, s{sKc}, s{sT2}')
    elif ROT == 2:
        a(f's_and_b32 s{sKc}, s{sKc}, 1')
        a(f's_mul_i32 s{sKc}, s{sKc}, 5')
        a(f's_add_u32 s{sKc}, s{sKc}, s{sT2}')
    elif ROT == 3:
        a(f's_and_b32 s{sKc}, s{sKc}, 3')
        a(f's_mul_i32 s{sKc}, s{sKc}, 5')
        a(f's_lshr_b32 s{sKc}, s{sKc}, 1')
        a(f's_and_b32 s{sT0}, s{sT2}, 1')
        a(f's_add_u32 s{sKc}, s{sKc}, s{sT0}')
    elif ROT == 4:
        a(f's_mul_i32 s{sKc}, s{sT2}, 5')
        a(f's_lshr_b32 s{sKc}, s{sKc}, 1')
    elif ROT == 5:
        a(f's_add_u32 s{sKc}, s{sKc}, s{sT2}')
    else:
        a(f's_mov_b32 s{sKc}, 0')
    for _ in range(2):
        a(f's_sub_u32 s{sT0}, s{sKc}, 10')
        a(f's_cmp_ge_u32 s{sKc}, 10')
        a(f's_cselect_b32 s{sKc}, s{sT0}, s{sKc}')
    va = RegAlloc('v', 24, 256)
    vOA = va.get(2); vOB = va.get(5); vOQ = va.get(5); vRP = va.get(); vRT = va.get()
    t = [hres + i for i in range(6)]
    a(f's_lshl_b32 s{sT1}, s{sWv}, 4')
    a(f'v_lshrrev_b32 v{t[0]}, 3, v{vL}')
    a(f'v_add_u32 v{t[0]}, s{sT1}, v{t[0]}')
    a(f'v_and_b32 v{t[1]}, 7, v{vL}')
    a(f'v_xor_b32 v{t[2]}, v{vG}, v{t[1]}')
    a(f'v_lshlrev_b32 v{t[2]}, 4, v{t[2]}')
    a(f'v_mul_u32_u24 v{t[0]}, 1280, v{t[0]}')
    a(f'v_add_u32 v{vOA}, v{t[0]}, v{t[2]}')
    a(f'v_xor_b32 v{t[2]}, 64, v{t[2]}')
    a(f'v_add3_u32 v{vOA + 1}, v{t[0]}, v{t[2]}, 0') if False else None
    a(f'v_add_u32 v{vOA + 1}, v{t[0]}, v{t[2]}')
    a(f'v_add_u32 v{vOA + 1}, {10240 - 1024}, v{vOA + 1}')
    a(f's_mul_i32 s{sT3}, s{sWv}, {16 * 3840}')
    a(f's_movk_i32 s{sT2}, 3840')
    for j in range(5):
        a(f'v_add_u32 v{t[0]}, {64 * j}, v{vL}')
        a(f'v_mul_u32_u24 v{t[1]}, 3277, v{t[0]}')
        a(f'v_lshrrev_b32 v{t[1]}, 16, v{t[1]}')
        a(f'v_mul_u32_u24 v{t[2]}, 20, v{t[1]}')
        a(f'v_sub_u32 v{t[0]}, v{t[0]}, v{t[2]}')
        a(f'v_lshrrev_b32 v{t[2]}, 2, v{t[1]}')
        a(f'v_and_b32 v{t[2]}, 2, v{t[2]}')
        a(f'v_xor_b32 v{t[0]}, v{t[0]}, v{t[2]}')
        a(f'v_mul_u32_u24 v{t[2]}, 205, v{t[0]}')
        a(f'v_lshrrev_b32 v{t[2]}, 10, v{t[2]}')
        a(f'v_and_b32 v{t[3]}, 1, v{t[2]}')
        a(f'v_mul_u32_u24 v{t[3]}, 1200, v{t[3]}')
        a(f'v_lshl_add_u32 v{t[0]}, v{t[0]}, 4, v{t[3]}')
        a(f'v_lshrrev_b32 v{t[2]}, 1, v{t[2]}')
        a(f'v_mul_u32_u24 v{t[2]}, 80, v{t[2]}')
        a(f'v_sub_u32 v{t[0]}, v{t[0]}, v{t[2]}')
        a(f'v_mad_u32_u24 v{t[0]}, v{t[1]}, s{sT2}, v{t[0]}')
        a(f's_sub_u32 s{sT1}, s{sT3}, {1024 * (j & 3)}')
        a(f'v_add_u32 v{vOB + j}, s{sT1}, v{t[0]}')
    a(f's_lshl_b32 s{sMA}, s{sWv}, 11')
    a(f's_mul_i32 s{sMB}, s{sWv}, 5120')
    a(f's_add_u32 s{sMB}, s{sMB}, {RB}')
    a(f's_mul_i32 s{sT0}, s{sR1}, {64 * 1280}')
    a(f's_mul_i32 s{sT1}, s{sHg}, 160')
    a('s_waitcnt lgkmcnt(0)')
    a(f's_add_u32 s{sX}, s{P_X}, s{sT0}')
    a(f's_addc_u32 s{sX + 1}, s{P_X + 1}, 0')
    a(f's_sub_u32 s{sX + 2}, {S * D * 2}, s{sT0}')
    a(f's_mov_b32 s{sX + 3}, 0x20000')
    a(f's_add_u32 s{sW}, s{P_WQKV}, s{sT1}')
    a(f's_addc_u32 s{sW + 1}, s{P_WQKV + 1}, 0')
    a(f's_sub_u32 s{sW + 2}, {D * 3 * D * 2}, s{sT1}')
    a(f's_mov_b32 s{sW + 3}, 0x20000')
    a.vm_reset()

    def stage_groups(n):
        g = []
        slot = RB_slot = (n % 3) * 20480
        adv = [f's_add_u32 s{sKc}, s{sKc}, 1', f's_cmp_eq_u32 s{sKc}, 10', f's_cselect_b32 s{sKc}, 0, s{sKc}']
        if n < 10:
            for j in range(2):
                pre = []
                if j == 0:
                    pre = [f's_lshl_b32 s{sSA}, s{sKc}, 7', f's_mul_i32 s{sSB}, s{sKc}, {64 * 3840}',
                           f's_add_u32 s{sSB}, s{sSB}, 1280', f's_add_u32 m0, s{sMA}, {8192 * n}'] + adv
                g.append((pre + [f'buffer_load_dwordx4 v{vOA + j}, s[{sX}:{sX + 3}], s{sSA} offen offset:{1024 * j} lds'], f's{n}'))
            vo = vOB
        else:
            vo = vOQ
        if n >= 13:
            for j in range(5):
                pre = []
                if j == 0:
                    pre = [f's_add_u32 s{sSB}, s{sKc}, s{sRh}', f's_cmp_eq_u32 s{sSB}, 10', f's_cselect_b32 s{sSB}, 0, s{sSB}',
                           f's_mul_i32 s{sSB}, s{sSB}, {64 * 3840}'] + adv + adv
                r = 200 + 20 * (n - 13) + 4 * j
                g.append((pre + [f'buffer_load_dwordx4 {R("a", r)}, v{vo + j}, s[{sW}:{sW + 3}], s{sSB} offen offset:{1024 * (j & 3)}'], f's{n}'))
            return g
        for j in range(5):
            pre = []
            if j == 0:
                if n >= 10:
                    pre = [f's_add_u32 s{sSB}, s{sKc}, s{sRh}', f's_cmp_eq_u32 s{sSB}, 10', f's_cselect_b32 s{sSB}, 0, s{sSB}',
                           f's_mul_i32 s{sSB}, s{sSB}, {64 * 3840}'] + adv + adv
                pre = pre + [f's_add_u32 m0, s{sMB}, {slot}', 's_nop 0']
            if j == 4:
                pre = [f's_add_u32 m0, s{sMB}, {slot + 4096}', 's_nop 0']
            elif j > 0:
                pre = [f's_add_u32 m0, s{sMB}, {slot}', 's_nop 0'] if j == 2 else []
            g.append((pre + [f'buffer_load_dwordx4 v{vo + j}, s[{sW}:{sW + 3}], s{sSB} offen offset:{1024 * (j & 3)} lds'], f's{n}'))
        return g

    def emit(g):
        for x in g[0]:
            a(x, tag=g[1])
    pend = []

    def pull(n=1):
        for _ in range(n):
            if pend:
                emit(pend.pop(0))

    def need_tag(tag, extra=''):
        while any(g[1] == tag for g in pend):
            pull()
        if tag in a.vm:
            a.vm_wait(tag, extra)
        elif extra:
            a('s_waitcnt' + extra)
    a.stamp(1)
    for n in range(2):
        for g in stage_groups(n):
            emit(g)
    srd(a, sWS, P_WS, 0, WS_USED)
    a(f'v_lshlrev_b32 v{vL16}, 4, v{vL}')
    a(f'v_add_u32 v{vL16b}, 4096, v{vL16}')
    a(f'v_lshlrev_b32 v{vL128}, 7, v{vL}')
    a(f'v_mov_b32 v{vOne}, 1')
    a(f'v_mov_b32 v{vZero}, 0')
    vOnes = va.get(4, 4)
    vA = va.get(4); vB = va.get(4); vQ = va.get(2)
    fr = [va.get(40, 4) for _ in range(2)]
    acc = va.get(40, 4); s1 = va.get(8, 4); s2 = va.get(8, 4); cs = va.get(20, 4)
    pad_ = va.get(4, 4)
    qacc = va.get(24, 4); qcs = va.get(12, 4)
    vC = hres + 6
    for i in range(4):
        a(f'v_mov_b32 v{vOnes + i}, 0x3f803f80')
        a(f'v_mov_b32 v{pad_ + i}, 0')
    if E('G_CODEPF', 1):
        a(f's_lshr_b32 s{sT0}, s2, 3')
        a(f's_lshl_b32 s{sT0}, s{sT0}, 2')
        a(f's_add_u32 s{sT0}, s{sT0}, s{sWv}')
        a(f's_lshl_b32 s{sT0}, s{sT0}, 10')
        Lc = a.newlabel('Lc')
        a(f's_cmp_ge_u32 s{sT0}, {name}_tab-{name}_pc')
        a(f's_cbranch_scc1 {Lc}')
        a(f'v_lshl_add_u32 v{t[0]}, v{vL}, 4, s{sT0}')
        keep = list(a.vm)
        a(f'global_load_dwordx4 a[0:3], v{t[0]}, s[{sM0x}:{sM0x + 1}]')
        a.vm = keep
        a.label(Lc)
    a(f's_xor_b32 s{sT0}, s{sRh}, s{sCh}')
    a(f'v_lshrrev_b32 v{t[0]}, 3, v{vR}')
    a(f'v_lshlrev_b32 v{t[0]}, 10, v{t[0]}')
    a(f'v_and_b32 v{t[1]}, 7, v{vR}')
    a(f'v_lshl_add_u32 v{t[0]}, v{t[1]}, 7, v{t[0]}')
    a(f's_lshl_b32 s{sT1}, s{sRh}, 12')
    a(f'v_add_u32 v{t[0]}, s{sT1}, v{t[0]}')
    a(f'v_lshrrev_b32 v{t[1]}, 1, v{vR}')
    a(f'v_xor_b32 v{t[1]}, v{t[1]}, v{vG}')
    a(f's_lshl_b32 s{sT1}, s{sT0}, 2')
    a(f'v_xor_b32 v{t[1]}, s{sT1}, v{t[1]}')
    a(f'v_lshl_add_u32 v{vA}, v{t[1]}, 4, v{t[0]}')
    a(f'v_xor_b32 v{t[1]}, 4, v{t[1]}')
    a(f'v_lshl_add_u32 v{vA + 1}, v{t[1]}, 4, v{t[0]}')
    a(f'v_add_u32 v{vA + 2}, 40960, v{vA}')
    a(f'v_add_u32 v{vA + 3}, 40960, v{vA + 1}')
    a(f'v_bfe_u32 v{t[0]}, v{vL}, 2, 2')
    a(f'v_and_b32 v{t[1]}, 3, v{vL}')
    a(f'v_lshl_add_u32 v{t[2]}, v{vG}, 3, v{t[0]}')
    a(f'v_and_b32 v{t[3]}, 1, v{vG}')
    a(f'v_mul_u32_u24 v{t[2]}, 320, v{t[2]}')
    a(f'v_lshl_add_u32 v{t[2]}, v{t[1]}, 3, v{t[2]}')
    a(f's_mul_i32 s{sT1}, s{sCh}, 160')
    a(f's_add_u32 s{sT1}, s{sT1}, {RB}')
    a(f'v_add_u32 v{t[2]}, s{sT1}, v{t[2]}')
    a(f'v_lshlrev_b32 v{t[4]}, 5, v{t[3]}')
    a(f'v_sub_u32 v{t[5]}, v{t[2]}, v{t[4]}')
    a(f'v_add_u32 v{t[4]}, v{t[2]}, v{t[4]}')
    a(f's_cmp_eq_u32 s{sCh}, 0')
    a('s_cselect_b64 vcc, -1, 0')
    a(f'v_cndmask_b32 v{t[2]}, v{t[5]}, v{t[4]}, vcc')
    a(f'v_cndmask_b32 v{t[4]}, v{t[4]}, v{t[5]}, vcc')
    a(f's_mul_i32 s{sT1}, s{sT0}, 10240')
    a(f's_sub_u32 s{sT2}, 10240, s{sT1}')
    for o, sreg in ((0, sT1), (1, sT2)):
        a(f'v_add_u32 v{vB + 2 * o}, s{sreg}, v{t[2]}')
        a(f'v_add_u32 v{vB + 2 * o + 1}, s{sreg}, v{t[4]}')
    a('s_cmp_lt_u32 s2, 200')
    a(f's_cselect_b32 s{sR}, s{P_WO}, s{P_W2}')
    a(f's_cselect_b32 s{sR + 1}, s{P_WO + 1}, s{P_W2 + 1}')
    a(f's_mov_b32 s{sR + 2}, {D * F * 2}')
    a(f's_cselect_b32 s{sR + 2}, {D * D * 2}, s{sR + 2}')
    a(f's_mov_b32 s{sR + 3}, 0x20000')
    a(f's_movk_i32 s{sT0}, 1280')
    a('s_cmp_lt_u32 s2, 135')
    a(f's_cselect_b32 s{sT2}, 3456, s{sT0}')
    a(f's_lshl_b32 s{sT1}, s{sWv}, 3')
    a(f'v_lshrrev_b32 v{t[0]}, 3, v{vL}')
    a(f'v_add_u32 v{t[0]}, s{sT1}, v{t[0]}')
    a(f'v_and_b32 v{t[1]}, 7, v{vL}')
    a(f'v_lshlrev_b32 v{t[1]}, 4, v{t[1]}')
    a(f'v_mad_u32_u24 v{vRP}, v{t[0]}, s{sT2}, v{t[1]}')
    a(f'v_mad_u32_u24 v{t[0]}, v{t[0]}, s{sT0}, v{t[1]}')
    a(f's_lshl_b32 s{sT1}, s{sWv}, 10')
    a(f's_add_u32 m0, s{sT1}, {SA}')
    a(f'buffer_load_dwordx4 v{t[0]}, s[{sR}:{sR + 3}], s{sTab} offen lds', tag='r')
    a(f'v_lshlrev_b32 v{vRT}, 10, v{vG}')
    a(f'v_bfe_u32 v{t[5]}, v{vL}, 2, 2')
    a(f'v_lshl_add_u32 v{vRT}, v{t[5]}, 7, v{vRT}')
    a(f'v_and_b32 v{t[5]}, 3, v{vL}')
    a(f'v_lshl_add_u32 v{vRT}, v{t[5]}, 4, v{vRT}')
    a(f's_lshl_b32 s{sT1}, s{sRh}, 6')
    a(f's_lshl_b32 s{sT2}, s{sCh}, 3')
    a(f's_add_u32 s{sT1}, s{sT1}, s{sT2}')
    a(f's_add_u32 s{sT1}, s{sT1}, {RB}')
    a(f'v_add_u32 v{vRT}, s{sT1}, v{vRT}')
    a('s_cmp_lt_u32 s2, 135')
    a(f's_cselect_b32 s{sR}, s{P_W1}, s{P_W2}')
    a(f's_cselect_b32 s{sR + 1}, s{P_W1 + 1}, s{P_W2 + 1}')
    a(f's_mov_b32 s{sR + 2}, {D * F * 2}')
    Lnz = a.newlabel('Lnz')
    a(f's_lshl_b32 s{sT1}, s{sHg}, 2')
    a(f's_add_u32 s{sT1}, s{sT1}, s{sWv}')
    a(f's_mul_i32 s{sT2}, s{sT1}, {KV_HS}')
    a(f's_add_u32 s{sT2}, s{sT2}, {KV_OFF}')
    a(f's_lshl_b32 s{sT3}, s{sT1}, 9')
    a(f's_add_u32 s{sT3}, s{sT3}, {FL_OFF}')
    a(f's_cmp_eq_u32 s{sR1}, 0')
    a(f's_cselect_b32 s{sT2}, s{sT2}, 0x{BIG:x}')
    a(f's_cselect_b32 s{sT3}, s{sT3}, 0x{BIG:x}')
    a(f'v_lshlrev_b32 v{t[0]}, 3, v{vL}')
    a(f'buffer_store_dwordx4 {R("v", pad_)}, v{vL16}, {WS}, s{sT2} offen sc1', tag='z')
    a(f'buffer_store_dwordx4 {R("v", pad_)}, v{vL16}, {WS}, s{sT2} offen offset:768 sc1', tag='z')
    a(f'buffer_store_dwordx2 {R("v", pad_, 2)}, v{t[0]}, {WS}, s{sT3} offen sc1', tag='z')
    if E('G_TLB', 1):
        hl = tlb_holes()
        for i, h in enumerate(hl):
            a(f's_mov_b32 s{sT1}, {h}')
            a(f'v_writelane_b32 v{t[0]}, s{sT1}, {i}')
        a(f's_mov_b64 exec, {(1 << len(hl)) - 1}')
        a(f'buffer_load_dword a4, v{t[0]}, {WS}, 0 offen', tag='tlb')
        a('s_mov_b64 exec, 3')
        a(f'v_mul_u32_u24 v{t[1]}, {S * D * 2 - 4}, v{vL}')
        a(f'global_load_dword a5, v{t[1]}, s[{P_OUT}:{P_OUT + 1}]', tag='tlb')
        a('s_mov_b64 exec, -1')
    a(f's_cmp_eq_u32 s{sWv}, 0')
    a(f's_mov_b32 s{sFw}, 0x{BIG:x}')
    a(f's_cselect_b32 s{sFw}, {FL_OFF}, s{sFw}')
    ones = R('v', vOnes)

    deferred = []

    def dq(x):
        deferred.append(x)
    dq(f's_mul_i32 s{sT3}, s{sCh}, {32 * 3840}')
    dq(f's_movk_i32 s{sT2}, 3840')
    for j in range(5):
        dq(f'v_add_u32 v{t[0]}, {64 * j}, v{vL}')
        dq(f'v_mul_u32_u24 v{t[1]}, 6554, v{t[0]}')
        dq(f'v_lshrrev_b32 v{t[1]}, 16, v{t[1]}')
        dq(f'v_mul_u32_u24 v{t[2]}, 10, v{t[1]}')
        dq(f'v_sub_u32 v{t[0]}, v{t[0]}, v{t[2]}')
        dq(f'v_and_b32 v{t[2]}, 0x13, v{t[1]}')
        dq(f'v_bfe_u32 v{t[3]}, v{t[1]}, 2, 1')
        dq(f'v_lshl_or_b32 v{t[2]}, v{t[3]}, 3, v{t[2]}')
        dq(f'v_bfe_u32 v{t[3]}, v{t[1]}, 3, 1')
        dq(f'v_lshl_or_b32 v{t[2]}, v{t[3]}, 2, v{t[2]}')
        dq(f'v_lshlrev_b32 v{t[0]}, 4, v{t[0]}')
        dq(f'v_mad_u32_u24 v{t[0]}, v{t[2]}, s{sT2}, v{t[0]}')
        dq(f's_sub_u32 s{sT1}, s{sT3}, {1024 * (j & 3)}')
        dq(f'v_add_u32 v{vOQ + j}, s{sT1}, v{t[0]}')
    dq(f'v_bfe_u32 v{t[0]}, v{vL}, 2, 2')
    dq(f'v_and_b32 v{t[1]}, 3, v{vL}')
    dq(f'v_and_b32 v{t[3]}, 1, v{vG}')
    dq(f's_xor_b32 s{sT0}, s{sRh}, s{sCh}')
    dq(f'v_lshl_add_u32 v{t[0]}, v{t[3]}, 2, v{t[0]}')
    dq(f'v_lshrrev_b32 v{t[3]}, 1, v{vG}')
    dq(f'v_lshl_add_u32 v{t[0]}, v{t[3]}, 4, v{t[0]}')
    dq(f'v_mul_u32_u24 v{t[0]}, 160, v{t[0]}')
    dq(f'v_lshl_add_u32 v{t[0]}, v{t[1]}, 3, v{t[0]}')
    dq(f's_mul_i32 s{sT1}, s{sCh}, 80')
    dq(f's_add_u32 s{sT1}, s{sT1}, {RB}')
    dq(f's_mul_i32 s{sT2}, s{sT0}, 5120')
    dq(f's_add_u32 s{sT3}, s{sT1}, s{sT2}')
    dq(f'v_add_u32 v{vQ}, s{sT3}, v{t[0]}')
    dq(f's_sub_u32 s{sT3}, s{sT1}, s{sT2}')
    dq(f's_add_u32 s{sT3}, s{sT3}, 5120')
    dq(f'v_add_u32 v{vQ + 1}, s{sT3}, v{t[0]}')
    for i, c in enumerate((LOG2E, LOG2E, 0x3f800000, 0x3f800000, 0x358637bd, 0x358637bd)):
        dq(f'v_mov_b32 v{vC + i}, 0x{c:x}')

    def a_read(dst, slot, o, tr):
        hi = slot >= 5
        return f'ds_read_b128 {R("v", dst)}, v{vA + 2 * hi + o} offset:{8192 * (slot - 5 * hi) + 2048 * tr}'

    def reads_kv(n, o):
        f = fr[o]
        lst = [a_read(f + 4 * tr, n, o, tr) for tr in range(2)]
        for tc in range(5):
            for j in range(2):
                b = f + 8 + 4 * tc + 2 * j
                lst.append(f'ds_read_b64_tr_b16 {R("v", b, 2)}, v{vB + 2 * o + (tc & 1)} offset:{(n % 3) * 20480 + 32 * tc + 1280 * j}')
        return lst

    def mf_kv(n, o, extras_first=False):
        f = fr[o]
        A = lambda tr: R('v', f + 4 * tr)
        B = lambda tc: R('v', f + 8 + 4 * tc)
        z = lambda d, first: '0' if first else R('v', d)
        lst, ex = [], []
        for tc in range(5):
            for tr in range(2):
                d = acc + 4 * (tr * 5 + tc)
                lst.append(f'{M16} {R("v", d)}, {A(tr)}, {B(tc)}, {z(d, n == 0 and o == 0)}')
        if o == 0:
            for tr in range(2):
                ex.append(f'{M16} {R("v", s1 + 4 * tr)}, {A(tr)}, {ones}, {z(s1 + 4 * tr, n == 0)}')
                ex.append(f'{M16} {R("v", s2 + 4 * tr)}, {A(tr)}, {A(tr)}, {z(s2 + 4 * tr, n == 0)}')
        else:
            for tc in range(5):
                ex.append(f'{M16} {R("v", cs + 4 * tc)}, {ones}, {B(tc)}, {z(cs + 4 * tc, n == 0)}')
        return ex + lst if extras_first else lst + ex

    def sched(ms, first, later, start=1):
        n = len(ms)
        first = list(first)
        pos = {}
        for k, g in enumerate(later):
            pos.setdefault(min(n - 1, start + (k * (n - start)) // max(1, len(later))), []).append(g)
        for k, m in enumerate(ms):
            a(m)
            if first:
                a(first.pop(0))
            for g in pos.get(k, []):
                if isinstance(g, tuple):
                    emit(g)
                else:
                    for x in g:
                        a(x)
        for x in first:
            a(x)

    def publish(sOff, line, tag, barrier=True):
        if tag in a.vm:
            a.vm_wait(tag)
        if barrier:
            a('s_barrier')
        a('s_mov_b64 exec, 1')
        a(f'buffer_atomic_add v{vOne}, v{vZero}, {WS}, s{sOff} offen offset:{128 * line} sc1', tag='flag')
        a('s_mov_b64 exec, -1')

    def poll_issue(sOff, line, nl=1):
        a(f's_mov_b64 exec, {(1 << nl) - 1}')
        a(f'buffer_load_dword v{vT[1]}, v{vL128}, {WS}, s{sOff} offen offset:{128 * line} sc1', tag='poll')
        a('s_mov_b64 exec, -1')

    def poll_wait(sOff, line, expect, nl=1, barrier=True):
        Lp = a.newlabel('Lp'); Lok = a.newlabel('Lok')
        keep = list(a.vm)
        a(f's_cmp_lg_u32 s{sWv}, 0')
        a(f's_cbranch_scc1 {Lok}')
        a.vm_wait('poll')
        a(f's_mov_b32 s{sCnt}, 0')
        a(f's_mov_b64 exec, {(1 << nl) - 1}')
        a.label(Lp)
        a(f'v_cmp_gt_u32 vcc, {expect}, v{vT[1]}')
        a(f's_add_u32 s{sCnt}, s{sCnt}, 1')
        a('s_cmp_eq_u64 vcc, 0')
        a(f's_cbranch_scc1 {Lok}')
        a(f's_cmp_ge_u32 s{sCnt}, 200000')
        a(f's_cbranch_scc1 {Lok}')
        a('s_sleep 1')
        a(f'buffer_load_dword v{vT[1]}, v{vL128}, {WS}, s{sOff} offen offset:{128 * line} sc1')
        a('s_waitcnt vmcnt(0)')
        a(f's_branch {Lp}')
        a.label(Lok)
        a.vm = keep
        a('s_mov_b64 exec, -1')
        if barrier:
            a('s_barrier')

    ZP_IT = E('G_ZPIT', 4)
    aRP = 240

    def zero_check():
        Lp = a.newlabel('Lzp'); Lok = a.newlabel('Lzok')
        a.vm_wait('zpoll')
        keep = list(a.vm)
        a(f's_mov_b32 s{sCnt}, 0')
        a('s_mov_b32 exec_hi, 0')
        a.label(Lp)
        a(f'v_cmp_ne_u32 vcc, 1, v{vT[2]}')
        a(f's_add_u32 s{sCnt}, s{sCnt}, 1')
        a('s_cmp_eq_u64 vcc, 0')
        a(f's_cbranch_scc1 {Lok}')
        a(f's_cmp_ge_u32 s{sCnt}, 200000')
        a(f's_cbranch_scc1 {Lok}')
        a('s_sleep 2')
        a(f'global_load_dword v{vT[2]}, v{t[5]}, s[{P_DBG}:{P_DBG + 1}] offset:128 sc1')
        a('s_waitcnt vmcnt(0)')
        a(f's_branch {Lp}')
        a.label(Lok)
        a.vm = keep
        a('s_mov_b64 exec, -1')


    ST1, ST2, CSP, AA, BB, QCS, KVA = SA, SA + 512, SA + 1024, SA + 2304, SA + 2560, SA + 2816, SA + 4096
    sg2 = stage_groups(2)
    for g in sg2[:4]:
        emit(g)
    a.stamp(2)
    a.vm_wait('s0', ' lgkmcnt(0)')
    a('s_barrier')
    a.stamp(3)
    for x in reads_kv(0, 0):
        a(x)
    carry = sg2[4:]
    R2_IT = E('G_R2IT', 2)
    rpr = fr[0] + 28
    for it in range(10):
        last = it == 9
        later = list(carry)
        if it == E('G_ZFIT', 2):
            later.append(('zf', 'zf'))
        if it == R2_IT + 1:
            later.append(([f'buffer_store_dwordx4 {R("v", rpr)}, v{vL16}, {WS}, s{sTab + 1} offen sc1'], 'rst'))
        if it == ZP_IT + 1:
            later.append(('zchk', 'zchk'))
        g1 = []
        if last:
            g1 = [[f's_mov_b32 s{sM0}, 0x22222222', f's_mov_b32 s{sM0 + 1}, 0x22222222', f's_mov_b32 s{sM1}, 0x44444444',
                   f's_mov_b32 s{sM1 + 1}, 0x44444444', 's_mov_b32 vcc_lo, 0x88888888', 's_mov_b32 vcc_hi, 0x88888888',
                   f's_lshl_b32 s{sT1}, s{sCh}, 8', f's_lshl_b32 s{sT2}, s{sRh}, 7', f's_add_u32 s{sT1}, s{sT1}, s{sT2}',
                   f's_add_u32 s{sT1}, s{sT1}, {SA}',
                   f'v_lshl_add_u32 v{t[0]}, v{vR}, 2, s{sT1}', f'v_lshl_add_u32 v{t[1]}, v{vG}, 4, s{sT1}']]
            for tr in range(2):
                d = s2 + 4 * tr
                g1.append([f'v_cndmask_b32 v{d}, v{d}, v{d + 1}, s[{sM0}:{sM0 + 1}]',
                           f'v_cndmask_b32 v{d}, v{d}, v{d + 2}, s[{sM1}:{sM1 + 1}]',
                           f'v_cndmask_b32 v{d}, v{d}, v{d + 3}, vcc'])
            w = ['s_mov_b32 exec_lo, 0x00F0000F', 's_mov_b32 exec_hi, 0xF0000F00']
            w += [f'ds_write_b32 v{t[0]}, v{s2 + 4 * tr} offset:{512 + 64 * tr}' for tr in range(2)]
            w += ['s_mov_b32 exec_lo, 0x00010001', 's_mov_b32 exec_hi, 0x00010001']
            w += [f'ds_write_b128 v{t[1]}, {R("v", s1 + 4 * tr)} offset:{64 * tr}' for tr in range(2)]
            w += ['s_mov_b64 exec, -1']
            g1.append(w)
        a('s_waitcnt lgkmcnt(0)')
        zf = [g for g in later if g == ('zf', 'zf')]
        zchk = [g for g in later if g == ('zchk', 'zchk')]
        later = [g for g in later if g not in (('zf', 'zf'), ('zchk', 'zchk'))]
        if last:
            ms = mf_kv(it, 0, True)
            sched(ms[:8], reads_kv(it, 1), later)
            sched(ms[8:], [], g1, start=2)
        else:
            if it < 2:
                later = later + [deferred[k:k + 3] for k in range(0, 27, 3)]
                deferred = deferred[27:]
            sched(mf_kv(it, 0), reads_kv(it, 1), later)
        if zf:
            Lz = a.newlabel('Lz')
            assert 'z' not in a.vm
            a(f's_cmp_lg_u32 s{sR1}, 0')
            a(f's_cbranch_scc1 {Lz}')
            a(f's_lshl_b32 s{sT1}, s{sHg}, 2')
            a(f's_add_u32 s{sT1}, s{sT1}, s{sWv}')
            a(f's_lshl_b32 s{sT1}, s{sT1}, 2')
            a(f'v_mov_b32 v{t[0]}, s{sT1}')
            a('s_mov_b64 exec, 1')
            keep = list(a.vm)
            a(f'global_store_dword v{t[0]}, v{vOne}, s[{P_DBG}:{P_DBG + 1}] offset:128 sc1')
            a.vm = keep
            a('s_mov_b64 exec, -1')
            a.label(Lz)
        if it == R2_IT:
            a.vm_wait('r') if 'r' in a.vm else None
        if zchk:
            zero_check()
            assert 'rst' not in a.vm
        if not last:
            need_tag(f's{it + 1}', ' lgkmcnt(0)')
        else:
            a('s_waitcnt lgkmcnt(0)')
        a('s_barrier')
        if zchk:
            a(f's_and_b32 s{sT1}, s2, 7')
            a(f's_lshl_b32 s{sT1}, s{sT1}, 7')
            a(f's_add_u32 s{sT1}, s{sT1}, {FL_RP * 128}')
            a(f's_add_u32 s{sT1}, s{sT1}, s{sFw}')
            publish(sT1, 0, 'rst', barrier=False)
        nx = stage_groups(it + 3)
        h = 4 if it + 3 < 10 else 3
        later = nx[:h]
        carry = nx[h:]
        first = reads_kv(it + 1, 0) if not last else []
        if it == R2_IT:
            later.append([f'ds_read_b64_tr_b16 {R("v", rpr + 2 * j, 2)}, v{vRT} offset:{SA - RB + 512 * j}' for j in range(2)])
        if it == ZP_IT:
            later.append(([f'v_lshlrev_b32 v{t[5]}, 2, v{vL}', 's_mov_b32 exec_hi, 0',
                           f'global_load_dword v{vT[2]}, v{t[5]}, s[{P_DBG}:{P_DBG + 1}] offset:128 sc1', 's_mov_b64 exec, -1'], 'zpoll'))
        if it == E('G_RPIT', 8):
            later.insert(0, ([f's_add_u32 s{sRpc}, s{sFw}, {FL_RP * 128}', 's_mov_b64 exec, 0xff',
                              f'buffer_load_dword v{vT[1]}, v{vL128}, {WS}, s{sRpc} offen sc1', 's_mov_b64 exec, -1'], 'poll'))
        if last:
            pend += stage_groups(13) + stage_groups(14)
            for i in range(4):
                pend.append(([f'buffer_load_dwordx4 {R("a", aRP + 4 * i)}, v{vRP}, s[{sR}:{sR + 3}], s{sTab + 2 + i} offen'], 'r2'))
        if last:
            e = fr[0]
            first = [f'v_lshlrev_b32 v{t[0]}, 2, v{vL}', f'v_add_u32 v{t[0]}, {SA}, v{t[0]}',
                     f'ds_read_b32 v{e}, v{t[0]}', f'ds_read_b32 v{e + 1}, v{t[0]} offset:256',
                     f'ds_read_b32 v{e + 2}, v{t[0]} offset:512', f'ds_read_b32 v{e + 3}, v{t[0]} offset:768']
            sub = Asm()
            sub('s_waitcnt lgkmcnt(0)')
            sub(f'v_add_f32 v{e}, v{e}, v{e + 1}')
            sub(f'v_add_f32 v{e + 2}, v{e + 2}, v{e + 3}')
            sub(f'v_mul_f32 v{e}, 0x3acccccd, v{e}')
            sub(f'v_mul_f32 v{e + 2}, 0x3acccccd, v{e + 2}')
            sub(f'v_fma_f32 v{e + 2}, -v{e}, v{e}, v{e + 2}')
            ln_stats(sub, e, e + 2, e + 1)
            st = [i.text for i in sub.items]
            g2 = []
            while st:
                g2.append(st[:4]); st = st[4:]
            cw = [f's_mul_i32 s{sT1}, s{sRh}, 640', f's_mul_i32 s{sT2}, s{sCh}, 320', f's_add_u32 s{sT1}, s{sT1}, s{sT2}',
                  f's_add_u32 s{sT1}, s{sT1}, {CSP}', f'v_lshl_add_u32 v{t[2]}, v{vR}, 2, s{sT1}', 's_mov_b64 exec, 0xffff']
            cw += [f'ds_write_b32 v{t[2]}, v{cs + 4 * tc} offset:{64 * tc}' for tc in range(5)] + ['s_mov_b64 exec, -1']
            g2.append(cw)
            g2.append([f'ds_write_b32 v{t[0]}, v{e + 1} offset:{AA - SA}', f'ds_write_b32 v{t[0]}, v{e} offset:{BB - SA}'])
            ms = mf_kv(it, 1, True)
            sched(ms[:7], first, later + carry)
            carry = []
            sched(ms[7:], [], g2, start=0)
        else:
            if it < 2:
                n_ = 27 if it == 0 else len(deferred)
                later = later + [deferred[k:k + 3] for k in range(0, n_, 3)]
                deferred = deferred[n_:]
            sched(mf_kv(it, 1), first, later)
        lap('K')
    a.stamp(4)
    lap()
    a('s_waitcnt lgkmcnt(0)')
    a('s_barrier')
    ra, rb_, rc = fr[0], fr[0] + 8, fr[0] + 16
    a(f's_lshl_b32 s{sT1}, s{sRh}, 7')
    a(f's_add_u32 s{sT1}, s{sT1}, {AA}')
    a(f'v_lshl_add_u32 v{t[0]}, v{vG}, 4, s{sT1}')
    a(f's_mul_i32 s{sT1}, s{sCh}, 320')
    a(f's_add_u32 s{sT1}, s{sT1}, {CSP}')
    a(f'v_lshl_add_u32 v{t[1]}, v{vR}, 2, s{sT1}')
    for tr in range(2):
        a(f'ds_read_b128 {R("v", ra + 4 * tr)}, v{t[0]} offset:{64 * tr}')
        a(f'ds_read_b128 {R("v", rb_ + 4 * tr)}, v{t[0]} offset:{256 + 64 * tr}')
    for tc in range(5):
        a(f'ds_read_b32 v{rc + 2 * tc}, v{t[1]} offset:{64 * tc}')
        a(f'ds_read_b32 v{rc + 2 * tc + 1}, v{t[1]} offset:{640 + 64 * tc}')
    pull(2)
    cp, rpz, ad = fr[1] + 24, fr[1] + 27, fr[1] + 30
    a(f's_mul_i32 s{sT1}, s{sWv}, {2 * KV_HS}')
    a(f's_add_u32 s{sT1}, s{sT1}, {KVA}')
    for tk in range(3):
        a(f'v_add_u32 v{cp + tk}, {16 * tk}, v{vR}')
        a(f'v_subrev_u32 v{t[2]}, 20, v{cp + tk}')
        a(f'v_min_u32 v{cp + tk}, v{cp + tk}, v{t[2]}')
        a(f'v_lshl_add_u32 v{cp + tk}, v{cp + tk}, 2, s{sT1}')
    for tv in range(2, 5):
        x = rpz + tv - 2
        a(f'v_lshlrev_b32 v{x}, 2, v{vG}')
        a(f'v_add_u32 v{x}, {(16 * tv - 40) & 0xffffffff}, v{x}')
        a(f'v_cmp_le_i32 vcc, 20, v{x}')
        a(f'v_mul_i32_i24 v{x}, 80, v{x}')
        a(f'v_add_u32 v{t[2]}, 192, v{x}')
        a(f'v_cndmask_b32 v{x}, v{x}, v{t[2]}, vcc')
    pairs = [(0, 2), (0, 3), (1, 2), (1, 3), (1, 4), (2, 3), (2, 4)]
    for n, (tk, tv) in enumerate(pairs):
        a(f'v_add_u32 v{ad + n}, v{cp + tk}, v{rpz + tv - 2}')
    a(f's_mov_b32 s{sM0}, 0x00ff00ff'); a(f's_mov_b32 s{sM0 + 1}, 0x00ff00ff')
    a('s_waitcnt lgkmcnt(0)')
    for tc in range(5):
        a(f'v_add_f32 v{rc + 2 * tc}, v{rc + 2 * tc}, v{rc + 2 * tc + 1}')
    pk = cs

    def phi_chain(d, u, p):
        return [f'v_pk_mul_f32 {R("v", u, 2)}, {R("v", d, 2)}, {R("v", vC, 2)}',
                f'v_pk_add_f32 {R("v", p, 2)}, {R("v", d, 2)}, {R("v", vC + 2, 2)}',
                f'v_exp_f32 v{u}, v{u}', f'v_exp_f32 v{u + 1}, v{u + 1}',
                f'v_med3_f32 v{u}, v{u}, v{p}, 1.0', f'v_med3_f32 v{u + 1}, v{u + 1}, v{p + 1}, 1.0',
                f'v_pk_add_f32 {R("v", u, 2)}, {R("v", u, 2)}, {R("v", vC + 4, 2)}']

    def weave(chains, k, pl=0):
        for b in range(0, len(chains), k):
            grp = chains[b:b + k]
            for i in range(max(len(c) for c in grp)):
                for c in grp:
                    if i < len(c):
                        a(c[i])
                if pl and i % pl == pl - 1:
                    pull()
    chains = []
    for tc in range(5):
        for tr in range(2):
            for h in range(2):
                d = acc + 4 * (tr * 5 + tc) + 2 * h
                w = fr[1] + 6 * (len(chains) % 4)
                c = [f'v_pk_mul_f32 {R("v", w, 2)}, {R("v", rb_ + 4 * tr + 2 * h, 2)}, {R("v", rc + 2 * tc, 2)} op_sel_hi:[1,0]',
                     f'v_pk_fma_f32 {R("v", d, 2)}, {R("v", d, 2)}, {R("v", ra + 4 * tr + 2 * h, 2)}, {R("v", w, 2)}']
                dst = pk + 4 * tc + 2 * tr + h
                if tc <= 2:
                    u, p = w + 2, w + 4
                    c += phi_chain(d, u, p)
                    if tc == 2:
                        c += [f'v_cndmask_b32 v{u}, v{d}, v{u}, s[{sM0}:{sM0 + 1}]', f'v_cndmask_b32 v{u + 1}, v{d + 1}, v{u + 1}, s[{sM0}:{sM0 + 1}]']
                    c.append(f'v_cvt_pk_bf16_f32 v{dst}, v{u}, v{u + 1}')
                else:
                    c.append(f'v_cvt_pk_bf16_f32 v{dst}, v{d}, v{d + 1}')
                chains.append(c)
    lap('F')
    weave(chains, 4, 2)
    while pend:
        pull()
    lap('F')
    kd = acc
    for n, (tk, tv) in enumerate(pairs):
        a(f'{M16} {R("v", kd + 4 * n)}, {R("v", pk + 4 * tv)}, {R("v", pk + 4 * tk)}, 0')
    for tk in range(3):
        a(f'{M16} {R("v", kd + 28 + 4 * tk)}, {ones}, {R("v", pk + 4 * tk)}, 0')
    for n, (tk, tv) in enumerate(pairs):
        m = lane_mask(lambda g, j: (16 * tk + j) < 40 and 0 <= (16 * tv + 4 * g - 40) and (16 * tk + j) // 20 == (16 * tv + 4 * g - 40) // 20)
        for x in set_exec(m):
            a(x)
        for r in range(4):
            a(f'ds_write_b32 v{ad + n}, v{kd + 4 * n + r} offset:{80 * r}')
    for tk in range(3):
        for hh in range(2):
            m = lane_mask(lambda g, j: g == 0 and (16 * tk + j) < 40 and (16 * tk + j) // 20 == hh)
            if m:
                for x in set_exec(m):
                    a(x)
                a(f'ds_write_b32 v{cp + tk}, v{kd + 28 + 4 * tk} offset:{1600 + hh * KV_HS}')
    a('s_mov_b64 exec, -1')
    lap('F')
    need_tag('s10', ' lgkmcnt(0)')
    lap('F')
    poll_wait(sRpc, 0, 32, nl=8)
    lap('F')
    a(f's_mul_i32 s{sT1}, s{sWv}, {KV_HS}')
    a(f's_add_u32 s{sT2}, s{sT1}, {KVA}')
    a(f'v_add_u32 v{t[1]}, s{sT2}, v{t[5]}')
    kt = acc
    for i in range(7):
        a(f'ds_read_b32 v{kt + i}, v{t[1]} offset:{256 * i}')
        a(f'ds_read_b32 v{kt + 8 + i}, v{t[1]} offset:{256 * i + 4 * KV_HS}')
    a(f's_mul_i32 s{sT2}, s{sHg}, {4 * KV_HS}')
    a(f's_add_u32 s{sT1}, s{sT1}, s{sT2}')
    a(f's_add_u32 s{sT1}, s{sT1}, {KV_OFF}')

    TOFF = (0, 32, 48)

    def reads_q(m):
        f = fr[m & 1]
        n = 10 + (m >> 1)
        lst = []
        for o in range(2):
            b0 = f + 20 * o
            lst += [a_read(b0 + 4 * tr, m, o, tr) for tr in range(2)]
            for tc in range(3):
                for j in range(2):
                    lst.append(f'ds_read_b64_tr_b16 {R("v", b0 + 8 + 4 * tc + 2 * j, 2)}, v{vQ + o} offset:{(n % 3) * 20480 + (m & 1) * 10240 + 1280 * j + TOFF[tc]}')
        return lst

    def mf_q(m):
        f = fr[m & 1]
        lst = []
        for o in range(2):
            b0 = f + 20 * o
            if o == 0:
                for tc in range(3):
                    d = qcs + 4 * tc
                    lst.append(f'{M16} {R("v", d)}, {R("v", b0 + 8 + 4 * tc)}, {ones}, {"0" if m == 0 else R("v", d)}')
            for tc in range(3):
                for tr in range(2):
                    d = qacc + 4 * (tr * 3 + tc)
                    lst.append(f'{M16} {R("v", d)}, {R("v", b0 + 8 + 4 * tc)}, {R("v", b0 + 4 * tr)}, {"0" if m == 0 and o == 0 else R("v", d)}')
        return lst
    a('s_waitcnt lgkmcnt(0)')
    for x in reads_q(0)[:15]:
        a(x)
    for i in range(7):
        a(f'v_add_f32 v{kt + i}, v{kt + i}, v{kt + 8 + i}')
    a(reads_q(0)[15])
    lap('F')
    for i in range(7):
        if i == 6:
            a('s_mov_b32 exec_hi, 0xf')
        a(f'buffer_atomic_add_f32 v{kt + i}, v{t[5]}, {WS}, s{sT1} offen offset:{256 * i}', tag='kva')
    a('s_mov_b64 exec, -1')
    lap('AF')
    p2s = [f's_and_b32 s{sT0}, s2, 7', f's_lshr_b32 s{sT1}, s2, 3', f's_and_b32 s{sJ}, s{sT1}, 15', f's_lshr_b32 s{sT1}, s{sT1}, 4',
           f's_lshl_b32 s{sC}, s{sT0}, 1', f's_add_u32 s{sC}, s{sC}, s{sT1}', f's_and_b32 s{sCg}, s{sJ}, 7', f's_lshr_b32 s{sT1}, s{sJ}, 3',
           f's_lshl_b32 s{sRb}, s{sC}, 1', f's_add_u32 s{sRb}, s{sRb}, s{sT1}']
    sub = Asm()
    cg_blocks(sub, sCg, sPb, sSb, sT0)
    p2s += [i.text for i in sub.items]
    p2s += [f's_lshl_b32 s{sT0}, s{sRb}, 2', f's_add_u32 s{sT0}, s{sT0}, s{sWv}', f's_mul_i32 s{sT1}, s{sT0}, {16 * 1280}',
            f's_lshl_b32 s{sOa}, s{sPb}, 6', f's_add_u32 s{sOa}, s{sOa}, s{sT1}', f's_lshr_b32 s{sT2}, s{sSb}, 1',
            f's_lshl_b32 s{sT2}, s{sT2}, 6', f's_and_b32 s{sT3}, s{sSb}, 1', f's_lshl_b32 s{sT3}, s{sT3}, 3',
            f's_add_u32 s{sT2}, s{sT2}, s{sT3}', f's_add_u32 s{sOb}, s{sT2}, s{sT1}']
    for x in p2s:
        a(x)
    srd(a, sX, P_X, 0, S * D * 2)
    srd(a, sO, P_OUT, 0, S * D * 2)
    aWO = 0
    sWo = sM0
    a(f's_mul_i32 s{sWo}, s{sCg}, 102400')
    a(f's_mul_i32 s{sT2}, s{sWv}, 25600')
    a(f's_add_u32 s{sWo}, s{sWo}, s{sT2}')
    a(f's_add_u32 s{sWo}, s{sWo}, {WOP_OFF}')
    sKvc, sW2b = sM0 + 1, sM1 + 1
    a(f's_lshl_b32 s{sKvc}, s{sHg}, 7')
    a(f's_add_u32 s{sKvc}, s{sKvc}, {FL_KV * 128}')
    a(f's_add_u32 s{sKvc}, s{sKvc}, s{sFw}')
    a(f's_mul_i32 s{sW2b}, s{sCg}, {W2G}')
    a(f's_mul_i32 s{sT0}, s{sWv}, 5120')
    a(f's_add_u32 s{sW2b}, s{sW2b}, s{sT0}')
    a(f's_add_u32 s{sW2b}, s{sW2b}, {W2P_OFF}')

    def wo_groups():
        g = []
        for f in range(25):
            pre = [f's_add_u32 s{sWo}, s{sWo}, 4096'] if f and f % 4 == 0 else []
            g.append((pre + [f'buffer_load_dwordx4 {R("a", aWO + 4 * f)}, v{vL16}, {WS}, s{sWo} offen offset:{1024 * (f & 3)} sc1'], 'wo'))
        return g
    W2R = [('v', Z + 20 * i) for i in range(4)] + [('a', 160 + 20 * i) for i in range(4)] + [('a', 20 * i) for i in range(6)]
    W2L = {8: SA, 9: 0, 10: 20480, 11: 40960} if E('G_W2LDS', 1) else {}

    def w2l_groups(i):
        g = []
        for sg in range(5):
            pre = []
            if sg == 0:
                pre = [f's_add_u32 s{sM2}, s{sW2b}, {20480 * i}', f's_mul_i32 s{sCnt}, s{sWv}, 5120', f's_add_u32 m0, s{sCnt}, {W2L[i]}', 's_nop 0']
            if sg == 4:
                pre = [f's_mul_i32 s{sCnt}, s{sWv}, 5120', f's_add_u32 m0, s{sCnt}, {W2L[i] + 4096}', 's_nop 0']
            v, off = (vL16, 1024 * sg) if sg < 4 else (vL16b, 0)
            g.append((pre + [f'buffer_load_dwordx4 v{v}, {WS}, s{sM2} offen offset:{off} sc1 lds'], f'w2_{i}'))
        return g

    def w2_groups(i):
        f, r = W2R[i]
        g = []
        for sg in range(5):
            pre = []
            if sg == 0:
                pre = [f's_add_u32 s{sM2}, s{sW2b}, {20480 * i}']
                if i == 5:
                    pre += [f's_cmp_ge_u32 s{sWv}, 2', f's_cselect_b32 s{sM2}, 0x{BIG:x}, s{sM2}']
            v, off = (vL16, 1024 * sg) if sg < 4 else (vL16b, 0)
            g.append((pre + [f'buffer_load_dwordx4 {R(f, r + 4 * sg)}, v{v}, {WS}, s{sM2} offen offset:{off} sc1'], f'w2_{i}'))
        return g
    PUB_KV = E('G_PUBKV', 7)
    rq = acc + 16
    RW_M = E('G_RWM', 5)
    wg_ = wo_groups()
    pend += wg_[:E('G_WOQ', 10)]
    wo_late = wg_[E('G_WOQ', 10):]
    carry = []
    for m in range(10):
        a('s_waitcnt lgkmcnt(0)')
        later = list(carry)
        carry = []
        if m & 1:
            n = 10 + (m >> 1)
            if m == PUB_KV and 'kva' in a.vm:
                a.vm_wait('kva')
            if n + 1 <= 12:
                need_tag(f's{n + 1}')
            a('s_barrier')
            if m == PUB_KV:
                publish(sKvc, 0, 'kva', barrier=False)
            if n + 3 <= 14:
                need_tag(f's{n + 3}')
                later.append([f'v_add_u32 v{t[0]}, s{sMB}, v{vL16}'])
                for j in range(5):
                    (later if j < 2 else carry).append([f'ds_write_b128 v{t[0]}, {R("a", 200 + 20 * (n + 3 - 13) + 4 * j)} offset:{((n + 3) % 3) * 20480 + 1024 * j}'])
        if m == RW_M:
            if 'r2' in a.vm:
                a.vm_wait('r2')
            later.append([f's_lshl_b32 s{sT1}, s{sWv}, 10', f's_add_u32 s{sT1}, s{sT1}, {KVA}', f'v_add_u32 v{t[3]}, s{sT1}, v{vL16}'])
            for i in range(4):
                (later if i < 2 else carry).append([f'ds_write_b128 v{t[3]}, {R("a", aRP + 4 * i)} offset:{4096 * i}'])
        if m == RW_M + 2:
            later.append([f'v_add_u32 v{t[3]}, {KVA - RB}, v{vRT}'])
            for i in range(4):
                later.append([f'ds_read_b64_tr_b16 {R("v", rq + 4 * i + 2 * j, 2)}, v{t[3]} offset:{4096 * i + 512 * j}' for j in range(2)])
        if m == RW_M + 3:
            for i in range(4):
                later.append(([f'buffer_store_dwordx4 {R("v", rq + 4 * i)}, v{vL16}, {WS}, s{sTab + 6 + i} offen sc1'], 'rst2'))
            later.append([f'{M16} {R("v", rq + 16)}, {R("v", rq + 4 * i)}, {ones}, {"0" if i == 0 else R("v", rq + 16)}' for i in range(4)])
        if m == RW_M + 4:
            later.append(([f'v_lshlrev_b32 v{t[4]}, 4, v{vG}', 's_mov_b32 exec_lo, 0x00010001', 's_mov_b32 exec_hi, 0x00010001',
                           f'buffer_store_dwordx4 {R("v", rq + 16)}, v{t[4]}, {WS}, s{sTab + 10} offen sc1', 's_mov_b64 exec, -1'], 'rst2'))
        if m == 9:
            cw = [f's_mul_i32 s{sT1}, s{sRh}, 384', f's_mul_i32 s{sT2}, s{sCh}, 192', f's_add_u32 s{sT1}, s{sT1}, s{sT2}',
                  f's_add_u32 s{sT1}, s{sT1}, {QCS}', f'v_lshl_add_u32 v{t[2]}, v{vG}, 4, s{sT1}',
                  's_mov_b32 exec_lo, 0x00010001', 's_mov_b32 exec_hi, 0x00010001']
            cw += [f'ds_write_b128 v{t[2]}, {R("v", qcs + 4 * tc)} offset:{64 * tc}' for tc in range(3)] + ['s_mov_b64 exec, -1']
        if m >= E('G_WOM', 8):
            k = E('G_QPULL', 5)
            while pend and k > 0:
                later.append(pend.pop(0)); k -= 1
        nxt = reads_q(m + 1) if m < 9 else []
        if m == 9:
            ms = mf_q(m)
            sched(ms[:9], nxt, later)
            sched(ms[9:], [], [cw], start=2)
        else:
            sched(mf_q(m), nxt, later)
        lap('Q')
    lap()
    while pend:
        pull()
    a('s_waitcnt lgkmcnt(0)')
    a('s_barrier')
    kraw = acc
    a(f'v_lshrrev_b32 v{t[0]}, 2, v{vR}')
    a(f'v_and_b32 v{t[1]}, 3, v{vR}')
    a(f'v_mad_u32_u24 v{t[2]}, v{t[0]}, 5, v{t[1]}')
    a(f'v_mul_u32_u24 v{t[2]}, 80, v{t[2]}')
    a(f'v_mad_u32_u24 v{t[3]}, v{t[0]}, 5, 4')
    a(f'v_mov_b32 v{t[4]}, 20')
    a(f'v_cmp_eq_u32 vcc, 1, v{t[1]}')
    a(f'v_cndmask_b32 v{t[3]}, v{t[3]}, v{t[4]}, vcc')
    a(f'v_mul_u32_u24 v{t[3]}, 80, v{t[3]}')
    a(f'v_mov_b32 v{t[4]}, 0x{BIG:x}')
    a(f's_lshl_b32 s{sSB}, s{sHg}, 2')
    a(f's_lshl_b32 s{sT1}, s{sCh}, 1')
    a(f's_add_u32 s{sSB}, s{sSB}, s{sT1}')
    a(f's_mul_i32 s{sSB}, s{sSB}, {KV_HS}')
    a(f's_add_u32 s{sSB}, s{sSB}, {KV_OFF}')
    ka = s1
    for tau in range(2):
        rowok = lambda i: tau == 0 or (i & 3) < 2
        m = lane_mask(lambda g, i: rowok(i))
        a(f'v_lshl_add_u32 v{ka + 4 * tau}, v{vG}, 4, v{t[2 + tau]}')
        a(f's_mov_b32 vcc_lo, 0x{m & 0xffffffff:x}'); a(f's_mov_b32 vcc_hi, 0x{m >> 32:x}')
        a(f'v_cndmask_b32 v{ka + 4 * tau}, v{t[4]}, v{ka + 4 * tau}, vcc')
        for gsel in range(2):
            m = lane_mask(lambda g, i: rowok(i) and g == gsel)
            a(f's_mov_b32 vcc_lo, 0x{m & 0xffffffff:x}'); a(f's_mov_b32 vcc_hi, 0x{m >> 32:x}')
            a(f'v_cndmask_b32 v{ka + 4 * tau + 1 + gsel}, v{t[4]}, v{t[2 + tau]}, vcc')
    ra, rb_, rc = fr[0], fr[0] + 4, fr[0] + 8
    a(f's_lshl_b32 s{sT1}, s{sRh}, 7')
    a(f's_add_u32 s{sT1}, s{sT1}, {AA}')
    a(f'v_lshl_add_u32 v{t[0]}, v{vR}, 2, s{sT1}')
    a(f's_mul_i32 s{sT1}, s{sCh}, 192')
    a(f's_add_u32 s{sT1}, s{sT1}, {QCS}')
    a(f'v_lshl_add_u32 v{t[1]}, v{vG}, 4, s{sT1}')
    for tr in range(2):
        a(f'ds_read_b32 v{ra + 2 * tr}, v{t[0]} offset:{64 * tr}')
        a(f'ds_read_b32 v{rb_ + 2 * tr}, v{t[0]} offset:{256 + 64 * tr}')
    for tc in range(3):
        a(f'ds_read_b128 {R("v", rc + 4 * tc)}, v{t[1]} offset:{64 * tc}')
        a(f'ds_read_b128 {R("v", rc + 12 + 4 * tc)}, v{t[1]} offset:{384 + 64 * tc}')
    a(f's_mul_i32 s{sT1}, s{sRh}, {32 * 160}')
    a(f's_mul_i32 s{sT2}, s{sCh}, 80')
    a(f's_add_u32 s{sT1}, s{sT1}, s{sT2}')
    a(f's_add_u32 s{sT1}, s{sT1}, {KVA}')
    a(f'v_mul_u32_u24 v{t[2]}, 160, v{vR}')
    a(f'v_mad_u32_u24 v{t[3]}, v{vG}, 10, v{t[2]}')
    a(f'v_add_u32 v{t[3]}, s{sT1}, v{t[3]}')
    a(f's_mul_i32 s{sT1}, s{sWv}, {16 * 160}')
    a(f's_add_u32 s{sT1}, s{sT1}, {KVA}')
    a(f'v_lshl_add_u32 v{t[2]}, v{vG}, 4, v{t[2]}')
    a(f'v_add_u32 v{t[2]}, s{sT1}, v{t[2]}')
    vOd = s2
    a(f's_mul_i32 s{sT1}, s{sHg}, 10')
    for u in range(3):
        a(f's_add_u32 s{sT2}, s{sT1}, {4 * u}')
        a(f'v_add_u32 v{t[5]}, s{sT2}, v{vG}')
        a(f'v_lshrrev_b32 v{vOd + u}, 2, v{t[5]}')
        a(f'v_lshlrev_b32 v{vOd + u}, 12, v{vOd + u}')
        a(f'v_and_b32 v{t[5]}, 3, v{t[5]}')
        a(f'v_lshl_add_u32 v{vOd + u}, v{t[5]}, 8, v{vOd + u}')
        a(f'v_lshl_add_u32 v{vOd + u}, v{vR}, 4, v{vOd + u}')
    a(f's_mul_i32 s{sT0}, s{sR1}, {20 * 4096}')
    a(f's_lshl_b32 s{sT1}, s{sWv}, 10')
    a(f's_add_u32 s{sT0}, s{sT0}, s{sT1}')
    if OP_OFF:
        a(f's_add_u32 s{sT0}, s{sT0}, {OP_OFF}')
    a('s_waitcnt lgkmcnt(0)')
    for k in range(6):
        a(f'v_pk_add_f32 {R("v", rc + 2 * k, 2)}, {R("v", rc + 2 * k, 2)}, {R("v", rc + 12 + 2 * k, 2)}')
    pq = cs
    chains = []
    for tr in range(2):
        for tc in range(3):
            for h in range(2):
                d = qacc + 4 * (tr * 3 + tc) + 2 * h
                w = fr[1] + 6 * (len(chains) % 4)
                c = [f'v_pk_mul_f32 {R("v", w, 2)}, {R("v", rc + 4 * tc + 2 * h, 2)}, {R("v", rb_ + 2 * tr, 2)} op_sel_hi:[1,0]',
                     f'v_pk_fma_f32 {R("v", d, 2)}, {R("v", d, 2)}, {R("v", ra + 2 * tr, 2)}, {R("v", w, 2)} op_sel_hi:[1,0,1]']
                c += phi_chain(d, w + 2, w + 4)
                c.append(f'v_cvt_pk_bf16_f32 v{pq + 8 * tr + 2 * tc + h}, v{w + 2}, v{w + 3}')
                chains.append(c)
    weave(chains, 4)
    lap('F')
    poll_issue(sKvc, 0)
    if 'rst2' in a.vm:
        a.vm_wait('rst2')
    lap('F')
    poll_wait(sKvc, 0, 32)
    lap('AF')
    for tau in range(2):
        b = kraw + 8 * tau
        a(f'buffer_load_dwordx4 {R("v", b)}, v{ka + 4 * tau}, {WS}, s{sSB} offen sc1', tag='kvl')
        a(f'buffer_load_dwordx4 {R("v", b + 4)}, v{ka + 4 * tau + 1}, {WS}, s{sSB} offen offset:64 sc1', tag='kvl')
        b = kraw + 16 + 8 * tau
        a(f'buffer_load_dwordx4 {R("v", b)}, v{ka + 4 * tau + 2}, {WS}, s{sSB} offen offset:{KV_HS} sc1', tag='kvl')
        a(f'buffer_load_dwordx4 {R("v", b + 4)}, v{ka + 4 * tau}, {WS}, s{sSB} offen offset:{KV_HS + 16} sc1', tag='kvl')
    a(f's_and_b32 s{sT1}, s2, 7')
    a(f's_lshl_b32 s{sT1}, s{sT1}, 7')
    a(f's_add_u32 s{sT1}, s{sT1}, s{sRpc}')
    publish(sT1, FL_RP2 - FL_RP, 'rst2', barrier=False)
    if E('G_MAP3', 1):
        a(f's_and_b32 s{sT1}, s2, 7')
        a(f's_lshr_b32 s{sT2}, s2, 3')
        a(f's_lshr_b32 s{sC3}, s{sT1}, 1')
        a(f's_lshl_b32 s{sC3}, s{sC3}, 2')
        a(f's_lshr_b32 s{sT3}, s{sT2}, 3')
        a(f's_add_u32 s{sC3}, s{sC3}, s{sT3}')
        a(f's_and_b32 s{sT1}, s{sT1}, 1')
        a(f's_lshl_b32 s{sT1}, s{sT1}, 3')
        a(f's_and_b32 s{sT2}, s{sT2}, 7')
        a(f's_add_u32 s{sJ}, s{sT1}, s{sT2}')
    else:
        a(f's_mov_b32 s{sC3}, s{sC}')
    a(f's_lshl_b32 s{sF3}, s{sC3}, 9')
    a(f's_add_u32 s{sF3}, s{sF3}, s{sFw}')
    a(f's_lshl_b32 s{sW1m}, s{sWv}, 12')
    a(f's_mul_i32 s{sW1}, s{sJ}, 143360')
    a(f's_add_u32 s{sW1}, s{sW1}, s{sW1m}')
    a(f's_add_u32 s{sW1}, s{sW1}, {W1P_OFF}')

    def w1_groups(lo, hi, tag):
        g = []
        off = lo
        while off + 16384 <= hi:
            for i in range(4):
                pre = [f's_add_u32 m0, s{sW1m}, {off}', f's_add_u32 s{sM2 + 1}, s{sW1}, {off}'] if i == 0 else []
                g.append((pre + [f'buffer_load_dwordx4 v{vL16}, {WS}, s{sM2 + 1} offen offset:{1024 * i} sc1 lds'], tag))
            off += 16384
        while off < hi:
            g.append(([f's_lshl_b32 s{sCnt}, s{sWv}, 10', f's_add_u32 m0, s{sCnt}, {off}', f's_sub_u32 s{sM2 + 1}, s{sW1}, s{sW1m}',
                       f's_add_u32 s{sM2 + 1}, s{sM2 + 1}, s{sCnt}', f's_add_u32 s{sM2 + 1}, s{sM2 + 1}, {off}',
                       f'buffer_load_dwordx4 v{vL16}, {WS}, s{sM2 + 1} offen sc1 lds'], tag))
            off += 4096
        return g
    a.vm_wait('kvl')
    lap('F')
    kT = fr[0]
    for k in range(16):
        a(f'v_cvt_pk_bf16_f32 v{kT + k}, v{kraw + 2 * k}, v{kraw + 2 * k + 1}')
    od = acc
    for tr in range(2):
        for hd in range(2):
            for tau in range(2):
                d = od + 16 * tr + 8 * hd + 4 * tau
                a(f'{M16} {R("v", d)}, {R("v", kT + 8 * hd + 4 * tau)}, {R("v", pq + 8 * tr + 2 * hd)}, 0')
    chains = []
    for tr in range(2):
        for hd in range(2):
            d = od + 16 * tr + 8 * hd
            c = [f'v_add_f32 v{d + 6}, 0x358637bd, v{d + 5}', f'v_rcp_f32 v{d + 6}, v{d + 6}']
            c += [f'v_mul_f32 v{d + k}, v{d + k}, v{d + 6}' for k in range(5)]
            c += [f'v_cvt_pk_bf16_f32 v{d}, v{d}, v{d + 1}', f'v_cvt_pk_bf16_f32 v{d + 2}, v{d + 2}, v{d + 3}',
                  f'v_cvt_pk_bf16_f32 v{d + 4}, v{d + 4}, v{d + 4}']
            o = 2560 * tr + 40 * hd
            c += [f'ds_write_b16 v{t[3]}, v{d} offset:{o}', f'ds_write_b16_d16_hi v{t[3]}, v{d} offset:{o + 2}',
                  f'ds_write_b16 v{t[3]}, v{d + 2} offset:{o + 4}', f'ds_write_b16_d16_hi v{t[3]}, v{d + 2} offset:{o + 6}',
                  f'ds_write_b16 v{t[3]}, v{d + 4} offset:{o + 8}']
            chains.append(c)
    weave(chains, 4)
    a('s_waitcnt lgkmcnt(0)')
    a('s_barrier')
    ob = fr[1]
    for u in range(3):
        a(f'ds_read_b128 {R("v", ob + 4 * u)}, v{t[2]} offset:{64 * u}')
    a('s_waitcnt lgkmcnt(0)')
    for u in range(3):
        if u == 2:
            a('s_mov_b32 exec_hi, 0')
        a(f'buffer_store_dwordx4 {R("v", ob + 4 * u)}, v{vOd + u}, {WS}, s{sT0} offen sc1', tag='ost')
    a('s_mov_b64 exec, -1')
    lap()
    vXo = hres + 10
    a(f'v_mul_u32_u24 v{vXo}, 1280, v{vR}')
    a(f'v_lshl_add_u32 v{vXo}, v{vG}, 4, v{vXo}')
    sx = f's[{sX}:{sX + 3}]'
    mid = [([f'buffer_load_dwordx4 {R("v", hres)}, v{vXo}, {sx}, s{sOa} offen'], 'x'),
           ([f'buffer_load_dwordx4 {R("v", hres + 4)}, v{vXo}, {sx}, s{sOa} offen offset:64'], 'x'),
           ([f'buffer_load_dwordx2 {R("v", hres + 8, 2)}, v{vXo}, {sx}, s{sOb} offen'], 'x')]
    mid += wo_late
    nb4 = min(len(mid), E('G_NB4', 8))
    for g in mid[:nb4]:
        emit(g)
    a(f's_lshl_b32 s{sT1}, s{sR1}, 7')
    a(f's_add_u32 s{sT1}, s{sT1}, {FL_O * 128}')
    a(f's_add_u32 s{sT1}, s{sT1}, s{sFw}')
    poll_issue(sRpc, FL_RP2 - FL_RP, 8)
    publish(sT1, 0, 'ost')
    lap()
    for g in mid[nb4:]:
        emit(g)
    poll_wait(sRpc, FL_RP2 - FL_RP, 32, nl=8)
    W1E = E('G_W1E', 48) * 1024
    for g in w1_groups(0, W1E, 'w1e'):
        emit(g)
    a(f's_lshl_b32 s{sT1}, s{sRb}, 7')
    a(f's_add_u32 s{sT1}, s{sT1}, {FL_O * 128}')
    a(f's_add_u32 s{sT1}, s{sT1}, s{sFw}')
    poll_issue(sT1, 0)
    a(f's_lshl_b32 s{sFc}, s{sC}, 9')
    a(f's_add_u32 s{sFc}, s{sFc}, s{sFw}')
    vR4 = [Y + 68, Y + 69, Y + 70, Y + 71]
    vAo = vR4
    vRW = Y + 60
    for i in range(4):
        a(f's_add_u32 s{sT2}, s{sWv}, {1 + i}')
        a(f's_and_b32 s{sT2}, s{sT2}, 3')
        a(f's_lshl_b32 s{sT3}, s{sT2}, 10')
        a(f'v_add_u32 v{vAo[i]}, s{sT3}, v{vL16}')
        if i < 3:
            a(f's_mul_i32 s{sT2}, s{sT2}, 15360')
            a(f's_add_u32 s{sT2}, s{sT2}, {P2L + 5120 * i}')
            a(f'v_add_u32 v{vRW + i}, s{sT2}, v{vL16}')
    a(f's_mul_i32 s{sA}, s{sRb}, {20 * 4096}')
    a(f's_mul_i32 s{sT2}, s{sWv}, {5 * 4096}')
    a(f's_add_u32 s{sA}, s{sA}, s{sT2}')
    if OP_OFF:
        a(f's_add_u32 s{sA}, s{sA}, {OP_OFF}')
    poll_wait(sT1, 0, 8)
    lap()
    acc = X
    for i in range(4):
        for m in range(5):
            a(f's_add_u32 s{sT2}, s{sA}, {4096 * m}')
            a(f'buffer_load_dwordx4 {R("v", Z + 20 * i + 4 * m)}, v{vAo[i]}, {WS}, s{sT2} offen sc1', tag=f'o{i}')
    W1M = E('G_W1M', 100) * 1024
    pend += w1_groups(W1E, W1M, 'w1m')
    w2next = [4, 5, 6, 7, 0, 1, 2, 3]
    for i in w2next[:E('G_NW2P2', 4)]:
        pend += w2_groups(i)
    w2next = w2next[E('G_NW2P2', 4):]
    w2next.sort()

    def send(i, base):
        return [f'ds_write_b128 v{base + i}, {R("v", acc + 20 * i + 4 * sg)} offset:{1024 * sg}' for sg in range(5)]
    sq = []
    for i in range(4):
        if f'o{i}' in a.vm:
            a.vm_wait(f'o{i}')
        k = 0
        for m in range(5):
            for sg in range(5):
                d = acc + 20 * i + 4 * sg
                a(f'{M16} {R("v", d)}, {R("a", aWO + 4 * (5 * m + sg))}, {R("v", Z + 20 * i + 4 * m)}, {"0" if m == 0 else R("v", d)}')
                k += 1
                if sq and k >= 4 and k % 3 == 0:
                    a(sq.pop(0))
                if k % E('G_P2PULL', 4) == 2:
                    pull()
        assert not sq
        if i < 3:
            sq = send(i, vRW)
    while pend:
        pull()
    lap()

    def reduce_own(base):
        a('s_waitcnt lgkmcnt(0)')
        a('s_barrier')
        a(f's_mul_i32 s{sT0}, s{sWv}, 15360')
        a(f's_add_u32 s{sT0}, s{sT0}, {base}')
        a(f'v_add_u32 v{vT[0]}, s{sT0}, v{vL16}')
        for k in range(15):
            a(f'ds_read_b128 {R("v", acc + 4 * k)}, v{vT[0]} offset:{1024 * k}')
        own = acc + 60
        for p in range(3):
            a(f's_waitcnt lgkmcnt({10 - 5 * p})')
            for k in range(10):
                a(f'v_pk_add_f32 {R("v", own + 2 * k, 2)}, {R("v", own + 2 * k, 2)}, {R("v", acc + 20 * p + 2 * k, 2)}')
        return own

    def residual(own, out, tmp):
        chains = []
        for i in range(10):
            q = tmp + 6 * (i % 4)
            chains.append([f'v_cvt_pk_bf16_f32 v{q + 4}, v{own + 2 * i}, v{own + 2 * i + 1}',
                           f'v_lshlrev_b32 v{q + 2}, 16, v{hres + i}',
                           f'v_and_b32 v{q + 3}, 0xffff0000, v{hres + i}',
                           f'v_lshlrev_b32 v{q}, 16, v{q + 4}',
                           f'v_and_b32 v{q + 1}, 0xffff0000, v{q + 4}',
                           f'v_pk_add_f32 {R("v", q, 2)}, {R("v", q, 2)}, {R("v", q + 2, 2)}',
                           f'v_cvt_pk_bf16_f32 v{out + i}, v{q}, v{q + 1}'])
        weave(chains, 4)

    a(f's_lshl_b32 s{sT3}, s{sRb}, 2')
    a(f's_add_u32 s{sT3}, s{sT3}, s{sWv}')
    a(f's_lshr_b32 s{sT1}, s{sT3}, 1')
    a(f's_mul_i32 s{sT1}, s{sT1}, 40960')
    a(f's_and_b32 s{sT2}, s{sT3}, 1')
    a(f's_lshl_b32 s{sT2}, s{sT2}, 10')
    a(f's_add_u32 s{sT1}, s{sT1}, s{sT2}')
    a(f's_add_u32 s{sT1}, s{sT1}, {HP_OFF}')
    a(f's_lshl_b32 s{sA}, s{sPb}, 11')
    a(f's_add_u32 s{sA}, s{sA}, s{sT1}')
    a(f's_lshr_b32 s{sB}, s{sSb}, 1')
    a(f's_lshl_b32 s{sB}, s{sB}, 11')
    a(f's_and_b32 s{sT2}, s{sSb}, 1')
    a(f's_lshl_b32 s{sT2}, s{sT2}, 3')
    a(f's_add_u32 s{sB}, s{sB}, s{sT2}')
    a(f's_add_u32 s{sB}, s{sB}, s{sT1}')
    a(f's_lshl_b32 s{sT1}, s{sT3}, 10')
    a(f's_lshr_b32 s{sT2}, s{sCg}, 1')
    a(f's_lshl_b32 s{sT2}, s{sT2}, 8')
    a(f's_add_u32 s{sT1}, s{sT1}, s{sT2}')
    a(f's_and_b32 s{sT2}, s{sCg}, 1')
    a(f's_lshl_b32 s{sT2}, s{sT2}, 3')
    a(f's_add_u32 s{sT1}, s{sT1}, s{sT2}')
    a(f's_add_u32 s{sT1}, s{sT1}, {ST_OFF}')
    own = reduce_own(P2L)
    tmpk = Y
    residual(own, hres, tmpk)
    a(f'buffer_store_dwordx4 {R("v", hres)}, v{vL16}, {WS}, s{sA} offen sc1', tag='hst')
    a(f'buffer_store_dwordx4 {R("v", hres + 4)}, v{vL16}, {WS}, s{sA} offen offset:2048 sc1', tag='hst')
    a(f'buffer_store_dwordx2 {R("v", hres + 8, 2)}, v{vL16}, {WS}, s{sB} offen sc1', tag='hst')
    hf_ = acc
    for i in range(10):
        a(f'v_lshlrev_b32 v{hf_ + 2 * i}, 16, v{hres + i}')
        a(f'v_and_b32 v{hf_ + 2 * i + 1}, 0xffff0000, v{hres + i}')
    sm = tmpk
    a(f'v_pk_add_f32 {R("v", sm + 2, 2)}, {R("v", hf_, 2)}, {R("v", hf_ + 2, 2)}')
    a(f'v_pk_mul_f32 {R("v", sm + 4, 2)}, {R("v", hf_, 2)}, {R("v", hf_, 2)}')
    a(f'v_pk_mul_f32 {R("v", sm + 6, 2)}, {R("v", hf_ + 2, 2)}, {R("v", hf_ + 2, 2)}')
    for i in range(2, 10):
        d = sm + 4 + 2 * (i & 1)
        a(f'v_pk_add_f32 {R("v", sm + 2, 2)}, {R("v", sm + 2, 2)}, {R("v", hf_ + 2 * i, 2)}')
        a(f'v_pk_fma_f32 {R("v", d, 2)}, {R("v", hf_ + 2 * i, 2)}, {R("v", hf_ + 2 * i, 2)}, {R("v", d, 2)}')
    a(f'v_pk_add_f32 {R("v", sm + 4, 2)}, {R("v", sm + 4, 2)}, {R("v", sm + 6, 2)}')
    a(f'v_add_f32 v{sm}, v{sm + 2}, v{sm + 3}')
    a(f'v_add_f32 v{sm + 1}, v{sm + 4}, v{sm + 5}')
    s1_, s2_ = Asm(), Asm()
    xsum_g(s1_, sm, sm + 2)
    xsum_g(s2_, sm + 1, sm + 3)
    for x, y in zip(s1_.items, s2_.items):
        a(x.text); a(y.text)
    a('s_mov_b64 exec, 0xffff')
    a(f'buffer_store_dwordx2 {R("v", sm, 2)}, v{vL16}, {WS}, s{sT1} offen sc1', tag='hst')
    a('s_mov_b64 exec, -1')
    lap('B')
    acc3, otmp = X, X + 56
    fb = [Y, Y + 16]
    vCs, vSt, ab = Y + 32, Y + 60, Y + 60
    csg = []
    for sg in range(7):
        pre = []
        if sg == 0:
            pre = [f'v_and_b32 v{vT[0]}, 7, v{vL}', f'v_cmp_gt_u32 vcc, 5, v{vT[0]}', f'v_mul_u32_u24 v{vT[0]}, 7168, v{vT[0]}',
                   f'v_lshl_add_u32 v{vT[0]}, v{vG}, 4, v{vT[0]}', f'v_mov_b32 v{vT[2]}, 0x{BIG:x}', f'v_cndmask_b32 v{vT[0]}, v{vT[2]}, v{vT[0]}, vcc',
                   f's_mul_i32 s{sT0}, s{sJ}, 448', f's_add_u32 s{sT0}, s{sT0}, {CS1_OFF}']
        csg.append((pre + [f'buffer_load_dwordx4 {R("v", vCs + 4 * sg)}, v{vT[0]}, {WS}, s{sT0} offen offset:{64 * sg} sc1'], 'cs'))
    for g in csg + w1_groups(W1M, 102400, 'w1m'):
        emit(g)
    publish(sFc, 0, 'hst')
    lap()
    mid = w1_groups(102400, 143360, 'w1l')
    NW2S = E('G_NW2S', 3)
    for i in w2next[:NW2S]:
        mid += w2_groups(i)
    w2next = w2next[NW2S:]
    for g in mid:
        emit(g)
    poll_issue(sF3, 0)
    a(f's_lshl_b32 s{sT0}, s{sC3}, 2')
    a(f's_add_u32 s{sT0}, s{sT0}, s{sWv}')
    a(f's_mul_i32 s{sA}, s{sT0}, 40960')
    a(f's_add_u32 s{sA}, s{sA}, {HP_OFF}')
    a(f's_lshl_b32 s{sT0}, s{sT0}, 11')
    a(f's_add_u32 s{sT0}, s{sT0}, {ST_OFF}')
    vBa = [vL16, vT[2], hres + 10]
    a(f'v_add_u32 v{vT[2]}, {65536}, v{vL16}')
    a(f'v_add_u32 v{hres + 10}, {131072}, v{vL16}')
    a(f's_lshl_b32 s{sT2}, s{sC3}, 1')
    a(f's_lshr_b32 s{sT3}, s{sWv}, 1')
    a(f's_add_u32 s{sT2}, s{sT2}, s{sT3}')
    a(f's_mul_i32 s{sH}, s{sT2}, {H1G}')
    a(f's_and_b32 s{sT3}, s{sWv}, 1')
    a(f's_lshl_b32 s{sT3}, s{sT3}, 11')
    a(f's_add_u32 s{sH}, s{sH}, s{sT3}')
    a(f's_add_u32 s{sH}, s{sH}, {H1P_OFF}')
    a(f's_lshr_b32 s{sHs}, s{sJ}, 3')
    a(f's_mul_i32 s{sHs}, s{sHs}, 3')
    a(f's_and_b32 s{sT2}, s{sJ}, 7')
    a(f's_lshr_b32 s{sT3}, s{sT2}, 1')
    a(f's_add_u32 s{sHs}, s{sHs}, s{sT3}')
    a(f's_lshl_b32 s{sHs}, s{sHs}, 12')
    a(f's_and_b32 s{sT3}, s{sJ}, 1')
    a(f's_lshl_b32 s{sT3}, s{sT3}, 3')
    a(f's_add_u32 s{sHs}, s{sHs}, s{sT3}')
    a(f's_add_u32 s{sHs}, s{sHs}, s{sH}')
    a(f's_add_u32 s{sHs}, s{sHs}, {16 * 4096}')
    a(f's_cmp_ge_u32 s{sT2}, 6')
    a(f's_cselect_b32 s{sHs}, 0x{BIG:x}, s{sHs}')
    a(f's_lshl_b32 s{sT2}, s{sJ}, 12')
    a(f's_add_u32 s{sH}, s{sH}, s{sT2}')
    a(f's_mul_i32 s{sA4}, s{sRb}, {H1G}')
    a(f's_lshl_b32 s{sT2}, s{sWv}, 12')
    a(f's_add_u32 s{sA4}, s{sA4}, s{sT2}')
    a(f's_add_u32 s{sA4}, s{sA4}, {H1P_OFF}')
    a.vm_wait('w1l')
    poll_wait(sF3, 0, 16)
    lap()

    def a3_groups():
        g = [([f'buffer_load_dwordx4 {R("v", vSt)}, v{vL16}, {WS}, s{sT0} offen sc1'], 'st'),
             ([f'buffer_load_dwordx4 {R("v", vSt + 4)}, v{vL16}, {WS}, s{sT0} offen offset:1024 sc1'], 'st')]
        for f in range(40):
            pre = [f's_add_u32 s{sA}, s{sA}, 4096'] if f and f % 4 == 0 else []
            g.append((pre + [f'buffer_load_dwordx4 {R("a", 4 * f)}, v{vL16}, {WS}, s{sA} offen offset:{1024 * (f & 3)} sc1'], f'h{f // 2}'))
        return g
    pend += a3_groups()
    for i in w2next:
        pend += w2_groups(i)
    if W2L:
        pend += w2l_groups(8)
    pull(E('G_H0', 18))
    PART = {0: ([0, 1, 6], 0, 3072), 1: ([2, 3], 61440, 2048), 2: ([4, 5], 102400, 2048)}

    def steps(part):
        sl = PART[part][0]
        if part == 0:
            return [[(ks, q, s_) for q, s_ in enumerate(sl)] for ks in range(20)]
        return [[(ks, q, s_) for ks in (2 * m, 2 * m + 1) for q, s_ in enumerate(sl)] for m in range(10)]
    allsteps = [(p, st) for p in range(3) for st in steps(p)]

    def breads(n):
        p, st = allsteps[n]
        f = fb[n & 1]
        out = []
        for k, (ks, q, s_) in enumerate(st):
            o = PART[p][1] + ks * PART[p][2] + 1024 * q
            out.append(f'ds_read_b128 {R("v", f + 4 * k)}, v{vBa[o >> 16]} offset:{o & 0xffff}')
        return out

    def mf3(n):
        p, st = allsteps[n]
        f = fb[n & 1]
        lst = []
        for k, (ks, q, s_) in enumerate(st):
            for t_ in range(2):
                d = acc3 + 28 * t_ + 4 * s_
                c = '0' if ks == 0 else R('v', d)
                lst.append(f'{M16} {R("v", d)}, {R("v", f + 4 * k)}, {R("a", 8 * ks + 4 * t_)}, {c}')
        return lst

    dpp = [f'v_add_f32_dpp v{vCs + r}, v{vCs + r}, v{vCs + r} quad_perm:[1,0,3,2] row_mask:0xf bank_mask:0xf' for r in range(28)]
    dpp += [f'v_add_f32_dpp v{vCs + r}, v{vCs + r}, v{vCs + r} quad_perm:[2,3,0,1] row_mask:0xf bank_mask:0xf' for r in range(28)]
    dpp += [f'v_add_f32_dpp v{vCs + r}, v{vCs + r}, v{vCs + r} row_half_mirror row_mask:0xf bank_mask:0xf' for r in range(28)]
    sub = Asm()
    for t_ in range(2):
        s_ = vSt + 4 * t_
        m, v, x = otmp + 4 * t_ + 2, otmp + 8 + 2 * t_, otmp + 9 + 2 * t_
        sub(f'v_add_f32 v{m}, v{s_}, v{s_ + 2}')
        sub(f'v_add_f32 v{v}, v{s_ + 1}, v{s_ + 3}')
        xsum_g(sub, m, x)
        xsum_g(sub, v, x)
        sub(f'v_mul_f32 v{m}, 0x3acccccd, v{m}')
        sub(f'v_mul_f32 v{v}, 0x3acccccd, v{v}')
        sub(f'v_fma_f32 v{v}, -v{m}, v{m}, v{v}')
        ln_stats(sub, m, v, otmp + 4 * t_)
        sub(f'v_mov_b32 v{ab + 4 * t_}, v{otmp + 4 * t_}')
        sub(f'v_mov_b32 v{ab + 4 * t_ + 1}, v{m}')
    half_n = len(sub.items) // 2
    stl = [None] * len(sub.items)
    stl[0::2] = [i.text for i in sub.items[:half_n]]
    stl[1::2] = [i.text for i in sub.items[half_n:]]

    def epi_tile(t_, sg, ob):
        lst = []
        d = acc3 + 28 * t_ + 4 * sg
        for r in range(4):
            lst.append(f'v_mul_f32 v{d + r}, v{d + r}, v{ab + 4 * t_}')
        for r in range(4):
            lst.append(f'v_fmac_f32 v{d + r}, v{vCs + 4 * sg + r}, v{ab + 4 * t_ + 1}')
        for h in range(2):
            lst.append(f'v_cvt_pk_bf16_f32 v{ob + h}, v{d + 2 * h}, v{d + 2 * h + 1}')
        for h in range(2):
            lst.append(f'v_pk_max_i16 v{ob + h}, v{ob + h}, v{vZero}')
        return lst

    def epi_part(p):
        out = []
        base = otmp + (0, 12, 0)[p]
        if p:
            out.append(f's_add_u32 s{sH}, s{sH}, {(24 if p == 1 else 16) * 4096}')
        for t_ in range(2):
            ob = base + 4 * t_
            out += epi_tile(t_, 2 * p, ob) + epi_tile(t_, 2 * p + 1, ob + 2)
            out.append(('vm', f'buffer_store_dwordx4 {R("v", ob)}, v{vL16}, {WS}, s{sH} offen offset:{1024 * t_} sc1', f'h1_{p}'))
        if p == 0:
            for t_ in range(2):
                ob = base + 8 + 2 * t_
                out += epi_tile(t_, 6, ob)
                out.append(('vm', f'buffer_store_dwordx2 {R("v", ob, 2)}, v{vL16}, {WS}, s{sHs} offen offset:{1024 * t_} sc1', 'h1_0'))
        return out

    AR = [('a', 240), ('a', 120), ('a', 136), ('v', Y), ('v', Y + 16), ('v', Y + 32), ('v', Y + 48)]
    NR_ = len(AR)

    def a4_groups(i):
        f, r = AR[i % NR_]
        g = []
        for t_ in range(4):
            pre = []
            if t_ == 0:
                pre = [f's_add_u32 s{sA}, s{sA4}, {16384 * i}']
                if i == 5:
                    pre += [f's_cmp_ge_u32 s{sWv}, 2', f's_cselect_b32 s{sA}, 0x{BIG:x}, s{sA}']
            g.append((pre + [f'buffer_load_dwordx4 {R(f, r + 4 * t_)}, v{vAo[t_]}, {WS}, s{sA} offen sc1'], f'a{i}'))
        return g

    for x in breads(0):
        a(x)
    side = list(dpp)
    PUB_A, POLL_A, PUB_B = E('G_PUBA', 31), E('G_POLLA', 38), E('G_PUBB', 39)
    NS_ = len(allsteps)
    for n in range(NS_):
        p, st = allsteps[n]
        if p == 0:
            need_tag(f'h{n}')
            if n == 6:
                side += stl
        if n == 20:
            while side:
                a(side.pop(0))
            lap()
            side = epi_part(0)
        if n == 30:
            assert not side
            side = epi_part(1)
        if n % 3 == 0:
            lap('E')
        a('s_waitcnt lgkmcnt(0)')
        nxt = breads(n + 1) if n + 1 < NS_ else []
        ms = mf3(n)
        for k, m in enumerate(ms):
            a(m)
            cnt = 2
            if nxt:
                a(nxt.pop(0))
                cnt = 1
            elif pend and k >= len(ms) - E('G_P3PULL', 2):
                pull()
                cnt = 0
            for _ in range(cnt):
                if side:
                    x = side.pop(0)
                    if isinstance(x, tuple):
                        a(x[1], tag=x[2])
                    else:
                        a(x)
        if n == PUB_A:
            lap('C')
            publish(sF3, 1, 'h1_0')
            lap('C')
            if W2L:
                pend += w2l_groups(9) + w2l_groups(10) + w2l_groups(11)
        if n == POLL_A:
            while pend:
                pull()
            poll_issue(sFc, 1)
        if n == PUB_B:
            assert not side
            lap('C')
            publish(sF3, 2, 'h1_1')
    lap()
    poll_wait(sFc, 1, 16)
    lap()
    for i in range(5):
        for g in a4_groups(i):
            emit(g)
    for x in epi_part(2):
        if isinstance(x, tuple):
            a(x[1], tag=x[2])
        else:
            a(x)
    acc4 = X
    pend += a4_groups(5)
    w2late = [i for i in range(8, 14) if i not in W2L]
    NWL = E('G_NWL', 2)
    PD = E('G_PD', 1)
    for i in w2late[:NWL]:
        pend += w2_groups(i)
    vWl = [vT[0], vT[2]]
    a(f's_mul_i32 s{sT0}, s{sWv}, 5120')
    a(f'v_add_u32 v{vWl[0]}, s{sT0}, v{vL16}')
    a(f'v_add_u32 v{vWl[1]}, {SA}, v{vWl[0]}')
    PUB_C, POLL_B, POLL_C = E('G_PUBC', 1), E('G_POLLB', 1), E('G_POLLC', 5)
    avail, nexta = 6, 6
    for i in range(14):
        need_tag(f'a{i}')
        need_tag(f'w2_{i}')
        if i in W2L:
            a('s_waitcnt lgkmcnt(0)')
        lrd = []
        if i + 2 in W2L:
            need_tag(f'w2_{i + 2}')
            o_ = W2L[i + 2]
            lrd = [f'ds_read_b128 {R("a", W2R[i + 2][1] + 4 * sg)}, v{vWl[o_ >= SA]} offset:{(o_ - SA if o_ >= SA else o_) + 1024 * sg}' for sg in range(5)]
        lap('D')
        fa, ra_ = AR[i % NR_]
        fw, rw = W2R[i]
        k = 0
        for t_ in range(4):
            for sg in range(5):
                d = acc4 + 20 * t_ + 4 * sg
                c = '0' if i == 0 else R('v', d)
                a(f'{M16} {R("v", d)}, {R(fw, rw + 4 * sg)}, {R(fa, ra_ + 4 * t_)}, {c}')
                k += 1
                if k % 2 == 0:
                    pull()
                elif lrd:
                    a(lrd.pop(0))
        if i == PUB_C:
            publish(sF3, 3, 'h1_2')
        if i in (POLL_B, POLL_C):
            poll_issue(sFc, 2 if i == POLL_B else 3)
        if i in (POLL_B + PD, POLL_C + PD):
            poll_wait(sFc, 2 if i == POLL_B + PD else 3, 16)
            avail += 4
        newa = []
        while nexta < avail and nexta <= i + NR_:
            newa += a4_groups(nexta)
            nexta += 1
        k_ = 0
        while k_ < len(pend) and not (pend[k_][1].startswith('w2') and len(pend[k_][0]) > 1):
            k_ += 1
        pend[k_:k_] = newa
        if i == POLL_B + PD:
            for q in w2late[NWL:]:
                pend += w2_groups(q)
    assert not pend
    lap()
    vRW = Y
    for i in range(3):
        a(f's_add_u32 s{sT0}, s{sWv}, {1 + i}')
        a(f's_and_b32 s{sT0}, s{sT0}, 3')
        a(f's_mul_i32 s{sT0}, s{sT0}, 15360')
        a(f's_add_u32 s{sT0}, s{sT0}, {61440 + 5120 * i}')
        a(f'v_add_u32 v{vRW + i}, s{sT0}, v{vL16}')
    for i in range(3):
        for x in send(i, vRW):
            a(x)
    vXo = vT[2]
    a(f'v_mul_u32_u24 v{vXo}, 1280, v{vR}')
    a(f'v_lshl_add_u32 v{vXo}, v{vG}, 4, v{vXo}')
    own = reduce_own(61440)
    outr = Y + 8
    residual(own, outr, Y + 24)
    so = f's[{sO}:{sO + 3}]'
    OST = {0: '', 1: ' sc1', 2: ' nt', 3: ' sc0 sc1'}[E('G_OST', 0)]
    a(f'buffer_store_dwordx4 {R("v", outr)}, v{vXo}, {so}, s{sOa} offen{OST}')
    a(f'buffer_store_dwordx4 {R("v", outr + 4)}, v{vXo}, {so}, s{sOa} offen offset:64{OST}')
    a(f'buffer_store_dwordx2 {R("v", outr + 8, 2)}, v{vXo}, {so}, s{sOb} offen{OST}')
    if a.diag is not None:
        a('s_waitcnt vmcnt(0)')
    if a.diag is not None and E('G_DBG', 0):
        a.stamp(5)
        a(f's_cmp_lg_u32 s2, {E("G_DBGWG", 77)}')
        a(f's_cbranch_scc1 {Lend}')
        a(f's_cmp_lg_u32 s{sWv}, 1')
        a(f's_cbranch_scc1 {Lend}')
        regs = [77, 79] + list(range(82, 95)) + [81]
        for i, r in enumerate(regs):
            a(f's_sub_u32 s98, s{r}, s76')
            a(f'v_writelane_b32 v9, s98, {i}')
        a(f'v_lshlrev_b32 v8, 2, v{vL}')
        a('s_mov_b64 exec, 0xffff')
        a(f'global_store_dword v8, v9, s[{P_DBG}:{P_DBG + 1}]')
    else:
        a.stamp_flush(sWv, P_WS, TS_OFF)
    a.label(Lend)
    a('s_endpgm')
    a.raw(f'.p2align 6\n.type {name}_tab,@object\n{name}_tab:')
    for e in kg_table():
        a.raw('.long ' + ', '.join(str(x) for x in e))
```

```python
S, D, H, DH, F = 2048, 640, 32, 20, 1728
PQ_OFF = 0x001000;   PQ_SZ = 128 * 80 * 256
KV_OFF = 0x290000;   KV_HS = 1792; KV_SZ = 32 * KV_HS
WOP_OFF = 0x2A0000;  WOP_SZ = 8 * 102400
ST_OFF = 0x370000;   ST_SZ = 128 * 1024
CS1_OFF = 0x390000;  CS1_SZ = 5 * 7168
FL_OFF = 0x3A0000;   FL_SZ = 16384
HP_OFF = 0x401000;   HP_SZ = 128 * 20 * 1024
W1P_OFF = 0x690000;  W1P_SZ = 16 * 143360
W2P_OFF = 0x8D0000;  W2G = 56 * 5120; W2P_SZ = 8 * W2G
H1P_OFF = 0xB10000;  H1G = 56 * 4096; H1P_SZ = 32 * H1G
WS_USED = H1P_OFF + H1P_SZ + 4096


def tlb_holes():
    holes = [0x0, 0x3F0000, 0x400000, 0x688000, 0x8C8000, 0xB08000]
    holes += [H1P_OFF + rb * H1G + 22 * 4096 for rb in range(32)] + [WS_USED - 128]
    out = {}
    for h in holes:
        out.setdefault(h >> 21, h)
    assert sorted(out) == list(range((WS_USED - 1 >> 21) + 1)), sorted(out)
    return [out[k] for k in sorted(out)]


T0_W1 = [0, 7, 14, 21, 28, 35, 42, 48]

def w1_t0(j):
    return 54 * (j >> 3) + T0_W1[j & 7]

def w1_cnt(j):
    return 7 if (j & 7) < 6 else 6

def slot_tiles(t0, cnt, nslots):
    tiles = list(range(t0, t0 + cnt))
    if t0 & 1:
        tiles = tiles[1:] + tiles[:1]
    return tiles + [None] * (nslots - cnt)

def tile_cols(T):
    b, ab = T >> 1, T & 1
    return [32 * b + 8 * (i >> 2) + 4 * ab + (i & 3) for i in range(16)]

TS_OFF = 0x1800000


def w1_frag_off(j, ks, sg):
    if sg in (0, 1, 6):
        o = ks * 3072 + (2 if sg == 6 else sg) * 1024
    elif sg < 4:
        o = 61440 + ks * 2048 + (sg - 2) * 1024
    else:
        o = 102400 + ks * 2048 + (sg - 4) * 1024
    return j * 143360 + o


def blk_pos():
    pos = {}
    for j in range(16):
        t0 = w1_t0(j)
        pb = (t0 + 1) >> 1
        pos[pb] = j
        pos[pb + 1] = 24 + j
        pos[pb + 2] = 40 + j
        if w1_cnt(j) == 7:
            ts = t0 if t0 & 1 else t0 + 6
            pos[ts >> 1] = 16 + 3 * (j >> 3) + ((j & 7) >> 1)
    assert sorted(pos) == list(range(54)) and len(set(pos.values())) == 54
    return [pos[b] for b in range(54)]


assert W2P_OFF + W2P_SZ <= H1P_OFF

assert PQ_OFF + PQ_SZ <= KV_OFF and WOP_OFF + WOP_SZ <= ST_OFF and HP_OFF + HP_SZ <= 0x688000 and W1P_OFF + W1P_SZ <= 0x8C8000 and W2P_OFF + W2P_SZ <= 0xB08000
```

```python
import re

_REG = re.compile(r'^(-|\|)?(?:abs\()?([vas])(?:(\d+)|\[(\d+):(\d+)\])\)?\|?$')
TRANS = ('v_exp_f32', 'v_log_f32', 'v_rcp_f32', 'v_rsq_f32', 'v_sqrt_f32', 'v_sin_f32', 'v_cos_f32', 'v_rcp_iflag_f32')


def regs_of(tok):
    tok = tok.strip()
    if tok in ('vcc', 'exec', 'm0', 'scc'):
        return {tok}
    if tok in ('vcc_lo', 'vcc_hi'):
        return {'vcc'}
    if tok in ('exec_lo', 'exec_hi'):
        return {'exec'}
    m = _REG.match(tok)
    if not m:
        return set()
    f = m.group(2)
    if m.group(3) is not None:
        return {(f, int(m.group(3)))}
    return {(f, i) for i in range(int(m.group(4)), int(m.group(5)) + 1)}


def split_ops(s):
    ops, depth, cur = [], 0, ''
    for ch in s:
        if ch in '[(':
            depth += 1
        if ch in '])':
            depth -= 1
        if ch == ',' and depth == 0:
            ops.append(cur.strip())
            cur = ''
        else:
            cur += ch
    if cur.strip():
        ops.append(cur.strip())
    return ops


class Ins:
    def __init__(self, text):
        self.text = text
        t = text.split(';')[0].strip()
        parts = t.split(None, 1)
        self.op = parts[0]
        rest = parts[1] if len(parts) > 1 else ''
        ops = split_ops(rest)
        self.mods = []
        clean = []
        for o in ops:
            w = o.split()
            clean.append(w[0])
            self.mods += w[1:]
        self.ops = clean
        op = self.op
        self.w = set()
        self.r = set()
        self.kind = 'other'
        self.passes = 0
        self.srcC = set()
        self.srcAB = set()
        self.store_data = set()
        self.ws = 1
        R = [regs_of(o) for o in clean]
        allr = lambda lst: set().union(*lst) if lst else set()
        if op == 's_nop':
            self.ws = int(clean[0], 0) + 1
            self.kind = 'nop'
        elif op.startswith('v_mfma'):
            self.kind = 'mfma'
            self.w = R[0]
            self.srcAB = R[1] | R[2]
            self.srcC = R[3]
            self.r = self.srcAB | self.srcC
            if '32x32x16' in op or '32x32x8' in op:
                self.passes = 8
            elif '16x16x32' in op or '16x16x16' in op:
                self.passes = 4
            elif '16x16x4_f32' in op:
                self.passes = 8
            else:
                raise ValueError(op)
        elif op.startswith('v_'):
            self.kind = 'trans' if any(op.startswith(x) for x in TRANS) else 'valu'
            if op.startswith('v_cmp'):
                self.w = R[0]
                self.r = allr(R[1:])
                if op.startswith('v_cmpx'):
                    self.w |= {'exec'}
            elif 'permlane' in op and 'swap' in op:
                self.w = R[0] | R[1]
                self.r = R[0] | R[1]
            elif op.startswith(('v_add_co', 'v_sub_co', 'v_addc_co', 'v_subb_co', 'v_subrev_co')):
                self.w = R[0] | R[1]
                self.r = allr(R[2:])
            else:
                self.w = R[0]
                self.r = allr(R[1:])
                if op.startswith(('v_fmac', 'v_dot2c', 'v_pk_fmac')) or op.startswith('v_writelane'):
                    self.r |= R[0]
            self.dpp = op.endswith('_dpp') or any(m.startswith(('row_', 'quad_perm')) for m in self.mods)
        elif op.startswith('ds_'):
            self.kind = 'ds'
            if op.startswith(('ds_read', 'ds_bpermute', 'ds_permute', 'ds_swizzle')) or '_rtn' in op:
                self.w = R[0]
                self.r = allr(R[1:])
            else:
                self.r = allr(R)
        elif op.startswith(('buffer_', 'global_', 'flat_')):
            self.kind = 'vmem'
            lds = 'lds' in self.mods or '_lds_' in op
            self.ldsdma = lds
            if op in ('buffer_wbl2', 'buffer_inv'):
                pass
            elif lds:
                self.r = allr(R) | {'m0'}
            elif '_load' in op:
                self.w = R[0]
                self.r = allr(R[1:])
            elif '_store' in op:
                self.r = allr(R)
                if 'x4' in op or 'x3' in op:
                    self.store_data = R[0] if op.startswith('buffer_') else R[1]
            elif '_atomic' in op:
                if 'sc0' in self.mods:
                    self.w = R[0]
                    self.r = allr(R) if op.startswith('buffer_') else allr(R[1:])
                else:
                    self.r = allr(R)
            else:
                raise ValueError(text)
        elif op.startswith('s_'):
            if op.startswith(('s_branch', 's_cbranch')):
                self.kind = 'branch'
                self.target = clean[0]
            elif op.startswith(('s_load', 's_memtime', 's_memrealtime', 's_atomic', 's_buffer_load')):
                self.kind = 'smem'
                self.w = R[0]
                self.r = allr(R[1:])
            elif op.startswith(('s_waitcnt', 's_barrier', 's_endpgm', 's_sleep', 's_setprio')):
                self.kind = 'other'
            elif op.startswith('s_cmp'):
                self.kind = 'salu'
                self.r = allr(R)
            else:
                self.kind = 'salu'
                self.w = R[0]
                self.r = allr(R[1:])
                if 'saveexec' in op:
                    self.w |= {'exec'}
        else:
            raise ValueError(text)


def is_vreg(x):
    return isinstance(x, tuple) and x[0] in 'va'


def is_sreg(x):
    return x == 'vcc' or (isinstance(x, tuple) and x[0] == 's')


def need(p, c):
    n = 0
    pv = p.kind in ('valu', 'trans')
    cv = c.kind in ('valu', 'trans')
    if pv:
        wv = {x for x in p.w if is_vreg(x)}
        wsg = {x for x in p.w if is_sreg(x)}
        if c.kind == 'mfma' and wv & c.r:
            n = max(n, 2)
        if p.kind == 'trans' and (cv or c.kind in ('vmem', 'ds')) and wv & c.r:
            n = max(n, 1)
        if cv and wv & c.r:
            if c.op.startswith(('v_readfirstlane', 'v_readlane')):
                n = max(n, 1)
            if 'permlane' in c.op or getattr(c, 'dpp', False):
                n = max(n, 2)
        if wsg:
            rd = set(c.r)
            if cv and c.op.startswith(('v_cndmask', 'v_addc', 'v_subb', 'v_div_fmas')):
                pass
            if c.kind == 'vmem' and wsg & rd:
                n = max(n, 5)
            if cv and wsg & rd:
                n = max(n, 4 if c.op.startswith(('v_readlane', 'v_writelane', 'v_div_fmas')) else 2)
            if c.kind in ('salu', 'smem') and wsg & rd:
                n = max(n, 1)
            if c.kind == 'branch' and 'vcc' in wsg and 'vcc' in c.op:
                n = max(n, 5)
        if 'exec' in p.w:
            n = max(n, 5)
    if p.kind == 'mfma':
        t = {4: (6, 8, 8, 3), 8: (10, 12, 12, 7)}[p.passes]
        if c.kind == 'mfma':
            if p.w & c.srcC:
                if not (p.w == c.srcC and p.op == c.op):
                    n = max(n, t[0])
            if p.w & c.srcAB:
                n = max(n, t[1])
            if (p.w & c.w) and not (p.w == c.srcC and p.op == c.op):
                n = max(n, t[0])
        elif cv or c.kind in ('vmem', 'ds'):
            if p.w & (c.r | c.w):
                n = max(n, t[2])
            if cv and p.srcC & c.w:
                n = max(n, t[3])
    if p.kind == 'salu' and 'm0' in p.w and 'm0' in c.r and c.kind in ('vmem', 'ds'):
        n = max(n, 1)
    if p.store_data and (p.store_data & c.w):
        n = max(n, 2)
    return n


class Asm:
    def __init__(self):
        self.items = []
        self.vm = []
        self.uid = 0

    def __call__(self, text, tag=None):
        for line in text.strip().split('\n'):
            line = line.strip()
            if not line or line.startswith(';'):
                continue
            ins = Ins(line)
            self.items.append(ins)
            if ins.kind == 'vmem' and ins.op not in ('buffer_wbl2', 'buffer_inv'):
                self.vm.append(tag)

    diag = None
    TS0 = 4

    def stamp(self, i):
        if self.diag is None:
            return
        assert i < 6
        self('s_memrealtime s[98:99]')
        if i == 0:
            self('s_memtime s[100:101]')
        self('s_waitcnt lgkmcnt(0)')
        self(f's_mov_b32 s{76 + i}, s98')

    LAPV = 255

    def lap(self, sel):
        if self.diag is None:
            return
        self('s_memrealtime s[98:99]')
        self('s_waitcnt lgkmcnt(0)')
        self(f's_lshl_b64 exec, 1, {sel}')
        self(f'v_mov_b32 v{self.LAPV}, s98')
        self('s_mov_b64 exec, -1')

    slaps = None

    def slap(self, i):
        if self.diag is None:
            return
        self.slaps = max(self.slaps or 0, i + 1)
        self('s_memrealtime s[98:99]')
        self('s_waitcnt lgkmcnt(0)')
        self(f's_mov_b32 s{82 + i}, s98')

    def lap_flush(self, sWv, ws_ptr, off):
        if self.diag is None:
            return
        if self.slaps:
            self(f'v_mov_b32 v{self.LAPV}, 0')
            for i in range(self.slaps):
                self(f'v_writelane_b32 v{self.LAPV}, s{82 + i}, {i}')
        self('s_mov_b64 exec, 0xffff')
        self(f's_lshl_b32 s98, s2, 2')
        self(f's_add_u32 s98, s98, s{sWv}')
        self(f's_lshl_b32 s98, s98, 6')
        self(f's_add_u32 s98, s98, {off + 0x100000 + self.diag * 65536}')
        self('v_mbcnt_lo_u32_b32 v0, -1, 0')
        self('v_lshlrev_b32 v0, 2, v0')
        self('v_add_u32 v0, s98, v0')
        self(f'global_store_dword v0, v{self.LAPV}, s[{ws_ptr}:{ws_ptr + 1}]')

    def stamp_flush(self, sWv, ws_ptr, off):
        if self.diag is None:
            return
        self.stamp(5)
        self.lap_flush(sWv, ws_ptr, off)
        self('s_mov_b64 exec, 1')
        for i in range(6):
            self(f'v_mov_b32 v{2 + i}, s{76 + i}')
        self('v_mov_b32 v8, s100')
        self('s_memtime s[100:101]')
        self('s_waitcnt lgkmcnt(0)')
        self('v_mov_b32 v9, s100')
        self(f's_lshl_b32 s4, s2, 2')
        self(f's_add_u32 s4, s4, s{sWv}')
        self(f's_lshl_b32 s4, s4, 5')
        self(f's_add_u32 s4, s4, {off + self.diag * 32768}')
        self('v_mov_b32 v0, s4')
        self(f'global_store_dwordx4 v0, v[2:5], s[{ws_ptr}:{ws_ptr + 1}]')
        self(f'global_store_dwordx4 v0, v[6:9], s[{ws_ptr}:{ws_ptr + 1}] offset:16')

    def label(self, name):
        self.items.append(('label', name))

    def raw(self, text):
        self.items.append(('raw', text))

    def newlabel(self, base='L'):
        self.uid += 1
        return f'{base}_{self.uid}'

    def vm_reset(self):
        self.vm = []

    def vm_wait(self, tag, extra=''):
        idx = [i for i, t in enumerate(self.vm) if t == tag]
        assert idx, f'no outstanding op with tag {tag}'
        n0 = sum(1 for t in self.vm[idx[-1] + 1:] if t != 'zmark')
        n = min(n0, 63)
        self(f's_waitcnt vmcnt({n}){extra}')
        self.vm = self.vm[idx[-1] + 1:]

    def vm_wait_all(self, extra=''):
        self(f's_waitcnt vmcnt(0){extra}')
        self.vm = []

    def _pad_linear(self):
        out = []
        for it in self.items:
            if isinstance(it, Ins):
                req = 0
                dist = 0
                for p in reversed(out):
                    if not isinstance(p, Ins):
                        continue
                    if dist >= 14:
                        break
                    if p.op in ('s_branch', 's_endpgm'):
                        break
                    k = need(p, it) - dist
                    req = max(req, k)
                    dist += p.ws
                if req > 0:
                    out.append(Ins(f's_nop {req - 1}'))
            out.append(it)
        self.items = out

    def _pad_branches(self):
        labels = {it[1]: i for i, it in enumerate(self.items) if isinstance(it, tuple) and it[0] == 'label'}
        i = 0
        inserts = []
        for i, it in enumerate(self.items):
            if isinstance(it, Ins) and it.kind == 'branch' and it.target in labels:
                pre = []
                d = 0
                for p in reversed(self.items[:i + 1]):
                    if isinstance(p, Ins):
                        if p is not it and p.op in ('s_branch', 's_endpgm'):
                            break
                        pre.append(p)
                        d += p.ws
                        if d >= 14:
                            break
                post = []
                d = 0
                for c in self.items[labels[it.target]:]:
                    if isinstance(c, Ins):
                        post.append(c)
                        d += c.ws
                        if d >= 14 or c.op in ('s_branch', 's_endpgm'):
                            break
                req = 0
                dpost = 0
                for c in post:
                    dpre = 0
                    for p in pre:
                        k = need(p, c) - (dpre + dpost)
                        req = max(req, k)
                        dpre += p.ws
                    dpost += c.ws
                if req > 0:
                    inserts.append((i, req))
        for i, req in reversed(inserts):
            self.items.insert(i, Ins(f's_nop {req - 1}'))

    def text(self):
        self._pad_linear()
        self._pad_branches()
        lines = []
        for it in self.items:
            if isinstance(it, Ins):
                lines.append('    ' + it.text)
            elif it[0] == 'label':
                lines.append(it[1] + ':')
            else:
                lines.append(it[1])
        return '\n'.join(lines) + '\n'

    def max_regs(self):
        mv = ma = ms = -1
        for it in self.items:
            if isinstance(it, Ins):
                for x in it.w | it.r:
                    if isinstance(x, tuple):
                        if x[0] == 'v':
                            mv = max(mv, x[1])
                        elif x[0] == 'a':
                            ma = max(ma, x[1])
                        else:
                            ms = max(ms, x[1])
        return mv, ma, ms


class RegAlloc:
    def __init__(self, f, start, limit):
        self.f = f
        self.n = start
        self.limit = limit

    def get(self, cnt=1, align=1):
        self.n = (self.n + align - 1) // align * align
        b = self.n
        self.n += cnt
        assert self.n <= self.limit, f'out of {self.f} regs'
        return b


def vr(b, n=1, f='v'):
    return f'{f}{b}' if n == 1 else f'{f}[{b}:{b + n - 1}]'


def sr(b, n=1):
    return vr(b, n, 's')


def ar(b, n=1):
    return vr(b, n, 'a')
```

```python
import os
from asmlib import *
from layout import *
from k1 import load_args, srd, ln_stats, spread, LOG2E, P_X, P_WQKV, P_WO, P_W1, P_W2, P_OUT, P_DBG, P_WS
from k234 import xsum_g, cg_blocks, M16, BIG

KG_LDS = 163840
RB = 81920
SA = 143360
P2L = 102400
OP_OFF = PQ_OFF
FL_C, FL_O, FL_KV, FL_RP, FL_RP2 = 0, 64, 96, 104, 112


def E(name, default):
    return int(os.environ.get(name, str(default)))


def R(f, b, n=4):
    return f'{f}[{b}:{b + n - 1}]'


def sig5(T):
    cg, rel = T // 5, T % 5
    return cg, ((4 if rel == 0 else rel - 1) if cg & 1 else rel)


def kg_table():
    bp = blk_pos()
    inv = {}
    for j in range(16):
        for sg, T in enumerate(slot_tiles(w1_t0(j), w1_cnt(j), 7)):
            if T is not None:
                inv[T] = (j, sg)

    def w2u(u, w):
        ks, nb = u // 10, u % 10
        cg, sg = sig5(4 * nb + w)
        return 32 * ks * 1280 + 128 * nb, W2P_OFF + cg * W2G + bp[ks] * 5120 + sg * 1024
    tab = []
    for r in range(256):
        for w in range(4):
            if r < 200:
                ks, nb = r // 10, r % 10
                cg, sg = sig5(4 * nb + w)
                e = [32 * ks * 1280 + 128 * nb, WOP_OFF + cg * 102400 + ks * 5120 + sg * 1024]
            else:
                e = list(w2u(484 + r - 200, w))
            if r < 135:
                p, nb = r // 27, r % 27
                j, sg = inv[4 * nb + w]
                e += [(128 * p + 32 * i) * 3456 + 128 * nb for i in range(4)]
                e += [W1P_OFF + w1_frag_off(j, 4 * p + i, sg) for i in range(4)]
                e.append(CS1_OFF + p * CS1P + (j * 7 + sg) * 128)
            else:
                us = [w2u(4 * (r - 135) + i, w) for i in range(4)]
                e += [u[0] for u in us] + [u[1] for u in us] + [BIG]
            e += [0] * (16 - len(e))
            tab.append(e)
    return tab


def lane_mask(fn):
    m = 0
    for l in range(64):
        if fn(l >> 4, l & 15):
            m |= 1 << l
    return m


def set_exec(m):
    return [f's_mov_b32 exec_lo, 0x{m & 0xffffffff:x}', f's_mov_b32 exec_hi, 0x{m >> 32:x}']


def gen_kg(a, name):
    sX, sW, sWS, sR = 36, 40, 44, 48
    sO = sR
    sa = RegAlloc('s', 52, 76)
    sTab = 4
    sP = sa.get(8, 4)
    sWv = sa.get(); sRh = sa.get(); sCh = sa.get(); sR1 = sa.get(); sHg = sa.get()
    sT0 = sa.get(); sT1 = sa.get(); sT2 = sa.get(); sT3 = sa.get()
    sKc = sa.get(); sSA = sa.get(); sSB = sa.get(); sMA = sa.get(); sMB = sa.get()
    sFw = sa.get(); sCnt = sa.get()
    sM0, sM1, sM2 = 22, 34, 28
    sRb, sCg, sPb, sSb, sJ, sC, sOa, sOb = [sP + i for i in range(8)]
    sW1, sW1m, sW2, sA, sB = sKc, sSA, sSB, sMA, sMB
    sH, sHs, sA4 = sRh, sCh, sR1
    sC3, sF3 = sTab, sTab + 1
    sFc = sHg
    sM0x = sP
    sRpc = 3
    WS = f's[{sWS}:{sWS + 3}]'
    lapn = [0]
    LSET = os.environ.get('G_LAPS', 'A')

    def lap(kind='A'):
        if any(k_ in LSET for k_ in kind) and lapn[0] < 14:
            a.slap(lapn[0])
            lapn[0] += 1

    vL, vG, vR, vL16, vL16b, vL128 = 1, 2, 3, 4, 5, 6
    vT = [7, 8, 9, 10, 11]
    vOne, vZero = vT[3], vT[4]
    hres = 12
    X, Y, Z = 24, 104, 176
    Lend = name + '_end'
    a.raw(f'.globl {name}\n.p2align 8\n.type {name},@function')
    a.label(name)
    a('s_cmp_ge_u32 s2, 256')
    a(f's_cbranch_scc1 {Lend}')
    a.stamp(0)
    load_args(a)
    a(f'v_and_b32 v{vL}, 63, v0')
    a(f'v_lshrrev_b32 v{vT[0]}, 6, v0')
    a(f'v_readfirstlane_b32 s{sWv}, v{vT[0]}')
    a(f'v_lshrrev_b32 v{vG}, 4, v{vL}')
    a(f'v_and_b32 v{vR}, 15, v{vL}')
    a(f's_lshr_b32 s{sRh}, s{sWv}, 1')
    a(f's_and_b32 s{sCh}, s{sWv}, 1')
    a(f's_getpc_b64 s[{sM1}:{sM1 + 1}]')
    a.label(name + '_pc')
    a(f's_mov_b64 s[{sM0x}:{sM0x + 1}], s[{sM1}:{sM1 + 1}]')
    a(f's_lshl_b32 s{sT0}, s2, 2')
    a(f's_add_u32 s{sT0}, s{sT0}, s{sWv}')
    a(f's_lshl_b32 s{sT0}, s{sT0}, 6')
    a(f's_add_u32 s{sM1}, s{sM1}, {name}_tab-{name}_pc')
    a(f's_addc_u32 s{sM1 + 1}, s{sM1 + 1}, 0')
    a(f's_add_u32 s{sM1}, s{sM1}, s{sT0}')
    a(f's_addc_u32 s{sM1 + 1}, s{sM1 + 1}, 0')
    a(f's_and_b32 s{sT0}, s2, 7')
    a(f's_lshr_b32 s{sT1}, s2, 3')
    a(f's_lshr_b32 s{sT2}, s{sT0}, 1')
    a(f's_lshl_b32 s{sR1}, s{sT2}, 3')
    a(f's_lshr_b32 s{sT3}, s{sT1}, 2')
    a(f's_add_u32 s{sR1}, s{sR1}, s{sT3}')
    a(f's_and_b32 s{sT0}, s{sT0}, 1')
    a(f's_lshl_b32 s{sHg}, s{sT0}, 2')
    a(f's_and_b32 s{sT1}, s{sT1}, 3')
    a(f's_add_u32 s{sHg}, s{sHg}, s{sT1}')
    ROT = E('G_ROT', 1)
    a(f's_add_u32 s{sKc}, s{sT3}, s{sT1}')
    if ROT == 1:
        a(f's_lshl_b32 s{sKc}, s{sKc}, 1')
        a(f's_add_u32 s{sKc}, s{sKc}, s{sT2}')
    elif ROT == 2:
        a(f's_and_b32 s{sKc}, s{sKc}, 1')
        a(f's_mul_i32 s{sKc}, s{sKc}, 5')
        a(f's_add_u32 s{sKc}, s{sKc}, s{sT2}')
    elif ROT == 3:
        a(f's_and_b32 s{sKc}, s{sKc}, 3')
        a(f's_mul_i32 s{sKc}, s{sKc}, 5')
        a(f's_lshr_b32 s{sKc}, s{sKc}, 1')
        a(f's_and_b32 s{sT0}, s{sT2}, 1')
        a(f's_add_u32 s{sKc}, s{sKc}, s{sT0}')
    elif ROT == 4:
        a(f's_mul_i32 s{sKc}, s{sT2}, 5')
        a(f's_lshr_b32 s{sKc}, s{sKc}, 1')
    elif ROT == 5:
        a(f's_add_u32 s{sKc}, s{sKc}, s{sT2}')
    else:
        a(f's_mov_b32 s{sKc}, 0')
    for _ in range(2):
        a(f's_sub_u32 s{sT0}, s{sKc}, 10')
        a(f's_cmp_ge_u32 s{sKc}, 10')
        a(f's_cselect_b32 s{sKc}, s{sT0}, s{sKc}')
    va = RegAlloc('v', 24, 256)
    vOA = va.get(2); vOB = va.get(5); vOQ = va.get(5); vRP = va.get(); vRT = va.get()
    t = [hres + i for i in range(6)]
    a(f's_lshl_b32 s{sT1}, s{sWv}, 4')
    a(f'v_lshrrev_b32 v{t[0]}, 3, v{vL}')
    a(f'v_add_u32 v{t[0]}, s{sT1}, v{t[0]}')
    a(f'v_and_b32 v{t[1]}, 7, v{vL}')
    a(f'v_xor_b32 v{t[2]}, v{vG}, v{t[1]}')
    a(f'v_lshlrev_b32 v{t[2]}, 4, v{t[2]}')
    a(f'v_mul_u32_u24 v{t[0]}, 1280, v{t[0]}')
    a(f'v_add_u32 v{vOA}, v{t[0]}, v{t[2]}')
    a(f'v_xor_b32 v{t[2]}, 64, v{t[2]}')
    a(f'v_add3_u32 v{vOA + 1}, v{t[0]}, v{t[2]}, 0') if False else None
    a(f'v_add_u32 v{vOA + 1}, v{t[0]}, v{t[2]}')
    a(f'v_add_u32 v{vOA + 1}, {10240 - 1024}, v{vOA + 1}')
    a(f's_mul_i32 s{sT3}, s{sWv}, {16 * 3840}')
    a(f's_movk_i32 s{sT2}, 3840')
    for j in range(5):
        a(f'v_add_u32 v{t[0]}, {64 * j}, v{vL}')
        a(f'v_mul_u32_u24 v{t[1]}, 3277, v{t[0]}')
        a(f'v_lshrrev_b32 v{t[1]}, 16, v{t[1]}')
        a(f'v_mul_u32_u24 v{t[2]}, 20, v{t[1]}')
        a(f'v_sub_u32 v{t[0]}, v{t[0]}, v{t[2]}')
        a(f'v_lshrrev_b32 v{t[2]}, 2, v{t[1]}')
        a(f'v_and_b32 v{t[2]}, 2, v{t[2]}')
        a(f'v_xor_b32 v{t[0]}, v{t[0]}, v{t[2]}')
        a(f'v_mul_u32_u24 v{t[2]}, 205, v{t[0]}')
        a(f'v_lshrrev_b32 v{t[2]}, 10, v{t[2]}')
        a(f'v_and_b32 v{t[3]}, 1, v{t[2]}')
        a(f'v_mul_u32_u24 v{t[3]}, 1200, v{t[3]}')
        a(f'v_lshl_add_u32 v{t[0]}, v{t[0]}, 4, v{t[3]}')
        a(f'v_lshrrev_b32 v{t[2]}, 1, v{t[2]}')
        a(f'v_mul_u32_u24 v{t[2]}, 80, v{t[2]}')
        a(f'v_sub_u32 v{t[0]}, v{t[0]}, v{t[2]}')
        a(f'v_mad_u32_u24 v{t[0]}, v{t[1]}, s{sT2}, v{t[0]}')
        a(f's_sub_u32 s{sT1}, s{sT3}, {1024 * (j & 3)}')
        a(f'v_add_u32 v{vOB + j}, s{sT1}, v{t[0]}')
    a(f's_lshl_b32 s{sMA}, s{sWv}, 11')
    a(f's_mul_i32 s{sMB}, s{sWv}, 5120')
    a(f's_add_u32 s{sMB}, s{sMB}, {RB}')
    a(f's_mul_i32 s{sT0}, s{sR1}, {64 * 1280}')
    a(f's_mul_i32 s{sT1}, s{sHg}, 160')
    a('s_waitcnt lgkmcnt(0)')
    a(f's_load_dwordx8 s[{sTab}:{sTab + 7}], s[{sM1}:{sM1 + 1}], 0')
    a(f's_load_dwordx4 s[{sTab + 8}:{sTab + 11}], s[{sM1}:{sM1 + 1}], 32')
    a(f's_add_u32 s{sX}, s{P_X}, s{sT0}')
    a(f's_addc_u32 s{sX + 1}, s{P_X + 1}, 0')
    a(f's_sub_u32 s{sX + 2}, {S * D * 2}, s{sT0}')
    a(f's_mov_b32 s{sX + 3}, 0x20000')
    a(f's_add_u32 s{sW}, s{P_WQKV}, s{sT1}')
    a(f's_addc_u32 s{sW + 1}, s{P_WQKV + 1}, 0')
    a(f's_sub_u32 s{sW + 2}, {D * 3 * D * 2}, s{sT1}')
    a(f's_mov_b32 s{sW + 3}, 0x20000')
    a.vm_reset()

    def stage_groups(n):
        g = []
        slot = RB_slot = (n % 3) * 20480
        adv = [f's_add_u32 s{sKc}, s{sKc}, 1', f's_cmp_eq_u32 s{sKc}, 10', f's_cselect_b32 s{sKc}, 0, s{sKc}']
        if n < 10:
            for j in range(2):
                pre = []
                if j == 0:
                    pre = [f's_lshl_b32 s{sSA}, s{sKc}, 7', f's_mul_i32 s{sSB}, s{sKc}, {64 * 3840}',
                           f's_add_u32 s{sSB}, s{sSB}, 1280', f's_add_u32 m0, s{sMA}, {8192 * n}'] + adv
                g.append((pre + [f'buffer_load_dwordx4 v{vOA + j}, s[{sX}:{sX + 3}], s{sSA} offen offset:{1024 * j} lds'], f's{n}'))
            vo = vOB
        else:
            vo = vOQ
        if n >= 13:
            for j in range(5):
                pre = []
                if j == 0:
                    pre = [f's_add_u32 s{sSB}, s{sKc}, s{sRh}', f's_cmp_eq_u32 s{sSB}, 10', f's_cselect_b32 s{sSB}, 0, s{sSB}',
                           f's_mul_i32 s{sSB}, s{sSB}, {64 * 3840}'] + adv + adv
                r = 200 + 20 * (n - 13) + 4 * j
                g.append((pre + [f'buffer_load_dwordx4 {R("a", r)}, v{vo + j}, s[{sW}:{sW + 3}], s{sSB} offen offset:{1024 * (j & 3)}'], f's{n}'))
            return g
        for j in range(5):
            pre = []
            if j == 0:
                if n >= 10:
                    pre = [f's_add_u32 s{sSB}, s{sKc}, s{sRh}', f's_cmp_eq_u32 s{sSB}, 10', f's_cselect_b32 s{sSB}, 0, s{sSB}',
                           f's_mul_i32 s{sSB}, s{sSB}, {64 * 3840}'] + adv + adv
                pre = pre + [f's_add_u32 m0, s{sMB}, {slot}', 's_nop 0']
            if j == 4:
                pre = [f's_add_u32 m0, s{sMB}, {slot + 4096}', 's_nop 0']
            elif j > 0:
                pre = [f's_add_u32 m0, s{sMB}, {slot}', 's_nop 0'] if j == 2 else []
            g.append((pre + [f'buffer_load_dwordx4 v{vo + j}, s[{sW}:{sW + 3}], s{sSB} offen offset:{1024 * (j & 3)} lds'], f's{n}'))
        return g

    def emit(g):
        for x in g[0]:
            a(x, tag=g[1])
    pend = []

    def pull(n=1):
        for _ in range(n):
            if pend:
                emit(pend.pop(0))

    def need_tag(tag, extra=''):
        while any(g[1] == tag for g in pend):
            pull()
        if tag in a.vm:
            a.vm_wait(tag, extra)
        elif extra:
            a('s_waitcnt' + extra)
    a.stamp(1)
    LIN = E('G_LIN', 0)

    def linear_pf():
        a(f's_lshl_b32 s{sT0}, s2, 2')
        a(f's_add_u32 s{sT0}, s{sT0}, s{sWv}')
        a(f's_mul_i32 s{sT1}, s{sT0}, 2560')
        a(f's_mul_i32 s{sT2}, s{sT0}, 2400')
        a(f'v_mul_u32_u24 v{t[0]}, 40, v{vL}')
        a(f'v_add_u32 v{t[1]}, s{sT1}, v{t[0]}')
        a(f'v_min_u32 v{t[0]}, 2396, v{t[0]}')
        a(f'v_add_u32 v{t[2]}, s{sT2}, v{t[0]}')
        a(f'global_load_dword a8, v{t[1]}, s[{P_X}:{P_X + 1}]', tag='lin')
        a(f'global_load_dword a9, v{t[2]}, s[{P_WQKV}:{P_WQKV + 1}]', tag='lin')
    if LIN == 1:
        linear_pf()
    for n in range(2):
        for g in stage_groups(n):
            emit(g)
        if LIN == 2 and n == 0:
            linear_pf()
    srd(a, sWS, P_WS, 0, WS_USED)
    a(f'v_lshlrev_b32 v{vL16}, 4, v{vL}')
    a(f'v_add_u32 v{vL16b}, 4096, v{vL16}')
    a(f'v_lshlrev_b32 v{vL128}, 7, v{vL}')
    a(f'v_mov_b32 v{vOne}, 1')
    a(f'v_mov_b32 v{vZero}, 0')
    vOnes = va.get(4, 4)
    vA = va.get(4); vB = va.get(4); vQ = va.get(2)
    fr = [va.get(40, 4) for _ in range(2)]
    acc = va.get(40, 4); s1 = va.get(8, 4); s2 = va.get(8, 4); cs = va.get(20, 4)
    pad_ = va.get(4, 4)
    qacc = va.get(24, 4); qcs = va.get(12, 4)
    vC = hres + 6
    for i in range(4):
        a(f'v_mov_b32 v{vOnes + i}, 0x3f803f80')
        a(f'v_mov_b32 v{pad_ + i}, 0')
    if E('G_CODEPF', 1):
        a(f's_lshr_b32 s{sT0}, s2, 3')
        a(f's_lshl_b32 s{sT0}, s{sT0}, 2')
        a(f's_add_u32 s{sT0}, s{sT0}, s{sWv}')
        a(f's_lshl_b32 s{sT0}, s{sT0}, 10')
        Lc = a.newlabel('Lc')
        a(f's_cmp_ge_u32 s{sT0}, {name}_tab-{name}_pc')
        a(f's_cbranch_scc1 {Lc}')
        a(f'v_lshl_add_u32 v{t[0]}, v{vL}, 4, s{sT0}')
        keep = list(a.vm)
        a(f'global_load_dwordx4 a[0:3], v{t[0]}, s[{sM0x}:{sM0x + 1}]')
        a.vm = keep
        a.label(Lc)
    a(f's_xor_b32 s{sT0}, s{sRh}, s{sCh}')
    a(f'v_lshrrev_b32 v{t[0]}, 3, v{vR}')
    a(f'v_lshlrev_b32 v{t[0]}, 10, v{t[0]}')
    a(f'v_and_b32 v{t[1]}, 7, v{vR}')
    a(f'v_lshl_add_u32 v{t[0]}, v{t[1]}, 7, v{t[0]}')
    a(f's_lshl_b32 s{sT1}, s{sRh}, 12')
    a(f'v_add_u32 v{t[0]}, s{sT1}, v{t[0]}')
    a(f'v_lshrrev_b32 v{t[1]}, 1, v{vR}')
    a(f'v_xor_b32 v{t[1]}, v{t[1]}, v{vG}')
    a(f's_lshl_b32 s{sT1}, s{sT0}, 2')
    a(f'v_xor_b32 v{t[1]}, s{sT1}, v{t[1]}')
    a(f'v_lshl_add_u32 v{vA}, v{t[1]}, 4, v{t[0]}')
    a(f'v_xor_b32 v{t[1]}, 4, v{t[1]}')
    a(f'v_lshl_add_u32 v{vA + 1}, v{t[1]}, 4, v{t[0]}')
    a(f'v_add_u32 v{vA + 2}, 40960, v{vA}')
    a(f'v_add_u32 v{vA + 3}, 40960, v{vA + 1}')
    a(f'v_bfe_u32 v{t[0]}, v{vL}, 2, 2')
    a(f'v_and_b32 v{t[1]}, 3, v{vL}')
    a(f'v_lshl_add_u32 v{t[2]}, v{vG}, 3, v{t[0]}')
    a(f'v_and_b32 v{t[3]}, 1, v{vG}')
    a(f'v_mul_u32_u24 v{t[2]}, 320, v{t[2]}')
    a(f'v_lshl_add_u32 v{t[2]}, v{t[1]}, 3, v{t[2]}')
    a(f's_mul_i32 s{sT1}, s{sCh}, 160')
    a(f's_add_u32 s{sT1}, s{sT1}, {RB}')
    a(f'v_add_u32 v{t[2]}, s{sT1}, v{t[2]}')
    a(f'v_lshlrev_b32 v{t[4]}, 5, v{t[3]}')
    a(f'v_sub_u32 v{t[5]}, v{t[2]}, v{t[4]}')
    a(f'v_add_u32 v{t[4]}, v{t[2]}, v{t[4]}')
    a(f's_cmp_eq_u32 s{sCh}, 0')
    a('s_cselect_b64 vcc, -1, 0')
    a(f'v_cndmask_b32 v{t[2]}, v{t[5]}, v{t[4]}, vcc')
    a(f'v_cndmask_b32 v{t[4]}, v{t[4]}, v{t[5]}, vcc')
    a(f's_mul_i32 s{sT1}, s{sT0}, 10240')
    a(f's_sub_u32 s{sT2}, 10240, s{sT1}')
    for o, sreg in ((0, sT1), (1, sT2)):
        a(f'v_add_u32 v{vB + 2 * o}, s{sreg}, v{t[2]}')
        a(f'v_add_u32 v{vB + 2 * o + 1}, s{sreg}, v{t[4]}')
    a('s_cmp_lt_u32 s2, 200')
    a(f's_cselect_b32 s{sR}, s{P_WO}, s{P_W2}')
    a(f's_cselect_b32 s{sR + 1}, s{P_WO + 1}, s{P_W2 + 1}')
    a(f's_mov_b32 s{sR + 2}, {D * F * 2}')
    a(f's_cselect_b32 s{sR + 2}, {D * D * 2}, s{sR + 2}')
    a(f's_mov_b32 s{sR + 3}, 0x20000')
    a(f's_movk_i32 s{sT0}, 1280')
    a('s_cmp_lt_u32 s2, 135')
    a(f's_cselect_b32 s{sT2}, 3456, s{sT0}')
    a(f's_lshl_b32 s{sT1}, s{sWv}, 3')
    a(f'v_lshrrev_b32 v{t[0]}, 3, v{vL}')
    a(f'v_add_u32 v{t[0]}, s{sT1}, v{t[0]}')
    a(f'v_and_b32 v{t[1]}, 7, v{vL}')
    a(f'v_lshlrev_b32 v{t[1]}, 4, v{t[1]}')
    a(f'v_mad_u32_u24 v{vRP}, v{t[0]}, s{sT2}, v{t[1]}')
    a(f'v_mad_u32_u24 v{t[0]}, v{t[0]}, s{sT0}, v{t[1]}')
    a(f's_lshl_b32 s{sT1}, s{sWv}, 10')
    a(f's_add_u32 m0, s{sT1}, {SA}')
    a('s_waitcnt lgkmcnt(0)')
    a(f'buffer_load_dwordx4 v{t[0]}, s[{sR}:{sR + 3}], s{sTab} offen lds', tag='r')
    a(f'v_lshlrev_b32 v{vRT}, 10, v{vG}')
    a(f'v_bfe_u32 v{t[5]}, v{vL}, 2, 2')
    a(f'v_lshl_add_u32 v{vRT}, v{t[5]}, 7, v{vRT}')
    a(f'v_and_b32 v{t[5]}, 3, v{vL}')
    a(f'v_lshl_add_u32 v{vRT}, v{t[5]}, 4, v{vRT}')
    a(f's_lshl_b32 s{sT1}, s{sRh}, 6')
    a(f's_lshl_b32 s{sT2}, s{sCh}, 3')
    a(f's_add_u32 s{sT1}, s{sT1}, s{sT2}')
    a(f's_add_u32 s{sT1}, s{sT1}, {RB}')
    a(f'v_add_u32 v{vRT}, s{sT1}, v{vRT}')
    a('s_cmp_lt_u32 s2, 135')
    a(f's_cselect_b32 s{sR}, s{P_W1}, s{P_W2}')
    a(f's_cselect_b32 s{sR + 1}, s{P_W1 + 1}, s{P_W2 + 1}')
    a(f's_mov_b32 s{sR + 2}, {D * F * 2}')
    REARLY = E('G_REARLY', 0)
    r2e = []
    for i in range(4):
        r2e.append(([f's_lshl_b32 s{sCnt}, s{sWv}, 10', f's_add_u32 m0, s{sCnt}, {SA + 4096 * (i + 1)}', 's_nop 0',
                     f'buffer_load_dwordx4 v{vRP}, s[{sR}:{sR + 3}], s{sTab + 2 + i} offen lds'], 'r'))
    if REARLY and E('G_REIT', -1) < 0:
        for g in r2e:
            emit(g)
    Lnz = a.newlabel('Lnz')
    a(f's_lshl_b32 s{sT1}, s{sHg}, 2')
    a(f's_add_u32 s{sT1}, s{sT1}, s{sWv}')
    a(f's_mul_i32 s{sT2}, s{sT1}, {KV_HS}')
    a(f's_add_u32 s{sT2}, s{sT2}, {KV_OFF}')
    a(f's_lshl_b32 s{sT3}, s{sT1}, 9')
    a(f's_add_u32 s{sT3}, s{sT3}, {FL_OFF}')
    a(f's_cmp_eq_u32 s{sR1}, 0')
    a(f's_cselect_b32 s{sT2}, s{sT2}, 0x{BIG:x}')
    a(f's_cselect_b32 s{sT3}, s{sT3}, 0x{BIG:x}')
    a(f'v_lshlrev_b32 v{t[0]}, 3, v{vL}')
    a(f'buffer_store_dwordx4 {R("v", pad_)}, v{vL16}, {WS}, s{sT2} offen sc1', tag='z')
    a(f'buffer_store_dwordx4 {R("v", pad_)}, v{vL16}, {WS}, s{sT2} offen offset:768 sc1', tag='z')
    a(f'buffer_store_dwordx2 {R("v", pad_, 2)}, v{t[0]}, {WS}, s{sT3} offen sc1', tag='z')
    if E('G_TLB', 1):
        hl = tlb_holes()
        for i, h in enumerate(hl):
            a(f's_mov_b32 s{sT1}, {h}')
            a(f'v_writelane_b32 v{t[0]}, s{sT1}, {i}')
        a(f's_mov_b64 exec, {(1 << len(hl)) - 1}')
        a(f'buffer_load_dword a4, v{t[0]}, {WS}, 0 offen', tag='tlb')
        a('s_mov_b64 exec, 3')
        a(f'v_mul_u32_u24 v{t[1]}, {S * D * 2 - 4}, v{vL}')
        a(f'global_load_dword a5, v{t[1]}, s[{P_OUT}:{P_OUT + 1}]', tag='tlb')
        a('s_mov_b64 exec, -1')
    a(f's_cmp_eq_u32 s{sWv}, 0')
    a(f's_mov_b32 s{sFw}, 0x{BIG:x}')
    a(f's_cselect_b32 s{sFw}, {FL_OFF}, s{sFw}')
    ones = R('v', vOnes)

    deferred = []

    def dq(x):
        deferred.append(x)
    dq(f's_mul_i32 s{sT3}, s{sCh}, {32 * 3840}')
    dq(f's_movk_i32 s{sT2}, 3840')
    for j in range(5):
        dq(f'v_add_u32 v{t[0]}, {64 * j}, v{vL}')
        dq(f'v_mul_u32_u24 v{t[1]}, 6554, v{t[0]}')
        dq(f'v_lshrrev_b32 v{t[1]}, 16, v{t[1]}')
        dq(f'v_mul_u32_u24 v{t[2]}, 10, v{t[1]}')
        dq(f'v_sub_u32 v{t[0]}, v{t[0]}, v{t[2]}')
        dq(f'v_and_b32 v{t[2]}, 0x13, v{t[1]}')
        dq(f'v_bfe_u32 v{t[3]}, v{t[1]}, 2, 1')
        dq(f'v_lshl_or_b32 v{t[2]}, v{t[3]}, 3, v{t[2]}')
        dq(f'v_bfe_u32 v{t[3]}, v{t[1]}, 3, 1')
        dq(f'v_lshl_or_b32 v{t[2]}, v{t[3]}, 2, v{t[2]}')
        dq(f'v_lshlrev_b32 v{t[0]}, 4, v{t[0]}')
        dq(f'v_mad_u32_u24 v{t[0]}, v{t[2]}, s{sT2}, v{t[0]}')
        dq(f's_sub_u32 s{sT1}, s{sT3}, {1024 * (j & 3)}')
        dq(f'v_add_u32 v{vOQ + j}, s{sT1}, v{t[0]}')
    dq(f'v_bfe_u32 v{t[0]}, v{vL}, 2, 2')
    dq(f'v_and_b32 v{t[1]}, 3, v{vL}')
    dq(f'v_and_b32 v{t[3]}, 1, v{vG}')
    dq(f's_xor_b32 s{sT0}, s{sRh}, s{sCh}')
    dq(f'v_lshl_add_u32 v{t[0]}, v{t[3]}, 2, v{t[0]}')
    dq(f'v_lshrrev_b32 v{t[3]}, 1, v{vG}')
    dq(f'v_lshl_add_u32 v{t[0]}, v{t[3]}, 4, v{t[0]}')
    dq(f'v_mul_u32_u24 v{t[0]}, 160, v{t[0]}')
    dq(f'v_lshl_add_u32 v{t[0]}, v{t[1]}, 3, v{t[0]}')
    dq(f's_mul_i32 s{sT1}, s{sCh}, 80')
    dq(f's_add_u32 s{sT1}, s{sT1}, {RB}')
    dq(f's_mul_i32 s{sT2}, s{sT0}, 5120')
    dq(f's_add_u32 s{sT3}, s{sT1}, s{sT2}')
    dq(f'v_add_u32 v{vQ}, s{sT3}, v{t[0]}')
    dq(f's_sub_u32 s{sT3}, s{sT1}, s{sT2}')
    dq(f's_add_u32 s{sT3}, s{sT3}, 5120')
    dq(f'v_add_u32 v{vQ + 1}, s{sT3}, v{t[0]}')
    for i, c in enumerate((LOG2E, LOG2E, 0x3f800000, 0x3f800000, 0x358637bd, 0x358637bd)):
        dq(f'v_mov_b32 v{vC + i}, 0x{c:x}')

    def a_read(dst, slot, o, tr):
        hi = slot >= 5
        return f'ds_read_b128 {R("v", dst)}, v{vA + 2 * hi + o} offset:{8192 * (slot - 5 * hi) + 2048 * tr}'

    def reads_kv(n, o):
        f = fr[o]
        lst = [a_read(f + 4 * tr, n, o, tr) for tr in range(2)]
        for tc in range(5):
            for j in range(2):
                b = f + 8 + 4 * tc + 2 * j
                lst.append(f'ds_read_b64_tr_b16 {R("v", b, 2)}, v{vB + 2 * o + (tc & 1)} offset:{(n % 3) * 20480 + 32 * tc + 1280 * j}')
        return lst

    def mf_kv(n, o, extras_first=False):
        f = fr[o]
        A = lambda tr: R('v', f + 4 * tr)
        B = lambda tc: R('v', f + 8 + 4 * tc)
        z = lambda d, first: '0' if first else R('v', d)
        lst, ex = [], []
        for tc in range(5):
            for tr in range(2):
                d = acc + 4 * (tr * 5 + tc)
                lst.append(f'{M16} {R("v", d)}, {A(tr)}, {B(tc)}, {z(d, n == 0 and o == 0)}')
        if o == 0:
            for tr in range(2):
                ex.append(f'{M16} {R("v", s1 + 4 * tr)}, {A(tr)}, {ones}, {z(s1 + 4 * tr, n == 0)}')
                ex.append(f'{M16} {R("v", s2 + 4 * tr)}, {A(tr)}, {A(tr)}, {z(s2 + 4 * tr, n == 0)}')
        else:
            for tc in range(5):
                ex.append(f'{M16} {R("v", cs + 4 * tc)}, {ones}, {B(tc)}, {z(cs + 4 * tc, n == 0)}')
        return ex + lst if extras_first else lst + ex

    def sched(ms, first, later, start=1, per=1):
        n = len(ms)
        first = list(first)
        pos = {}
        for k, g in enumerate(later):
            pos.setdefault(min(n - 1, start + (k * (n - start)) // max(1, len(later))), []).append(g)
        for k, m in enumerate(ms):
            a(m)
            for _ in range(per):
                if first:
                    a(first.pop(0))
            for g in pos.get(k, []):
                if isinstance(g, tuple):
                    emit(g)
                else:
                    for x in g:
                        a(x)
        for x in first:
            a(x)

    def publish(sOff, line, tag, barrier=True):
        if tag in a.vm:
            a.vm_wait(tag)
        if barrier:
            a('s_barrier')
        a('s_mov_b64 exec, 1')
        a(f'buffer_atomic_add v{vOne}, v{vZero}, {WS}, s{sOff} offen offset:{128 * line} sc1', tag='flag')
        a('s_mov_b64 exec, -1')

    def poll_issue(sOff, line, nl=1):
        a(f's_mov_b64 exec, {(1 << nl) - 1}')
        a(f'buffer_load_dword v{vT[1]}, v{vL128}, {WS}, s{sOff} offen offset:{128 * line} sc1', tag='poll')
        a('s_mov_b64 exec, -1')

    def poll_wait(sOff, line, expect, nl=1, barrier=True):
        Lp = a.newlabel('Lp'); Lok = a.newlabel('Lok')
        keep = list(a.vm)
        a(f's_cmp_lg_u32 s{sWv}, 0')
        a(f's_cbranch_scc1 {Lok}')
        a.vm_wait('poll')
        a(f's_mov_b32 s{sCnt}, 0')
        a(f's_mov_b64 exec, {(1 << nl) - 1}')
        a.label(Lp)
        a(f'v_cmp_gt_u32 vcc, {expect}, v{vT[1]}')
        a(f's_add_u32 s{sCnt}, s{sCnt}, 1')
        a('s_cmp_eq_u64 vcc, 0')
        a(f's_cbranch_scc1 {Lok}')
        a(f's_cmp_ge_u32 s{sCnt}, 200000')
        a(f's_cbranch_scc1 {Lok}')
        a('s_sleep 1')
        a(f'buffer_load_dword v{vT[1]}, v{vL128}, {WS}, s{sOff} offen offset:{128 * line} sc1')
        a('s_waitcnt vmcnt(0)')
        a(f's_branch {Lp}')
        a.label(Lok)
        a.vm = keep
        a('s_mov_b64 exec, -1')
        if barrier:
            a('s_barrier')

    ZP_IT = E('G_ZPIT', 5)
    aRP = 240

    def zero_poll():
        Lz = a.newlabel('Lzq')
        keep = list(a.vm)
        a(f's_cmp_lg_u32 s{sWv}, 0')
        a(f's_cbranch_scc1 {Lz}')
        a('s_mov_b32 exec_hi, 0')
        a(f'global_load_dword v{vT[2]}, v{t[5]}, s[{P_DBG}:{P_DBG + 1}] offset:128 sc1')
        a('s_mov_b64 exec, -1')
        a.label(Lz)
        a.vm = keep + ['zmark']
        a.vm_mark = True

    def zero_check():
        Lp = a.newlabel('Lzp'); Lok = a.newlabel('Lzok')
        assert 'zmark' not in a.vm
        keep = list(a.vm)
        a(f's_cmp_lg_u32 s{sWv}, 0')
        a(f's_cbranch_scc1 {Lok}')
        a(f's_mov_b32 s{sCnt}, 0')
        a('s_mov_b32 exec_hi, 0')
        a.label(Lp)
        a(f'v_cmp_ne_u32 vcc, 1, v{vT[2]}')
        a(f's_add_u32 s{sCnt}, s{sCnt}, 1')
        a('s_cmp_eq_u64 vcc, 0')
        a(f's_cbranch_scc1 {Lok}')
        a(f's_cmp_ge_u32 s{sCnt}, 200000')
        a(f's_cbranch_scc1 {Lok}')
        a('s_sleep 2')
        a(f'global_load_dword v{vT[2]}, v{t[5]}, s[{P_DBG}:{P_DBG + 1}] offset:128 sc1')
        a('s_waitcnt vmcnt(0)')
        a(f's_branch {Lp}')
        a.label(Lok)
        a.vm = keep
        a('s_mov_b64 exec, -1')

    ST1, ST2, CSP, AA, BB, QCS, KVA = SA, SA + 512, SA + 1024, SA + 2304, SA + 2560, SA + 2816, SA + 4096
    sg2 = stage_groups(2)
    for g in sg2[:4]:
        emit(g)
    a.stamp(2)
    a.vm_wait('s0', ' lgkmcnt(0)')
    a('s_barrier')
    a.stamp(3)
    for x in reads_kv(0, 0):
        a(x)
    carry = sg2[4:]
    R2_IT = E('G_R2IT', 2)
    rpr = fr[0] + 28
    rpe = [fr[0] + 32, fr[0] + 36, fr[1] + 28, fr[1] + 32]
    rpd = fr[1] + 36
    pairs = [(0, 2), (0, 3), (1, 2), (1, 3), (1, 4), (2, 3), (2, 4)]
    cp, ad, vSa, vSc = fr[1] + 28, fr[1] + 31, fr[1] + 38, fr[1] + 39
    rpz = fr[0] + 32
    ep_addr = [f's_mul_i32 s{sT3}, s{sWv}, {2 * KV_HS}', f's_add_u32 s{sT3}, s{sT3}, {KVA}']
    for tk in range(3):
        ep_addr += [f'v_add_u32 v{t[2]}, {4 * tk}, v{vG}', f'v_mul_u32_u24 v{t[2]}, 336, v{t[2]}', f'v_add_u32 v{cp + tk}, s{sT3}, v{t[2]}']
        if tk == 1:
            ep_addr += [f'v_min_u32 v{t[3]}, 1, v{vG}', f'v_mul_u32_u24 v{t[3]}, {KV_HS - 1680}, v{t[3]}', f'v_add_u32 v{cp + tk}, v{cp + tk}, v{t[3]}']
        if tk == 2:
            ep_addr += [f'v_add_u32 v{cp + tk}, {KV_HS - 1680}, v{cp + tk}']
    for tv in range(2, 5):
        x = rpz + tv - 2
        m4 = lane_mask(lambda g, j: ((16 * tv + j - 40) % 20) % 5 == 4)
        ep_addr += [f'v_add_u32 v{x}, {(16 * tv - 40) & 0xffffffff}, v{vR}', f'v_subrev_u32 v{t[2]}, 20, v{x}',
                    f'v_min_u32 v{x}, v{x}, v{t[2]}', f'v_mul_u32_u24 v{t[2]}, 205, v{x}', f'v_lshrrev_b32 v{t[2]}, 10, v{t[2]}',
                    f'v_sub_u32 v{x}, v{x}, v{t[2]}', f'v_add_u32 v{t[2]}, 16, v{t[2]}',
                    f's_mov_b32 s{sM0}, 0x{m4 & 0xffffffff:x}', f's_mov_b32 s{sM0 + 1}, 0x{m4 >> 32:x}',
                    f'v_cndmask_b32 v{x}, v{x}, v{t[2]}, s[{sM0}:{sM0 + 1}]', f'v_lshlrev_b32 v{x}, 4, v{x}']
    for n, (tk, tv) in enumerate(pairs):
        ep_addr.append(f'v_add_u32 v{ad + n}, v{cp + tk}, v{rpz + tv - 2}')
    ep_addr += [f's_lshl_b32 s{sT3}, s{sRh}, 7', f's_add_u32 s{sT3}, s{sT3}, {AA}', f'v_lshl_add_u32 v{vSa}, v{vG}, 4, s{sT3}',
                f's_mul_i32 s{sT3}, s{sCh}, 320', f's_add_u32 s{sT3}, s{sT3}, {CSP}', f'v_lshl_add_u32 v{vSc}, v{vR}, 2, s{sT3}']
    for it in range(10):
        last = it == 9
        later = list(carry)
        if it == E('G_ZFIT', 2):
            later.append(('zf', 'zf'))
        if it == R2_IT + 1:
            later.append(([f'buffer_store_dwordx4 {R("v", rpr)}, v{vL16}, {WS}, s{sTab + 1} offen sc1'], 'rst'))
            if REARLY:
                for i in range(4):
                    later.append(([f'buffer_store_dwordx4 {R("v", rpe[i])}, v{vL16}, {WS}, s{sTab + 6 + i} offen sc1'], 'rst'))
                later.append([f'{M16} {R("v", rpd)}, {R("v", rpe[i])}, {ones}, {"0" if i == 0 else R("v", rpd)}' for i in range(4)])
        if it == ZP_IT + 2:
            later.append(('zchk', 'zchk'))
        g1 = []
        if last:
            g1 = [[f's_mov_b32 s{sM0}, 0x22222222', f's_mov_b32 s{sM0 + 1}, 0x22222222', f's_mov_b32 s{sM1}, 0x44444444',
                   f's_mov_b32 s{sM1 + 1}, 0x44444444', 's_mov_b32 vcc_lo, 0x88888888', 's_mov_b32 vcc_hi, 0x88888888',
                   f's_lshl_b32 s{sT1}, s{sCh}, 8', f's_lshl_b32 s{sT2}, s{sRh}, 7', f's_add_u32 s{sT1}, s{sT1}, s{sT2}',
                   f's_add_u32 s{sT1}, s{sT1}, {SA}',
                   f'v_lshl_add_u32 v{t[0]}, v{vR}, 2, s{sT1}', f'v_lshl_add_u32 v{t[1]}, v{vG}, 4, s{sT1}']]
            for tr in range(2):
                d = s2 + 4 * tr
                g1.append([f'v_cndmask_b32 v{d}, v{d}, v{d + 1}, s[{sM0}:{sM0 + 1}]',
                           f'v_cndmask_b32 v{d}, v{d}, v{d + 2}, s[{sM1}:{sM1 + 1}]',
                           f'v_cndmask_b32 v{d}, v{d}, v{d + 3}, vcc'])
            w = ['s_mov_b32 exec_lo, 0x00F0000F', 's_mov_b32 exec_hi, 0xF0000F00']
            w += [f'ds_write_b32 v{t[0]}, v{s2 + 4 * tr} offset:{512 + 64 * tr}' for tr in range(2)]
            w += ['s_mov_b32 exec_lo, 0x00010001', 's_mov_b32 exec_hi, 0x00010001']
            w += [f'ds_write_b128 v{t[1]}, {R("v", s1 + 4 * tr)} offset:{64 * tr}' for tr in range(2)]
            w += ['s_mov_b64 exec, -1']
            g1.append(w)
        a('s_waitcnt lgkmcnt(0)')
        zf = [g for g in later if g == ('zf', 'zf')]
        zchk = [g for g in later if g == ('zchk', 'zchk')]
        later = [g for g in later if g not in (('zf', 'zf'), ('zchk', 'zchk'))]
        if last:
            ms = mf_kv(it, 0, True)
            sched(ms[:8], reads_kv(it, 1), later)
            sched(ms[8:], [], g1, start=2)
        else:
            if it < 2:
                later = later + [deferred[k:k + 3] for k in range(0, 27, 3)]
                deferred = deferred[27:]
            sched(mf_kv(it, 0), reads_kv(it, 1), later, start=E('G_KST', 4), per=E('G_KPER', 2))
        if zf:
            Lz = a.newlabel('Lz')
            assert 'z' not in a.vm
            a(f's_cmp_lg_u32 s{sR1}, 0')
            a(f's_cbranch_scc1 {Lz}')
            a(f's_lshl_b32 s{sT1}, s{sHg}, 2')
            a(f's_add_u32 s{sT1}, s{sT1}, s{sWv}')
            a(f's_lshl_b32 s{sT1}, s{sT1}, 2')
            a(f'v_mov_b32 v{t[0]}, s{sT1}')
            a('s_mov_b64 exec, 1')
            keep = list(a.vm)
            a(f'global_store_dword v{t[0]}, v{vOne}, s[{P_DBG}:{P_DBG + 1}] offset:128 sc1')
            a.vm = keep
            a('s_mov_b64 exec, -1')
            a.label(Lz)
        if it == R2_IT:
            a.vm_wait('r') if 'r' in a.vm else None
        if not last:
            need_tag(f's{it + 1}', ' lgkmcnt(0)')
        else:
            a('s_waitcnt lgkmcnt(0)')
        if zchk:
            zero_check()
            assert 'rst' not in a.vm
        a('s_barrier')
        if it == ZP_IT:
            a(f'v_lshlrev_b32 v{t[5]}, 2, v{vL}')
            zero_poll()
        if zchk:
            a(f's_and_b32 s{sT1}, s2, 7')
            a(f's_lshl_b32 s{sT1}, s{sT1}, 7')
            a(f's_add_u32 s{sT1}, s{sT1}, {FL_RP * 128}')
            a(f's_add_u32 s{sT1}, s{sT1}, s{sFw}')
            publish(sT1, 0, 'rst', barrier=False)
        nx = stage_groups(it + 3)
        h = 4 if it + 3 < 10 else 3
        later = nx[:h]
        carry = nx[h:]
        first = reads_kv(it + 1, 0) if not last else []
        if it == R2_IT:
            later.append([f'ds_read_b64_tr_b16 {R("v", rpr + 2 * j, 2)}, v{vRT} offset:{SA - RB + 512 * j}' for j in range(2)])
            if REARLY:
                later.append([f'v_add_u32 v{t[3]}, {KVA - RB}, v{vRT}'])
                for i in range(4):
                    later.append([f'ds_read_b64_tr_b16 {R("v", rpe[i] + 2 * j, 2)}, v{t[3]} offset:{4096 * i + 512 * j}' for j in range(2)])
        if REARLY and it == R2_IT + 1:
            later.append(([f'v_lshlrev_b32 v{t[4]}, 4, v{vG}', f'v_lshl_add_u32 v{t[4]}, v{vR}, 6, v{t[4]}',
                           's_mov_b32 exec_lo, 0x00030003', 's_mov_b32 exec_hi, 0x00030003',
                           f'buffer_store_dwordx4 {R("v", rpd)}, v{t[4]}, {WS}, s{sTab + 10} offen sc1', 's_mov_b64 exec, -1'], 'rst'))
        if REARLY and it == E('G_REIT', -1):
            carry += r2e
        if it in (6, 7, 8):
            n_ = (len(ep_addr) + (8 - it)) // (9 - it)
            later += [ep_addr[k:k + 3] for k in range(0, n_, 3)]
            ep_addr = ep_addr[(n_ + 2) // 3 * 3:]
        if last:
            r2g = [([f'buffer_load_dwordx4 {R("a", aRP + 4 * i)}, v{vRP}, s[{sR}:{sR + 3}], s{sTab + 2 + i} offen'], 'r2') for i in range(4)]
            R2POS = E('G_R2POS', 2)
            if REARLY:
                r2g = []
            if R2POS == 0:
                pend += carry + stage_groups(13) + stage_groups(14) + r2g
                carry = []
            elif R2POS == 1:
                pend += carry + r2g + stage_groups(13) + stage_groups(14)
                carry = []
            elif R2POS == 2:
                pend += carry + stage_groups(13) + stage_groups(14)
                carry = []
            elif R2POS == 3:
                pend += carry
                r2g = stage_groups(13) + stage_groups(14) + r2g
                carry = []
            else:
                pend += carry + stage_groups(13)
                r2g = stage_groups(14) + r2g
                carry = []
        if last:
            e = fr[0]
            first = [f'v_lshlrev_b32 v{t[0]}, 2, v{vL}', f'v_add_u32 v{t[0]}, {SA}, v{t[0]}',
                     f'ds_read_b32 v{e}, v{t[0]}', f'ds_read_b32 v{e + 1}, v{t[0]} offset:256',
                     f'ds_read_b32 v{e + 2}, v{t[0]} offset:512', f'ds_read_b32 v{e + 3}, v{t[0]} offset:768']
            sub = Asm()
            sub('s_waitcnt lgkmcnt(0)')
            sub(f'v_add_f32 v{e}, v{e}, v{e + 1}')
            sub(f'v_add_f32 v{e + 2}, v{e + 2}, v{e + 3}')
            sub(f'v_mul_f32 v{e}, 0x3acccccd, v{e}')
            sub(f'v_mul_f32 v{e + 2}, 0x3acccccd, v{e + 2}')
            sub(f'v_fma_f32 v{e + 2}, -v{e}, v{e}, v{e + 2}')
            ln_stats(sub, e, e + 2, e + 1)
            st = [i.text for i in sub.items]
            g2 = []
            while st:
                g2.append(st[:4]); st = st[4:]
            cw = [f's_mul_i32 s{sT1}, s{sRh}, 640', f's_mul_i32 s{sT2}, s{sCh}, 320', f's_add_u32 s{sT1}, s{sT1}, s{sT2}',
                  f's_add_u32 s{sT1}, s{sT1}, {CSP}', f'v_lshl_add_u32 v{t[2]}, v{vR}, 2, s{sT1}', 's_mov_b64 exec, 0xffff']
            cw += [f'ds_write_b32 v{t[2]}, v{cs + 4 * tc} offset:{64 * tc}' for tc in range(5)] + ['s_mov_b64 exec, -1']
            g2.append(cw)
            g2.append([f'ds_write_b32 v{t[0]}, v{e + 1} offset:{AA - SA}', f'ds_write_b32 v{t[0]}, v{e} offset:{BB - SA}'])
            ms = mf_kv(it, 1, True)
            sched(ms[:7], first, later + carry)
            carry = []
            sched(ms[7:], [], g2, start=0)
        else:
            if it < 2:
                n_ = 27 if it == 0 else len(deferred)
                later = later + [deferred[k:k + 3] for k in range(0, n_, 3)]
                deferred = deferred[n_:]
            sched(mf_kv(it, 1), first, later, start=E('G_KST', 4), per=E('G_KPER', 2))
        lap('K')
    a.stamp(4)
    lap()
    a('s_waitcnt lgkmcnt(0)')
    a('s_barrier')
    ra, rb_, rc = fr[0], fr[0] + 8, fr[0] + 16
    for tc in range(5):
        a(f'ds_read_b32 v{rc + 2 * tc}, v{vSc} offset:{64 * tc}')
        a(f'ds_read_b32 v{rc + 2 * tc + 1}, v{vSc} offset:{640 + 64 * tc}')
    for tr in range(2):
        a(f'ds_read_b128 {R("v", ra + 4 * tr)}, v{vSa} offset:{64 * tr}')
        a(f'ds_read_b128 {R("v", rb_ + 4 * tr)}, v{vSa} offset:{256 + 64 * tr}')
    pull(2)
    a(f's_mov_b32 s{sM0}, 0x00ff00ff'); a(f's_mov_b32 s{sM0 + 1}, 0x00ff00ff')
    a('s_waitcnt lgkmcnt(0)')
    for tc in range(5):
        a(f'v_add_f32 v{rc + 2 * tc}, v{rc + 2 * tc}, v{rc + 2 * tc + 1}')
    pk = cs

    def phi_chain(d, u, p):
        return [f'v_pk_mul_f32 {R("v", u, 2)}, {R("v", d, 2)}, {R("v", vC, 2)}',
                f'v_pk_add_f32 {R("v", p, 2)}, {R("v", d, 2)}, {R("v", vC + 2, 2)}',
                f'v_exp_f32 v{u}, v{u}', f'v_exp_f32 v{u + 1}, v{u + 1}',
                f'v_med3_f32 v{u}, v{u}, v{p}, 1.0', f'v_med3_f32 v{u + 1}, v{u + 1}, v{p + 1}, 1.0',
                f'v_pk_add_f32 {R("v", u, 2)}, {R("v", u, 2)}, {R("v", vC + 4, 2)}']

    def weave(chains, k, pl=0):
        for b in range(0, len(chains), k):
            grp = chains[b:b + k]
            for i in range(max(len(c) for c in grp)):
                for c in grp:
                    if i < len(c):
                        a(c[i])
                if pl and i % pl == pl - 1:
                    pull()
    chains = []
    for tc in range(5):
        for tr in range(2):
            for h in range(2):
                d = acc + 4 * (tr * 5 + tc) + 2 * h
                w = fr[1] + 6 * (len(chains) % 4)
                c = [f'v_pk_mul_f32 {R("v", w, 2)}, {R("v", rb_ + 4 * tr + 2 * h, 2)}, {R("v", rc + 2 * tc, 2)} op_sel_hi:[1,0]',
                     f'v_pk_fma_f32 {R("v", d, 2)}, {R("v", d, 2)}, {R("v", ra + 4 * tr + 2 * h, 2)}, {R("v", w, 2)}']
                dst = pk + 4 * tc + 2 * tr + h
                if tc <= 2:
                    u, p = w + 2, w + 4
                    c += phi_chain(d, u, p)
                    if tc == 2:
                        c += [f'v_cndmask_b32 v{u}, v{d}, v{u}, s[{sM0}:{sM0 + 1}]', f'v_cndmask_b32 v{u + 1}, v{d + 1}, v{u + 1}, s[{sM0}:{sM0 + 1}]']
                    c.append(f'v_cvt_pk_bf16_f32 v{dst}, v{u}, v{u + 1}')
                else:
                    c.append(f'v_cvt_pk_bf16_f32 v{dst}, v{d}, v{d + 1}')
                chains.append(c)
    lap('F')
    weave(chains, 4, E('G_EPULL', 4))
    lap('F')
    kd = acc
    for n, (tk, tv) in enumerate(pairs):
        a(f'{M16} {R("v", kd + 4 * n)}, {R("v", pk + 4 * tk)}, {R("v", pk + 4 * tv)}, 0')
        if n % 3 == 2:
            pull()
    for tk in range(3):
        a(f'{M16} {R("v", kd + 28 + 4 * tk)}, {R("v", pk + 4 * tk)}, {ones}, 0')
    a(f's_mul_i32 s{sT1}, s{sWv}, {KV_HS}')
    a(f's_add_u32 s{sT2}, s{sT1}, {KVA}')
    a(f'v_add_u32 v{t[1]}, s{sT2}, v{t[5]}')
    a(f's_mul_i32 s{sT2}, s{sHg}, {4 * KV_HS}')
    a(f's_add_u32 s{sT1}, s{sT1}, s{sT2}')
    a(f's_add_u32 s{sT1}, s{sT1}, {KV_OFF}')
    for n, (tk, tv) in enumerate(pairs):
        m = lane_mask(lambda g, j: (4 * tk + g) < 10 and 0 <= (16 * tv + j - 40) and (4 * tk + g) // 5 == (16 * tv + j - 40) // 20)
        for x in set_exec(m):
            a(x)
        a(f'ds_write_b128 v{ad + n}, {R("v", kd + 4 * n)}')
    for tk in range(3):
        if tk != 1:
            for x in set_exec(lane_mask(lambda g, j: j == 0 and (4 * tk + g) < 10)):
                a(x)
        a(f'ds_write_b128 v{cp + tk}, {R("v", kd + 28 + 4 * tk)} offset:320')
    a('s_mov_b64 exec, -1')
    while pend:
        pull()
    lap('F')
    need_tag('s10', ' lgkmcnt(0)')
    lap('F')
    a('s_barrier')
    lap('F')
    kt = acc
    for i in range(7):
        a(f'ds_read_b32 v{kt + i}, v{t[1]} offset:{256 * i}')
        a(f'ds_read_b32 v{kt + 8 + i}, v{t[1]} offset:{256 * i + 4 * KV_HS}')

    TOFF = (0, 32, 48)

    def reads_q(m):
        f = fr[m & 1]
        n = 10 + (m >> 1)
        lst = []
        for o in range(2):
            b0 = f + 20 * o
            lst += [a_read(b0 + 4 * tr, m, o, tr) for tr in range(2)]
            for tc in range(3):
                for j in range(2):
                    lst.append(f'ds_read_b64_tr_b16 {R("v", b0 + 8 + 4 * tc + 2 * j, 2)}, v{vQ + o} offset:{(n % 3) * 20480 + (m & 1) * 10240 + 1280 * j + TOFF[tc]}')
        return lst

    def mf_q(m):
        f = fr[m & 1]
        lst = []
        for o in range(2):
            b0 = f + 20 * o
            if o == 0:
                for tc in range(3):
                    d = qcs + 4 * tc
                    lst.append(f'{M16} {R("v", d)}, {R("v", b0 + 8 + 4 * tc)}, {ones}, {"0" if m == 0 else R("v", d)}')
            for tc in range(3):
                for tr in range(2):
                    d = qacc + 4 * (tr * 3 + tc)
                    lst.append(f'{M16} {R("v", d)}, {R("v", b0 + 8 + 4 * tc)}, {R("v", b0 + 4 * tr)}, {"0" if m == 0 and o == 0 else R("v", d)}')
        return lst
    for i in range(7):
        a(f's_waitcnt lgkmcnt({12 - 2 * i})')
        a(f'v_add_f32 v{kt + i}, v{kt + i}, v{kt + 8 + i}')
        if i == 6:
            a('s_mov_b32 exec_hi, 0xf')
        a(f'buffer_atomic_add_f32 v{kt + i}, v{t[5]}, {WS}, s{sT1} offen offset:{256 * i}', tag='kva')
    a('s_mov_b64 exec, -1')
    for x in reads_q(0):
        a(x)
    qcarry = []
    if R2POS == 2:
        for g in r2g:
            emit(g)
    elif R2POS >= 3:
        qcarry = list(r2g)
    lap('AF')
    p2s = [f's_and_b32 s{sT0}, s2, 7', f's_lshr_b32 s{sT1}, s2, 3', f's_and_b32 s{sJ}, s{sT1}, 15', f's_lshr_b32 s{sT1}, s{sT1}, 4',
           f's_lshl_b32 s{sC}, s{sT0}, 1', f's_add_u32 s{sC}, s{sC}, s{sT1}', f's_and_b32 s{sCg}, s{sJ}, 7', f's_lshr_b32 s{sT1}, s{sJ}, 3',
           f's_lshl_b32 s{sRb}, s{sC}, 1', f's_add_u32 s{sRb}, s{sRb}, s{sT1}']
    sub = Asm()
    cg_blocks(sub, sCg, sPb, sSb, sT0)
    p2s += [i.text for i in sub.items]
    p2s += [f's_lshl_b32 s{sT0}, s{sRb}, 2', f's_add_u32 s{sT0}, s{sT0}, s{sWv}', f's_mul_i32 s{sT1}, s{sT0}, {16 * 1280}',
            f's_lshl_b32 s{sOa}, s{sPb}, 6', f's_add_u32 s{sOa}, s{sOa}, s{sT1}', f's_lshr_b32 s{sT2}, s{sSb}, 1',
            f's_lshl_b32 s{sT2}, s{sT2}, 6', f's_and_b32 s{sT3}, s{sSb}, 1', f's_lshl_b32 s{sT3}, s{sT3}, 3',
            f's_add_u32 s{sT2}, s{sT2}, s{sT3}', f's_add_u32 s{sOb}, s{sT2}, s{sT1}']
    for x in p2s:
        a(x)
    srd(a, sX, P_X, 0, S * D * 2)
    if REARLY:
        srd(a, sO, P_OUT, 0, S * D * 2)
    aWO = 0
    sWo = sM0
    a(f's_mul_i32 s{sWo}, s{sCg}, 102400')
    a(f's_mul_i32 s{sT2}, s{sWv}, 25600')
    a(f's_add_u32 s{sWo}, s{sWo}, s{sT2}')
    a(f's_add_u32 s{sWo}, s{sWo}, {WOP_OFF}')
    sKvc, sW2b = sM0 + 1, sM1 + 1
    a(f's_lshl_b32 s{sKvc}, s{sHg}, 7')
    a(f's_add_u32 s{sKvc}, s{sKvc}, {FL_KV * 128}')
    a(f's_add_u32 s{sKvc}, s{sKvc}, s{sFw}')
    a(f's_mul_i32 s{sW2b}, s{sCg}, {W2G}')
    a(f's_mul_i32 s{sT0}, s{sWv}, 5120')
    a(f's_add_u32 s{sW2b}, s{sW2b}, s{sT0}')
    a(f's_add_u32 s{sW2b}, s{sW2b}, {W2P_OFF}')

    def wo_groups():
        g = []
        for f in range(25):
            pre = [f's_add_u32 s{sWo}, s{sWo}, 4096'] if f and f % 4 == 0 else []
            g.append((pre + [f'buffer_load_dwordx4 {R("a", aWO + 4 * f)}, v{vL16}, {WS}, s{sWo} offen offset:{1024 * (f & 3)} sc1'], 'wo'))
        return g
    W2R = [('v', Z + 20 * i) for i in range(4)] + [('a', 160 + 20 * i) for i in range(4)]
    W2R += [('v', Y), ('v', Y + 20), ('v', Y + 40), ('v', Y), ('v', Z), ('v', Z + 20)]
    W2L = {8: SA, 9: 0, 10: 20480, 11: 40960}

    def w2l_groups(i):
        g = []
        for sg in range(5):
            pre = []
            if sg == 0:
                pre = [f's_add_u32 s{sM2}, s{sW2b}, {20480 * i}', f's_mul_i32 s{sCnt}, s{sWv}, 5120', f's_add_u32 m0, s{sCnt}, {W2L[i]}', 's_nop 0']
            if sg == 4:
                pre = [f's_mul_i32 s{sCnt}, s{sWv}, 5120', f's_add_u32 m0, s{sCnt}, {W2L[i] + 4096}', 's_nop 0']
            v, off = (vL16, 1024 * sg) if sg < 4 else (vL16b, 0)
            g.append((pre + [f'buffer_load_dwordx4 v{v}, {WS}, s{sM2} offen offset:{off} sc1 lds'], f'w2_{i}'))
        return g

    def w2_groups(i):
        f, r = W2R[i]
        g = []
        for sg in range(5):
            pre = []
            if sg == 0:
                pre = [f's_add_u32 s{sM2}, s{sW2b}, {20480 * i}']
                if i == 5:
                    pre += [f's_cmp_ge_u32 s{sWv}, 2', f's_cselect_b32 s{sM2}, 0x{BIG:x}, s{sM2}']
            v, off = (vL16, 1024 * sg) if sg < 4 else (vL16b, 0)
            g.append((pre + [f'buffer_load_dwordx4 {R(f, r + 4 * sg)}, v{v}, {WS}, s{sM2} offen offset:{off} sc1'], f'w2_{i}'))
        return g
    PUB_KV = E('G_PUBKV', 7)
    rq = acc + 16
    RLATE = E('G_RLATE', 0)
    RW_M = 99 if RLATE or REARLY else E('G_RWM', 5)
    wg_ = wo_groups()
    NW2Q = E('G_NW2Q', 0) if REARLY else 0
    for i in range(4, 4 + NW2Q):
        wg_ += w2_groups(i)
    pend += wg_[:E('G_WOQ', 10)]
    wo_late = wg_[E('G_WOQ', 10):]
    carry = []
    for m in range(10):
        a('s_waitcnt lgkmcnt(0)')
        later = list(carry)
        carry = []
        if m & 1:
            n = 10 + (m >> 1)
            if m == PUB_KV and 'kva' in a.vm:
                a.vm_wait('kva')
            if n + 1 <= 12:
                need_tag(f's{n + 1}')
            if m == 7:
                poll_wait(sRpc, 0, 32, nl=8, barrier=False)
            a('s_barrier')
            if m == PUB_KV:
                publish(sKvc, 0, 'kva', barrier=False)
            if 13 <= n + 2 <= 14:
                need_tag(f's{n + 2}')
                later.append([f'v_add_u32 v{t[0]}, s{sMB}, v{vL16}'])
                for j in range(5):
                    (later if j < 3 else carry).append([f'ds_write_b128 v{t[0]}, {R("a", 200 + 20 * (n + 2 - 13) + 4 * j)} offset:{((n + 2) % 3) * 20480 + 1024 * j}'])
        if qcarry:
            later += qcarry[:5]
            qcarry = qcarry[5:]
        if m == 2:
            later.append(([f's_add_u32 s{sRpc}, s{sFw}, {FL_RP * 128}', 's_mov_b64 exec, 0xff',
                           f'buffer_load_dword v{vT[1]}, v{vL128}, {WS}, s{sRpc} offen sc1', 's_mov_b64 exec, -1'], 'poll'))
        if m == RW_M:
            if 'r2' in a.vm:
                a.vm_wait('r2')
            later.append([f's_lshl_b32 s{sT1}, s{sWv}, 10', f's_add_u32 s{sT1}, s{sT1}, {KVA}', f'v_add_u32 v{t[3]}, s{sT1}, v{vL16}'])
            for i in range(4):
                (later if i < 2 else carry).append([f'ds_write_b128 v{t[3]}, {R("a", aRP + 4 * i)} offset:{4096 * i}'])
        if m == RW_M + 2:
            later.append([f'v_add_u32 v{t[3]}, {KVA - RB}, v{vRT}'])
            for i in range(4):
                later.append([f'ds_read_b64_tr_b16 {R("v", rq + 4 * i + 2 * j, 2)}, v{t[3]} offset:{4096 * i + 512 * j}' for j in range(2)])
        if m == RW_M + 3:
            for i in range(4):
                later.append(([f'buffer_store_dwordx4 {R("v", rq + 4 * i)}, v{vL16}, {WS}, s{sTab + 6 + i} offen sc1'], 'rst2'))
            later.append([f'{M16} {R("v", rq + 16)}, {R("v", rq + 4 * i)}, {ones}, {"0" if i == 0 else R("v", rq + 16)}' for i in range(4)])
        if m == RW_M + 4:
            later.append(([f'v_lshlrev_b32 v{t[4]}, 4, v{vG}', f'v_lshl_add_u32 v{t[4]}, v{vR}, 6, v{t[4]}',
                           's_mov_b32 exec_lo, 0x00030003', 's_mov_b32 exec_hi, 0x00030003',
                           f'buffer_store_dwordx4 {R("v", rq + 16)}, v{t[4]}, {WS}, s{sTab + 10} offen sc1', 's_mov_b64 exec, -1'], 'rst2'))
        if m == 9:
            cw = [f's_mul_i32 s{sT1}, s{sRh}, 384', f's_mul_i32 s{sT2}, s{sCh}, 192', f's_add_u32 s{sT1}, s{sT1}, s{sT2}',
                  f's_add_u32 s{sT1}, s{sT1}, {QCS}', f'v_lshl_add_u32 v{t[2]}, v{vG}, 4, s{sT1}',
                  's_mov_b32 exec_lo, 0x00010001', 's_mov_b32 exec_hi, 0x00010001']
            cw += [f'ds_write_b128 v{t[2]}, {R("v", qcs + 4 * tc)} offset:{64 * tc}' for tc in range(3)] + ['s_mov_b64 exec, -1']
        if m >= max(7, E('G_WOM', 7)):
            k = E('G_QPULL', 5)
            while pend and k > 0:
                later.append(pend.pop(0)); k -= 1
        nxt = reads_q(m + 1) if m < 9 else []
        if m == 9:
            ms = mf_q(m)
            sched(ms[:9], nxt, later)
            sched(ms[9:], [], [cw], start=2)
        else:
            sched(mf_q(m), nxt, later, start=E('G_QST', 6), per=2)
        lap('Q')
    lap()
    while pend:
        pull()
    if not REARLY:
        srd(a, sO, P_OUT, 0, S * D * 2)
    a('s_waitcnt lgkmcnt(0)')
    a('s_barrier')
    ra, rb_, rc = fr[0], fr[0] + 4, fr[0] + 8
    a(f's_lshl_b32 s{sT1}, s{sRh}, 7')
    a(f's_add_u32 s{sT1}, s{sT1}, {AA}')
    a(f'v_lshl_add_u32 v{t[0]}, v{vR}, 2, s{sT1}')
    a(f's_mul_i32 s{sT1}, s{sCh}, 192')
    a(f's_add_u32 s{sT1}, s{sT1}, {QCS}')
    a(f'v_lshl_add_u32 v{t[1]}, v{vG}, 4, s{sT1}')
    for tr in range(2):
        a(f'ds_read_b32 v{ra + 2 * tr}, v{t[0]} offset:{64 * tr}')
        a(f'ds_read_b32 v{rb_ + 2 * tr}, v{t[0]} offset:{256 + 64 * tr}')
    for tc in range(3):
        a(f'ds_read_b128 {R("v", rc + 4 * tc)}, v{t[1]} offset:{64 * tc}')
        a(f'ds_read_b128 {R("v", rc + 12 + 4 * tc)}, v{t[1]} offset:{384 + 64 * tc}')
    kraw = acc
    a(f'v_lshrrev_b32 v{t[0]}, 2, v{vR}')
    a(f'v_and_b32 v{t[1]}, 3, v{vR}')
    a(f'v_lshlrev_b32 v{t[2]}, 4, v{vR}')
    a(f'v_add_u32 v{t[3]}, 16, v{t[0]}')
    a(f'v_mov_b32 v{t[4]}, 20')
    a(f'v_cmp_eq_u32 vcc, 1, v{t[1]}')
    a(f'v_cndmask_b32 v{t[3]}, v{t[3]}, v{t[4]}, vcc')
    a(f'v_lshlrev_b32 v{t[3]}, 4, v{t[3]}')
    a(f'v_mul_u32_u24 v{t[0]}, 336, v{vG}')
    a(f'v_mov_b32 v{t[4]}, 0x{BIG:x}')
    a(f's_lshl_b32 s{sSB}, s{sHg}, 2')
    a(f's_lshl_b32 s{sT1}, s{sCh}, 1')
    a(f's_add_u32 s{sSB}, s{sSB}, s{sT1}')
    a(f's_mul_i32 s{sSB}, s{sSB}, {KV_HS}')
    a(f's_add_u32 s{sSB}, s{sSB}, {KV_OFF}')
    ka = s1
    for tau in range(2):
        rowok = lambda i: tau == 0 or (i & 3) < 2
        m = lane_mask(lambda g, i: rowok(i))
        a(f'v_add_u32 v{ka + 4 * tau}, v{t[0]}, v{t[2 + tau]}')
        a(f's_mov_b32 vcc_lo, 0x{m & 0xffffffff:x}'); a(f's_mov_b32 vcc_hi, 0x{m >> 32:x}')
        a(f'v_cndmask_b32 v{ka + 4 * tau}, v{t[4]}, v{ka + 4 * tau}, vcc')
        for gsel in range(2):
            m = lane_mask(lambda g, i: rowok(i) and g == gsel)
            a(f's_mov_b32 vcc_lo, 0x{m & 0xffffffff:x}'); a(f's_mov_b32 vcc_hi, 0x{m >> 32:x}')
            a(f'v_cndmask_b32 v{ka + 4 * tau + 1 + gsel}, v{t[4]}, v{t[2 + tau]}, vcc')
    a('s_waitcnt lgkmcnt(0)')
    for k in range(6):
        a(f'v_pk_add_f32 {R("v", rc + 2 * k, 2)}, {R("v", rc + 2 * k, 2)}, {R("v", rc + 12 + 2 * k, 2)}')
    pq = cs
    chains = []
    for tr in range(2):
        for tc in range(3):
            for h in range(2):
                d = qacc + 4 * (tr * 3 + tc) + 2 * h
                w = fr[1] + 6 * (len(chains) % 4)
                c = [f'v_pk_mul_f32 {R("v", w, 2)}, {R("v", rc + 4 * tc + 2 * h, 2)}, {R("v", rb_ + 2 * tr, 2)} op_sel_hi:[1,0]',
                     f'v_pk_fma_f32 {R("v", d, 2)}, {R("v", d, 2)}, {R("v", ra + 2 * tr, 2)}, {R("v", w, 2)} op_sel_hi:[1,0,1]']
                c += phi_chain(d, w + 2, w + 4)
                c.append(f'v_cvt_pk_bf16_f32 v{pq + 8 * tr + 2 * tc + h}, v{w + 2}, v{w + 3}')
                chains.append(c)
    weave(chains[:8], 4)
    poll_issue(sKvc, 0)
    weave(chains[8:], 4)
    lap('F')
    if 'rst2' in a.vm:
        a.vm_wait('rst2')
    if RLATE:
        if 'r2' in a.vm:
            a.vm_wait('r2')
        a(f's_lshl_b32 s{sT1}, s{sWv}, 10')
        a(f's_add_u32 s{sT1}, s{sT1}, {RB}')
        a(f'v_add_u32 v{t[0]}, s{sT1}, v{vL16}')
        for i in range(4):
            a(f'ds_write_b128 v{t[0]}, {R("a", aRP + 4 * i)} offset:{4096 * i}')
        a('s_waitcnt lgkmcnt(0)')
    lap('F')
    poll_wait(sKvc, 0, 32)
    lap('AF')
    for tau in range(2):
        b = kraw + 8 * tau
        a(f'buffer_load_dwordx4 {R("v", b)}, v{ka + 4 * tau}, {WS}, s{sSB} offen sc1', tag='kvl')
        a(f'buffer_load_dwordx4 {R("v", b + 4)}, v{ka + 4 * tau + 1}, {WS}, s{sSB} offen offset:{4 * 336} sc1', tag='kvl')
        b = kraw + 16 + 8 * tau
        a(f'buffer_load_dwordx4 {R("v", b)}, v{ka + 4 * tau + 2}, {WS}, s{sSB} offen offset:{KV_HS} sc1', tag='kvl')
        a(f'buffer_load_dwordx4 {R("v", b + 4)}, v{ka + 4 * tau}, {WS}, s{sSB} offen offset:{KV_HS + 336} sc1', tag='kvl')
    if RLATE:
        rq = qacc
        for i in range(4):
            for j in range(2):
                a(f'ds_read_b64_tr_b16 {R("v", rq + 4 * i + 2 * j, 2)}, v{vRT} offset:{4096 * i + 512 * j}')
    elif not REARLY:
        a(f's_and_b32 s{sT1}, s2, 7')
        a(f's_lshl_b32 s{sT1}, s{sT1}, 7')
        a(f's_add_u32 s{sT1}, s{sT1}, s{sRpc}')
        publish(sT1, FL_RP2 - FL_RP, 'rst2', barrier=False)
    if E('G_MAP3', 1):
        a(f's_and_b32 s{sT1}, s2, 7')
        a(f's_lshr_b32 s{sT2}, s2, 3')
        a(f's_lshr_b32 s{sC3}, s{sT1}, 1')
        a(f's_lshl_b32 s{sC3}, s{sC3}, 2')
        a(f's_lshr_b32 s{sT3}, s{sT2}, 3')
        a(f's_add_u32 s{sC3}, s{sC3}, s{sT3}')
        a(f's_and_b32 s{sT1}, s{sT1}, 1')
        a(f's_lshl_b32 s{sT1}, s{sT1}, 3')
        a(f's_and_b32 s{sT2}, s{sT2}, 7')
        a(f's_add_u32 s{sJ}, s{sT1}, s{sT2}')
    else:
        a(f's_mov_b32 s{sC3}, s{sC}')
    a(f's_lshl_b32 s{sF3}, s{sC3}, 9')
    a(f's_add_u32 s{sF3}, s{sF3}, s{sFw}')
    a(f's_lshl_b32 s{sW1m}, s{sWv}, 12')
    a(f's_mul_i32 s{sW1}, s{sJ}, 143360')
    a(f's_add_u32 s{sW1}, s{sW1}, s{sW1m}')
    a(f's_add_u32 s{sW1}, s{sW1}, {W1P_OFF}')

    sW1s = sTab + 2
    a(f's_and_b32 s{sT1}, s{sJ}, 7')
    a(f's_cmp_ge_u32 s{sT1}, 6')
    a(f's_cselect_b32 s{sW1s}, 0x{BIG:x}, s{sW1}')

    HROT = E('G_HROT', 0)
    sRo = sTab + 3
    a(f's_and_b32 s{sRo}, s{sJ}, {1 if HROT else 0}')
    a(f's_mul_i32 s{sRo}, s{sRo}, 20480')

    def w1_groups(lo, hi, tag):
        g = []
        segs = []
        for base in (0, 61440, 102400):
            segs += [(base, base + 20480, sW1, 1), (base + 20480, base + 40960, sW1, -1)]
        segs.insert(2, (40960, 61440, sW1s, 0))
        for lo_, hi_, sb, sgn in segs:
            off, hi_ = max(lo, lo_), min(hi, hi_)
            rot = {1: [f's_add_u32 s{sM2 + 1}, s{sM2 + 1}, s{sRo}'], -1: [f's_sub_u32 s{sM2 + 1}, s{sM2 + 1}, s{sRo}'], 0: []}[sgn]
            while sgn and off + 16384 <= hi_:
                for i in range(4):
                    pre = [f's_add_u32 m0, s{sW1m}, {off}', f's_add_u32 s{sM2 + 1}, s{sb}, {off}'] + rot if i == 0 else []
                    g.append((pre + [f'buffer_load_dwordx4 v{vL16}, {WS}, s{sM2 + 1} offen offset:{1024 * i} sc1 lds'], tag))
                off += 16384
            while off < hi_:
                pre = [f's_lshl_b32 s{sCnt}, s{sWv}, 10', f's_add_u32 m0, s{sCnt}, {off}', f's_sub_u32 s{sM2 + 1}, s{sb}, s{sW1m}',
                       f's_add_u32 s{sM2 + 1}, s{sM2 + 1}, s{sCnt}', f's_add_u32 s{sM2 + 1}, s{sM2 + 1}, {off}'] + rot
                if sgn == 0:
                    b0 = (off - 40960) // 1024
                    pre += [f's_lshr_b32 s{sCnt}, s{sRo}, 1']
                    if b0 + 3 < 10:
                        pre += [f's_add_u32 s{sM2 + 1}, s{sM2 + 1}, s{sCnt}']
                    elif b0 >= 10:
                        pre += [f's_sub_u32 s{sM2 + 1}, s{sM2 + 1}, s{sCnt}']
                    else:
                        pre += [f's_add_u32 s{sM2 + 1}, s{sM2 + 1}, s{sCnt}', f's_cmp_ge_u32 s{sWv}, {10 - b0}',
                                f's_cselect_b32 s{sCnt}, s{sRo}, 0', f's_sub_u32 s{sM2 + 1}, s{sM2 + 1}, s{sCnt}']
                g.append((pre + [f'buffer_load_dwordx4 v{vL16}, {WS}, s{sM2 + 1} offen sc1 lds'], tag))
                off += 4096
        return g
    W1Q = E('G_W1Q', 40) * 1024 if REARLY else 0
    for g in w1_groups(0, W1Q, 'w1q'):
        emit(g)
    a(f's_mul_i32 s{sT1}, s{sRh}, {32 * 160}')
    a(f's_mul_i32 s{sT2}, s{sCh}, 80')
    a(f's_add_u32 s{sT1}, s{sT1}, s{sT2}')
    a(f's_add_u32 s{sT1}, s{sT1}, {KVA}')
    a(f'v_mul_u32_u24 v{t[2]}, 160, v{vR}')
    a(f'v_mad_u32_u24 v{t[3]}, v{vG}, 10, v{t[2]}')
    a(f'v_add_u32 v{t[3]}, s{sT1}, v{t[3]}')
    a(f's_mul_i32 s{sT1}, s{sWv}, {16 * 160}')
    a(f's_add_u32 s{sT1}, s{sT1}, {KVA}')
    a(f'v_lshl_add_u32 v{t[2]}, v{vG}, 4, v{t[2]}')
    a(f'v_add_u32 v{t[2]}, s{sT1}, v{t[2]}')
    vOd = s2
    a(f's_mul_i32 s{sT1}, s{sHg}, 10')
    for u in range(3):
        a(f's_add_u32 s{sT2}, s{sT1}, {4 * u}')
        a(f'v_add_u32 v{t[5]}, s{sT2}, v{vG}')
        a(f'v_lshrrev_b32 v{vOd + u}, 2, v{t[5]}')
        a(f'v_lshlrev_b32 v{vOd + u}, 12, v{vOd + u}')
        a(f'v_and_b32 v{t[5]}, 3, v{t[5]}')
        a(f'v_lshl_add_u32 v{vOd + u}, v{t[5]}, 8, v{vOd + u}')
        a(f'v_lshl_add_u32 v{vOd + u}, v{vR}, 4, v{vOd + u}')
    a(f's_mul_i32 s{sT0}, s{sR1}, {20 * 4096}')
    a(f's_lshl_b32 s{sT1}, s{sWv}, 10')
    a(f's_add_u32 s{sT0}, s{sT0}, s{sT1}')
    if OP_OFF:
        a(f's_add_u32 s{sT0}, s{sT0}, {OP_OFF}')
    if RLATE:
        a('s_waitcnt lgkmcnt(0)')
        for i in range(4):
            a(f'{M16} {R("v", rq + 16)}, {R("v", rq + 4 * i)}, {ones}, {"0" if i == 0 else R("v", rq + 16)}')
    a.vm_wait('kvl')
    lap('F')
    kT = fr[0]
    for k in range(16):
        a(f'v_cvt_pk_bf16_f32 v{kT + k}, v{kraw + 2 * k}, v{kraw + 2 * k + 1}')
    od = acc
    for tr in range(2):
        for hd in range(2):
            for tau in range(2):
                d = od + 16 * tr + 8 * hd + 4 * tau
                a(f'{M16} {R("v", d)}, {R("v", kT + 8 * hd + 4 * tau)}, {R("v", pq + 8 * tr + 2 * hd)}, 0')
    chains = []
    for tr in range(2):
        for hd in range(2):
            d = od + 16 * tr + 8 * hd
            c = [f'v_add_f32 v{d + 6}, 0x358637bd, v{d + 5}', f'v_rcp_f32 v{d + 6}, v{d + 6}']
            c += [f'v_mul_f32 v{d + k}, v{d + k}, v{d + 6}' for k in range(5)]
            c += [f'v_cvt_pk_bf16_f32 v{d}, v{d}, v{d + 1}', f'v_cvt_pk_bf16_f32 v{d + 2}, v{d + 2}, v{d + 3}',
                  f'v_cvt_pk_bf16_f32 v{d + 4}, v{d + 4}, v{d + 4}']
            o = 2560 * tr + 40 * hd
            c += [f'ds_write_b16 v{t[3]}, v{d} offset:{o}', f'ds_write_b16_d16_hi v{t[3]}, v{d} offset:{o + 2}',
                  f'ds_write_b16 v{t[3]}, v{d + 2} offset:{o + 4}', f'ds_write_b16_d16_hi v{t[3]}, v{d + 2} offset:{o + 6}',
                  f'ds_write_b16 v{t[3]}, v{d + 4} offset:{o + 8}']
            chains.append(c)
    weave(chains, 4)
    a('s_waitcnt lgkmcnt(0)')
    a('s_barrier')
    ob = fr[1]
    for u in range(3):
        a(f'ds_read_b128 {R("v", ob + 4 * u)}, v{t[2]} offset:{64 * u}')
    a('s_waitcnt lgkmcnt(0)')
    for u in range(3):
        if u == 2:
            a('s_mov_b32 exec_hi, 0')
        a(f'buffer_store_dwordx4 {R("v", ob + 4 * u)}, v{vOd + u}, {WS}, s{sT0} offen sc1', tag='ost')
    a('s_mov_b64 exec, -1')
    if RLATE:
        for i in range(4):
            a(f'buffer_store_dwordx4 {R("v", rq + 4 * i)}, v{vL16}, {WS}, s{sTab + 6 + i} offen sc1', tag='rst2')
        a(f'v_lshlrev_b32 v{t[4]}, 4, v{vG}')
        a(f'v_lshl_add_u32 v{t[4]}, v{vR}, 6, v{t[4]}')
        a('s_mov_b32 exec_lo, 0x00030003'); a('s_mov_b32 exec_hi, 0x00030003')
        a(f'buffer_store_dwordx4 {R("v", rq + 16)}, v{t[4]}, {WS}, s{sTab + 10} offen sc1', tag='rst2')
        a('s_mov_b64 exec, -1')
    lap()
    vXo = hres + 10
    vL8 = hres + 11
    a(f'v_lshlrev_b32 v{vL8}, 3, v{vL}')
    a(f'v_mul_u32_u24 v{vXo}, 1280, v{vR}')
    a(f'v_lshl_add_u32 v{vXo}, v{vG}, 4, v{vXo}')
    sx = f's[{sX}:{sX + 3}]'
    mid = [([f'buffer_load_dwordx4 {R("v", hres)}, v{vXo}, {sx}, s{sOa} offen'], 'x'),
           ([f'buffer_load_dwordx4 {R("v", hres + 4)}, v{vXo}, {sx}, s{sOa} offen offset:64'], 'x'),
           ([f'buffer_load_dwordx2 {R("v", hres + 8, 2)}, v{vXo}, {sx}, s{sOb} offen'], 'x')]
    xg = []
    if E('G_XLATE', 0):
        xg, mid = mid, []
    mid += wo_late
    nb4 = min(len(mid), E('G_NB4', 8))
    for g in mid[:nb4]:
        emit(g)
    a(f's_lshl_b32 s{sT1}, s{sR1}, 7')
    a(f's_add_u32 s{sT1}, s{sT1}, {FL_O * 128}')
    a(f's_add_u32 s{sT1}, s{sT1}, s{sFw}')
    if not RLATE and not REARLY:
        poll_issue(sRpc, FL_RP2 - FL_RP, 8)
    publish(sT1, 0, 'ost')
    lap()
    if RLATE:
        a(f's_and_b32 s{sT1}, s2, 7')
        a(f's_lshl_b32 s{sT1}, s{sT1}, 7')
        a(f's_add_u32 s{sT1}, s{sT1}, s{sRpc}')
        publish(sT1, FL_RP2 - FL_RP, 'rst2')
    for g in mid[nb4:]:
        emit(g)
    if not RLATE and not REARLY:
        poll_wait(sRpc, FL_RP2 - FL_RP, 32, nl=8)
    W1E = 0 if RLATE else E('G_W1E', 40) * 1024
    for g in w1_groups(W1Q, W1E, 'w1e'):
        emit(g)
    a(f's_lshl_b32 s{sT1}, s{sRb}, 7')
    a(f's_add_u32 s{sT1}, s{sT1}, {FL_O * 128}')
    a(f's_add_u32 s{sT1}, s{sT1}, s{sFw}')
    poll_issue(sT1, 0)
    a(f's_lshl_b32 s{sFc}, s{sC}, 9')
    a(f's_add_u32 s{sFc}, s{sFc}, s{sFw}')
    vR4 = [Y + 68, Y + 69, Y + 70, Y + 71]
    vAo = vR4
    vRW = Y + 60
    for i in range(4):
        a(f's_add_u32 s{sT2}, s{sWv}, {1 + i}')
        a(f's_and_b32 s{sT2}, s{sT2}, 3')
        a(f's_lshl_b32 s{sT3}, s{sT2}, 10')
        a(f'v_add_u32 v{vAo[i]}, s{sT3}, v{vL16}')
        if i < 3:
            a(f's_mul_i32 s{sT2}, s{sT2}, 15360')
            a(f's_add_u32 s{sT2}, s{sT2}, {P2L + 5120 * i}')
            a(f'v_add_u32 v{vRW + i}, s{sT2}, v{vL16}')
    a(f's_mul_i32 s{sA}, s{sRb}, {20 * 4096}')
    a(f's_mul_i32 s{sT2}, s{sWv}, {5 * 4096}')
    a(f's_add_u32 s{sA}, s{sA}, s{sT2}')
    if OP_OFF:
        a(f's_add_u32 s{sA}, s{sA}, {OP_OFF}')
    poll_wait(sT1, 0, 8)
    lap()
    acc = X
    for i in range(4):
        for m in range(5):
            a(f's_add_u32 s{sT2}, s{sA}, {4096 * m}')
            a(f'buffer_load_dwordx4 {R("v", Z + 20 * i + 4 * m)}, v{vAo[i]}, {WS}, s{sT2} offen sc1', tag=f'o{i}_{m}')
    W1M = E('G_W1M', 100) * 1024
    pend += xg
    p2pf = w1_groups(W1E, W1M, 'w1m')
    w2next = [4, 5, 6, 7, 0, 1, 2, 3][NW2Q:]
    assert NW2Q + E('G_NW2P2', 4) <= 4
    for i in w2next[:E('G_NW2P2', 4)]:
        p2pf += w2_groups(i)
    if RLATE:
        poll_issue(sRpc, FL_RP2 - FL_RP, 8)
    else:
        pend += p2pf
    w2next = w2next[E('G_NW2P2', 4):]
    w2next.sort()

    def send(i, base):
        return [f'ds_write_b128 v{base + i}, {R("v", acc + 20 * i + 4 * sg)} offset:{1024 * sg}' for sg in range(5)]
    sq = []
    for i in range(4):
        if RLATE and i == E('G_RP2AT', 3):
            poll_wait(sRpc, FL_RP2 - FL_RP, 32, nl=8)
            pend += p2pf
        k = 0
        for m in range(5):
            a.vm_wait(f'o{i}_{m}')
            for sg in range(5):
                d = acc + 20 * i + 4 * sg
                a(f'{M16} {R("v", d)}, {R("a", aWO + 4 * (5 * m + sg))}, {R("v", Z + 20 * i + 4 * m)}, {"0" if m == 0 else R("v", d)}')
                k += 1
                if sq and k >= 4 and k % 3 == 0:
                    a(sq.pop(0))
                if k % E('G_P2PULL', 4) == 2:
                    pull()
        assert not sq
        if i < 3:
            sq = send(i, vRW)
    while pend:
        pull()
    lap()

    def reduce_own(base):
        a('s_waitcnt lgkmcnt(0)')
        a('s_barrier')
        a(f's_mul_i32 s{sT0}, s{sWv}, 15360')
        a(f's_add_u32 s{sT0}, s{sT0}, {base}')
        a(f'v_add_u32 v{vT[0]}, s{sT0}, v{vL16}')
        for k in range(15):
            a(f'ds_read_b128 {R("v", acc + 4 * k)}, v{vT[0]} offset:{1024 * k}')
        own = acc + 60
        for p in range(3):
            a(f's_waitcnt lgkmcnt({10 - 5 * p})')
            for k in range(10):
                a(f'v_pk_add_f32 {R("v", own + 2 * k, 2)}, {R("v", own + 2 * k, 2)}, {R("v", acc + 20 * p + 2 * k, 2)}')
        return own

    def residual(own, out, tmp):
        chains = []
        for i in range(10):
            q = tmp + 6 * (i % 4)
            chains.append([f'v_cvt_pk_bf16_f32 v{q + 4}, v{own + 2 * i}, v{own + 2 * i + 1}',
                           f'v_lshlrev_b32 v{q + 2}, 16, v{hres + i}',
                           f'v_and_b32 v{q + 3}, 0xffff0000, v{hres + i}',
                           f'v_lshlrev_b32 v{q}, 16, v{q + 4}',
                           f'v_and_b32 v{q + 1}, 0xffff0000, v{q + 4}',
                           f'v_pk_add_f32 {R("v", q, 2)}, {R("v", q, 2)}, {R("v", q + 2, 2)}',
                           f'v_cvt_pk_bf16_f32 v{out + i}, v{q}, v{q + 1}'])
        weave(chains, 4)

    a(f's_lshl_b32 s{sT3}, s{sRb}, 2')
    a(f's_add_u32 s{sT3}, s{sT3}, s{sWv}')
    a(f's_lshr_b32 s{sT1}, s{sT3}, 1')
    a(f's_mul_i32 s{sT1}, s{sT1}, 40960')
    a(f's_and_b32 s{sT2}, s{sT3}, 1')
    a(f's_lshl_b32 s{sT2}, s{sT2}, 10')
    a(f's_add_u32 s{sT1}, s{sT1}, s{sT2}')
    a(f's_add_u32 s{sT1}, s{sT1}, {HP_OFF}')
    a(f's_lshl_b32 s{sA}, s{sPb}, 11')
    a(f's_add_u32 s{sA}, s{sA}, s{sT1}')
    a(f's_lshr_b32 s{sB}, s{sSb}, 1')
    a(f's_lshl_b32 s{sB}, s{sB}, 11')
    a(f's_and_b32 s{sT2}, s{sSb}, 1')
    a(f's_lshl_b32 s{sT2}, s{sT2}, 9')
    a(f's_add_u32 s{sB}, s{sB}, s{sT2}')
    a(f's_add_u32 s{sB}, s{sB}, s{sT1}')
    a(f's_lshl_b32 s{sT1}, s{sT3}, 10')
    a(f's_lshl_b32 s{sT2}, s{sCg}, 7')
    a(f's_add_u32 s{sT1}, s{sT1}, s{sT2}')
    a(f's_add_u32 s{sT1}, s{sT1}, {ST_OFF}')
    own = reduce_own(P2L)
    tmpk = Y
    if 'x' in a.vm:
        a.vm_wait('x')
    residual(own, hres, tmpk)
    a(f'buffer_store_dwordx4 {R("v", hres)}, v{vL16}, {WS}, s{sA} offen sc1', tag='hst')
    a(f'buffer_store_dwordx4 {R("v", hres + 4)}, v{vL16}, {WS}, s{sA} offen offset:2048 sc1', tag='hst')
    a(f'buffer_store_dwordx2 {R("v", hres + 8, 2)}, v{vL8}, {WS}, s{sB} offen sc1', tag='hst')
    hf_ = acc
    for i in range(10):
        a(f'v_lshlrev_b32 v{hf_ + 2 * i}, 16, v{hres + i}')
        a(f'v_and_b32 v{hf_ + 2 * i + 1}, 0xffff0000, v{hres + i}')
    sm = tmpk
    a(f'v_pk_add_f32 {R("v", sm + 2, 2)}, {R("v", hf_, 2)}, {R("v", hf_ + 2, 2)}')
    a(f'v_pk_mul_f32 {R("v", sm + 4, 2)}, {R("v", hf_, 2)}, {R("v", hf_, 2)}')
    a(f'v_pk_mul_f32 {R("v", sm + 6, 2)}, {R("v", hf_ + 2, 2)}, {R("v", hf_ + 2, 2)}')
    for i in range(2, 10):
        d = sm + 4 + 2 * (i & 1)
        a(f'v_pk_add_f32 {R("v", sm + 2, 2)}, {R("v", sm + 2, 2)}, {R("v", hf_ + 2 * i, 2)}')
        a(f'v_pk_fma_f32 {R("v", d, 2)}, {R("v", hf_ + 2 * i, 2)}, {R("v", hf_ + 2 * i, 2)}, {R("v", d, 2)}')
    a(f'v_pk_add_f32 {R("v", sm + 4, 2)}, {R("v", sm + 4, 2)}, {R("v", sm + 6, 2)}')
    a(f'v_add_f32 v{sm}, v{sm + 2}, v{sm + 3}')
    a(f'v_add_f32 v{sm + 1}, v{sm + 4}, v{sm + 5}')
    s1_, s2_ = Asm(), Asm()
    xsum_g(s1_, sm, sm + 2)
    xsum_g(s2_, sm + 1, sm + 3)
    for x, y in zip(s1_.items, s2_.items):
        a(x.text); a(y.text)
    a('s_mov_b64 exec, 0xffff')
    a(f'buffer_store_dwordx2 {R("v", sm, 2)}, v{vL8}, {WS}, s{sT1} offen sc1', tag='hst')
    a('s_mov_b64 exec, -1')
    lap('B')
    acc3, otmp = X, X + 56
    fb = [Y, Y + 16]
    vCs, vSt, ab = Y + 32, Y + 60, Y + 60
    csg = []
    for sg in range(7):
        pre = []
        if sg == 0:
            pre = [f'v_and_b32 v{vT[0]}, 7, v{vL}', f'v_cmp_gt_u32 vcc, 5, v{vT[0]}', f'v_mul_u32_u24 v{vT[0]}, {CS1P}, v{vT[0]}',
                   f'v_lshl_add_u32 v{vT[0]}, v{vG}, 4, v{vT[0]}', f'v_mov_b32 v{vT[2]}, 0x{BIG:x}', f'v_cndmask_b32 v{vT[0]}, v{vT[2]}, v{vT[0]}, vcc',
                   f's_mul_i32 s{sT0}, s{sJ}, 896', f's_add_u32 s{sT0}, s{sT0}, {CS1_OFF}']
        if sg == 6:
            pre = [f's_cmp_eq_u32 s{sW1s}, 0x{BIG:x}', f's_cselect_b32 s{sT0}, s{sW1s}, s{sT0}']
        csg.append((pre + [f'buffer_load_dwordx4 {R("v", vCs + 4 * sg)}, v{vT[0]}, {WS}, s{sT0} offen offset:{128 * sg} sc1'], 'cs'))
    for g in csg + w1_groups(W1M, 102400, 'w1m'):
        emit(g)
    publish(sFc, 0, 'hst')
    lap()
    mid = w1_groups(102400, 143360, 'w1l')
    NW2S = E('G_NW2S', 2)
    for i in w2next[:NW2S]:
        mid += w2_groups(i)
    w2next = w2next[NW2S:]
    for g in mid:
        emit(g)
    poll_issue(sF3, 0)
    a(f's_lshl_b32 s{sT0}, s{sC3}, 2')
    a(f's_add_u32 s{sT0}, s{sT0}, s{sWv}')
    a(f's_mul_i32 s{sA}, s{sT0}, 40960')
    a(f's_add_u32 s{sA}, s{sA}, {HP_OFF}')
    a(f's_add_u32 s{sA}, s{sA}, s{sRo}')
    a(f's_lshl_b32 s{sT0}, s{sT0}, 11')
    a(f's_add_u32 s{sT0}, s{sT0}, {ST_OFF}')
    vBa = [vL16, vT[2], hres + 10]
    a(f'v_add_u32 v{vT[2]}, {65536}, v{vL16}')
    a(f'v_add_u32 v{hres + 10}, {131072}, v{vL16}')
    a(f's_lshl_b32 s{sT2}, s{sC3}, 1')
    a(f's_lshr_b32 s{sT3}, s{sWv}, 1')
    a(f's_add_u32 s{sT2}, s{sT2}, s{sT3}')
    a(f's_mul_i32 s{sH}, s{sT2}, {H1G}')
    a(f's_and_b32 s{sT3}, s{sWv}, 1')
    a(f's_lshl_b32 s{sT3}, s{sT3}, 11')
    a(f's_add_u32 s{sH}, s{sH}, s{sT3}')
    a(f's_add_u32 s{sH}, s{sH}, {H1P_OFF}')
    a(f's_lshr_b32 s{sHs}, s{sJ}, 3')
    a(f's_mul_i32 s{sHs}, s{sHs}, 3')
    a(f's_and_b32 s{sT2}, s{sJ}, 7')
    a(f's_lshr_b32 s{sT3}, s{sT2}, 1')
    a(f's_add_u32 s{sHs}, s{sHs}, s{sT3}')
    a(f's_lshl_b32 s{sHs}, s{sHs}, 12')
    a(f's_and_b32 s{sT3}, s{sJ}, 1')
    a(f's_lshl_b32 s{sT3}, s{sT3}, 9')
    a(f's_add_u32 s{sHs}, s{sHs}, s{sT3}')
    a(f's_add_u32 s{sHs}, s{sHs}, s{sH}')
    a(f's_add_u32 s{sHs}, s{sHs}, {16 * 4096}')
    a(f's_cmp_ge_u32 s{sT2}, 6')
    a(f's_cselect_b32 s{sHs}, 0x{BIG:x}, s{sHs}')
    a(f's_lshl_b32 s{sT2}, s{sJ}, 12')
    a(f's_add_u32 s{sH}, s{sH}, s{sT2}')
    a(f's_mul_i32 s{sA4}, s{sRb}, {H1G}')
    a(f's_lshl_b32 s{sT2}, s{sWv}, 12')
    a(f's_add_u32 s{sA4}, s{sA4}, s{sT2}')
    a(f's_add_u32 s{sA4}, s{sA4}, {H1P_OFF}')
    a.vm_wait('w1l')
    poll_wait(sF3, 0, 16)
    lap()

    def a3_groups():
        g = []
        for q in range(4):
            g.append(([f'buffer_load_dwordx2 {R("v", vSt + 2 * q, 2)}, v{vL8}, {WS}, s{sT0} offen offset:{512 * q} sc1'], 'st'))
        for f in range(40):
            pre = [f's_add_u32 s{sA}, s{sA}, 4096'] if f and f % 4 == 0 else []
            if f == 20:
                pre += [f's_sub_u32 s{sA}, s{sA}, s{sRo}', f's_sub_u32 s{sA}, s{sA}, s{sRo}']
            if (f // 2) % 5 == 2:
                g.append((pre + [f'buffer_load_dwordx2 {R("a", 4 * f, 2)}, v{vL8}, {WS}, s{sA} offen offset:{1024 * (f & 3)} sc1',
                                 f'buffer_load_dwordx2 {R("a", 4 * f + 2, 2)}, v{vL8}, {WS}, s{sA} offen offset:{1024 * (f & 3) + 512} sc1'], f'h{f // 2}'))
            else:
                g.append((pre + [f'buffer_load_dwordx4 {R("a", 4 * f)}, v{vL16}, {WS}, s{sA} offen offset:{1024 * (f & 3)} sc1'], f'h{f // 2}'))
        return g
    pend += a3_groups()
    for i in w2next:
        pend += w2_groups(i)
    pend += w2l_groups(8)
    pull(E('G_H0', 18))
    PART = {0: ([0, 1, 6], 0, 3072), 1: ([2, 3], 61440, 2048), 2: ([4, 5], 102400, 2048)}

    def steps(part):
        sl = PART[part][0]
        if part == 0:
            return [[(ks, q, s_) for q, s_ in enumerate(sl)] for ks in range(20)]
        return [[(ks, q, s_) for ks in (2 * m, 2 * m + 1) for q, s_ in enumerate(sl)] for m in range(10)]
    allsteps = [(p, st) for p in range(3) for st in steps(p)]

    def breads(n):
        p, st = allsteps[n]
        f = fb[n & 1]
        out = []
        for k, (ks, q, s_) in enumerate(st):
            o = w1_frag_off(0, ks, s_)
            out.append(f'ds_read_b128 {R("v", f + 4 * k)}, v{vBa[o >> 16]} offset:{o & 0xffff}')
        return out

    def mf3(n):
        p, st = allsteps[n]
        f = fb[n & 1]
        lst = []
        for k, (ks, q, s_) in enumerate(st):
            for t_ in range(2):
                d = acc3 + 28 * t_ + 4 * s_
                c = '0' if ks == 0 else R('v', d)
                lst.append(f'{M16} {R("v", d)}, {R("v", f + 4 * k)}, {R("a", 8 * ks + 4 * t_)}, {c}')
        return lst

    dpp = [f'v_add_f32_dpp v{vCs + r}, v{vCs + r}, v{vCs + r} quad_perm:[1,0,3,2] row_mask:0xf bank_mask:0xf' for r in range(28)]
    dpp += [f'v_add_f32_dpp v{vCs + r}, v{vCs + r}, v{vCs + r} quad_perm:[2,3,0,1] row_mask:0xf bank_mask:0xf' for r in range(28)]
    dpp += [f'v_add_f32_dpp v{vCs + r}, v{vCs + r}, v{vCs + r} row_half_mirror row_mask:0xf bank_mask:0xf' for r in range(28)]
    sub = Asm()
    for t_ in range(2):
        s_ = vSt + 4 * t_
        m, v, x = otmp + 4 * t_ + 2, otmp + 8 + 2 * t_, otmp + 9 + 2 * t_
        sub(f'v_add_f32 v{m}, v{s_}, v{s_ + 2}')
        sub(f'v_add_f32 v{v}, v{s_ + 1}, v{s_ + 3}')
        xsum_g(sub, m, x)
        xsum_g(sub, v, x)
        sub(f'v_mul_f32 v{m}, 0x3acccccd, v{m}')
        sub(f'v_mul_f32 v{v}, 0x3acccccd, v{v}')
        sub(f'v_fma_f32 v{v}, -v{m}, v{m}, v{v}')
        ln_stats(sub, m, v, otmp + 4 * t_)
        sub(f'v_mov_b32 v{ab + 4 * t_}, v{otmp + 4 * t_}')
        sub(f'v_mov_b32 v{ab + 4 * t_ + 1}, v{m}')
    half_n = len(sub.items) // 2
    stl = [None] * len(sub.items)
    stl[0::2] = [i.text for i in sub.items[:half_n]]
    stl[1::2] = [i.text for i in sub.items[half_n:]]

    def epi_tile(t_, sg, ob):
        lst = []
        d = acc3 + 28 * t_ + 4 * sg
        for r in range(4):
            lst.append(f'v_mul_f32 v{d + r}, v{d + r}, v{ab + 4 * t_}')
        for r in range(4):
            lst.append(f'v_fmac_f32 v{d + r}, v{vCs + 4 * sg + r}, v{ab + 4 * t_ + 1}')
        for h in range(2):
            lst.append(f'v_cvt_pk_bf16_f32 v{ob + h}, v{d + 2 * h}, v{d + 2 * h + 1}')
        for h in range(2):
            lst.append(f'v_pk_max_i16 v{ob + h}, v{ob + h}, v{vZero}')
        return lst

    def epi_part(p):
        out = []
        base = otmp + (0, 12, 0)[p]
        if p:
            out.append(f's_add_u32 s{sH}, s{sH}, {(24 if p == 1 else 16) * 4096}')
        for t_ in range(2):
            ob = base + 4 * t_
            out += epi_tile(t_, 2 * p, ob) + epi_tile(t_, 2 * p + 1, ob + 2)
            out.append(('vm', f'buffer_store_dwordx4 {R("v", ob)}, v{vL16}, {WS}, s{sH} offen offset:{1024 * t_} sc1', f'h1_{p}'))
        if p == 0:
            for t_ in range(2):
                ob = base + 8 + 2 * t_
                out += epi_tile(t_, 6, ob)
                out.append(('vm', f'buffer_store_dwordx2 {R("v", ob, 2)}, v{vL8}, {WS}, s{sHs} offen offset:{1024 * t_} sc1', 'h1_0'))
        return out

    AR = [('a', 16 * i) for i in range(10)]
    vTm = Y + 67
    NR_ = len(AR)

    def a4_groups(i):
        f, r = AR[i % NR_]
        g = []
        for t_ in range(4):
            pre = []
            if t_ == 0:
                pre = [f's_add_u32 s{sA}, s{sA4}, {16384 * i}']
                if i == 5:
                    pre += [f's_cmp_ge_u32 s{sWv}, 2', f's_cselect_b32 s{sA}, 0x{BIG:x}, s{sA}']
            if i in (4, 5):
                g.append((pre + [f'v_sub_u32 v{vT[1] if False else vTm}, v{vAo[t_]}, v{vL8}',
                                 f'buffer_load_dwordx2 {R(f, r + 4 * t_, 2)}, v{vTm}, {WS}, s{sA} offen sc1',
                                 f'buffer_load_dwordx2 {R(f, r + 4 * t_ + 2, 2)}, v{vTm}, {WS}, s{sA} offen offset:512 sc1'], f'a{i}'))
            else:
                g.append((pre + [f'buffer_load_dwordx4 {R(f, r + 4 * t_)}, v{vAo[t_]}, {WS}, s{sA} offen sc1'], f'a{i}'))
        return g

    for x in breads(0):
        a(x)
    side = list(dpp)
    PUB_A, POLL_A, CHK_A, PUB_B = E('G_PUBA', 27), E('G_POLLA', 36), E('G_CHKA', 38), E('G_PUBB', 38)
    DENS = E('G_DENS', 3)
    P3K = {0: (6, 7), 1: (4, 7), 2: (7,), 3: (4, 5, 6, 7), 4: (4, 6)}[E('G_P3K', 0)]
    NS_ = len(allsteps)
    nexta = 0
    for n in range(NS_):
        p, st = allsteps[n]
        if p == 0:
            need_tag(f'h{n}')
            if n == 6:
                side += stl
        if n == 20:
            while side:
                a(side.pop(0))
            lap()
            side = epi_part(0)
        if n == 30:
            assert not side
            side = epi_part(1)
        if n % 3 == 0:
            lap('E')
        a('s_waitcnt lgkmcnt(0)')
        if n == 21:
            a('s_barrier')
        nxt = breads(n + 1) if n + 1 < NS_ else []
        ms = mf3(n)
        for k, m in enumerate(ms):
            a(m)
            cnt = 2 if p == 0 else DENS
            if nxt:
                a(nxt.pop(0))
                cnt -= 1
            elif pend and (k >= len(ms) - E('G_P3PULL', 2) if p == 0 else k in P3K):
                pull()
                cnt -= 2
            for _ in range(max(cnt, 0)):
                if side:
                    x = side.pop(0)
                    if isinstance(x, tuple):
                        a(x[1], tag=x[2])
                        if x[2] == 'h1_0' and not side:
                            assert n > 21
                            pend += w2l_groups(9) + w2l_groups(10) + w2l_groups(11)
                    else:
                        a(x)
        if n == PUB_A:
            assert n >= 30 or not side
            lap('C')
            publish(sF3, 1, 'h1_0')
            lap('C')
        if n == POLL_A:
            while pend:
                pull()
            poll_issue(sFc, 1)
        if n == CHK_A:
            lap('C')
            poll_wait(sFc, 1, 16)
            lap('C')
        if n >= CHK_A:
            while nexta < 6 and nexta <= n - 30:
                pend += a4_groups(nexta)
                nexta += 1
        if n == PUB_B:
            assert not side
            publish(sF3, 2, 'h1_1')
    lap()
    ecl = epi_part(2)
    EOV = E('G_EOV', 1)
    k = 0
    while ecl and (not EOV or (pend and k < E('G_EPRE', 24))):
        x = ecl.pop(0)
        if isinstance(x, tuple):
            a(x[1], tag=x[2])
        else:
            a(x)
        k += 1
        if k % 3 == 0:
            pull()
    lap()
    acc4 = X
    PD = E('G_PD', 2)
    vWl = [vT[0], vT[2]]
    a(f's_mul_i32 s{sT0}, s{sWv}, 5120')
    a(f'v_add_u32 v{vWl[0]}, s{sT0}, v{vL16}')
    a(f'v_add_u32 v{vWl[1]}, {SA}, v{vWl[0]}')
    vRW = Y + 60
    vXo = Y + 64
    fin = []
    for i in range(3):
        fin += [f's_add_u32 s{sT0}, s{sWv}, {1 + i}', f's_and_b32 s{sT0}, s{sT0}, 3', f's_mul_i32 s{sT0}, s{sT0}, 15360',
                f's_add_u32 s{sT0}, s{sT0}, {61440 + 5120 * i}', f'v_add_u32 v{vRW + i}, s{sT0}, v{vL16}']
    fin += [f'v_mul_u32_u24 v{vXo}, 1280, v{vR}', f'v_lshl_add_u32 v{vXo}, v{vG}, 4, v{vXo}']
    PUB_C, POLL_B, POLL_C = E('G_PUBC', 1), E('G_POLLB', 0), E('G_POLLC', 4)
    avail = 6
    for i in range(14):
        need_tag(f'a{i}')
        need_tag(f'w2_{i}')
        if i in W2L:
            a('s_waitcnt lgkmcnt(0)')
        lrd = []
        if i + 2 in W2L:
            need_tag(f'w2_{i + 2}')
            o_ = W2L[i + 2]
            lrd = [f'ds_read_b128 {R("v", W2R[i + 2][1] + 4 * sg)}, v{vWl[o_ >= SA]} offset:{(o_ - SA if o_ >= SA else o_) + 1024 * sg}' for sg in range(5)]
        if i == 12:
            lrd = fin
        lap('D')
        fa, ra_ = AR[i % NR_]
        fw, rw = W2R[i]
        k = 0
        order = [(t_, sg) for t_ in range(4) for sg in range(5)]
        if i == 0:
            clash = [(0, 4), (1, 0), (2, 1), (2, 2), (2, 4), (3, 0)]
            order = [o_ for o_ in order if o_ not in clash] + clash
        for t_, sg in order:
            if True:
                if i == 0:
                    for _ in range(3 if k < 14 else 99):
                        if ecl:
                            x = ecl.pop(0)
                            if isinstance(x, tuple):
                                a(x[1], tag=x[2])
                            else:
                                a(x)
                d = acc4 + 20 * t_ + 4 * sg
                c = '0' if i == 0 else R('v', d)
                a(f'{M16} {R("v", d)}, {R(fw, rw + 4 * sg)}, {R(fa, ra_ + 4 * t_)}, {c}')
                k += 1
                if i == 13:
                    if t_ >= 2 or (t_ == 1 and sg >= 3):
                        q = k - 9
                        a(send(q // 5, vRW)[q % 5])
                elif k % E('G_P4PULL', 4) == 0 and pend:
                    pull()
                elif lrd:
                    a(lrd.pop(0))
        assert not lrd
        if i == PUB_C:
            publish(sF3, 3, 'h1_2')
        if i in (POLL_B, POLL_C):
            poll_issue(sFc, 2 if i == POLL_B else 3)
        if i in (POLL_B + PD, POLL_C + PD):
            poll_wait(sFc, 2 if i == POLL_B + PD else 3, 16)
            avail += 4
        newa = []
        while nexta < avail and nexta <= i + NR_:
            newa += a4_groups(nexta)
            nexta += 1
        k_ = 0
        while k_ < len(pend) and not (pend[k_][1].startswith('w2') and len(pend[k_][0]) > 1):
            k_ += 1
        pend[k_:k_] = newa
        if i == max(1, POLL_B + PD):
            pend += w2_groups(12) + w2_groups(13)
    assert not pend
    lap()
    for q in range(12, 15):
        a(send(q // 5, vRW)[q % 5])
    own = reduce_own(61440)
    outr = Y + 8
    residual(own, outr, Y + 24)
    so = f's[{sO}:{sO + 3}]'
    OST = {0: '', 1: ' sc1', 2: ' nt', 3: ' sc0 sc1'}[E('G_OST', 0)]
    a(f'buffer_store_dwordx4 {R("v", outr)}, v{vXo}, {so}, s{sOa} offen{OST}')
    a(f'buffer_store_dwordx4 {R("v", outr + 4)}, v{vXo}, {so}, s{sOa} offen offset:64{OST}')
    a(f'buffer_store_dwordx2 {R("v", outr + 8, 2)}, v{vXo}, {so}, s{sOb} offen{OST}')
    if a.diag is not None:
        a('s_waitcnt vmcnt(0)')
    if a.diag is not None and E('G_DBG', 0):
        a.stamp(5)
        a(f's_cmp_lg_u32 s2, {E("G_DBGWG", 77)}')
        a(f's_cbranch_scc1 {Lend}')
        a(f's_cmp_lg_u32 s{sWv}, 1')
        a(f's_cbranch_scc1 {Lend}')
        regs = [77, 79] + list(range(82, 95)) + [81]
        for i, r in enumerate(regs):
            a(f's_sub_u32 s98, s{r}, s76')
            a(f'v_writelane_b32 v9, s98, {i}')
        a(f'v_lshlrev_b32 v8, 2, v{vL}')
        a('s_mov_b64 exec, 0xffff')
        a(f'global_store_dword v8, v9, s[{P_DBG}:{P_DBG + 1}]')
    else:
        a.stamp_flush(sWv, P_WS, TS_OFF)
    a.label(Lend)
    a('s_endpgm')
    a.raw(f'.p2align 6\n.type {name}_tab,@object\n{name}_tab:')
    for e in kg_table():
        a.raw('.long ' + ', '.join(str(x) for x in e))
```

```python
import os
from asmlib import *
from layout import *
from k1 import load_args, srd, ln_stats, LOG2E, P_X, P_WQKV, P_WO, P_W1, P_W2, P_OUT, P_DBG, P_WS
from k234 import xsum_g, cg_blocks, M16, BIG
from kg import E, R, sig5, lane_mask, set_exec

KH_LDS = 163840
RB = 49152
SA = 143360
ST = 110592
P2L = 102400
OP_OFF = PQ_OFF
FL_C, FL_O, FL_KV, FL_RP = 0, 64, 96, 104


def kh_table():
    bp = blk_pos()
    inv = {}
    for j in range(16):
        for sg, T in enumerate(slot_tiles(w1_t0(j), w1_cnt(j), 7)):
            if T is not None:
                inv[T] = (j, sg)
    tab = []
    for u in range(128):
        for w in range(4):
            if u < 54:
                p, nb = u // 27, u % 27
                j, sg = inv[4 * nb + w]
                e = [320 * p * 3456 + 128 * nb, 32 * 3456, CS1_OFF + p * 7168 + (j * 7 + sg) * 64]
                d = [W1P_OFF + w1_frag_off(j, 10 * p + i, sg) for i in range(10)]
            else:
                ks = u - 54 if u < 108 else u - 108
                e = [32 * ks * 1280, 128, BIG]
                d = []
                for nb in range(10):
                    cg, sg = sig5(4 * nb + w)
                    d.append(W2P_OFF + cg * W2G + bp[ks] * 5120 + sg * 1024 if u < 108 else WOP_OFF + cg * 102400 + ks * 5120 + sg * 1024)
            tab.append(e + d[:5] + d[5:] + [0, 0, 0])
    return tab


def gen_kh(a, name):
    sX, sW, sWS, sR = 36, 40, 44, 48
    sO = sR
    sa = RegAlloc('s', 52, 76)
    sTab = 4
    sP = sa.get(8, 4)
    sWv = sa.get(); sRh = sa.get(); sCh = sa.get(); sR1 = sa.get(); sHg = sa.get()
    sT0 = sa.get(); sT1 = sa.get(); sT2 = sa.get(); sT3 = sa.get()
    sKc = sa.get(); sSA = sa.get(); sSB = sa.get(); sMA = sa.get(); sMB = sa.get()
    sFw = sa.get(); sCnt = sa.get()
    sM0, sM1, sM2 = 22, 34, 28
    sRb, sCg, sPb, sSb, sJ, sC, sOa, sOb = [sP + i for i in range(8)]
    sW1, sW1m, sA, sB = sKc, sSA, sMA, sMB
    sH, sHs, sA4 = sRh, sCh, sR1
    sFc = sHg
    sC3, sF3 = 24, 25
    sWo, sKvc, sW2b, sRpc = sM0, sM0 + 1, 26, 27
    sKb = 3
    WS = f's[{sWS}:{sWS + 3}]'
    lapn = [0]
    LSET = os.environ.get('G_LAPS', 'A')

    def lap(kind='A'):
        if any(k_ in LSET for k_ in kind) and lapn[0] < 14:
            a.slap(lapn[0])
            lapn[0] += 1

    vL, vG, vR, vL16, vL16b, vL128 = 1, 2, 3, 4, 5, 6
    vT = [7, 8, 9, 10, 11]
    vOne, vZero = vT[3], vT[4]
    hres = 12
    X, Y, Z = 24, 104, 176
    t = [hres + i for i in range(6)]
    vC = hres + 6
    Lend = name + '_end'
    a.raw(f'.globl {name}\n.p2align 8\n.type {name},@function')
    a.label(name)
    a('s_cmp_ge_u32 s2, 256')
    a(f's_cbranch_scc1 {Lend}')
    a.stamp(0)
    load_args(a)
    a(f'v_and_b32 v{vL}, 63, v0')
    a(f'v_lshrrev_b32 v{vT[0]}, 6, v0')
    a(f'v_readfirstlane_b32 s{sWv}, v{vT[0]}')
    a(f'v_lshrrev_b32 v{vG}, 4, v{vL}')
    a(f'v_and_b32 v{vR}, 15, v{vL}')
    a(f's_lshr_b32 s{sRh}, s{sWv}, 1')
    a(f's_and_b32 s{sCh}, s{sWv}, 1')
    a(f's_and_b32 s{sT0}, s2, 7')
    a(f's_lshr_b32 s{sT1}, s2, 4')
    a(f's_lshr_b32 s{sT2}, s{sT0}, 1')
    a(f's_lshl_b32 s{sR1}, s{sT2}, 2')
    a(f's_lshr_b32 s{sT3}, s{sT1}, 2')
    a(f's_add_u32 s{sR1}, s{sR1}, s{sT3}')
    a(f's_and_b32 s{sT0}, s{sT0}, 1')
    a(f's_lshl_b32 s{sHg}, s{sT0}, 2')
    a(f's_and_b32 s{sT1}, s{sT1}, 3')
    a(f's_add_u32 s{sHg}, s{sHg}, s{sT1}')
    a(f's_add_u32 s{sKc}, s{sT3}, s{sT1}')
    a(f's_mul_i32 s{sKc}, s{sKc}, 5')
    a(f's_lshr_b32 s{sKc}, s{sKc}, 1')
    a(f's_add_u32 s{sKc}, s{sKc}, s{sT2}')
    a(f's_bfe_u32 s{sT0}, s2, 0x10003')
    a(f's_add_u32 s{sKc}, s{sKc}, s{sT0}')
    for _ in range(2):
        a(f's_sub_u32 s{sT0}, s{sKc}, 10')
        a(f's_cmp_ge_u32 s{sKc}, 10')
        a(f's_cselect_b32 s{sKc}, s{sT0}, s{sKc}')
    vOA, vOB = 24, 28
    vOnes = 36
    vA, vB = 33, 40
    a(f's_lshl_b32 s{sT1}, s{sWv}, 5')
    a(f'v_lshrrev_b32 v{t[0]}, 3, v{vL}')
    a(f'v_add_u32 v{t[0]}, s{sT1}, v{t[0]}')
    a(f'v_and_b32 v{t[1]}, 7, v{vL}')
    a(f'v_xor_b32 v{t[2]}, v{vG}, v{t[1]}')
    a(f'v_lshlrev_b32 v{t[2]}, 4, v{t[2]}')
    a(f'v_mul_u32_u24 v{t[0]}, 1280, v{t[0]}')
    a(f'v_add_u32 v{vOA}, v{t[0]}, v{t[2]}')
    a(f'v_xor_b32 v{t[2]}, 64, v{t[2]}')
    a(f'v_add_u32 v{t[2]}, v{t[0]}, v{t[2]}')
    for j in range(1, 4):
        a(f'v_add_u32 v{vOA + j}, {j * (10240 - 1024)}, v{t[2] if j & 1 else vOA}')
    a(f's_lshl_b32 s{sMA}, s{sWv}, 12')
    a(f's_mul_i32 s{sMB}, s{sWv}, 5120')
    a(f's_add_u32 s{sMB}, s{sMB}, {RB}')
    a(f's_movk_i32 s{sT2}, 3840')

    pend = []

    def emit(g):
        for x in g[0]:
            a(x, tag=g[1])

    def pull(n=1):
        for _ in range(n):
            if pend:
                emit(pend.pop(0))

    def need_tag(tag, extra=''):
        while any(g[1] == tag for g in pend):
            pull()
        if tag in a.vm:
            a.vm_wait(tag, extra)
        elif extra:
            a('s_waitcnt' + extra)

    def sched(ms, first, later, start=1, per=1):
        n = len(ms)
        first = list(first)
        pos = {}
        start = min(start, n - 1)
        for k, g in enumerate(later):
            pos.setdefault(min(n - 1, start + (k * (n - start)) // max(1, len(later))), []).append(g)
        for k, m in enumerate(ms):
            a(m)
            for _ in range(per):
                if first:
                    a(first.pop(0))
            for g in pos.get(k, []):
                if isinstance(g, tuple):
                    emit(g)
                else:
                    for x in g:
                        a(x)
        for x in first:
            a(x)

    def publish(sOff, line, tag, barrier=True):
        if tag in a.vm:
            a.vm_wait(tag)
        if barrier:
            a('s_barrier')
        a('s_mov_b64 exec, 1')
        a(f'buffer_atomic_add v{vOne}, v{vZero}, {WS}, s{sOff} offen offset:{128 * line} sc1', tag='flag')
        a('s_mov_b64 exec, -1')

    def poll_issue(sOff, line, nl=1):
        a(f's_mov_b64 exec, {(1 << nl) - 1}')
        a(f'buffer_load_dword v{vT[1]}, v{vL128}, {WS}, s{sOff} offen offset:{128 * line} sc1', tag='poll')
        a('s_mov_b64 exec, -1')

    def poll_wait(sOff, line, expect, nl=1, barrier=True, sleep=1):
        Lp = a.newlabel('Lp'); Lok = a.newlabel('Lok')
        keep = list(a.vm)
        a(f's_cmp_lg_u32 s{sWv}, 0')
        a(f's_cbranch_scc1 {Lok}')
        a.vm_wait('poll')
        a(f's_mov_b32 s{sCnt}, 0')
        a(f's_mov_b64 exec, {(1 << nl) - 1}')
        a.label(Lp)
        a(f'v_cmp_gt_u32 vcc, {expect}, v{vT[1]}')
        a(f's_add_u32 s{sCnt}, s{sCnt}, 1')
        a('s_cmp_eq_u64 vcc, 0')
        a(f's_cbranch_scc1 {Lok}')
        a(f's_cmp_ge_u32 s{sCnt}, 200000')
        a(f's_cbranch_scc1 {Lok}')
        a(f's_sleep {sleep}')
        a(f'buffer_load_dword v{vT[1]}, v{vL128}, {WS}, s{sOff} offen offset:{128 * line} sc1')
        a('s_waitcnt vmcnt(0)')
        a(f's_branch {Lp}')
        a.label(Lok)
        a.vm = keep
        a('s_mov_b64 exec, -1')
        if barrier:
            a('s_barrier')

    def zero_poll():
        Lz = a.newlabel('Lzq')
        keep = list(a.vm)
        a(f'v_lshlrev_b32 v{t[5]}, 2, v{vL}')
        a(f's_cmp_lg_u32 s{sWv}, 0')
        a(f's_cbranch_scc1 {Lz}')
        a('s_mov_b32 exec_hi, 0')
        a(f'global_load_dword v{vT[2]}, v{t[5]}, s[{P_DBG}:{P_DBG + 1}] offset:128 sc1')
        a('s_mov_b64 exec, -1')
        a.label(Lz)
        a.vm = keep + ['zmark']

    def zero_check():
        Lp = a.newlabel('Lzp'); Lok = a.newlabel('Lzok')
        assert 'zmark' not in a.vm
        keep = list(a.vm)
        a(f's_cmp_lg_u32 s{sWv}, 0')
        a(f's_cbranch_scc1 {Lok}')
        a(f's_mov_b32 s{sCnt}, 0')
        a('s_mov_b32 exec_hi, 0')
        a.label(Lp)
        a(f'v_cmp_ne_u32 vcc, 1, v{vT[2]}')
        a(f's_add_u32 s{sCnt}, s{sCnt}, 1')
        a('s_cmp_eq_u64 vcc, 0')
        a(f's_cbranch_scc1 {Lok}')
        a(f's_cmp_ge_u32 s{sCnt}, 200000')
        a(f's_cbranch_scc1 {Lok}')
        a('s_sleep 2')
        a(f'global_load_dword v{vT[2]}, v{t[5]}, s[{P_DBG}:{P_DBG + 1}] offset:128 sc1')
        a('s_waitcnt vmcnt(0)')
        a(f's_branch {Lp}')
        a.label(Lok)
        a.vm = keep
        a('s_mov_b64 exec, -1')

    def weave(chains, k, pl=0):
        for b in range(0, len(chains), k):
            grp = chains[b:b + k]
            for i in range(max(len(c) for c in grp)):
                for c in grp:
                    if i < len(c):
                        a(c[i])
                if pl and i % pl == pl - 1:
                    pull()

    def phi_chain(d, u, p):
        return [f'v_pk_mul_f32 {R("v", u, 2)}, {R("v", d, 2)}, {R("v", vC, 2)}',
                f'v_pk_add_f32 {R("v", p, 2)}, {R("v", d, 2)}, {R("v", vC + 2, 2)}',
                f'v_exp_f32 v{u}, v{u}', f'v_exp_f32 v{u + 1}, v{u + 1}',
                f'v_med3_f32 v{u}, v{u}, v{p}, 1.0', f'v_med3_f32 v{u + 1}, v{u + 1}, v{p + 1}, 1.0',
                f'v_pk_add_f32 {R("v", u, 2)}, {R("v", u, 2)}, {R("v", vC + 4, 2)}']

    aWO = 0
    W2R = [('v', Z + 20 * i) for i in range(4)] + [('a', 160 + 20 * i) for i in range(4)]
    W2R += [('v', Y), ('v', Y + 20), ('v', Y + 40), ('v', Y), ('v', Z), ('v', Z + 20)]
    W2L = {8: SA, 9: 0, 10: 20480, 11: 40960}

    def wo_groups():
        g = []
        for f in range(25):
            pre = [f's_add_u32 s{sWo}, s{sWo}, 4096'] if f and f % 4 == 0 else []
            g.append((pre + [f'buffer_load_dwordx4 {R("a", aWO + 4 * f)}, v{vL16}, {WS}, s{sWo} offen offset:{1024 * (f & 3)} sc1'], 'wo'))
        return g

    def w2_groups(i):
        f, r = W2R[i]
        g = []
        for sg in range(5):
            pre = []
            if sg == 0:
                pre = [f's_add_u32 s{sM2}, s{sW2b}, {20480 * i}']
                if i == 5:
                    pre += [f's_cmp_ge_u32 s{sWv}, 2', f's_cselect_b32 s{sM2}, 0x{BIG:x}, s{sM2}']
            v, off = (vL16, 1024 * sg) if sg < 4 else (vL16b, 0)
            g.append((pre + [f'buffer_load_dwordx4 {R(f, r + 4 * sg)}, v{v}, {WS}, s{sM2} offen offset:{off} sc1'], f'w2_{i}'))
        return g

    def w2l_groups(i):
        g = []
        for sg in range(5):
            pre = []
            if sg == 0:
                pre = [f's_add_u32 s{sM2}, s{sW2b}, {20480 * i}', f's_mul_i32 s{sCnt}, s{sWv}, 5120', f's_add_u32 m0, s{sCnt}, {W2L[i]}', 's_nop 0']
            if sg == 4:
                pre = [f's_mul_i32 s{sCnt}, s{sWv}, 5120', f's_add_u32 m0, s{sCnt}, {W2L[i] + 4096}', 's_nop 0']
            v, off = (vL16, 1024 * sg) if sg < 4 else (vL16b, 0)
            g.append((pre + [f'buffer_load_dwordx4 v{v}, {WS}, s{sM2} offen offset:{off} sc1 lds'], f'w2_{i}'))
        return g

    def w1_groups(lo, hi, tag):
        g = []
        off = lo
        while off + 16384 <= hi:
            for i in range(4):
                pre = [f's_add_u32 m0, s{sW1m}, {off}', f's_add_u32 s{sM2 + 1}, s{sW1}, {off}'] if i == 0 else []
                g.append((pre + [f'buffer_load_dwordx4 v{vL16}, {WS}, s{sM2 + 1} offen offset:{1024 * i} sc1 lds'], tag))
            off += 16384
        while off < hi:
            g.append(([f's_lshl_b32 s{sCnt}, s{sWv}, 10', f's_add_u32 m0, s{sCnt}, {off}', f's_sub_u32 s{sM2 + 1}, s{sW1}, s{sW1m}',
                       f's_add_u32 s{sM2 + 1}, s{sM2 + 1}, s{sCnt}', f's_add_u32 s{sM2 + 1}, s{sM2 + 1}, {off}',
                       f'buffer_load_dwordx4 v{vL16}, {WS}, s{sM2 + 1} offen sc1 lds'], tag))
            off += 4096
        return g

    def post_scalars():
        a(f's_and_b32 s{sT0}, s2, 7')
        a(f's_lshr_b32 s{sT1}, s2, 3')
        a(f's_and_b32 s{sCg}, s{sT1}, 7')
        a(f's_lshr_b32 s{sT2}, s{sT1}, 3')
        a(f's_lshl_b32 s{sRb}, s{sT0}, 2')
        a(f's_add_u32 s{sRb}, s{sRb}, s{sT2}')
        a(f's_lshr_b32 s{sC}, s{sRb}, 1')
        a(f's_lshr_b32 s{sC3}, s{sT0}, 1')
        a(f's_lshl_b32 s{sC3}, s{sC3}, 2')
        a(f's_add_u32 s{sC3}, s{sC3}, s{sT2}')
        a(f's_and_b32 s{sT0}, s{sT0}, 1')
        a(f's_lshl_b32 s{sJ}, s{sT0}, 3')
        a(f's_add_u32 s{sJ}, s{sJ}, s{sCg}')
        a(f's_lshl_b32 s{sF3}, s{sC3}, 9')
        a(f's_add_u32 s{sF3}, s{sF3}, s{sFw}')
        cg_blocks(a, sCg, sPb, sSb, sT0)
        for x in [f's_lshl_b32 s{sT0}, s{sRb}, 2', f's_add_u32 s{sT0}, s{sT0}, s{sWv}', f's_mul_i32 s{sT1}, s{sT0}, {16 * 1280}',
                  f's_lshl_b32 s{sOa}, s{sPb}, 6', f's_add_u32 s{sOa}, s{sOa}, s{sT1}', f's_lshr_b32 s{sT2}, s{sSb}, 1',
                  f's_lshl_b32 s{sT2}, s{sT2}, 6', f's_and_b32 s{sT3}, s{sSb}, 1', f's_lshl_b32 s{sT3}, s{sT3}, 3',
                  f's_add_u32 s{sT2}, s{sT2}, s{sT3}', f's_add_u32 s{sOb}, s{sT2}, s{sT1}']:
            a(x)
        srd(a, sX, P_X, 0, S * D * 2)
        srd(a, sO, P_OUT, 0, S * D * 2)
        a(f's_mul_i32 s{sWo}, s{sCg}, 102400')
        a(f's_mul_i32 s{sT2}, s{sWv}, 25600')
        a(f's_add_u32 s{sWo}, s{sWo}, s{sT2}')
        a(f's_add_u32 s{sWo}, s{sWo}, {WOP_OFF}')
        a(f's_lshl_b32 s{sKvc}, s{sHg}, 7')
        a(f's_add_u32 s{sKvc}, s{sKvc}, {FL_KV * 128}')
        a(f's_add_u32 s{sKvc}, s{sKvc}, s{sFw}')
        a(f's_add_u32 s{sRpc}, s{sFw}, {FL_RP * 128}')
        a(f's_mul_i32 s{sW2b}, s{sCg}, {W2G}')
        a(f's_mul_i32 s{sT0}, s{sWv}, 5120')
        a(f's_add_u32 s{sW2b}, s{sW2b}, s{sT0}')
        a(f's_add_u32 s{sW2b}, s{sW2b}, {W2P_OFF}')
        a(f's_lshl_b32 s{sW1m}, s{sWv}, 12')
        a(f's_mul_i32 s{sW1}, s{sJ}, 143360')
        a(f's_add_u32 s{sW1}, s{sW1}, s{sW1m}')
        a(f's_add_u32 s{sW1}, s{sW1}, {W1P_OFF}')

    W2ORD = [4, 5, 6, 7, 0, 1, 2, 3]
    NW2PF = E('H_NW2PF', 4)

    def pf_list():
        g = wo_groups() + w1_groups(0, 102400, 'w1e')
        for i in W2ORD[:NW2PF]:
            g += w2_groups(i)
        return g

    ones = R('v', vOnes)
    ST1, CSP, AA, KVA = ST, ST + 2048, ST + 3584, ST + 4608
    Lq = name + '_q'; Lm = name + '_merge'
    a('s_bitcmp1_b32 s2, 3')
    a(f's_cbranch_scc1 {Lq}')
    lap0 = lapn[0]
    for role in ('kv', 'q'):
        kv = role == 'kv'
        lapn[0] = lap0
        if not kv:
            a.label(Lq)
        TC = 5 if kv else 3
        NF = 16 + 4 * TC
        if kv:
            fr = [44, 44 + 36]
            acc, s1, s2, cs = 116, 196, 212, 228
            ex = 248
            a(f's_mul_i32 s{sT3}, s{sWv}, {16 * 3840}')
            for j in range(5):
                a(f'v_add_u32 v{t[0]}, {64 * j}, v{vL}')
                a(f'v_mul_u32_u24 v{t[1]}, 3277, v{t[0]}')
                a(f'v_lshrrev_b32 v{t[1]}, 16, v{t[1]}')
                a(f'v_mul_u32_u24 v{t[2]}, 20, v{t[1]}')
                a(f'v_sub_u32 v{t[0]}, v{t[0]}, v{t[2]}')
                a(f'v_lshrrev_b32 v{t[2]}, 2, v{t[1]}')
                a(f'v_and_b32 v{t[2]}, 2, v{t[2]}')
                a(f'v_xor_b32 v{t[0]}, v{t[0]}, v{t[2]}')
                a(f'v_mul_u32_u24 v{t[2]}, 205, v{t[0]}')
                a(f'v_lshrrev_b32 v{t[2]}, 10, v{t[2]}')
                a(f'v_and_b32 v{t[3]}, 1, v{t[2]}')
                a(f'v_mul_u32_u24 v{t[3]}, 1200, v{t[3]}')
                a(f'v_lshl_add_u32 v{t[0]}, v{t[0]}, 4, v{t[3]}')
                a(f'v_lshrrev_b32 v{t[2]}, 1, v{t[2]}')
                a(f'v_mul_u32_u24 v{t[2]}, 80, v{t[2]}')
                a(f'v_sub_u32 v{t[0]}, v{t[0]}, v{t[2]}')
                a(f'v_mad_u32_u24 v{t[0]}, v{t[1]}, s{sT2}, v{t[0]}')
                a(f's_sub_u32 s{sT1}, s{sT3}, {1024 * (j & 3)}')
                a(f'v_add_u32 v{vOB + j}, s{sT1}, v{t[0]}')
        else:
            fr = [Z, Z + 28]
            acc, s1, s2, cs = 64, 112, 128, 144
            ex = 156
            a(f's_mov_b32 s{sKb}, s{sKc}')
            a(f's_mul_i32 s{sT3}, s{sCh}, {32 * 3840}')
            for j in range(5):
                a(f'v_add_u32 v{t[0]}, {64 * j}, v{vL}')
                a(f'v_mul_u32_u24 v{t[1]}, 6554, v{t[0]}')
                a(f'v_lshrrev_b32 v{t[1]}, 16, v{t[1]}')
                a(f'v_mul_u32_u24 v{t[2]}, 10, v{t[1]}')
                a(f'v_sub_u32 v{t[0]}, v{t[0]}, v{t[2]}')
                a(f'v_and_b32 v{t[2]}, 0x13, v{t[1]}')
                a(f'v_bfe_u32 v{t[3]}, v{t[1]}, 2, 1')
                a(f'v_lshl_or_b32 v{t[2]}, v{t[3]}, 3, v{t[2]}')
                a(f'v_bfe_u32 v{t[3]}, v{t[1]}, 3, 1')
                a(f'v_lshl_or_b32 v{t[2]}, v{t[3]}, 2, v{t[2]}')
                a(f'v_lshlrev_b32 v{t[0]}, 4, v{t[0]}')
                a(f'v_mad_u32_u24 v{t[0]}, v{t[2]}, s{sT2}, v{t[0]}')
                a(f's_sub_u32 s{sT1}, s{sT3}, {1024 * (j & 3)}')
                a(f'v_add_u32 v{vOB + j}, s{sT1}, v{t[0]}')
        a(f's_mul_i32 s{sT0}, s{sR1}, {128 * 1280}')
        a(f's_mul_i32 s{sT1}, s{sHg}, 160')
        if kv:
            a(f's_add_u32 s{sT1}, s{sT1}, 1280')
        a('s_waitcnt lgkmcnt(0)')
        a(f's_add_u32 s{sX}, s{P_X}, s{sT0}')
        a(f's_addc_u32 s{sX + 1}, s{P_X + 1}, 0')
        a(f's_sub_u32 s{sX + 2}, {S * D * 2}, s{sT0}')
        a(f's_mov_b32 s{sX + 3}, 0x20000')
        a(f's_add_u32 s{sW}, s{P_WQKV}, s{sT1}')
        a(f's_addc_u32 s{sW + 1}, s{P_WQKV + 1}, 0')
        a(f's_sub_u32 s{sW + 2}, {D * 3 * D * 2}, s{sT1}')
        a(f's_mov_b32 s{sW + 3}, 0x20000')
        a.vm_reset()

        def adv(s_):
            return [f's_add_u32 s{s_}, s{s_}, 1', f's_cmp_eq_u32 s{s_}, 10', f's_cselect_b32 s{s_}, 0, s{s_}']

        def b_groups(slot, pre0, tag):
            g = []
            for j in range(5):
                pre = list(pre0) if j == 0 else []
                pre += [f's_add_u32 m0, s{sMB}, {slot * 20480 + (4096 if j == 4 else 0)}', 's_nop 0']
                g.append((pre + [f'buffer_load_dwordx4 v{vOB + j}, s[{sW}:{sW + 3}], s{sSB} offen offset:{1024 * (j & 3)} lds'], tag))
            return g

        def stage_groups(n):
            g = []
            for j in range(4):
                pre = []
                if j == 0:
                    pre = [f's_lshl_b32 s{sSA}, s{sKc}, 7']
                    if kv:
                        pre += [f's_mul_i32 s{sSB}, s{sKc}, {64 * 3840}']
                    pre += [f's_add_u32 m0, s{sMA}, {16384 * (n % 3)}'] + adv(sKc)
                g.append((pre + [f'buffer_load_dwordx4 v{vOA + j}, s[{sX}:{sX + 3}], s{sSA} offen offset:{1024 * j} lds'], f's{n}'))
            if kv:
                g += b_groups(n % 3, [], f's{n}')
            elif n % 2 == 0:
                pre0 = [f's_add_u32 s{sSB}, s{sKb}, s{sRh}', f's_cmp_eq_u32 s{sSB}, 10', f's_cselect_b32 s{sSB}, 0, s{sSB}',
                        f's_mul_i32 s{sSB}, s{sSB}, {64 * 3840}'] + adv(sKb) + adv(sKb)
                g += b_groups((n >> 1) % 3, pre0, f's{n}')
            return g
        a.stamp(1)
        for n in range(2):
            for g in stage_groups(n):
                emit(g)
        srd(a, sWS, P_WS, 0, WS_USED)
        a(f'v_lshlrev_b32 v{vL16}, 4, v{vL}')
        a(f'v_add_u32 v{vL16b}, 4096, v{vL16}')
        a(f'v_lshlrev_b32 v{vL128}, 7, v{vL}')
        a(f'v_mov_b32 v{vOne}, 1')
        a(f'v_mov_b32 v{vZero}, 0')
        for i in range(4):
            a(f'v_mov_b32 v{vOnes + i}, 0x3f803f80')
        Lpc = a.newlabel('Lpc')
        a(f's_getpc_b64 s[{sM1}:{sM1 + 1}]')
        a.label(Lpc)
        a(f's_sub_u32 s{sM1}, s{sM1}, {Lpc}-{name}')
        a(f's_subb_u32 s{sM1 + 1}, s{sM1 + 1}, 0')
        Lc = a.newlabel('Lc')
        a(f's_lshr_b32 s{sT0}, s2, 3')
        a(f's_lshl_b32 s{sT0}, s{sT0}, 2')
        a(f's_add_u32 s{sT0}, s{sT0}, s{sWv}')
        a(f's_lshl_b32 s{sT0}, s{sT0}, 10')
        a(f's_cmp_ge_u32 s{sT0}, {name}_tab-{name}')
        a(f's_cbranch_scc1 {Lc}')
        a(f'v_lshl_add_u32 v{t[0]}, v{vL}, 4, s{sT0}')
        keep = list(a.vm)
        a(f'global_load_dwordx4 a[0:3], v{t[0]}, s[{sM1}:{sM1 + 1}]')
        a.vm = keep
        a.label(Lc)
        hl = tlb_holes()
        for i, h in enumerate(hl):
            a(f's_mov_b32 s{sT1}, {h}')
            a(f'v_writelane_b32 v{t[0]}, s{sT1}, {i}')
        a(f's_mov_b64 exec, {(1 << len(hl)) - 1}')
        a(f'buffer_load_dword a4, v{t[0]}, {WS}, 0 offen', tag='tlb')
        a('s_mov_b64 exec, 3')
        a(f'v_mul_u32_u24 v{t[1]}, {S * D * 2 - 4}, v{vL}')
        a(f'global_load_dword a5, v{t[1]}, s[{P_OUT}:{P_OUT + 1}]', tag='tlb')
        a('s_mov_b64 exec, -1')
        if kv:
            for i in range(4):
                a(f'v_mov_b32 v{ex + i}, 0')
            a(f's_lshl_b32 s{sT1}, s{sHg}, 2')
            a(f's_add_u32 s{sT1}, s{sT1}, s{sWv}')
            a(f's_mul_i32 s{sT2}, s{sT1}, {KV_HS}')
            a(f's_add_u32 s{sT2}, s{sT2}, {KV_OFF}')
            a(f's_lshl_b32 s{sT3}, s{sT1}, 9')
            a(f's_add_u32 s{sT3}, s{sT3}, {FL_OFF}')
            a(f's_cmp_eq_u32 s{sR1}, 0')
            a(f's_cselect_b32 s{sT2}, s{sT2}, 0x{BIG:x}')
            a(f's_cselect_b32 s{sT3}, s{sT3}, 0x{BIG:x}')
            a(f'v_lshlrev_b32 v{t[0]}, 3, v{vL}')
            a(f'buffer_store_dwordx4 {R("v", ex)}, v{vL16}, {WS}, s{sT2} offen sc1', tag='z')
            a(f'buffer_store_dwordx4 {R("v", ex)}, v{vL16}, {WS}, s{sT2} offen offset:768 sc1', tag='z')
            a(f'buffer_store_dwordx2 {R("v", ex, 2)}, v{t[0]}, {WS}, s{sT3} offen sc1', tag='z')
        else:
            a(f's_lshr_b32 s{sT0}, s2, 4')
            a(f's_lshl_b32 s{sT0}, s{sT0}, 3')
            a(f's_and_b32 s{sT1}, s2, 7')
            a(f's_add_u32 s{sT0}, s{sT0}, s{sT1}')
            a(f's_lshl_b32 s{sT1}, s{sT0}, 2')
            a(f's_add_u32 s{sT1}, s{sT1}, s{sWv}')
            a(f's_lshl_b32 s{sT1}, s{sT1}, 6')
            a(f's_add_u32 s{sT1}, s{sT1}, {name}_tab-{name}')
            a(f's_add_u32 s{sM1}, s{sM1}, s{sT1}')
            a(f's_addc_u32 s{sM1 + 1}, s{sM1 + 1}, 0')
            a(f's_load_dwordx8 s[4:11], s[{sM1}:{sM1 + 1}], 0')
            a(f's_load_dwordx4 s[12:15], s[{sM1}:{sM1 + 1}], 32')
            a(f's_load_dword s{sP}, s[{sM1}:{sM1 + 1}], 48')
            a(f's_cmp_lt_u32 s{sT0}, 108')
            a(f's_cselect_b32 s{sR}, s{P_W2}, s{P_WO}')
            a(f's_cselect_b32 s{sR + 1}, s{P_W2 + 1}, s{P_WO + 1}')
            a(f's_mov_b32 s{sR + 2}, {D * D * 2}')
            a(f's_cselect_b32 s{sR + 2}, {D * F * 2}, s{sR + 2}')
            a(f's_movk_i32 s{sT2}, 1280')
            a(f's_cmp_lt_u32 s{sT0}, 54')
            a(f's_cselect_b32 s{sR}, s{P_W1}, s{sR}')
            a(f's_cselect_b32 s{sR + 1}, s{P_W1 + 1}, s{sR + 1}')
            a(f's_cselect_b32 s{sT2}, 3456, s{sT2}')
            a(f's_mov_b32 s{sR + 3}, 0x20000')
            vRP = 44
            a(f's_lshl_b32 s{sT1}, s{sWv}, 3')
            a(f'v_lshrrev_b32 v{t[0]}, 3, v{vL}')
            a(f'v_add_u32 v{t[0]}, s{sT1}, v{t[0]}')
            a(f'v_and_b32 v{t[1]}, 7, v{vL}')
            a(f'v_lshlrev_b32 v{t[1]}, 4, v{t[1]}')
            a(f'v_mad_u32_u24 v{vRP}, v{t[0]}, s{sT2}, v{t[1]}')
        a(f's_xor_b32 s{sT0}, s{sRh}, s{sCh}')
        a(f'v_lshrrev_b32 v{t[0]}, 3, v{vR}')
        a(f'v_lshlrev_b32 v{t[0]}, 10, v{t[0]}')
        a(f'v_and_b32 v{t[1]}, 7, v{vR}')
        a(f'v_lshl_add_u32 v{t[0]}, v{t[1]}, 7, v{t[0]}')
        a(f's_lshl_b32 s{sT1}, s{sRh}, 13')
        a(f'v_add_u32 v{t[0]}, s{sT1}, v{t[0]}')
        a(f'v_lshrrev_b32 v{t[1]}, 1, v{vR}')
        a(f'v_xor_b32 v{t[1]}, v{t[1]}, v{vG}')
        a(f's_lshl_b32 s{sT1}, s{sT0}, 2')
        a(f'v_xor_b32 v{t[1]}, s{sT1}, v{t[1]}')
        a(f'v_lshl_add_u32 v{vA}, v{t[1]}, 4, v{t[0]}')
        a(f'v_xor_b32 v{t[1]}, 4, v{t[1]}')
        a(f'v_lshl_add_u32 v{vA + 1}, v{t[1]}, 4, v{t[0]}')
        a(f'v_bfe_u32 v{t[0]}, v{vL}, 2, 2')
        a(f'v_and_b32 v{t[1]}, 3, v{vL}')
        a(f'v_and_b32 v{t[3]}, 1, v{vG}')
        if kv:
            a(f'v_lshl_add_u32 v{t[2]}, v{vG}, 3, v{t[0]}')
            a(f'v_mul_u32_u24 v{t[2]}, 320, v{t[2]}')
            a(f'v_lshl_add_u32 v{t[2]}, v{t[1]}, 3, v{t[2]}')
            a(f's_mul_i32 s{sT1}, s{sCh}, 160')
            a(f's_add_u32 s{sT1}, s{sT1}, {RB}')
            a(f'v_add_u32 v{t[2]}, s{sT1}, v{t[2]}')
            a(f'v_lshlrev_b32 v{t[4]}, 5, v{t[3]}')
            a(f'v_sub_u32 v{t[5]}, v{t[2]}, v{t[4]}')
            a(f'v_add_u32 v{t[4]}, v{t[2]}, v{t[4]}')
            a(f's_cmp_eq_u32 s{sCh}, 0')
            a('s_cselect_b64 vcc, -1, 0')
            a(f'v_cndmask_b32 v{t[2]}, v{t[5]}, v{t[4]}, vcc')
            a(f'v_cndmask_b32 v{t[4]}, v{t[4]}, v{t[5]}, vcc')
            a(f's_mul_i32 s{sT1}, s{sT0}, 10240')
            a(f's_sub_u32 s{sT2}, 10240, s{sT1}')
            for o, sreg in ((0, sT1), (1, sT2)):
                a(f'v_add_u32 v{vB + 2 * o}, s{sreg}, v{t[2]}')
                a(f'v_add_u32 v{vB + 2 * o + 1}, s{sreg}, v{t[4]}')
        else:
            a(f'v_lshl_add_u32 v{t[0]}, v{t[3]}, 2, v{t[0]}')
            a(f'v_lshrrev_b32 v{t[3]}, 1, v{vG}')
            a(f'v_lshl_add_u32 v{t[0]}, v{t[3]}, 4, v{t[0]}')
            a(f'v_mul_u32_u24 v{t[0]}, 160, v{t[0]}')
            a(f'v_lshl_add_u32 v{t[0]}, v{t[1]}, 3, v{t[0]}')
            a(f's_mul_i32 s{sT1}, s{sCh}, 80')
            a(f's_add_u32 s{sT1}, s{sT1}, {RB}')
            a(f's_mul_i32 s{sT2}, s{sT0}, 5120')
            a(f's_add_u32 s{sT3}, s{sT1}, s{sT2}')
            a(f'v_add_u32 v{vB}, s{sT3}, v{t[0]}')
            a(f's_sub_u32 s{sT3}, s{sT1}, s{sT2}')
            a(f's_add_u32 s{sT3}, s{sT3}, 5120')
            a(f'v_add_u32 v{vB + 1}, s{sT3}, v{t[0]}')
        for i, c in enumerate((LOG2E, LOG2E, 0x3f800000, 0x3f800000, 0x358637bd, 0x358637bd)):
            a(f'v_mov_b32 v{vC + i}, 0x{c:x}')
        a(f's_cmp_eq_u32 s{sWv}, 0')
        a(f's_mov_b32 s{sFw}, 0x{BIG:x}')
        a(f's_cselect_b32 s{sFw}, {FL_OFF}, s{sFw}')
        TOFF = (0, 32, 48)

        def reads(n, o):
            f = fr[o]
            lst = [f'ds_read_b128 {R("v", f + 4 * tr)}, v{vA + o} offset:{16384 * (n % 3) + 2048 * tr}' for tr in range(4)]
            for tc in range(TC):
                for j in range(2):
                    b = f + 16 + 4 * tc + 2 * j
                    if kv:
                        lst.append(f'ds_read_b64_tr_b16 {R("v", b, 2)}, v{vB + 2 * o + (tc & 1)} offset:{(n % 3) * 20480 + 32 * tc + 1280 * j}')
                    else:
                        lst.append(f'ds_read_b64_tr_b16 {R("v", b, 2)}, v{vB + o} offset:{((n >> 1) % 3) * 20480 + (n & 1) * 10240 + 1280 * j + TOFF[tc]}')
            return lst

        def mf(n, o, extras_first=False):
            f = fr[o]
            A = lambda tr: R('v', f + 4 * tr)
            B = lambda tc: R('v', f + 16 + 4 * tc)
            z = lambda d, first: '0' if first else R('v', d)
            sw = (lambda x, y: (x, y)) if kv else (lambda x, y: (y, x))
            lst, exl = [], []
            for tc in range(TC):
                for tr in range(4):
                    d = acc + 4 * (tr * TC + tc)
                    x, y = sw(A(tr), B(tc))
                    lst.append(f'{M16} {R("v", d)}, {x}, {y}, {z(d, n == 0 and o == 0)}')
            if o == 0:
                for tr in range(4):
                    exl.append(f'{M16} {R("v", s1 + 4 * tr)}, {A(tr)}, {ones}, {z(s1 + 4 * tr, n == 0)}')
                    exl.append(f'{M16} {R("v", s2 + 4 * tr)}, {A(tr)}, {A(tr)}, {z(s2 + 4 * tr, n == 0)}')
            else:
                for tc in range(TC):
                    x, y = sw(ones, B(tc))
                    exl.append(f'{M16} {R("v", cs + 4 * tc)}, {x}, {y}, {z(cs + 4 * tc, n == 0)}')
            return exl + lst if extras_first else lst + exl

        sg2 = stage_groups(2)
        for g in sg2[:4]:
            emit(g)
        a.stamp(2)
        a.vm_wait('s0', ' lgkmcnt(0)')
        a('s_barrier')
        a.stamp(3)
        for x in reads(0, 0):
            a(x)
        carry = sg2[4:]
        ZP_IT = E('H_ZPIT', 5)
        R_IT = E('H_RIT', 3)
        aRP = 200
        for it in range(10):
            last = it == 9
            later = list(carry)
            a('s_waitcnt lgkmcnt(0)')
            if last:
                g1 = [[f's_mov_b32 s{sM0}, 0x22222222', f's_mov_b32 s{sM0 + 1}, 0x22222222', f's_mov_b32 s{sM1}, 0x44444444',
                       f's_mov_b32 s{sM1 + 1}, 0x44444444', 's_mov_b32 vcc_lo, 0x88888888', 's_mov_b32 vcc_hi, 0x88888888',
                       f's_lshl_b32 s{sT1}, s{sCh}, 9', f's_lshl_b32 s{sT2}, s{sRh}, 8', f's_add_u32 s{sT1}, s{sT1}, s{sT2}',
                       f's_add_u32 s{sT1}, s{sT1}, {ST1}',
                       f'v_lshl_add_u32 v{t[0]}, v{vR}, 2, s{sT1}', f'v_lshl_add_u32 v{t[1]}, v{vG}, 4, s{sT1}']]
                for tr in range(4):
                    d = s2 + 4 * tr
                    g1.append([f'v_cndmask_b32 v{d}, v{d}, v{d + 1}, s[{sM0}:{sM0 + 1}]',
                               f'v_cndmask_b32 v{d}, v{d}, v{d + 2}, s[{sM1}:{sM1 + 1}]',
                               f'v_cndmask_b32 v{d}, v{d}, v{d + 3}, vcc'])
                w = ['s_mov_b32 exec_lo, 0x00F0000F', 's_mov_b32 exec_hi, 0xF0000F00']
                w += [f'ds_write_b32 v{t[0]}, v{s2 + 4 * tr} offset:{1024 + 64 * tr}' for tr in range(4)]
                w += ['s_mov_b32 exec_lo, 0x00010001', 's_mov_b32 exec_hi, 0x00010001']
                w += [f'ds_write_b128 v{t[1]}, {R("v", s1 + 4 * tr)} offset:{64 * tr}' for tr in range(4)]
                w += ['s_mov_b64 exec, -1']
                g1.append(w)
                ms = mf(it, 0, True)
                sched(ms[:12], reads(it, 1), later, per=2)
                sched(ms[12:], [], g1, start=0)
            else:
                sched(mf(it, 0), reads(it, 1), later, start=2, per=1 if kv else 2)
            if kv and it == 2:
                Lz = a.newlabel('Lz')
                assert 'z' not in a.vm
                a(f's_cmp_lg_u32 s{sR1}, 0')
                a(f's_cbranch_scc1 {Lz}')
                a(f's_lshl_b32 s{sT1}, s{sHg}, 2')
                a(f's_add_u32 s{sT1}, s{sT1}, s{sWv}')
                a(f's_lshl_b32 s{sT1}, s{sT1}, 2')
                a(f'v_mov_b32 v{t[0]}, s{sT1}')
                a('s_mov_b64 exec, 1')
                keep = list(a.vm)
                a(f'global_store_dword v{t[0]}, v{vOne}, s[{P_DBG}:{P_DBG + 1}] offset:128 sc1')
                a.vm = keep
                a('s_mov_b64 exec, -1')
                a.label(Lz)
            if not last:
                need_tag(f's{it + 1}', ' lgkmcnt(0)')
            else:
                a('s_waitcnt lgkmcnt(0)')
            if it == ZP_IT + 3:
                zero_check()
            a('s_barrier')
            if it == ZP_IT + 1:
                zero_poll()
            nx = stage_groups(it + 3) if it + 3 < 10 else []
            h = 4 if kv or len(nx) > 4 else 2
            later = nx[:h]
            carry = nx[h:]
            if not kv and len(nx) == 4:
                carry[0] = ([f's_add_u32 m0, s{sMA}, {16384 * ((it + 3) % 3)}', 's_nop 0'] + carry[0][0], carry[0][1])
            if not kv and it == R_IT:
                for i in range(10):
                    pre = [f's_add_u32 s4, s4, s5'] if i else []
                    carry.append((pre + [f'buffer_load_dwordx4 {R("a", aRP + 4 * i)}, v{vRP}, s[{sR}:{sR + 3}], s4 offen'], 'r'))
            first = reads(it + 1, 0) if not last else []
            if last:
                e = fr[0]
                first = [f'v_and_b32 v{t[0]}, 127, v0', f'v_lshlrev_b32 v{t[0]}, 2, v{t[0]}', f'v_add_u32 v{t[0]}, {ST1}, v{t[0]}',
                         f'ds_read_b32 v{e}, v{t[0]}', f'ds_read_b32 v{e + 1}, v{t[0]} offset:512',
                         f'ds_read_b32 v{e + 2}, v{t[0]} offset:1024', f'ds_read_b32 v{e + 3}, v{t[0]} offset:1536']
                sub = Asm()
                sub('s_waitcnt lgkmcnt(0)')
                sub(f'v_add_f32 v{e}, v{e}, v{e + 1}')
                sub(f'v_add_f32 v{e + 2}, v{e + 2}, v{e + 3}')
                sub(f'v_mul_f32 v{e}, 0x3acccccd, v{e}')
                sub(f'v_mul_f32 v{e + 2}, 0x3acccccd, v{e + 2}')
                sub(f'v_fma_f32 v{e + 2}, -v{e}, v{e}, v{e + 2}')
                ln_stats(sub, e, e + 2, e + 1)
                st = [i.text for i in sub.items]
                g2 = []
                while st:
                    g2.append(st[:4]); st = st[4:]
                if kv:
                    cw = [f's_mul_i32 s{sT1}, s{sRh}, 640', f's_mul_i32 s{sT2}, s{sCh}, 320', f's_add_u32 s{sT1}, s{sT1}, s{sT2}',
                          f's_add_u32 s{sT1}, s{sT1}, {CSP}', f'v_lshl_add_u32 v{t[2]}, v{vR}, 2, s{sT1}', 's_mov_b64 exec, 0xffff']
                    cw += [f'ds_write_b32 v{t[2]}, v{cs + 4 * tc} offset:{64 * tc}' for tc in range(5)] + ['s_mov_b64 exec, -1']
                else:
                    cw = [f's_mul_i32 s{sT1}, s{sRh}, 384', f's_mul_i32 s{sT2}, s{sCh}, 192', f's_add_u32 s{sT1}, s{sT1}, s{sT2}',
                          f's_add_u32 s{sT1}, s{sT1}, {CSP}', f'v_lshl_add_u32 v{t[2]}, v{vG}, 4, s{sT1}',
                          's_mov_b32 exec_lo, 0x00010001', 's_mov_b32 exec_hi, 0x00010001']
                    cw += [f'ds_write_b128 v{t[2]}, {R("v", cs + 4 * tc)} offset:{64 * tc}' for tc in range(3)] + ['s_mov_b64 exec, -1']
                g2.append(cw)
                g2.append([f'ds_write_b32 v{t[0]}, v{e + 1} offset:{AA - ST1}', f'ds_write_b32 v{t[0]}, v{e} offset:{AA + 512 - ST1}'])
                if kv:
                    pairs = [(0, 2), (0, 3), (1, 2), (1, 3), (1, 4), (2, 3), (2, 4)]
                    cp, ad, vSa, vSc, rpz = vOA, ex, vOA + 3, vOA + 4, vOA + 5
                    ea = [f's_mul_i32 s{sT3}, s{sWv}, {2 * KV_HS}', f's_add_u32 s{sT3}, s{sT3}, {KVA}']
                    for tk in range(3):
                        ea += [f'v_add_u32 v{t[4]}, {4 * tk}, v{vG}', f'v_lshl_add_u32 v{cp + tk}, v{t[4]}, 4, s{sT3}']
                        if tk == 1:
                            ea += [f'v_min_u32 v{t[3]}, 1, v{vG}', f'v_mul_u32_u24 v{t[3]}, {KV_HS - 80}, v{t[3]}', f'v_add_u32 v{cp + tk}, v{cp + tk}, v{t[3]}']
                        if tk == 2:
                            ea += [f'v_add_u32 v{cp + tk}, {KV_HS - 80}, v{cp + tk}']
                    for tv in range(2, 5):
                        x = rpz + tv - 2
                        ea += [f'v_add_u32 v{x}, {(16 * tv - 40) & 0xffffffff}, v{vR}', f'v_subrev_u32 v{t[4]}, 20, v{x}',
                               f'v_min_u32 v{x}, v{x}, v{t[4]}', f'v_mul_u32_u24 v{x}, 80, v{x}']
                    for n, (tk, tv) in enumerate(pairs):
                        ea.append(f'v_add_u32 v{ad + n}, v{cp + tk}, v{rpz + tv - 2}')
                    ea += [f's_lshl_b32 s{sT3}, s{sRh}, 8', f's_add_u32 s{sT3}, s{sT3}, {AA}', f'v_lshl_add_u32 v{vSa}, v{vG}, 4, s{sT3}',
                           f's_mul_i32 s{sT3}, s{sCh}, 320', f's_add_u32 s{sT3}, s{sT3}, {CSP}', f'v_lshl_add_u32 v{vSc}, v{vR}, 2, s{sT3}']
                    g2 += [ea[k:k + 4] for k in range(0, len(ea), 4)]
                else:
                    assert 'r' not in a.vm
                    g2.append([f's_lshl_b32 s{sT3}, s{sWv}, 10', f'v_add_u32 v{t[3]}, s{sT3}, v{vL16}'])
                    g2 += [[f'ds_write_b128 v{t[3]}, {R("a", aRP + 4 * i)} offset:{4096 * i}'] for i in range(10)]
                ms = mf(it, 1, True)
                sched(ms[:7], first, [])
                sched(ms[7:], [], g2, start=0)
            else:
                sched(mf(it, 1), first, later, start=2, per=1 if kv else 2)
            lap('K')
        a.stamp(4)
        lap()
        a('s_waitcnt lgkmcnt(0)')
        a('s_barrier')
        if kv:
            ra, rb_, rc = fr[0], fr[0] + 16, fr[1] + 24
            for tc in range(5):
                a(f'ds_read_b32 v{rc + 2 * tc}, v{vSc} offset:{64 * tc}')
                a(f'ds_read_b32 v{rc + 2 * tc + 1}, v{vSc} offset:{640 + 64 * tc}')
            for tr in range(4):
                a(f'ds_read_b128 {R("v", ra + 4 * tr)}, v{vSa} offset:{64 * tr}')
                a(f'ds_read_b128 {R("v", rb_ + 4 * tr)}, v{vSa} offset:{512 + 64 * tr}')
            a(f's_mov_b32 s{sM0}, 0x00ff00ff'); a(f's_mov_b32 s{sM0 + 1}, 0x00ff00ff')
            a(f's_mul_i32 s{sT1}, s{sWv}, {KV_HS}')
            a(f's_add_u32 s{sT2}, s{sT1}, {KVA}')
            a(f'v_add_u32 v{t[1]}, s{sT2}, v{t[5]}')
            a(f's_mul_i32 s{sT2}, s{sHg}, {4 * KV_HS}')
            a(f's_add_u32 s{sT1}, s{sT1}, s{sT2}')
            a(f's_add_u32 s{sT1}, s{sT1}, {KV_OFF}')
            a('s_waitcnt lgkmcnt(0)')
            for tc in range(5):
                a(f'v_add_f32 v{rc + 2 * tc}, v{rc + 2 * tc}, v{rc + 2 * tc + 1}')
            pk = s1
            kd = acc
            for hf in range(2):
                chains = []
                for tc in range(5):
                    for tq in range(2):
                        tr = 2 * hf + tq
                        for h in range(2):
                            d = acc + 4 * (tr * 5 + tc) + 2 * h
                            w = fr[1] + 6 * (len(chains) % 4)
                            c = [f'v_pk_mul_f32 {R("v", w, 2)}, {R("v", rb_ + 4 * tr + 2 * h, 2)}, {R("v", rc + 2 * tc, 2)} op_sel_hi:[1,0]',
                                 f'v_pk_fma_f32 {R("v", d, 2)}, {R("v", d, 2)}, {R("v", ra + 4 * tr + 2 * h, 2)}, {R("v", w, 2)}']
                            dst = pk + 20 * hf + 4 * tc + 2 * tq + h
                            if tc <= 2:
                                u, p = w + 2, w + 4
                                c += phi_chain(d, u, p)
                                if tc == 2:
                                    c += [f'v_cndmask_b32 v{u}, v{d}, v{u}, s[{sM0}:{sM0 + 1}]', f'v_cndmask_b32 v{u + 1}, v{d + 1}, v{u + 1}, s[{sM0}:{sM0 + 1}]']
                                c.append(f'v_cvt_pk_bf16_f32 v{dst}, v{u}, v{u + 1}')
                            else:
                                c.append(f'v_cvt_pk_bf16_f32 v{dst}, v{d}, v{d + 1}')
                            chains.append(c)
                weave(chains, 4)
                P = lambda tc: R('v', pk + 20 * hf + 4 * tc)
                for n, (tk, tv) in enumerate(pairs):
                    a(f'{M16} {R("v", kd + 4 * n)}, {P(tk)}, {P(tv)}, {"0" if hf == 0 else R("v", kd + 4 * n)}')
                for tk in range(3):
                    a(f'{M16} {R("v", kd + 28 + 4 * tk)}, {P(tk)}, {ones}, {"0" if hf == 0 else R("v", kd + 28 + 4 * tk)}')
            for n, (tk, tv) in enumerate(pairs):
                m = lane_mask(lambda g, j: (4 * tk + g) < 10 and 0 <= (16 * tv + j - 40) and (4 * tk + g) // 5 == (16 * tv + j - 40) // 20)
                for x in set_exec(m):
                    a(x)
                a(f'ds_write_b128 v{ad + n}, {R("v", kd + 4 * n)}')
            for tk in range(3):
                if tk != 1:
                    for x in set_exec(lane_mask(lambda g, j: j == 0 and (4 * tk + g) < 10)):
                        a(x)
                a(f'ds_write_b128 v{cp + tk}, {R("v", kd + 28 + 4 * tk)} offset:1600')
            a('s_mov_b64 exec, -1')
            a('s_waitcnt lgkmcnt(0)')
            a('s_barrier')
            kt = acc + 40
            for i in range(7):
                a(f'ds_read_b32 v{kt + i}, v{t[1]} offset:{256 * i}')
                a(f'ds_read_b32 v{kt + 8 + i}, v{t[1]} offset:{256 * i + 4 * KV_HS}')
            for i in range(7):
                a(f's_waitcnt lgkmcnt({12 - 2 * i})')
                a(f'v_add_f32 v{kt + i}, v{kt + i}, v{kt + 8 + i}')
                if i == 6:
                    a('s_mov_b32 exec_hi, 0xf')
                a(f'buffer_atomic_add_f32 v{kt + i}, v{t[5]}, {WS}, s{sT1} offen offset:{256 * i}', tag='kva')
            a('s_mov_b64 exec, -1')
            lap()
            post_scalars()
            poll_issue(sRpc, 0, 8)
            publish(sKvc, 0, 'kva')
            lap()
            poll_wait(sRpc, 0, 16, nl=8, sleep=4)
            lap()
            for g in pf_list():
                emit(g)
            lap(); lap()
            a.vm_wait_all()
            a(f's_branch {Lm}')
        else:
            rq = fr[0]
            a(f'v_lshlrev_b32 v{t[3]}, 10, v{vG}')
            a(f'v_bfe_u32 v{t[4]}, v{vL}, 2, 2')
            a(f'v_lshl_add_u32 v{t[3]}, v{t[4]}, 7, v{t[3]}')
            a(f'v_and_b32 v{t[4]}, 3, v{vL}')
            a(f'v_lshl_add_u32 v{t[3]}, v{t[4]}, 4, v{t[3]}')
            a(f's_lshl_b32 s{sT1}, s{sRh}, 6')
            a(f's_lshl_b32 s{sT2}, s{sCh}, 3')
            a(f's_add_u32 s{sT1}, s{sT1}, s{sT2}')
            a(f'v_add_u32 v{t[3]}, s{sT1}, v{t[3]}')
            dsts = [7 + i for i in range(9)] + [sP]
            for hf in range(2):
                for i in range(5 * hf, 5 * hf + 5):
                    for j in range(2):
                        a(f'ds_read_b64_tr_b16 {R("v", rq + 4 * i + 2 * j, 2)}, v{t[3]} offset:{4096 * i + 512 * j}')
                a('s_waitcnt lgkmcnt(0)')
                for i in range(5 * hf, 5 * hf + 5):
                    a(f'buffer_store_dwordx4 {R("v", rq + 4 * i)}, v{vL16}, {WS}, s{dsts[i]} offen sc1', tag='rst')
                    a(f'{M16} {R("v", rq + 40)}, {R("v", rq + 4 * i)}, {ones}, {"0" if i == 0 else R("v", rq + 40)}')
            ra, rb_, rc = 44, 52, s1
            a(f's_lshl_b32 s{sT1}, s{sRh}, 8')
            a(f's_add_u32 s{sT1}, s{sT1}, {AA}')
            a(f'v_lshl_add_u32 v{t[0]}, v{vR}, 2, s{sT1}')
            a(f's_mul_i32 s{sT1}, s{sCh}, 192')
            a(f's_add_u32 s{sT1}, s{sT1}, {CSP}')
            a(f'v_lshl_add_u32 v{t[1]}, v{vG}, 4, s{sT1}')
            for tr in range(4):
                a(f'ds_read_b32 v{ra + 2 * tr}, v{t[0]} offset:{64 * tr}')
                a(f'ds_read_b32 v{rb_ + 2 * tr}, v{t[0]} offset:{512 + 64 * tr}')
            for tc in range(3):
                a(f'ds_read_b128 {R("v", rc + 4 * tc)}, v{t[1]} offset:{64 * tc}')
                a(f'ds_read_b128 {R("v", rc + 12 + 4 * tc)}, v{t[1]} offset:{384 + 64 * tc}')
            a(f'v_lshlrev_b32 v{t[4]}, 4, v{vG}')
            a('s_mov_b32 exec_lo, 0x00010001'); a('s_mov_b32 exec_hi, 0x00010001')
            a(f'buffer_store_dwordx4 {R("v", rq + 40)}, v{t[4]}, {WS}, s6 offen sc1', tag='rst')
            a('s_mov_b64 exec, -1')
            lap()
            post_scalars()
            a('s_waitcnt lgkmcnt(0)')
            for k in range(6):
                a(f'v_pk_add_f32 {R("v", rc + 2 * k, 2)}, {R("v", rc + 2 * k, 2)}, {R("v", rc + 12 + 2 * k, 2)}')
            pq = s1 + 12
            chains = []
            for tr in range(4):
                for tc in range(3):
                    for h in range(2):
                        d = acc + 4 * (tr * 3 + tc) + 2 * h
                        w = 148 + 6 * (len(chains) % 4)
                        c = [f'v_pk_mul_f32 {R("v", w, 2)}, {R("v", rc + 4 * tc + 2 * h, 2)}, {R("v", rb_ + 2 * tr, 2)} op_sel_hi:[1,0]',
                             f'v_pk_fma_f32 {R("v", d, 2)}, {R("v", d, 2)}, {R("v", ra + 2 * tr, 2)}, {R("v", w, 2)} op_sel_hi:[1,0,1]']
                        c += phi_chain(d, w + 2, w + 4)
                        c.append(f'v_cvt_pk_bf16_f32 v{pq + 6 * tr + 2 * tc + h}, v{w + 2}, v{w + 3}')
                        chains.append(c)
            weave(chains, 4)
            a(f's_and_b32 s{sT1}, s2, 7')
            a(f's_lshl_b32 s{sT1}, s{sT1}, 7')
            a(f's_add_u32 s{sT1}, s{sT1}, s{sRpc}')
            publish(sT1, 0, 'rst')
            lap()
            poll_issue(sRpc, 0, 8)
            ka, vOd, vOw, vOr = 24, 148, 151, 152
            a(f'v_lshrrev_b32 v{t[0]}, 2, v{vR}')
            a(f'v_and_b32 v{t[1]}, 3, v{vR}')
            a(f'v_mad_u32_u24 v{t[2]}, v{t[0]}, 5, v{t[1]}')
            a(f'v_mul_u32_u24 v{t[2]}, 80, v{t[2]}')
            a(f'v_mad_u32_u24 v{t[3]}, v{t[0]}, 5, 4')
            a(f'v_mov_b32 v{t[4]}, 20')
            a(f'v_cmp_eq_u32 vcc, 1, v{t[1]}')
            a(f'v_cndmask_b32 v{t[3]}, v{t[3]}, v{t[4]}, vcc')
            a(f'v_mul_u32_u24 v{t[3]}, 80, v{t[3]}')
            a(f'v_mov_b32 v{t[4]}, 0x{BIG:x}')
            a(f's_lshl_b32 s{sSB}, s{sHg}, 2')
            a(f's_lshl_b32 s{sT1}, s{sCh}, 1')
            a(f's_add_u32 s{sSB}, s{sSB}, s{sT1}')
            a(f's_mul_i32 s{sSB}, s{sSB}, {KV_HS}')
            a(f's_add_u32 s{sSB}, s{sSB}, {KV_OFF}')
            for tau in range(2):
                rowok = lambda i: tau == 0 or (i & 3) < 2
                m = lane_mask(lambda g, i: rowok(i))
                a(f'v_lshl_add_u32 v{ka + 4 * tau}, v{vG}, 4, v{t[2 + tau]}')
                a(f's_mov_b32 vcc_lo, 0x{m & 0xffffffff:x}'); a(f's_mov_b32 vcc_hi, 0x{m >> 32:x}')
                a(f'v_cndmask_b32 v{ka + 4 * tau}, v{t[4]}, v{ka + 4 * tau}, vcc')
                for gsel in range(2):
                    m = lane_mask(lambda g, i: rowok(i) and g == gsel)
                    a(f's_mov_b32 vcc_lo, 0x{m & 0xffffffff:x}'); a(f's_mov_b32 vcc_hi, 0x{m >> 32:x}')
                    a(f'v_cndmask_b32 v{ka + 4 * tau + 1 + gsel}, v{t[4]}, v{t[2 + tau]}, vcc')
            a(f's_mul_i32 s{sT1}, s{sRh}, {64 * 160}')
            a(f's_mul_i32 s{sT2}, s{sCh}, 80')
            a(f's_add_u32 s{sT1}, s{sT1}, s{sT2}')
            a(f's_add_u32 s{sT1}, s{sT1}, {KVA}')
            a(f'v_mul_u32_u24 v{t[2]}, 160, v{vR}')
            a(f'v_mad_u32_u24 v{vOw}, v{vG}, 10, v{t[2]}')
            a(f'v_add_u32 v{vOw}, s{sT1}, v{vOw}')
            a(f's_mul_i32 s{sT1}, s{sWv}, {32 * 160}')
            a(f's_add_u32 s{sT1}, s{sT1}, {KVA}')
            a(f'v_lshl_add_u32 v{vOr}, v{vG}, 4, v{t[2]}')
            a(f'v_add_u32 v{vOr}, s{sT1}, v{vOr}')
            a(f's_mul_i32 s{sT1}, s{sHg}, 10')
            for u in range(3):
                a(f's_add_u32 s{sT2}, s{sT1}, {4 * u}')
                a(f'v_add_u32 v{t[5]}, s{sT2}, v{vG}')
                a(f'v_lshrrev_b32 v{vOd + u}, 2, v{t[5]}')
                a(f'v_lshlrev_b32 v{vOd + u}, 12, v{vOd + u}')
                a(f'v_and_b32 v{t[5]}, 3, v{t[5]}')
                a(f'v_lshl_add_u32 v{vOd + u}, v{t[5]}, 8, v{vOd + u}')
                a(f'v_lshl_add_u32 v{vOd + u}, v{vR}, 4, v{vOd + u}')
            a(f's_lshl_b32 s{sKb}, s{sR1}, 1')
            a(f's_add_u32 s{sKb}, s{sKb}, s{sRh}')
            a(f's_mul_i32 s{sKb}, s{sKb}, {20 * 4096}')
            a(f's_lshl_b32 s{sT1}, s{sCh}, 11')
            a(f's_add_u32 s{sKb}, s{sKb}, s{sT1}')
            a(f's_add_u32 s{sKb}, s{sKb}, {OP_OFF}')
            poll_wait(sRpc, 0, 16, nl=8, sleep=4)
            lap()
            pf = pf_list()
            NPA = E('H_NPA', 40)
            for g in pf[:NPA]:
                emit(g)
            poll_issue(sKvc, 0)
            poll_wait(sKvc, 0, 16)
            lap()
            kraw, kT, od = acc, 44, acc
            for tau in range(2):
                b = kraw + 8 * tau
                a(f'buffer_load_dwordx4 {R("v", b)}, v{ka + 4 * tau}, {WS}, s{sSB} offen sc1', tag='kvl')
                a(f'buffer_load_dwordx4 {R("v", b + 4)}, v{ka + 4 * tau + 1}, {WS}, s{sSB} offen offset:64 sc1', tag='kvl')
                b = kraw + 16 + 8 * tau
                a(f'buffer_load_dwordx4 {R("v", b)}, v{ka + 4 * tau + 2}, {WS}, s{sSB} offen offset:{KV_HS} sc1', tag='kvl')
                a(f'buffer_load_dwordx4 {R("v", b + 4)}, v{ka + 4 * tau}, {WS}, s{sSB} offen offset:{KV_HS + 16} sc1', tag='kvl')
            a.vm_wait('kvl')
            for k in range(16):
                a(f'v_cvt_pk_bf16_f32 v{kT + k}, v{kraw + 2 * k}, v{kraw + 2 * k + 1}')
            ods = [64 + 8 * k for k in range(7)] + [156]
            for tr in range(4):
                for hd in range(2):
                    for tau in range(2):
                        d = ods[2 * tr + hd] + 4 * tau
                        a(f'{M16} {R("v", d)}, {R("v", kT + 8 * hd + 4 * tau)}, {R("v", pq + 6 * tr + 2 * hd)}, 0')
            chains = []
            for tr in range(4):
                for hd in range(2):
                    d = ods[2 * tr + hd]
                    c = [f'v_add_f32 v{d + 6}, 0x358637bd, v{d + 5}', f'v_rcp_f32 v{d + 6}, v{d + 6}']
                    c += [f'v_mul_f32 v{d + k}, v{d + k}, v{d + 6}' for k in range(5)]
                    c += [f'v_cvt_pk_bf16_f32 v{d}, v{d}, v{d + 1}', f'v_cvt_pk_bf16_f32 v{d + 2}, v{d + 2}, v{d + 3}',
                          f'v_cvt_pk_bf16_f32 v{d + 4}, v{d + 4}, v{d + 4}']
                    o = 2560 * tr + 40 * hd
                    c += [f'ds_write_b16 v{vOw}, v{d} offset:{o}', f'ds_write_b16_d16_hi v{vOw}, v{d} offset:{o + 2}',
                          f'ds_write_b16 v{vOw}, v{d + 2} offset:{o + 4}', f'ds_write_b16_d16_hi v{vOw}, v{d + 2} offset:{o + 6}',
                          f'ds_write_b16 v{vOw}, v{d + 4} offset:{o + 8}']
                    chains.append(c)
            weave(chains, 4)
            a('s_waitcnt lgkmcnt(0)')
            a('s_barrier')
            ob = 64
            for q in range(2):
                for u in range(3):
                    a(f'ds_read_b128 {R("v", ob + 12 * q + 4 * u)}, v{vOr} offset:{2560 * q + 64 * u}')
            a('s_waitcnt lgkmcnt(0)')
            for u in range(3):
                if u == 2:
                    a('s_mov_b32 exec_hi, 0')
                for q in range(2):
                    a(f'buffer_store_dwordx4 {R("v", ob + 12 * q + 4 * u)}, v{vOd + u}, {WS}, s{sKb} offen offset:{1024 * q} sc1', tag='ost')
            a('s_mov_b64 exec, -1')
            a(f's_lshl_b32 s{sT1}, s{sR1}, 7')
            a(f's_add_u32 s{sT1}, s{sT1}, {FL_O * 128}')
            a(f's_add_u32 s{sT1}, s{sT1}, s{sFw}')
            publish(sT1, 0, 'ost')
            lap()
            for g in pf[NPA:]:
                emit(g)
            a.vm = ['pfx']
    a.label(Lm)
    a.vm = []
    vXo = hres + 10
    vL8 = hres + 11
    a(f'v_lshlrev_b32 v{vL8}, 3, v{vL}')
    a(f'v_mul_u32_u24 v{vXo}, 1280, v{vR}')
    a(f'v_lshl_add_u32 v{vXo}, v{vG}, 4, v{vXo}')
    sx = f's[{sX}:{sX + 3}]'
    a(f'buffer_load_dwordx4 {R("v", hres)}, v{vXo}, {sx}, s{sOa} offen', tag='x')
    a(f'buffer_load_dwordx4 {R("v", hres + 4)}, v{vXo}, {sx}, s{sOa} offen offset:64', tag='x')
    a(f'buffer_load_dwordx2 {R("v", hres + 8, 2)}, v{vXo}, {sx}, s{sOb} offen', tag='x')
    a(f's_lshl_b32 s{sT1}, s{sC}, 7')
    a(f's_add_u32 s{sT1}, s{sT1}, {FL_O * 128}')
    a(f's_add_u32 s{sT1}, s{sT1}, s{sFw}')
    poll_issue(sT1, 0)
    a(f's_lshl_b32 s{sFc}, s{sC}, 9')
    a(f's_add_u32 s{sFc}, s{sFc}, s{sFw}')
    vAo = [Y + 68, Y + 69, Y + 70, Y + 71]
    vRW = Y + 60
    for i in range(4):
        a(f's_add_u32 s{sT2}, s{sWv}, {1 + i}')
        a(f's_and_b32 s{sT2}, s{sT2}, 3')
        a(f's_lshl_b32 s{sT3}, s{sT2}, 10')
        a(f'v_add_u32 v{vAo[i]}, s{sT3}, v{vL16}')
        if i < 3:
            a(f's_mul_i32 s{sT2}, s{sT2}, 15360')
            a(f's_add_u32 s{sT2}, s{sT2}, {P2L + 5120 * i}')
            a(f'v_add_u32 v{vRW + i}, s{sT2}, v{vL16}')
    a(f's_mul_i32 s{sA}, s{sRb}, {20 * 4096}')
    a(f's_mul_i32 s{sT2}, s{sWv}, {5 * 4096}')
    a(f's_add_u32 s{sA}, s{sA}, s{sT2}')
    a(f's_add_u32 s{sA}, s{sA}, {OP_OFF}')
    poll_wait(sT1, 0, 8)
    lap()
    acc = X
    OR = [('a', 100), ('a', 120), ('a', 140), ('v', Y)]
    for i in range(4):
        for m in range(5):
            a(f's_add_u32 s{sT2}, s{sA}, {4096 * m}')
            a(f'buffer_load_dwordx4 {R(OR[i][0], OR[i][1] + 4 * m)}, v{vAo[i]}, {WS}, s{sT2} offen sc1', tag=f'o{i}')
    W1M = 102400
    w2next = W2ORD[NW2PF:]
    for i in w2next[:E('G_NW2P2', 2)]:
        pend += w2_groups(i)
    w2next = w2next[E('G_NW2P2', 2):]

    def send(i, base):
        return [f'ds_write_b128 v{base + i}, {R("v", acc + 20 * i + 4 * sg)} offset:{1024 * sg}' for sg in range(5)]
    sq = []
    for i in range(4):
        if f'o{i}' in a.vm:
            a.vm_wait(f'o{i}')
        k = 0
        for m in range(5):
            for sg in range(5):
                d = acc + 20 * i + 4 * sg
                a(f'{M16} {R("v", d)}, {R("a", aWO + 4 * (5 * m + sg))}, {R(OR[i][0], OR[i][1] + 4 * m)}, {"0" if m == 0 else R("v", d)}')
                k += 1
                if sq and k >= 4 and k % 3 == 0:
                    a(sq.pop(0))
                if k % E('G_P2PULL', 4) == 2:
                    pull()
        assert not sq
        if i < 3:
            sq = send(i, vRW)
    while pend:
        pull()
    lap()

    def reduce_own(base):
        a('s_waitcnt lgkmcnt(0)')
        a('s_barrier')
        a(f's_mul_i32 s{sT0}, s{sWv}, 15360')
        a(f's_add_u32 s{sT0}, s{sT0}, {base}')
        a(f'v_add_u32 v{vT[0]}, s{sT0}, v{vL16}')
        for k in range(15):
            a(f'ds_read_b128 {R("v", acc + 4 * k)}, v{vT[0]} offset:{1024 * k}')
        own = acc + 60
        for p in range(3):
            a(f's_waitcnt lgkmcnt({10 - 5 * p})')
            for k in range(10):
                a(f'v_pk_add_f32 {R("v", own + 2 * k, 2)}, {R("v", own + 2 * k, 2)}, {R("v", acc + 20 * p + 2 * k, 2)}')
        return own

    def residual(own, out, tmp):
        chains = []
        for i in range(10):
            q = tmp + 6 * (i % 4)
            chains.append([f'v_cvt_pk_bf16_f32 v{q + 4}, v{own + 2 * i}, v{own + 2 * i + 1}',
                           f'v_lshlrev_b32 v{q + 2}, 16, v{hres + i}',
                           f'v_and_b32 v{q + 3}, 0xffff0000, v{hres + i}',
                           f'v_lshlrev_b32 v{q}, 16, v{q + 4}',
                           f'v_and_b32 v{q + 1}, 0xffff0000, v{q + 4}',
                           f'v_pk_add_f32 {R("v", q, 2)}, {R("v", q, 2)}, {R("v", q + 2, 2)}',
                           f'v_cvt_pk_bf16_f32 v{out + i}, v{q}, v{q + 1}'])
        weave(chains, 4)

    a(f's_lshl_b32 s{sT3}, s{sRb}, 2')
    a(f's_add_u32 s{sT3}, s{sT3}, s{sWv}')
    a(f's_lshr_b32 s{sT1}, s{sT3}, 1')
    a(f's_mul_i32 s{sT1}, s{sT1}, 40960')
    a(f's_and_b32 s{sT2}, s{sT3}, 1')
    a(f's_lshl_b32 s{sT2}, s{sT2}, 10')
    a(f's_add_u32 s{sT1}, s{sT1}, s{sT2}')
    a(f's_add_u32 s{sT1}, s{sT1}, {HP_OFF}')
    a(f's_lshl_b32 s{sA}, s{sPb}, 11')
    a(f's_add_u32 s{sA}, s{sA}, s{sT1}')
    a(f's_lshr_b32 s{sB}, s{sSb}, 1')
    a(f's_lshl_b32 s{sB}, s{sB}, 11')
    a(f's_and_b32 s{sT2}, s{sSb}, 1')
    a(f's_lshl_b32 s{sT2}, s{sT2}, 9')
    a(f's_add_u32 s{sB}, s{sB}, s{sT2}')
    a(f's_add_u32 s{sB}, s{sB}, s{sT1}')
    a(f's_lshl_b32 s{sT1}, s{sT3}, 10')
    a(f's_lshl_b32 s{sT2}, s{sCg}, 7')
    a(f's_add_u32 s{sT1}, s{sT1}, s{sT2}')
    a(f's_add_u32 s{sT1}, s{sT1}, {ST_OFF}')
    own = reduce_own(P2L)
    tmpk = Y + 20
    residual(own, hres, tmpk)
    a(f'buffer_store_dwordx4 {R("v", hres)}, v{vL16}, {WS}, s{sA} offen sc1', tag='hst')
    a(f'buffer_store_dwordx4 {R("v", hres + 4)}, v{vL16}, {WS}, s{sA} offen offset:2048 sc1', tag='hst')
    a(f'buffer_store_dwordx2 {R("v", hres + 8, 2)}, v{vL8}, {WS}, s{sB} offen sc1', tag='hst')
    hf_ = acc
    for i in range(10):
        a(f'v_lshlrev_b32 v{hf_ + 2 * i}, 16, v{hres + i}')
        a(f'v_and_b32 v{hf_ + 2 * i + 1}, 0xffff0000, v{hres + i}')
    sm = tmpk
    a(f'v_pk_add_f32 {R("v", sm + 2, 2)}, {R("v", hf_, 2)}, {R("v", hf_ + 2, 2)}')
    a(f'v_pk_mul_f32 {R("v", sm + 4, 2)}, {R("v", hf_, 2)}, {R("v", hf_, 2)}')
    a(f'v_pk_mul_f32 {R("v", sm + 6, 2)}, {R("v", hf_ + 2, 2)}, {R("v", hf_ + 2, 2)}')
    for i in range(2, 10):
        d = sm + 4 + 2 * (i & 1)
        a(f'v_pk_add_f32 {R("v", sm + 2, 2)}, {R("v", sm + 2, 2)}, {R("v", hf_ + 2 * i, 2)}')
        a(f'v_pk_fma_f32 {R("v", d, 2)}, {R("v", hf_ + 2 * i, 2)}, {R("v", hf_ + 2 * i, 2)}, {R("v", d, 2)}')
    a(f'v_pk_add_f32 {R("v", sm + 4, 2)}, {R("v", sm + 4, 2)}, {R("v", sm + 6, 2)}')
    a(f'v_add_f32 v{sm}, v{sm + 2}, v{sm + 3}')
    a(f'v_add_f32 v{sm + 1}, v{sm + 4}, v{sm + 5}')
    s1_, s2_ = Asm(), Asm()
    xsum_g(s1_, sm, sm + 2)
    xsum_g(s2_, sm + 1, sm + 3)
    for x, y in zip(s1_.items, s2_.items):
        a(x.text); a(y.text)
    a('s_mov_b64 exec, 0xffff')
    a(f'buffer_store_dwordx2 {R("v", sm, 2)}, v{vL8}, {WS}, s{sT1} offen sc1', tag='hst')
    a('s_mov_b64 exec, -1')
    lap('B')
    acc3, otmp = X, X + 56
    fb = [Y, Y + 16]
    vCs, vSt, ab = Y + 32, Y + 60, Y + 60
    csg = []
    for sg in range(7):
        pre = []
        if sg == 0:
            pre = [f'v_and_b32 v{vT[0]}, 1, v{vL}', f'v_mul_u32_u24 v{vT[0]}, 7168, v{vT[0]}', f'v_lshl_add_u32 v{vT[0]}, v{vG}, 4, v{vT[0]}',
                   f's_mul_i32 s{sT0}, s{sJ}, 448', f's_add_u32 s{sT0}, s{sT0}, {CS1_OFF}']
        csg.append((pre + [f'buffer_load_dwordx4 {R("v", vCs + 4 * sg)}, v{vT[0]}, {WS}, s{sT0} offen offset:{64 * sg} sc1'], 'cs'))
    for g in csg + w1_groups(W1M, 102400, 'w1m'):
        emit(g)
    publish(sFc, 0, 'hst')
    lap()
    mid = w1_groups(102400, 143360, 'w1l')
    NW2S = E('G_NW2S', 2)
    for i in w2next[:NW2S]:
        mid += w2_groups(i)
    w2next = w2next[NW2S:]
    for g in mid:
        emit(g)
    poll_issue(sF3, 0)
    a(f's_lshl_b32 s{sT0}, s{sC3}, 2')
    a(f's_add_u32 s{sT0}, s{sT0}, s{sWv}')
    a(f's_mul_i32 s{sA}, s{sT0}, 40960')
    a(f's_add_u32 s{sA}, s{sA}, {HP_OFF}')
    a(f's_lshl_b32 s{sT0}, s{sT0}, 11')
    a(f's_add_u32 s{sT0}, s{sT0}, {ST_OFF}')
    vBa = [vL16, vT[2], hres + 10]
    a(f'v_add_u32 v{vT[2]}, {65536}, v{vL16}')
    a(f'v_add_u32 v{hres + 10}, {131072}, v{vL16}')
    a(f's_lshl_b32 s{sT2}, s{sC3}, 1')
    a(f's_lshr_b32 s{sT3}, s{sWv}, 1')
    a(f's_add_u32 s{sT2}, s{sT2}, s{sT3}')
    a(f's_mul_i32 s{sH}, s{sT2}, {H1G}')
    a(f's_and_b32 s{sT3}, s{sWv}, 1')
    a(f's_lshl_b32 s{sT3}, s{sT3}, 11')
    a(f's_add_u32 s{sH}, s{sH}, s{sT3}')
    a(f's_add_u32 s{sH}, s{sH}, {H1P_OFF}')
    a(f's_lshr_b32 s{sHs}, s{sJ}, 3')
    a(f's_mul_i32 s{sHs}, s{sHs}, 3')
    a(f's_and_b32 s{sT2}, s{sJ}, 7')
    a(f's_lshr_b32 s{sT3}, s{sT2}, 1')
    a(f's_add_u32 s{sHs}, s{sHs}, s{sT3}')
    a(f's_lshl_b32 s{sHs}, s{sHs}, 12')
    a(f's_and_b32 s{sT3}, s{sJ}, 1')
    a(f's_lshl_b32 s{sT3}, s{sT3}, 9')
    a(f's_add_u32 s{sHs}, s{sHs}, s{sT3}')
    a(f's_add_u32 s{sHs}, s{sHs}, s{sH}')
    a(f's_add_u32 s{sHs}, s{sHs}, {16 * 4096}')
    a(f's_cmp_ge_u32 s{sT2}, 6')
    a(f's_cselect_b32 s{sHs}, 0x{BIG:x}, s{sHs}')
    a(f's_lshl_b32 s{sT2}, s{sJ}, 12')
    a(f's_add_u32 s{sH}, s{sH}, s{sT2}')
    a(f's_mul_i32 s{sA4}, s{sRb}, {H1G}')
    a(f's_lshl_b32 s{sT2}, s{sWv}, 12')
    a(f's_add_u32 s{sA4}, s{sA4}, s{sT2}')
    a(f's_add_u32 s{sA4}, s{sA4}, {H1P_OFF}')
    a.vm_wait('w1l')
    poll_wait(sF3, 0, 16)
    lap()

    def a3_groups():
        g = []
        for q in range(4):
            g.append(([f'buffer_load_dwordx2 {R("v", vSt + 2 * q, 2)}, v{vL8}, {WS}, s{sT0} offen offset:{512 * q} sc1'], 'st'))
        for f in range(40):
            pre = [f's_add_u32 s{sA}, s{sA}, 4096'] if f and f % 4 == 0 else []
            if (f // 2) % 5 == 2:
                g.append((pre + [f'buffer_load_dwordx2 {R("a", 4 * f, 2)}, v{vL8}, {WS}, s{sA} offen offset:{1024 * (f & 3)} sc1',
                                 f'buffer_load_dwordx2 {R("a", 4 * f + 2, 2)}, v{vL8}, {WS}, s{sA} offen offset:{1024 * (f & 3) + 512} sc1'], f'h{f // 2}'))
            else:
                g.append((pre + [f'buffer_load_dwordx4 {R("a", 4 * f)}, v{vL16}, {WS}, s{sA} offen offset:{1024 * (f & 3)} sc1'], f'h{f // 2}'))
        return g
    pend += a3_groups()
    for i in w2next:
        pend += w2_groups(i)
    pend += w2l_groups(8)
    pull(E('G_H0', 18))
    PART = {0: ([0, 1, 6], 0, 3072), 1: ([2, 3], 61440, 2048), 2: ([4, 5], 102400, 2048)}

    def steps(part):
        sl = PART[part][0]
        if part == 0:
            return [[(ks, q, s_) for q, s_ in enumerate(sl)] for ks in range(20)]
        return [[(ks, q, s_) for ks in (2 * m, 2 * m + 1) for q, s_ in enumerate(sl)] for m in range(10)]
    allsteps = [(p, st) for p in range(3) for st in steps(p)]

    def breads(n):
        p, st = allsteps[n]
        f = fb[n & 1]
        out = []
        for k, (ks, q, s_) in enumerate(st):
            o = PART[p][1] + ks * PART[p][2] + 1024 * q
            out.append(f'ds_read_b128 {R("v", f + 4 * k)}, v{vBa[o >> 16]} offset:{o & 0xffff}')
        return out

    def mf3(n):
        p, st = allsteps[n]
        f = fb[n & 1]
        lst = []
        for k, (ks, q, s_) in enumerate(st):
            for t_ in range(2):
                d = acc3 + 28 * t_ + 4 * s_
                c = '0' if ks == 0 else R('v', d)
                lst.append(f'{M16} {R("v", d)}, {R("v", f + 4 * k)}, {R("a", 8 * ks + 4 * t_)}, {c}')
        return lst

    dpp = [f'v_add_f32_dpp v{vCs + r}, v{vCs + r}, v{vCs + r} quad_perm:[1,0,3,2] row_mask:0xf bank_mask:0xf' for r in range(28)]
    sub = Asm()
    for t_ in range(2):
        s_ = vSt + 4 * t_
        m, v, x = otmp + 4 * t_ + 2, otmp + 8 + 2 * t_, otmp + 9 + 2 * t_
        sub(f'v_add_f32 v{m}, v{s_}, v{s_ + 2}')
        sub(f'v_add_f32 v{v}, v{s_ + 1}, v{s_ + 3}')
        xsum_g(sub, m, x)
        xsum_g(sub, v, x)
        sub(f'v_mul_f32 v{m}, 0x3acccccd, v{m}')
        sub(f'v_mul_f32 v{v}, 0x3acccccd, v{v}')
        sub(f'v_fma_f32 v{v}, -v{m}, v{m}, v{v}')
        ln_stats(sub, m, v, otmp + 4 * t_)
        sub(f'v_mov_b32 v{ab + 4 * t_}, v{otmp + 4 * t_}')
        sub(f'v_mov_b32 v{ab + 4 * t_ + 1}, v{m}')
    half_n = len(sub.items) // 2
    stl = [None] * len(sub.items)
    stl[0::2] = [i.text for i in sub.items[:half_n]]
    stl[1::2] = [i.text for i in sub.items[half_n:]]

    def epi_tile(t_, sg, ob):
        lst = []
        d = acc3 + 28 * t_ + 4 * sg
        for r in range(4):
            lst.append(f'v_mul_f32 v{d + r}, v{d + r}, v{ab + 4 * t_}')
        for r in range(4):
            lst.append(f'v_fmac_f32 v{d + r}, v{vCs + 4 * sg + r}, v{ab + 4 * t_ + 1}')
        for h in range(2):
            lst.append(f'v_cvt_pk_bf16_f32 v{ob + h}, v{d + 2 * h}, v{d + 2 * h + 1}')
        for h in range(2):
            lst.append(f'v_pk_max_i16 v{ob + h}, v{ob + h}, v{vZero}')
        return lst

    def epi_part(p):
        out = []
        base = otmp + (0, 12, 0)[p]
        if p:
            out.append(f's_add_u32 s{sH}, s{sH}, {(24 if p == 1 else 16) * 4096}')
        for t_ in range(2):
            ob = base + 4 * t_
            out += epi_tile(t_, 2 * p, ob) + epi_tile(t_, 2 * p + 1, ob + 2)
            out.append(('vm', f'buffer_store_dwordx4 {R("v", ob)}, v{vL16}, {WS}, s{sH} offen offset:{1024 * t_} sc1', f'h1_{p}'))
        if p == 0:
            for t_ in range(2):
                ob = base + 8 + 2 * t_
                out += epi_tile(t_, 6, ob)
                out.append(('vm', f'buffer_store_dwordx2 {R("v", ob, 2)}, v{vL8}, {WS}, s{sHs} offen offset:{1024 * t_} sc1', 'h1_0'))
        return out

    AR = [('a', 16 * i) for i in range(10)]
    vTm = Y + 67
    NR_ = len(AR)

    def a4_groups(i):
        f, r = AR[i % NR_]
        g = []
        for t_ in range(4):
            pre = []
            if t_ == 0:
                pre = [f's_add_u32 s{sA}, s{sA4}, {16384 * i}']
                if i == 5:
                    pre += [f's_cmp_ge_u32 s{sWv}, 2', f's_cselect_b32 s{sA}, 0x{BIG:x}, s{sA}']
            if i in (4, 5):
                g.append((pre + [f'v_sub_u32 v{vT[1] if False else vTm}, v{vAo[t_]}, v{vL8}',
                                 f'buffer_load_dwordx2 {R(f, r + 4 * t_, 2)}, v{vTm}, {WS}, s{sA} offen sc1',
                                 f'buffer_load_dwordx2 {R(f, r + 4 * t_ + 2, 2)}, v{vTm}, {WS}, s{sA} offen offset:512 sc1'], f'a{i}'))
            else:
                g.append((pre + [f'buffer_load_dwordx4 {R(f, r + 4 * t_)}, v{vAo[t_]}, {WS}, s{sA} offen sc1'], f'a{i}'))
        return g

    for x in breads(0):
        a(x)
    side = list(dpp)
    PUB_A, POLL_A, CHK_A, PUB_B = E('G_PUBA', 28), E('G_POLLA', 37), E('G_CHKA', 39), E('G_PUBB', 38)
    DENS = E('G_DENS', 3)
    NS_ = len(allsteps)
    nexta = 0
    for n in range(NS_):
        p, st = allsteps[n]
        if p == 0:
            need_tag(f'h{n}')
            if n == 6:
                side += stl
        if n == 20:
            while side:
                a(side.pop(0))
            lap()
            side = epi_part(0)
        if n == 30:
            assert not side
            side = epi_part(1)
        if n % 3 == 0:
            lap('E')
        a('s_waitcnt lgkmcnt(0)')
        if n == 21:
            a('s_barrier')
        nxt = breads(n + 1) if n + 1 < NS_ else []
        ms = mf3(n)
        for k, m in enumerate(ms):
            a(m)
            cnt = 2 if p == 0 else DENS
            if nxt:
                a(nxt.pop(0))
                cnt -= 1
            elif pend and k >= len(ms) - (E('G_P3PULL', 2) if n < CHK_A else 4):
                pull()
                cnt -= 2
            for _ in range(max(cnt, 0)):
                if side:
                    x = side.pop(0)
                    if isinstance(x, tuple):
                        a(x[1], tag=x[2])
                        if x[2] == 'h1_0' and not side:
                            assert n > 21
                            pend += w2l_groups(9) + w2l_groups(10) + w2l_groups(11)
                    else:
                        a(x)
        if n == PUB_A:
            assert n >= 30 or not side
            lap('C')
            publish(sF3, 1, 'h1_0')
            lap('C')
        if n == POLL_A:
            while pend:
                pull()
            poll_issue(sFc, 1)
        if n == CHK_A:
            lap('C')
            poll_wait(sFc, 1, 16)
            lap('C')
        if n >= CHK_A:
            while nexta < 6 and nexta <= n - 30:
                pend += a4_groups(nexta)
                nexta += 1
        if n == PUB_B:
            assert not side
            publish(sF3, 2, 'h1_1')
    lap()
    k = 0
    for x in epi_part(2):
        if isinstance(x, tuple):
            a(x[1], tag=x[2])
        else:
            a(x)
        k += 1
        if k % 3 == 0:
            pull()
    lap()
    acc4 = X
    PD = E('G_PD', 2)
    vWl = [vT[0], vT[2]]
    a(f's_mul_i32 s{sT0}, s{sWv}, 5120')
    a(f'v_add_u32 v{vWl[0]}, s{sT0}, v{vL16}')
    a(f'v_add_u32 v{vWl[1]}, {SA}, v{vWl[0]}')
    vRW = Y + 60
    vXo = Y + 64
    fin = []
    for i in range(3):
        fin += [f's_add_u32 s{sT0}, s{sWv}, {1 + i}', f's_and_b32 s{sT0}, s{sT0}, 3', f's_mul_i32 s{sT0}, s{sT0}, 15360',
                f's_add_u32 s{sT0}, s{sT0}, {61440 + 5120 * i}', f'v_add_u32 v{vRW + i}, s{sT0}, v{vL16}']
    fin += [f'v_mul_u32_u24 v{vXo}, 1280, v{vR}', f'v_lshl_add_u32 v{vXo}, v{vG}, 4, v{vXo}']
    PUB_C, POLL_B, POLL_C = E('G_PUBC', 1), E('G_POLLB', 0), E('G_POLLC', 4)
    avail = 6
    for i in range(14):
        need_tag(f'a{i}')
        need_tag(f'w2_{i}')
        if i in W2L:
            a('s_waitcnt lgkmcnt(0)')
        lrd = []
        if i + 2 in W2L:
            need_tag(f'w2_{i + 2}')
            o_ = W2L[i + 2]
            lrd = [f'ds_read_b128 {R("v", W2R[i + 2][1] + 4 * sg)}, v{vWl[o_ >= SA]} offset:{(o_ - SA if o_ >= SA else o_) + 1024 * sg}' for sg in range(5)]
        if i == 12:
            lrd = fin
        lap('D')
        fa, ra_ = AR[i % NR_]
        fw, rw = W2R[i]
        k = 0
        for t_ in range(4):
            for sg in range(5):
                d = acc4 + 20 * t_ + 4 * sg
                c = '0' if i == 0 else R('v', d)
                a(f'{M16} {R("v", d)}, {R(fw, rw + 4 * sg)}, {R(fa, ra_ + 4 * t_)}, {c}')
                k += 1
                if i == 13:
                    if t_ >= 2 or (t_ == 1 and sg >= 3):
                        q = k - 9
                        a(send(q // 5, vRW)[q % 5])
                elif k % 2 == 0 and pend:
                    pull()
                elif lrd:
                    a(lrd.pop(0))
        assert not lrd
        if i == PUB_C:
            publish(sF3, 3, 'h1_2')
        if i in (POLL_B, POLL_C):
            poll_issue(sFc, 2 if i == POLL_B else 3)
        if i in (POLL_B + PD, POLL_C + PD):
            poll_wait(sFc, 2 if i == POLL_B + PD else 3, 16)
            avail += 4
        newa = []
        while nexta < avail and nexta <= i + NR_:
            newa += a4_groups(nexta)
            nexta += 1
        k_ = 0
        while k_ < len(pend) and not (pend[k_][1].startswith('w2') and len(pend[k_][0]) > 1):
            k_ += 1
        pend[k_:k_] = newa
        if i == max(1, POLL_B + PD):
            pend += w2_groups(12) + w2_groups(13)
    assert not pend
    lap()
    for q in range(12, 15):
        a(send(q // 5, vRW)[q % 5])
    own = reduce_own(61440)
    outr = Y + 8
    residual(own, outr, Y + 24)
    so = f's[{sO}:{sO + 3}]'
    OST = {0: '', 1: ' sc1', 2: ' nt', 3: ' sc0 sc1'}[E('G_OST', 0)]
    a(f'buffer_store_dwordx4 {R("v", outr)}, v{vXo}, {so}, s{sOa} offen{OST}')
    a(f'buffer_store_dwordx4 {R("v", outr + 4)}, v{vXo}, {so}, s{sOa} offen offset:64{OST}')
    a(f'buffer_store_dwordx2 {R("v", outr + 8, 2)}, v{vXo}, {so}, s{sOb} offen{OST}')
    if a.diag is not None:
        a('s_waitcnt vmcnt(0)')
    if a.diag is not None and E('G_DBG', 0):
        a.stamp(5)
        a(f's_cmp_lg_u32 s2, {E("G_DBGWG", 77)}')
        a(f's_cbranch_scc1 {Lend}')
        a(f's_cmp_lg_u32 s{sWv}, 1')
        a(f's_cbranch_scc1 {Lend}')
        regs = [77, 79] + list(range(82, 95)) + [81]
        for i, r in enumerate(regs):
            a(f's_sub_u32 s98, s{r}, s76')
            a(f'v_writelane_b32 v9, s98, {i}')
        a(f'v_lshlrev_b32 v8, 2, v{vL}')
        a('s_mov_b64 exec, 0xffff')
        a(f'global_store_dword v8, v9, s[{P_DBG}:{P_DBG + 1}]')
    else:
        a.stamp_flush(sWv, P_WS, TS_OFF)
    a.label(Lend)
    a('s_endpgm')
    a.raw(f'.p2align 6\n.type {name}_tab,@object\n{name}_tab:')
    for e in kh_table():
        a.raw('.long ' + ', '.join(str(x) for x in e))
```

```python
S, D, H, DH, F = 2048, 640, 32, 20, 1728
PQ_OFF = 0x001000;   PQ_SZ = 128 * 80 * 256
KV_OFF = 0x290000;   KV_HS = 1792; KV_SZ = 32 * KV_HS
WOP_OFF = 0x2A0000;  WOP_SZ = 8 * 102400
ST_OFF = 0x370000;   ST_SZ = 128 * 1024
CS1_OFF = 0x3B0000;  CS1P = 14336; CS1_SZ = 5 * CS1P
FL_OFF = 0x3A0000;   FL_SZ = 16384
HP_OFF = 0x401000;   HP_SZ = 128 * 20 * 1024
W1P_OFF = 0x690000;  W1P_SZ = 16 * 143360
W2P_OFF = 0x8D0000;  W2G = 56 * 5120; W2P_SZ = 8 * W2G
H1P_OFF = 0xB10000;  H1G = 56 * 4096; H1P_SZ = 32 * H1G
WS_USED = H1P_OFF + H1P_SZ + 4096


def tlb_holes():
    holes = [0x0, 0x3F0000, 0x400000, 0x688000, 0x8C8000, 0xB08000]
    holes += [H1P_OFF + rb * H1G + 22 * 4096 for rb in range(32)] + [WS_USED - 128]
    out = {}
    for h in holes:
        out.setdefault(h >> 21, h)
    assert sorted(out) == list(range((WS_USED - 1 >> 21) + 1)), sorted(out)
    return [out[k] for k in sorted(out)]


T0_W1 = [0, 7, 14, 21, 28, 35, 42, 48]

def w1_t0(j):
    return 54 * (j >> 3) + T0_W1[j & 7]

def w1_cnt(j):
    return 7 if (j & 7) < 6 else 6

def slot_tiles(t0, cnt, nslots):
    tiles = list(range(t0, t0 + cnt))
    if t0 & 1:
        tiles = tiles[1:] + tiles[:1]
    return tiles + [None] * (nslots - cnt)

def tile_cols(T):
    b, ab = T >> 1, T & 1
    return [32 * b + 8 * (i >> 2) + 4 * ab + (i & 3) for i in range(16)]

TS_OFF = 0x1800000


def w1_frag_off(j, ks, sg):
    if sg < 2:
        o = ks * 2048 + sg * 1024
    elif sg == 6:
        o = 40960 + ks * 1024
    elif sg < 4:
        o = 61440 + ks * 2048 + (sg - 2) * 1024
    else:
        o = 102400 + ks * 2048 + (sg - 4) * 1024
    return j * 143360 + o


def blk_pos():
    pos = {}
    for j in range(16):
        t0 = w1_t0(j)
        pb = (t0 + 1) >> 1
        pos[pb] = j
        pos[pb + 1] = 24 + j
        pos[pb + 2] = 40 + j
        if w1_cnt(j) == 7:
            ts = t0 if t0 & 1 else t0 + 6
            pos[ts >> 1] = 16 + 3 * (j >> 3) + ((j & 7) >> 1)
    assert sorted(pos) == list(range(54)) and len(set(pos.values())) == 54
    return [pos[b] for b in range(54)]


assert W2P_OFF + W2P_SZ <= H1P_OFF

assert PQ_OFF + PQ_SZ <= KV_OFF and WOP_OFF + WOP_SZ <= ST_OFF and HP_OFF + HP_SZ <= 0x688000 and W1P_OFF + W1P_SZ <= 0x8C8000 and W2P_OFF + W2P_SZ <= 0xB08000
```

```python
import os
from asmlib import *
from layout import *
from k1 import load_args, srd, ln_stats, spread, LOG2E, P_X, P_WQKV, P_WO, P_W1, P_W2, P_OUT, P_DBG, P_WS
from k234 import xsum_g, cg_blocks, M16, BIG

KG_LDS = 163840
RB = 81920
SA = 143360
P2L = 102400
OP_OFF = PQ_OFF
FL_C, FL_O, FL_KV, FL_RP, FL_RP2 = 0, 64, 96, 104, 112


def E(name, default):
    return int(os.environ.get(name, str(default)))


def R(f, b, n=4):
    return f'{f}[{b}:{b + n - 1}]'


def sig5(T):
    cg, rel = T // 5, T % 5
    return cg, ((4 if rel == 0 else rel - 1) if cg & 1 else rel)


def kg_table():
    bp = blk_pos()
    inv = {}
    for j in range(16):
        for sg, T in enumerate(slot_tiles(w1_t0(j), w1_cnt(j), 7)):
            if T is not None:
                inv[T] = (j, sg)

    def w2u(u, w):
        ks, nb = u // 10, u % 10
        cg, sg = sig5(4 * nb + w)
        return 32 * ks * 1280 + 128 * nb, W2P_OFF + cg * W2G + bp[ks] * 5120 + sg * 1024
    tab = []
    for r in range(256):
        for w in range(4):
            if r < 200:
                ks, nb = r // 10, r % 10
                cg, sg = sig5(4 * nb + w)
                e = [32 * ks * 1280 + 128 * nb, WOP_OFF + cg * 102400 + ks * 5120 + sg * 1024]
            else:
                e = list(w2u(484 + r - 200, w))
            if r < 135:
                p, nb = r // 27, r % 27
                j, sg = inv[4 * nb + w]
                e += [(128 * p + 32 * i) * 3456 + 128 * nb for i in range(4)]
                e += [W1P_OFF + w1_frag_off(j, 4 * p + i, sg) for i in range(4)]
                e.append(CS1_OFF + p * CS1P + (j * 7 + sg) * 128)
            else:
                us = [w2u(4 * (r - 135) + i, w) for i in range(4)]
                e += [u[0] for u in us] + [u[1] for u in us] + [BIG]
            e += [0] * (16 - len(e))
            tab.append(e)
    return tab


def lane_mask(fn):
    m = 0
    for l in range(64):
        if fn(l >> 4, l & 15):
            m |= 1 << l
    return m


def set_exec(m):
    return [f's_mov_b32 exec_lo, 0x{m & 0xffffffff:x}', f's_mov_b32 exec_hi, 0x{m >> 32:x}']


def gen_kg(a, name):
    sX, sW, sWS, sR = 36, 40, 44, 48
    sO = sR
    sa = RegAlloc('s', 52, 76)
    sTab = 4
    sP = sa.get(8, 4)
    sWv = sa.get(); sRh = sa.get(); sCh = sa.get(); sR1 = sa.get(); sHg = sa.get()
    sT0 = sa.get(); sT1 = sa.get(); sT2 = sa.get(); sT3 = sa.get()
    sKc = sa.get(); sSA = sa.get(); sSB = sa.get(); sMA = sa.get(); sMB = sa.get()
    sFw = sa.get(); sCnt = sa.get()
    sM0, sM1, sM2 = 22, 34, 28
    sRb, sCg, sPb, sSb, sJ, sC, sOa, sOb = [sP + i for i in range(8)]
    sW1, sW1m, sW2, sA, sB = sKc, sSA, sSB, sMA, sMB
    sH, sHs, sA4 = sRh, sCh, sR1
    sC3, sF3 = sTab, sTab + 1
    sFc = sHg
    sM0x = sP
    sRpc = 3
    WS = f's[{sWS}:{sWS + 3}]'
    lapn = [0]
    LSET = os.environ.get('G_LAPS', 'A')

    def lap(kind='A'):
        if any(k_ in LSET for k_ in kind) and lapn[0] < 14:
            a.slap(lapn[0])
            lapn[0] += 1

    vL, vG, vR, vL16, vL16b, vL128 = 1, 2, 3, 4, 5, 6
    vT = [7, 8, 9, 10, 11]
    vOne, vZero = vT[3], vT[4]
    hres = 12
    X, Y, Z = 24, 104, 176
    Lend = name + '_end'
    a.raw(f'.globl {name}\n.p2align 8\n.type {name},@function')
    a.label(name)
    a('s_cmp_ge_u32 s2, 256')
    a(f's_cbranch_scc1 {Lend}')
    a.stamp(0)
    load_args(a)
    for _ in range(E('G_SHIFT', 0)):
        a('s_nop 0')
    a(f'v_and_b32 v{vL}, 63, v0')
    a(f'v_lshrrev_b32 v{vT[0]}, 6, v0')
    a(f'v_readfirstlane_b32 s{sWv}, v{vT[0]}')
    a(f'v_lshrrev_b32 v{vG}, 4, v{vL}')
    a(f'v_and_b32 v{vR}, 15, v{vL}')
    a(f's_lshr_b32 s{sRh}, s{sWv}, 1')
    a(f's_and_b32 s{sCh}, s{sWv}, 1')
    a(f's_getpc_b64 s[{sM1}:{sM1 + 1}]')
    a.label(name + '_pc')
    a(f's_mov_b64 s[{sM0x}:{sM0x + 1}], s[{sM1}:{sM1 + 1}]')
    a(f's_lshl_b32 s{sT0}, s2, 2')
    a(f's_add_u32 s{sT0}, s{sT0}, s{sWv}')
    a(f's_lshl_b32 s{sT0}, s{sT0}, 6')
    a(f's_add_u32 s{sM1}, s{sM1}, {name}_tab-{name}_pc')
    a(f's_addc_u32 s{sM1 + 1}, s{sM1 + 1}, 0')
    a(f's_add_u32 s{sM1}, s{sM1}, s{sT0}')
    a(f's_addc_u32 s{sM1 + 1}, s{sM1 + 1}, 0')
    a(f's_and_b32 s{sT0}, s2, 7')
    a(f's_lshr_b32 s{sT1}, s2, 3')
    a(f's_lshr_b32 s{sT2}, s{sT0}, 1')
    a(f's_lshl_b32 s{sR1}, s{sT2}, 3')
    a(f's_lshr_b32 s{sT3}, s{sT1}, 2')
    a(f's_add_u32 s{sR1}, s{sR1}, s{sT3}')
    a(f's_and_b32 s{sT0}, s{sT0}, 1')
    a(f's_lshl_b32 s{sHg}, s{sT0}, 2')
    if E('G_HSH', 0):
        a(f's_add_u32 s{sT1}, s{sT1}, {E("G_HSH", 0)}')
    a(f's_and_b32 s{sT1}, s{sT1}, 3')
    a(f's_add_u32 s{sHg}, s{sHg}, s{sT1}')
    ROT = E('G_ROT', 1)
    a(f's_add_u32 s{sKc}, s{sT3}, s{sT1}')
    if ROT == 1:
        a(f's_lshl_b32 s{sKc}, s{sKc}, 1')
        a(f's_add_u32 s{sKc}, s{sKc}, s{sT2}')
    elif ROT == 2:
        a(f's_and_b32 s{sKc}, s{sKc}, 1')
        a(f's_mul_i32 s{sKc}, s{sKc}, 5')
        a(f's_add_u32 s{sKc}, s{sKc}, s{sT2}')
    elif ROT == 3:
        a(f's_and_b32 s{sKc}, s{sKc}, 3')
        a(f's_mul_i32 s{sKc}, s{sKc}, 5')
        a(f's_lshr_b32 s{sKc}, s{sKc}, 1')
        a(f's_and_b32 s{sT0}, s{sT2}, 1')
        a(f's_add_u32 s{sKc}, s{sKc}, s{sT0}')
    elif ROT == 4:
        a(f's_mul_i32 s{sKc}, s{sT2}, 5')
        a(f's_lshr_b32 s{sKc}, s{sKc}, 1')
    elif ROT == 6:
        a(f's_add_u32 s{sKc}, s{sKc}, s{sT1}')
        a(f's_mul_i32 s{sKc}, s{sKc}, 5')
        a(f's_lshr_b32 s{sKc}, s{sKc}, 2')
        a(f's_add_u32 s{sKc}, s{sKc}, s{sT2}')
    elif ROT == 7:
        a(f's_lshl_b32 s{sKc}, s{sKc}, 1')
        a(f's_lshr_b32 s{sT0}, s{sT1}, 1')
        a(f's_add_u32 s{sKc}, s{sKc}, s{sT0}')
        a(f's_add_u32 s{sKc}, s{sKc}, s{sT2}')
    elif ROT == 5:
        a(f's_add_u32 s{sKc}, s{sKc}, s{sT2}')
    else:
        a(f's_mov_b32 s{sKc}, 0')
    for _ in range(2):
        a(f's_sub_u32 s{sT0}, s{sKc}, 10')
        a(f's_cmp_ge_u32 s{sKc}, 10')
        a(f's_cselect_b32 s{sKc}, s{sT0}, s{sKc}')
    va = RegAlloc('v', 24, 256)
    vOA = va.get(2); vOB = va.get(5); vOQ = va.get(5); vRP = va.get(); vRT = va.get()
    t = [hres + i for i in range(6)]
    a(f's_lshl_b32 s{sT1}, s{sWv}, 4')
    a(f'v_lshrrev_b32 v{t[0]}, 3, v{vL}')
    a(f'v_add_u32 v{t[0]}, s{sT1}, v{t[0]}')
    a(f'v_and_b32 v{t[1]}, 7, v{vL}')
    a(f'v_xor_b32 v{t[2]}, v{vG}, v{t[1]}')
    a(f'v_lshlrev_b32 v{t[2]}, 4, v{t[2]}')
    a(f'v_mul_u32_u24 v{t[0]}, 1280, v{t[0]}')
    a(f'v_add_u32 v{vOA}, v{t[0]}, v{t[2]}')
    a(f'v_xor_b32 v{t[2]}, 64, v{t[2]}')
    a(f'v_add3_u32 v{vOA + 1}, v{t[0]}, v{t[2]}, 0') if False else None
    a(f'v_add_u32 v{vOA + 1}, v{t[0]}, v{t[2]}')
    a(f'v_add_u32 v{vOA + 1}, {10240 - 1024}, v{vOA + 1}')
    a(f's_mul_i32 s{sT3}, s{sWv}, {16 * 3840}')
    a(f's_movk_i32 s{sT2}, 3840')
    for j in range(5):
        a(f'v_add_u32 v{t[0]}, {64 * j}, v{vL}')
        a(f'v_mul_u32_u24 v{t[1]}, 3277, v{t[0]}')
        a(f'v_lshrrev_b32 v{t[1]}, 16, v{t[1]}')
        a(f'v_mul_u32_u24 v{t[2]}, 20, v{t[1]}')
        a(f'v_sub_u32 v{t[0]}, v{t[0]}, v{t[2]}')
        a(f'v_lshrrev_b32 v{t[2]}, 2, v{t[1]}')
        a(f'v_and_b32 v{t[2]}, 2, v{t[2]}')
        a(f'v_xor_b32 v{t[0]}, v{t[0]}, v{t[2]}')
        a(f'v_mul_u32_u24 v{t[2]}, 205, v{t[0]}')
        a(f'v_lshrrev_b32 v{t[2]}, 10, v{t[2]}')
        a(f'v_and_b32 v{t[3]}, 1, v{t[2]}')
        a(f'v_mul_u32_u24 v{t[3]}, 1200, v{t[3]}')
        a(f'v_lshl_add_u32 v{t[0]}, v{t[0]}, 4, v{t[3]}')
        a(f'v_lshrrev_b32 v{t[2]}, 1, v{t[2]}')
        a(f'v_mul_u32_u24 v{t[2]}, 80, v{t[2]}')
        a(f'v_sub_u32 v{t[0]}, v{t[0]}, v{t[2]}')
        a(f'v_mad_u32_u24 v{t[0]}, v{t[1]}, s{sT2}, v{t[0]}')
        a(f's_sub_u32 s{sT1}, s{sT3}, {1024 * (j & 3)}')
        a(f'v_add_u32 v{vOB + j}, s{sT1}, v{t[0]}')
    a(f's_lshl_b32 s{sMA}, s{sWv}, 11')
    a(f's_mul_i32 s{sMB}, s{sWv}, 5120')
    a(f's_add_u32 s{sMB}, s{sMB}, {RB}')
    a(f's_mul_i32 s{sT0}, s{sR1}, {64 * 1280}')
    a(f's_mul_i32 s{sT1}, s{sHg}, 160')
    a('s_waitcnt lgkmcnt(0)')
    a(f's_load_dwordx8 s[{sTab}:{sTab + 7}], s[{sM1}:{sM1 + 1}], 0')
    a(f's_load_dwordx4 s[{sTab + 8}:{sTab + 11}], s[{sM1}:{sM1 + 1}], 32')
    a(f's_add_u32 s{sX}, s{P_X}, s{sT0}')
    a(f's_addc_u32 s{sX + 1}, s{P_X + 1}, 0')
    a(f's_sub_u32 s{sX + 2}, {S * D * 2}, s{sT0}')
    a(f's_mov_b32 s{sX + 3}, 0x20000')
    a(f's_add_u32 s{sW}, s{P_WQKV}, s{sT1}')
    a(f's_addc_u32 s{sW + 1}, s{P_WQKV + 1}, 0')
    a(f's_sub_u32 s{sW + 2}, {D * 3 * D * 2}, s{sT1}')
    a(f's_mov_b32 s{sW + 3}, 0x20000')
    a.vm_reset()

    def stage_groups(n):
        g = []
        slot = RB_slot = (n % 3) * 20480
        adv = [f's_add_u32 s{sKc}, s{sKc}, 1', f's_cmp_eq_u32 s{sKc}, 10', f's_cselect_b32 s{sKc}, 0, s{sKc}']
        if n < 10:
            for j in range(2):
                pre = []
                if j == 0:
                    pre = [f's_lshl_b32 s{sSA}, s{sKc}, 7', f's_mul_i32 s{sSB}, s{sKc}, {64 * 3840}',
                           f's_add_u32 s{sSB}, s{sSB}, 1280', f's_add_u32 m0, s{sMA}, {8192 * n}'] + adv
                g.append((pre + [f'buffer_load_dwordx4 v{vOA + j}, s[{sX}:{sX + 3}], s{sSA} offen offset:{1024 * j}{" nt" if E("G_XNT", 0) else ""} lds'], f's{n}'))
            vo = vOB
        else:
            vo = vOQ
        if n >= 13:
            for j in range(5):
                pre = []
                if j == 0:
                    pre = [f's_add_u32 s{sSB}, s{sKc}, s{sRh}', f's_cmp_eq_u32 s{sSB}, 10', f's_cselect_b32 s{sSB}, 0, s{sSB}',
                           f's_mul_i32 s{sSB}, s{sSB}, {64 * 3840}'] + adv + adv
                r = 200 + 20 * (n - 13) + 4 * j
                g.append((pre + [f'buffer_load_dwordx4 {R("a", r)}, v{vo + j}, s[{sW}:{sW + 3}], s{sSB} offen offset:{1024 * (j & 3)}'], f's{n}'))
            return g
        for j in range(5):
            pre = []
            if j == 0:
                if n >= 10:
                    pre = [f's_add_u32 s{sSB}, s{sKc}, s{sRh}', f's_cmp_eq_u32 s{sSB}, 10', f's_cselect_b32 s{sSB}, 0, s{sSB}',
                           f's_mul_i32 s{sSB}, s{sSB}, {64 * 3840}'] + adv + adv
                pre = pre + [f's_add_u32 m0, s{sMB}, {slot}', 's_nop 0']
            if j == 4:
                pre = [f's_add_u32 m0, s{sMB}, {slot + 4096}', 's_nop 0']
            elif j > 0:
                pre = [f's_add_u32 m0, s{sMB}, {slot}', 's_nop 0'] if j == 2 else []
            g.append((pre + [f'buffer_load_dwordx4 v{vo + j}, s[{sW}:{sW + 3}], s{sSB} offen offset:{1024 * (j & 3)}{" nt" if E("G_WNT", 0) else ""} lds'], f's{n}'))
        return g

    def emit(g):
        for x in g[0]:
            a(x, tag=g[1])
    pend = []

    def pull(n=1):
        for _ in range(n):
            if pend:
                emit(pend.pop(0))

    def need_tag(tag, extra=''):
        while any(g[1] == tag for g in pend):
            pull()
        if tag in a.vm:
            a.vm_wait(tag, extra)
        elif extra:
            a('s_waitcnt' + extra)
    a.stamp(1)
    LIN = E('G_LIN', 0)

    def linear_pf():
        a(f's_lshl_b32 s{sT0}, s2, 2')
        a(f's_add_u32 s{sT0}, s{sT0}, s{sWv}')
        a(f's_mul_i32 s{sT1}, s{sT0}, 2560')
        a(f's_mul_i32 s{sT2}, s{sT0}, 2400')
        a(f'v_mul_u32_u24 v{t[0]}, 40, v{vL}')
        a(f'v_add_u32 v{t[1]}, s{sT1}, v{t[0]}')
        a(f'v_min_u32 v{t[0]}, 2396, v{t[0]}')
        a(f'v_add_u32 v{t[2]}, s{sT2}, v{t[0]}')
        a(f'global_load_dword a8, v{t[1]}, s[{P_X}:{P_X + 1}]', tag='lin')
        a(f'global_load_dword a9, v{t[2]}, s[{P_WQKV}:{P_WQKV + 1}]', tag='lin')
    if LIN == 1:
        linear_pf()
    for n in range(2):
        for g in stage_groups(n):
            emit(g)
        if LIN == 2 and n == 0:
            linear_pf()
    srd(a, sWS, P_WS, 0, WS_USED)
    a(f'v_lshlrev_b32 v{vL16}, 4, v{vL}')
    a(f'v_add_u32 v{vL16b}, 4096, v{vL16}')
    a(f'v_lshlrev_b32 v{vL128}, 7, v{vL}')
    a(f'v_mov_b32 v{vOne}, 1')
    a(f'v_mov_b32 v{vZero}, 0')
    vOnes = va.get(4, 4)
    vA = va.get(4); vB = va.get(4); vQ = va.get(2)
    fr = [va.get(40, 4) for _ in range(2)]
    acc = va.get(40, 4); s1 = va.get(8, 4); s2 = va.get(8, 4); cs = va.get(20, 4)
    pad_ = va.get(4, 4)
    qacc = va.get(24, 4); qcs = va.get(12, 4)
    vC = hres + 6
    for i in range(4):
        a(f'v_mov_b32 v{vOnes + i}, 0x3f803f80')
        a(f'v_mov_b32 v{pad_ + i}, 0')
    if E('G_CODEPF', 1):
        a(f's_lshr_b32 s{sT0}, s2, 3')
        a(f's_lshl_b32 s{sT0}, s{sT0}, 2')
        a(f's_add_u32 s{sT0}, s{sT0}, s{sWv}')
        a(f's_lshl_b32 s{sT0}, s{sT0}, 10')
        Lc = a.newlabel('Lc')
        a(f's_cmp_ge_u32 s{sT0}, {name}_tab-{name}_pc')
        a(f's_cbranch_scc1 {Lc}')
        a(f'v_lshl_add_u32 v{t[0]}, v{vL}, 4, s{sT0}')
        keep = list(a.vm)
        a(f'global_load_dwordx4 a[0:3], v{t[0]}, s[{sM0x}:{sM0x + 1}]')
        a.vm = keep
        a.label(Lc)
    a(f's_xor_b32 s{sT0}, s{sRh}, s{sCh}')
    a(f'v_lshrrev_b32 v{t[0]}, 3, v{vR}')
    a(f'v_lshlrev_b32 v{t[0]}, 10, v{t[0]}')
    a(f'v_and_b32 v{t[1]}, 7, v{vR}')
    a(f'v_lshl_add_u32 v{t[0]}, v{t[1]}, 7, v{t[0]}')
    a(f's_lshl_b32 s{sT1}, s{sRh}, 12')
    a(f'v_add_u32 v{t[0]}, s{sT1}, v{t[0]}')
    a(f'v_lshrrev_b32 v{t[1]}, 1, v{vR}')
    a(f'v_xor_b32 v{t[1]}, v{t[1]}, v{vG}')
    a(f's_lshl_b32 s{sT1}, s{sT0}, 2')
    a(f'v_xor_b32 v{t[1]}, s{sT1}, v{t[1]}')
    a(f'v_lshl_add_u32 v{vA}, v{t[1]}, 4, v{t[0]}')
    a(f'v_xor_b32 v{t[1]}, 4, v{t[1]}')
    a(f'v_lshl_add_u32 v{vA + 1}, v{t[1]}, 4, v{t[0]}')
    a(f'v_add_u32 v{vA + 2}, 40960, v{vA}')
    a(f'v_add_u32 v{vA + 3}, 40960, v{vA + 1}')
    a(f'v_bfe_u32 v{t[0]}, v{vL}, 2, 2')
    a(f'v_and_b32 v{t[1]}, 3, v{vL}')
    a(f'v_lshl_add_u32 v{t[2]}, v{vG}, 3, v{t[0]}')
    a(f'v_and_b32 v{t[3]}, 1, v{vG}')
    a(f'v_mul_u32_u24 v{t[2]}, 320, v{t[2]}')
    a(f'v_lshl_add_u32 v{t[2]}, v{t[1]}, 3, v{t[2]}')
    a(f's_mul_i32 s{sT1}, s{sCh}, 160')
    a(f's_add_u32 s{sT1}, s{sT1}, {RB}')
    a(f'v_add_u32 v{t[2]}, s{sT1}, v{t[2]}')
    a(f'v_lshlrev_b32 v{t[4]}, 5, v{t[3]}')
    a(f'v_sub_u32 v{t[5]}, v{t[2]}, v{t[4]}')
    a(f'v_add_u32 v{t[4]}, v{t[2]}, v{t[4]}')
    a(f's_cmp_eq_u32 s{sCh}, 0')
    a('s_cselect_b64 vcc, -1, 0')
    a(f'v_cndmask_b32 v{t[2]}, v{t[5]}, v{t[4]}, vcc')
    a(f'v_cndmask_b32 v{t[4]}, v{t[4]}, v{t[5]}, vcc')
    a(f's_mul_i32 s{sT1}, s{sT0}, 10240')
    a(f's_sub_u32 s{sT2}, 10240, s{sT1}')
    for o, sreg in ((0, sT1), (1, sT2)):
        a(f'v_add_u32 v{vB + 2 * o}, s{sreg}, v{t[2]}')
        a(f'v_add_u32 v{vB + 2 * o + 1}, s{sreg}, v{t[4]}')
    a('s_cmp_lt_u32 s2, 200')
    a(f's_cselect_b32 s{sR}, s{P_WO}, s{P_W2}')
    a(f's_cselect_b32 s{sR + 1}, s{P_WO + 1}, s{P_W2 + 1}')
    a(f's_mov_b32 s{sR + 2}, {D * F * 2}')
    a(f's_cselect_b32 s{sR + 2}, {D * D * 2}, s{sR + 2}')
    a(f's_mov_b32 s{sR + 3}, 0x20000')
    a(f's_movk_i32 s{sT0}, 1280')
    a('s_cmp_lt_u32 s2, 135')
    a(f's_cselect_b32 s{sT2}, 3456, s{sT0}')
    a(f's_lshl_b32 s{sT1}, s{sWv}, 3')
    a(f'v_lshrrev_b32 v{t[0]}, 3, v{vL}')
    a(f'v_add_u32 v{t[0]}, s{sT1}, v{t[0]}')
    a(f'v_and_b32 v{t[1]}, 7, v{vL}')
    a(f'v_lshlrev_b32 v{t[1]}, 4, v{t[1]}')
    a(f'v_mad_u32_u24 v{vRP}, v{t[0]}, s{sT2}, v{t[1]}')
    a(f'v_mad_u32_u24 v{t[0]}, v{t[0]}, s{sT0}, v{t[1]}')
    a(f's_lshl_b32 s{sT1}, s{sWv}, 10')
    a(f's_add_u32 m0, s{sT1}, {SA}')
    a('s_waitcnt lgkmcnt(0)')
    a(f'buffer_load_dwordx4 v{t[0]}, s[{sR}:{sR + 3}], s{sTab} offen{" nt" if E("G_RNT", 0) else ""} lds', tag='r')
    a(f'v_lshlrev_b32 v{vRT}, 10, v{vG}')
    a(f'v_bfe_u32 v{t[5]}, v{vL}, 2, 2')
    a(f'v_lshl_add_u32 v{vRT}, v{t[5]}, 7, v{vRT}')
    a(f'v_and_b32 v{t[5]}, 3, v{vL}')
    a(f'v_lshl_add_u32 v{vRT}, v{t[5]}, 4, v{vRT}')
    a(f's_lshl_b32 s{sT1}, s{sRh}, 6')
    a(f's_lshl_b32 s{sT2}, s{sCh}, 3')
    a(f's_add_u32 s{sT1}, s{sT1}, s{sT2}')
    a(f's_add_u32 s{sT1}, s{sT1}, {RB}')
    a(f'v_add_u32 v{vRT}, s{sT1}, v{vRT}')
    a('s_cmp_lt_u32 s2, 135')
    a(f's_cselect_b32 s{sR}, s{P_W1}, s{P_W2}')
    a(f's_cselect_b32 s{sR + 1}, s{P_W1 + 1}, s{P_W2 + 1}')
    a(f's_mov_b32 s{sR + 2}, {D * F * 2}')
    REARLY = E('G_REARLY', 0)
    r2e = []
    for i in range(4):
        r2e.append(([f's_lshl_b32 s{sCnt}, s{sWv}, 10', f's_add_u32 m0, s{sCnt}, {SA + 4096 * (i + 1)}', 's_nop 0',
                     f'buffer_load_dwordx4 v{vRP}, s[{sR}:{sR + 3}], s{sTab + 2 + i} offen lds'], 'r'))
    if REARLY and E('G_REIT', -1) < 0:
        for g in r2e:
            emit(g)
    Lnz = a.newlabel('Lnz')
    a(f's_lshl_b32 s{sT1}, s{sHg}, 2')
    a(f's_add_u32 s{sT1}, s{sT1}, s{sWv}')
    a(f's_mul_i32 s{sT2}, s{sT1}, {KV_HS}')
    a(f's_add_u32 s{sT2}, s{sT2}, {KV_OFF}')
    a(f's_lshl_b32 s{sT3}, s{sT1}, 9')
    a(f's_add_u32 s{sT3}, s{sT3}, {FL_OFF}')
    a(f's_cmp_eq_u32 s{sR1}, 0')
    a(f's_cselect_b32 s{sT2}, s{sT2}, 0x{BIG:x}')
    a(f's_cselect_b32 s{sT3}, s{sT3}, 0x{BIG:x}')
    a(f'v_lshlrev_b32 v{t[0]}, 3, v{vL}')
    a(f'buffer_store_dwordx4 {R("v", pad_)}, v{vL16}, {WS}, s{sT2} offen sc1', tag='z')
    a(f'buffer_store_dwordx4 {R("v", pad_)}, v{vL16}, {WS}, s{sT2} offen offset:768 sc1', tag='z')
    a(f'buffer_store_dwordx2 {R("v", pad_, 2)}, v{t[0]}, {WS}, s{sT3} offen sc1', tag='z')
    if E('G_TLB', 1):
        hl = tlb_holes()
        for i, h in enumerate(hl):
            a(f's_mov_b32 s{sT1}, {h}')
            a(f'v_writelane_b32 v{t[0]}, s{sT1}, {i}')
        a(f's_mov_b64 exec, {(1 << len(hl)) - 1}')
        a(f'buffer_load_dword a4, v{t[0]}, {WS}, 0 offen', tag='tlb')
        a('s_mov_b64 exec, 3')
        a(f'v_mul_u32_u24 v{t[1]}, {S * D * 2 - 4}, v{vL}')
        a(f'global_load_dword a5, v{t[1]}, s[{P_OUT}:{P_OUT + 1}]', tag='tlb')
        a('s_mov_b64 exec, -1')
    a(f's_cmp_eq_u32 s{sWv}, 0')
    a(f's_mov_b32 s{sFw}, 0x{BIG:x}')
    a(f's_cselect_b32 s{sFw}, {FL_OFF}, s{sFw}')
    ones = R('v', vOnes)

    deferred = []

    def dq(x):
        deferred.append(x)
    dq(f's_mul_i32 s{sT3}, s{sCh}, {32 * 3840}')
    dq(f's_movk_i32 s{sT2}, 3840')
    for j in range(5):
        dq(f'v_add_u32 v{t[0]}, {64 * j}, v{vL}')
        dq(f'v_mul_u32_u24 v{t[1]}, 6554, v{t[0]}')
        dq(f'v_lshrrev_b32 v{t[1]}, 16, v{t[1]}')
        dq(f'v_mul_u32_u24 v{t[2]}, 10, v{t[1]}')
        dq(f'v_sub_u32 v{t[0]}, v{t[0]}, v{t[2]}')
        dq(f'v_and_b32 v{t[2]}, 0x13, v{t[1]}')
        dq(f'v_bfe_u32 v{t[3]}, v{t[1]}, 2, 1')
        dq(f'v_lshl_or_b32 v{t[2]}, v{t[3]}, 3, v{t[2]}')
        dq(f'v_bfe_u32 v{t[3]}, v{t[1]}, 3, 1')
        dq(f'v_lshl_or_b32 v{t[2]}, v{t[3]}, 2, v{t[2]}')
        dq(f'v_lshlrev_b32 v{t[0]}, 4, v{t[0]}')
        dq(f'v_mad_u32_u24 v{t[0]}, v{t[2]}, s{sT2}, v{t[0]}')
        dq(f's_sub_u32 s{sT1}, s{sT3}, {1024 * (j & 3)}')
        dq(f'v_add_u32 v{vOQ + j}, s{sT1}, v{t[0]}')
    dq(f'v_bfe_u32 v{t[0]}, v{vL}, 2, 2')
    dq(f'v_and_b32 v{t[1]}, 3, v{vL}')
    dq(f'v_and_b32 v{t[3]}, 1, v{vG}')
    dq(f's_xor_b32 s{sT0}, s{sRh}, s{sCh}')
    dq(f'v_lshl_add_u32 v{t[0]}, v{t[3]}, 2, v{t[0]}')
    dq(f'v_lshrrev_b32 v{t[3]}, 1, v{vG}')
    dq(f'v_lshl_add_u32 v{t[0]}, v{t[3]}, 4, v{t[0]}')
    dq(f'v_mul_u32_u24 v{t[0]}, 160, v{t[0]}')
    dq(f'v_lshl_add_u32 v{t[0]}, v{t[1]}, 3, v{t[0]}')
    dq(f's_mul_i32 s{sT1}, s{sCh}, 80')
    dq(f's_add_u32 s{sT1}, s{sT1}, {RB}')
    dq(f's_mul_i32 s{sT2}, s{sT0}, 5120')
    dq(f's_add_u32 s{sT3}, s{sT1}, s{sT2}')
    dq(f'v_add_u32 v{vQ}, s{sT3}, v{t[0]}')
    dq(f's_sub_u32 s{sT3}, s{sT1}, s{sT2}')
    dq(f's_add_u32 s{sT3}, s{sT3}, 5120')
    dq(f'v_add_u32 v{vQ + 1}, s{sT3}, v{t[0]}')
    for i, c in enumerate((LOG2E, LOG2E, 0x3f800000, 0x3f800000, 0x358637bd, 0x358637bd)):
        dq(f'v_mov_b32 v{vC + i}, 0x{c:x}')

    def a_read(dst, slot, o, tr):
        hi = slot >= 5
        return f'ds_read_b128 {R("v", dst)}, v{vA + 2 * hi + o} offset:{8192 * (slot - 5 * hi) + 2048 * tr}'

    def reads_kv(n, o):
        f = fr[o]
        lst = [a_read(f + 4 * tr, n, o, tr) for tr in range(2)]
        for tc in range(5):
            for j in range(2):
                b = f + 8 + 4 * tc + 2 * j
                lst.append(f'ds_read_b64_tr_b16 {R("v", b, 2)}, v{vB + 2 * o + (tc & 1)} offset:{(n % 3) * 20480 + 32 * tc + 1280 * j}')
        return lst

    def mf_kv(n, o, extras_first=False):
        f = fr[o]
        A = lambda tr: R('v', f + 4 * tr)
        B = lambda tc: R('v', f + 8 + 4 * tc)
        z = lambda d, first: '0' if first else R('v', d)
        lst, ex = [], []
        for tc in range(5):
            for tr in range(2):
                d = acc + 4 * (tr * 5 + tc)
                lst.append(f'{M16} {R("v", d)}, {A(tr)}, {B(tc)}, {z(d, n == 0 and o == 0)}')
        if o == 0:
            for tr in range(2):
                ex.append(f'{M16} {R("v", s1 + 4 * tr)}, {A(tr)}, {ones}, {z(s1 + 4 * tr, n == 0)}')
                ex.append(f'{M16} {R("v", s2 + 4 * tr)}, {A(tr)}, {A(tr)}, {z(s2 + 4 * tr, n == 0)}')
        else:
            for tc in range(5):
                ex.append(f'{M16} {R("v", cs + 4 * tc)}, {ones}, {B(tc)}, {z(cs + 4 * tc, n == 0)}')
        return ex + lst if extras_first else lst + ex

    def sched(ms, first, later, start=1, per=1):
        n = len(ms)
        first = list(first)
        pos = {}
        for k, g in enumerate(later):
            pos.setdefault(min(n - 1, start + (k * (n - start)) // max(1, len(later))), []).append(g)
        for k, m in enumerate(ms):
            a(m)
            for _ in range(per):
                if first:
                    a(first.pop(0))
            for g in pos.get(k, []):
                if isinstance(g, tuple):
                    emit(g)
                else:
                    for x in g:
                        a(x)
        for x in first:
            a(x)

    def publish(sOff, line, tag, barrier=True):
        if tag in a.vm:
            a.vm_wait(tag)
        if barrier:
            a('s_barrier')
        a('s_mov_b64 exec, 1')
        a(f'buffer_atomic_add v{vOne}, v{vZero}, {WS}, s{sOff} offen offset:{128 * line} sc1', tag='flag')
        a('s_mov_b64 exec, -1')

    def poll_issue(sOff, line, nl=1):
        a(f's_mov_b64 exec, {(1 << nl) - 1}')
        a(f'buffer_load_dword v{vT[1]}, v{vL128}, {WS}, s{sOff} offen offset:{128 * line} sc1', tag='poll')
        a('s_mov_b64 exec, -1')

    def poll_wait(sOff, line, expect, nl=1, barrier=True):
        Lp = a.newlabel('Lp'); Lok = a.newlabel('Lok')
        keep = list(a.vm)
        a(f's_cmp_lg_u32 s{sWv}, 0')
        a(f's_cbranch_scc1 {Lok}')
        a.vm_wait('poll')
        a(f's_mov_b32 s{sCnt}, 0')
        a(f's_mov_b64 exec, {(1 << nl) - 1}')
        a.label(Lp)
        a(f'v_cmp_gt_u32 vcc, {expect}, v{vT[1]}')
        a(f's_add_u32 s{sCnt}, s{sCnt}, 1')
        a('s_cmp_eq_u64 vcc, 0')
        a(f's_cbranch_scc1 {Lok}')
        a(f's_cmp_ge_u32 s{sCnt}, 200000')
        a(f's_cbranch_scc1 {Lok}')
        a('s_sleep 1')
        a(f'buffer_load_dword v{vT[1]}, v{vL128}, {WS}, s{sOff} offen offset:{128 * line} sc1')
        a('s_waitcnt vmcnt(0)')
        a(f's_branch {Lp}')
        a.label(Lok)
        a.vm = keep
        a('s_mov_b64 exec, -1')
        if barrier:
            a('s_barrier')

    ZP_IT = E('G_ZPIT', 5)
    aRP = 240

    def zero_poll():
        Lz = a.newlabel('Lzq')
        keep = list(a.vm)
        a(f's_cmp_lg_u32 s{sWv}, 0')
        a(f's_cbranch_scc1 {Lz}')
        a('s_mov_b32 exec_hi, 0')
        a(f'global_load_dword v{vT[2]}, v{t[5]}, s[{P_DBG}:{P_DBG + 1}] offset:128 sc1')
        a('s_mov_b64 exec, -1')
        a.label(Lz)
        a.vm = keep + ['zmark']
        a.vm_mark = True

    def zero_check():
        Lp = a.newlabel('Lzp'); Lok = a.newlabel('Lzok')
        assert 'zmark' not in a.vm
        keep = list(a.vm)
        a(f's_cmp_lg_u32 s{sWv}, 0')
        a(f's_cbranch_scc1 {Lok}')
        a(f's_mov_b32 s{sCnt}, 0')
        a('s_mov_b32 exec_hi, 0')
        a.label(Lp)
        a(f'v_cmp_ne_u32 vcc, 1, v{vT[2]}')
        a(f's_add_u32 s{sCnt}, s{sCnt}, 1')
        a('s_cmp_eq_u64 vcc, 0')
        a(f's_cbranch_scc1 {Lok}')
        a(f's_cmp_ge_u32 s{sCnt}, 200000')
        a(f's_cbranch_scc1 {Lok}')
        a('s_sleep 2')
        a(f'global_load_dword v{vT[2]}, v{t[5]}, s[{P_DBG}:{P_DBG + 1}] offset:128 sc1')
        a('s_waitcnt vmcnt(0)')
        a(f's_branch {Lp}')
        a.label(Lok)
        a.vm = keep
        a('s_mov_b64 exec, -1')

    ST1, ST2, CSP, AA, BB, QCS, KVA = SA, SA + 512, SA + 1024, SA + 2304, SA + 2560, SA + 2816, SA + 4096
    sg2 = stage_groups(2)
    for g in sg2[:4]:
        emit(g)
    a.stamp(2)
    a.vm_wait('s0', ' lgkmcnt(0)')
    a('s_barrier')
    a.stamp(3)
    for x in reads_kv(0, 0):
        a(x)
    carry = sg2[4:]
    R2_IT = E('G_R2IT', 2)
    rpr = fr[0] + 28
    rpe = [fr[0] + 32, fr[0] + 36, fr[1] + 28, fr[1] + 32]
    rpd = fr[1] + 36
    pairs = [(0, 2), (0, 3), (1, 2), (1, 3), (1, 4), (2, 3), (2, 4)]
    cp, ad, vSa, vSc = fr[1] + 28, fr[1] + 31, fr[1] + 38, fr[1] + 39
    rpz = fr[0] + 32
    ep_addr = [f's_mul_i32 s{sT3}, s{sWv}, {2 * KV_HS}', f's_add_u32 s{sT3}, s{sT3}, {KVA}']
    for tk in range(3):
        ep_addr += [f'v_add_u32 v{t[2]}, {4 * tk}, v{vG}', f'v_mul_u32_u24 v{t[2]}, 336, v{t[2]}', f'v_add_u32 v{cp + tk}, s{sT3}, v{t[2]}']
        if tk == 1:
            ep_addr += [f'v_min_u32 v{t[3]}, 1, v{vG}', f'v_mul_u32_u24 v{t[3]}, {KV_HS - 1680}, v{t[3]}', f'v_add_u32 v{cp + tk}, v{cp + tk}, v{t[3]}']
        if tk == 2:
            ep_addr += [f'v_add_u32 v{cp + tk}, {KV_HS - 1680}, v{cp + tk}']
    for tv in range(2, 5):
        x = rpz + tv - 2
        m4 = lane_mask(lambda g, j: ((16 * tv + j - 40) % 20) % 5 == 4)
        ep_addr += [f'v_add_u32 v{x}, {(16 * tv - 40) & 0xffffffff}, v{vR}', f'v_subrev_u32 v{t[2]}, 20, v{x}',
                    f'v_min_u32 v{x}, v{x}, v{t[2]}', f'v_mul_u32_u24 v{t[2]}, 205, v{x}', f'v_lshrrev_b32 v{t[2]}, 10, v{t[2]}',
                    f'v_sub_u32 v{x}, v{x}, v{t[2]}', f'v_add_u32 v{t[2]}, 16, v{t[2]}',
                    f's_mov_b32 s{sM0}, 0x{m4 & 0xffffffff:x}', f's_mov_b32 s{sM0 + 1}, 0x{m4 >> 32:x}',
                    f'v_cndmask_b32 v{x}, v{x}, v{t[2]}, s[{sM0}:{sM0 + 1}]', f'v_lshlrev_b32 v{x}, 4, v{x}']
    for n, (tk, tv) in enumerate(pairs):
        ep_addr.append(f'v_add_u32 v{ad + n}, v{cp + tk}, v{rpz + tv - 2}')
    ep_addr += [f's_lshl_b32 s{sT3}, s{sRh}, 7', f's_add_u32 s{sT3}, s{sT3}, {AA}', f'v_lshl_add_u32 v{vSa}, v{vG}, 4, s{sT3}',
                f's_mul_i32 s{sT3}, s{sCh}, 320', f's_add_u32 s{sT3}, s{sT3}, {CSP}', f'v_lshl_add_u32 v{vSc}, v{vR}, 2, s{sT3}']
    for it in range(10):
        last = it == 9
        later = list(carry)
        if it == E('G_ZFIT', 2):
            later.append(('zf', 'zf'))
        if it == R2_IT + 1:
            later.append(([f'buffer_store_dwordx4 {R("v", rpr)}, v{vL16}, {WS}, s{sTab + 1} offen sc1'], 'rst'))
            if REARLY:
                for i in range(4):
                    later.append(([f'buffer_store_dwordx4 {R("v", rpe[i])}, v{vL16}, {WS}, s{sTab + 6 + i} offen sc1'], 'rst'))
                later.append([f'{M16} {R("v", rpd)}, {R("v", rpe[i])}, {ones}, {"0" if i == 0 else R("v", rpd)}' for i in range(4)])
        if it == ZP_IT + 2:
            later.append(('zchk', 'zchk'))
        g1 = []
        if last:
            g1 = [[f's_mov_b32 s{sM0}, 0x22222222', f's_mov_b32 s{sM0 + 1}, 0x22222222', f's_mov_b32 s{sM1}, 0x44444444',
                   f's_mov_b32 s{sM1 + 1}, 0x44444444', 's_mov_b32 vcc_lo, 0x88888888', 's_mov_b32 vcc_hi, 0x88888888',
                   f's_lshl_b32 s{sT1}, s{sCh}, 8', f's_lshl_b32 s{sT2}, s{sRh}, 7', f's_add_u32 s{sT1}, s{sT1}, s{sT2}',
                   f's_add_u32 s{sT1}, s{sT1}, {SA}',
                   f'v_lshl_add_u32 v{t[0]}, v{vR}, 2, s{sT1}', f'v_lshl_add_u32 v{t[1]}, v{vG}, 4, s{sT1}']]
            for tr in range(2):
                d = s2 + 4 * tr
                g1.append([f'v_cndmask_b32 v{d}, v{d}, v{d + 1}, s[{sM0}:{sM0 + 1}]',
                           f'v_cndmask_b32 v{d}, v{d}, v{d + 2}, s[{sM1}:{sM1 + 1}]',
                           f'v_cndmask_b32 v{d}, v{d}, v{d + 3}, vcc'])
            w = ['s_mov_b32 exec_lo, 0x00F0000F', 's_mov_b32 exec_hi, 0xF0000F00']
            w += [f'ds_write_b32 v{t[0]}, v{s2 + 4 * tr} offset:{512 + 64 * tr}' for tr in range(2)]
            w += ['s_mov_b32 exec_lo, 0x00010001', 's_mov_b32 exec_hi, 0x00010001']
            w += [f'ds_write_b128 v{t[1]}, {R("v", s1 + 4 * tr)} offset:{64 * tr}' for tr in range(2)]
            w += ['s_mov_b64 exec, -1']
            g1.append(w)
        a('s_waitcnt lgkmcnt(0)')
        zf = [g for g in later if g == ('zf', 'zf')]
        zchk = [g for g in later if g == ('zchk', 'zchk')]
        later = [g for g in later if g not in (('zf', 'zf'), ('zchk', 'zchk'))]
        if last:
            ms = mf_kv(it, 0, True)
            sched(ms[:8], reads_kv(it, 1), later)
            sched(ms[8:], [], g1, start=2)
        else:
            if it < 2:
                later = later + [deferred[k:k + 3] for k in range(0, 27, 3)]
                deferred = deferred[27:]
            sched(mf_kv(it, 0), reads_kv(it, 1), later, start=E('G_KST', 4), per=E('G_KPER', 2))
        if zf:
            Lz = a.newlabel('Lz')
            assert 'z' not in a.vm
            a(f's_cmp_lg_u32 s{sR1}, 0')
            a(f's_cbranch_scc1 {Lz}')
            a(f's_lshl_b32 s{sT1}, s{sHg}, 2')
            a(f's_add_u32 s{sT1}, s{sT1}, s{sWv}')
            a(f's_lshl_b32 s{sT1}, s{sT1}, 2')
            a(f'v_mov_b32 v{t[0]}, s{sT1}')
            a('s_mov_b64 exec, 1')
            keep = list(a.vm)
            a(f'global_store_dword v{t[0]}, v{vOne}, s[{P_DBG}:{P_DBG + 1}] offset:128 sc1')
            a.vm = keep
            a('s_mov_b64 exec, -1')
            a.label(Lz)
        if it == R2_IT:
            a.vm_wait('r') if 'r' in a.vm else None
        if not last:
            need_tag(f's{it + 1}', ' lgkmcnt(0)')
        else:
            a('s_waitcnt lgkmcnt(0)')
        if zchk:
            zero_check()
            assert 'rst' not in a.vm
        a('s_barrier')
        if it == ZP_IT:
            a(f'v_lshlrev_b32 v{t[5]}, 2, v{vL}')
            zero_poll()
        if zchk:
            a(f's_and_b32 s{sT1}, s2, 7')
            a(f's_lshl_b32 s{sT1}, s{sT1}, 7')
            a(f's_add_u32 s{sT1}, s{sT1}, {FL_RP * 128}')
            a(f's_add_u32 s{sT1}, s{sT1}, s{sFw}')
            publish(sT1, 0, 'rst', barrier=False)
        nx = stage_groups(it + 3)
        h = 4 if it + 3 < 10 else 3
        later = nx[:h]
        carry = nx[h:]
        first = reads_kv(it + 1, 0) if not last else []
        if it == R2_IT:
            later.append([f'ds_read_b64_tr_b16 {R("v", rpr + 2 * j, 2)}, v{vRT} offset:{SA - RB + 512 * j}' for j in range(2)])
            if REARLY:
                later.append([f'v_add_u32 v{t[3]}, {KVA - RB}, v{vRT}'])
                for i in range(4):
                    later.append([f'ds_read_b64_tr_b16 {R("v", rpe[i] + 2 * j, 2)}, v{t[3]} offset:{4096 * i + 512 * j}' for j in range(2)])
        if REARLY and it == R2_IT + 1:
            later.append(([f'v_lshlrev_b32 v{t[4]}, 4, v{vG}', f'v_lshl_add_u32 v{t[4]}, v{vR}, 6, v{t[4]}',
                           's_mov_b32 exec_lo, 0x00030003', 's_mov_b32 exec_hi, 0x00030003',
                           f'buffer_store_dwordx4 {R("v", rpd)}, v{t[4]}, {WS}, s{sTab + 10} offen sc1', 's_mov_b64 exec, -1'], 'rst'))
        if REARLY and it == E('G_REIT', -1):
            carry += r2e
        if it in (6, 7, 8):
            n_ = (len(ep_addr) + (8 - it)) // (9 - it)
            later += [ep_addr[k:k + 3] for k in range(0, n_, 3)]
            ep_addr = ep_addr[(n_ + 2) // 3 * 3:]
        if last:
            r2g = [([f'buffer_load_dwordx4 {R("a", aRP + 4 * i)}, v{vRP}, s[{sR}:{sR + 3}], s{sTab + 2 + i} offen{" nt" if E("G_RNT", 0) else ""}'], 'r2') for i in range(4)]
            R2POS = E('G_R2POS', 2)
            if REARLY:
                r2g = []
            if R2POS == 0:
                pend += carry + stage_groups(13) + stage_groups(14) + r2g
                carry = []
            elif R2POS == 1:
                pend += carry + r2g + stage_groups(13) + stage_groups(14)
                carry = []
            elif R2POS == 2:
                pend += carry + stage_groups(13) + stage_groups(14)
                carry = []
            elif R2POS == 3:
                pend += carry
                r2g = stage_groups(13) + stage_groups(14) + r2g
                carry = []
            else:
                pend += carry + stage_groups(13)
                r2g = stage_groups(14) + r2g
                carry = []
        if last:
            e = fr[0]
            first = [f'v_lshlrev_b32 v{t[0]}, 2, v{vL}', f'v_add_u32 v{t[0]}, {SA}, v{t[0]}',
                     f'ds_read_b32 v{e}, v{t[0]}', f'ds_read_b32 v{e + 1}, v{t[0]} offset:256',
                     f'ds_read_b32 v{e + 2}, v{t[0]} offset:512', f'ds_read_b32 v{e + 3}, v{t[0]} offset:768']
            sub = Asm()
            sub('s_waitcnt lgkmcnt(0)')
            sub(f'v_add_f32 v{e}, v{e}, v{e + 1}')
            sub(f'v_add_f32 v{e + 2}, v{e + 2}, v{e + 3}')
            sub(f'v_mul_f32 v{e}, 0x3acccccd, v{e}')
            sub(f'v_mul_f32 v{e + 2}, 0x3acccccd, v{e + 2}')
            sub(f'v_fma_f32 v{e + 2}, -v{e}, v{e}, v{e + 2}')
            ln_stats(sub, e, e + 2, e + 1)
            st = [i.text for i in sub.items]
            g2 = []
            while st:
                g2.append(st[:4]); st = st[4:]
            cw = [f's_mul_i32 s{sT1}, s{sRh}, 640', f's_mul_i32 s{sT2}, s{sCh}, 320', f's_add_u32 s{sT1}, s{sT1}, s{sT2}',
                  f's_add_u32 s{sT1}, s{sT1}, {CSP}', f'v_lshl_add_u32 v{t[2]}, v{vR}, 2, s{sT1}', 's_mov_b64 exec, 0xffff']
            cw += [f'ds_write_b32 v{t[2]}, v{cs + 4 * tc} offset:{64 * tc}' for tc in range(5)] + ['s_mov_b64 exec, -1']
            g2.append(cw)
            g2.append([f'ds_write_b32 v{t[0]}, v{e + 1} offset:{AA - SA}', f'ds_write_b32 v{t[0]}, v{e} offset:{BB - SA}'])
            ms = mf_kv(it, 1, True)
            sched(ms[:7], first, later + carry)
            carry = []
            sched(ms[7:], [], g2, start=0)
        else:
            if it < 2:
                n_ = 27 if it == 0 else len(deferred)
                later = later + [deferred[k:k + 3] for k in range(0, n_, 3)]
                deferred = deferred[n_:]
            sched(mf_kv(it, 1), first, later, start=E('G_KST', 4), per=E('G_KPER', 2))
        lap('K')
    a.stamp(4)
    lap()
    a('s_waitcnt lgkmcnt(0)')
    a('s_barrier')
    ra, rb_, rc = fr[0], fr[0] + 8, fr[0] + 16
    for tc in range(5):
        a(f'ds_read_b32 v{rc + 2 * tc}, v{vSc} offset:{64 * tc}')
        a(f'ds_read_b32 v{rc + 2 * tc + 1}, v{vSc} offset:{640 + 64 * tc}')
    for tr in range(2):
        a(f'ds_read_b128 {R("v", ra + 4 * tr)}, v{vSa} offset:{64 * tr}')
        a(f'ds_read_b128 {R("v", rb_ + 4 * tr)}, v{vSa} offset:{256 + 64 * tr}')
    pull(2)
    a(f's_mov_b32 s{sM0}, 0x00ff00ff'); a(f's_mov_b32 s{sM0 + 1}, 0x00ff00ff')
    a('s_waitcnt lgkmcnt(0)')
    for tc in range(5):
        a(f'v_add_f32 v{rc + 2 * tc}, v{rc + 2 * tc}, v{rc + 2 * tc + 1}')
    pk = cs

    def phi_chain(d, u, p):
        return [f'v_pk_mul_f32 {R("v", u, 2)}, {R("v", d, 2)}, {R("v", vC, 2)}',
                f'v_pk_add_f32 {R("v", p, 2)}, {R("v", d, 2)}, {R("v", vC + 2, 2)}',
                f'v_exp_f32 v{u}, v{u}', f'v_exp_f32 v{u + 1}, v{u + 1}',
                f'v_med3_f32 v{u}, v{u}, v{p}, 1.0', f'v_med3_f32 v{u + 1}, v{u + 1}, v{p + 1}, 1.0',
                f'v_pk_add_f32 {R("v", u, 2)}, {R("v", u, 2)}, {R("v", vC + 4, 2)}']

    def weave(chains, k, pl=0):
        for b in range(0, len(chains), k):
            grp = chains[b:b + k]
            for i in range(max(len(c) for c in grp)):
                for c in grp:
                    if i < len(c):
                        a(c[i])
                if pl and i % pl == pl - 1:
                    pull()
    chains = []
    for tc in range(5):
        for tr in range(2):
            for h in range(2):
                d = acc + 4 * (tr * 5 + tc) + 2 * h
                w = fr[1] + 6 * (len(chains) % 4)
                c = [f'v_pk_mul_f32 {R("v", w, 2)}, {R("v", rb_ + 4 * tr + 2 * h, 2)}, {R("v", rc + 2 * tc, 2)} op_sel_hi:[1,0]',
                     f'v_pk_fma_f32 {R("v", d, 2)}, {R("v", d, 2)}, {R("v", ra + 4 * tr + 2 * h, 2)}, {R("v", w, 2)}']
                dst = pk + 4 * tc + 2 * tr + h
                if tc <= 2:
                    u, p = w + 2, w + 4
                    c += phi_chain(d, u, p)
                    if tc == 2:
                        c += [f'v_cndmask_b32 v{u}, v{d}, v{u}, s[{sM0}:{sM0 + 1}]', f'v_cndmask_b32 v{u + 1}, v{d + 1}, v{u + 1}, s[{sM0}:{sM0 + 1}]']
                    c.append(f'v_cvt_pk_bf16_f32 v{dst}, v{u}, v{u + 1}')
                else:
                    c.append(f'v_cvt_pk_bf16_f32 v{dst}, v{d}, v{d + 1}')
                chains.append(c)
    lap('F')
    weave(chains, 4, E('G_EPULL', 4))
    lap('F')
    kd = acc
    for n, (tk, tv) in enumerate(pairs):
        a(f'{M16} {R("v", kd + 4 * n)}, {R("v", pk + 4 * tk)}, {R("v", pk + 4 * tv)}, 0')
        if n % 3 == 2:
            pull()
    for tk in range(3):
        a(f'{M16} {R("v", kd + 28 + 4 * tk)}, {R("v", pk + 4 * tk)}, {ones}, 0')
    a(f's_mul_i32 s{sT1}, s{sWv}, {KV_HS}')
    a(f's_add_u32 s{sT2}, s{sT1}, {KVA}')
    a(f'v_add_u32 v{t[1]}, s{sT2}, v{t[5]}')
    a(f's_mul_i32 s{sT2}, s{sHg}, {4 * KV_HS}')
    a(f's_add_u32 s{sT1}, s{sT1}, s{sT2}')
    a(f's_add_u32 s{sT1}, s{sT1}, {KV_OFF}')
    for n, (tk, tv) in enumerate(pairs):
        m = lane_mask(lambda g, j: (4 * tk + g) < 10 and 0 <= (16 * tv + j - 40) and (4 * tk + g) // 5 == (16 * tv + j - 40) // 20)
        for x in set_exec(m):
            a(x)
        a(f'ds_write_b128 v{ad + n}, {R("v", kd + 4 * n)}')
    for tk in range(3):
        if tk != 1:
            for x in set_exec(lane_mask(lambda g, j: j == 0 and (4 * tk + g) < 10)):
                a(x)
        a(f'ds_write_b128 v{cp + tk}, {R("v", kd + 28 + 4 * tk)} offset:320')
    a('s_mov_b64 exec, -1')
    while pend:
        pull()
    lap('F')
    need_tag('s10', ' lgkmcnt(0)')
    lap('F')
    a('s_barrier')
    lap('F')
    kt = acc
    for i in range(7):
        a(f'ds_read_b32 v{kt + i}, v{t[1]} offset:{256 * i}')
        a(f'ds_read_b32 v{kt + 8 + i}, v{t[1]} offset:{256 * i + 4 * KV_HS}')

    TOFF = (0, 32, 48)

    def reads_q(m):
        f = fr[m & 1]
        n = 10 + (m >> 1)
        lst = []
        for o in range(2):
            b0 = f + 20 * o
            lst += [a_read(b0 + 4 * tr, m, o, tr) for tr in range(2)]
            for tc in range(3):
                for j in range(2):
                    lst.append(f'ds_read_b64_tr_b16 {R("v", b0 + 8 + 4 * tc + 2 * j, 2)}, v{vQ + o} offset:{(n % 3) * 20480 + (m & 1) * 10240 + 1280 * j + TOFF[tc]}')
        return lst

    def mf_q(m):
        f = fr[m & 1]
        lst = []
        for o in range(2):
            b0 = f + 20 * o
            if o == 0:
                for tc in range(3):
                    d = qcs + 4 * tc
                    lst.append(f'{M16} {R("v", d)}, {R("v", b0 + 8 + 4 * tc)}, {ones}, {"0" if m == 0 else R("v", d)}')
            for tc in range(3):
                for tr in range(2):
                    d = qacc + 4 * (tr * 3 + tc)
                    lst.append(f'{M16} {R("v", d)}, {R("v", b0 + 8 + 4 * tc)}, {R("v", b0 + 4 * tr)}, {"0" if m == 0 and o == 0 else R("v", d)}')
        return lst
    for i in range(7):
        a(f's_waitcnt lgkmcnt({12 - 2 * i})')
        a(f'v_add_f32 v{kt + i}, v{kt + i}, v{kt + 8 + i}')
        if i == 6:
            a('s_mov_b32 exec_hi, 0xf')
        a(f'buffer_atomic_add_f32 v{kt + i}, v{t[5]}, {WS}, s{sT1} offen offset:{256 * i}', tag='kva')
    a('s_mov_b64 exec, -1')
    for x in reads_q(0):
        a(x)
    qcarry = []
    if R2POS == 2:
        for g in r2g:
            emit(g)
    elif R2POS >= 3:
        qcarry = list(r2g)
    lap('AF')
    p2s = [f's_and_b32 s{sT0}, s2, 7', f's_lshr_b32 s{sT1}, s2, 3', f's_and_b32 s{sJ}, s{sT1}, 15', f's_lshr_b32 s{sT1}, s{sT1}, 4',
           f's_lshl_b32 s{sC}, s{sT0}, 1', f's_add_u32 s{sC}, s{sC}, s{sT1}', f's_and_b32 s{sCg}, s{sJ}, 7', f's_lshr_b32 s{sT1}, s{sJ}, 3',
           f's_lshl_b32 s{sRb}, s{sC}, 1', f's_add_u32 s{sRb}, s{sRb}, s{sT1}']
    sub = Asm()
    cg_blocks(sub, sCg, sPb, sSb, sT0)
    p2s += [i.text for i in sub.items]
    p2s += [f's_lshl_b32 s{sT0}, s{sRb}, 2', f's_add_u32 s{sT0}, s{sT0}, s{sWv}', f's_mul_i32 s{sT1}, s{sT0}, {16 * 1280}',
            f's_lshl_b32 s{sOa}, s{sPb}, 6', f's_add_u32 s{sOa}, s{sOa}, s{sT1}', f's_lshr_b32 s{sT2}, s{sSb}, 1',
            f's_lshl_b32 s{sT2}, s{sT2}, 6', f's_and_b32 s{sT3}, s{sSb}, 1', f's_lshl_b32 s{sT3}, s{sT3}, 3',
            f's_add_u32 s{sT2}, s{sT2}, s{sT3}', f's_add_u32 s{sOb}, s{sT2}, s{sT1}']
    for x in p2s:
        a(x)
    srd(a, sX, P_X, 0, S * D * 2)
    if REARLY:
        srd(a, sO, P_OUT, 0, S * D * 2)
    aWO = 0
    sWo = sM0
    a(f's_mul_i32 s{sWo}, s{sCg}, 102400')
    a(f's_mul_i32 s{sT2}, s{sWv}, 25600')
    a(f's_add_u32 s{sWo}, s{sWo}, s{sT2}')
    a(f's_add_u32 s{sWo}, s{sWo}, {WOP_OFF}')
    sKvc, sW2b = sM0 + 1, sM1 + 1
    a(f's_lshl_b32 s{sKvc}, s{sHg}, 7')
    a(f's_add_u32 s{sKvc}, s{sKvc}, {FL_KV * 128}')
    a(f's_add_u32 s{sKvc}, s{sKvc}, s{sFw}')
    a(f's_mul_i32 s{sW2b}, s{sCg}, {W2G}')
    a(f's_mul_i32 s{sT0}, s{sWv}, 5120')
    a(f's_add_u32 s{sW2b}, s{sW2b}, s{sT0}')
    a(f's_add_u32 s{sW2b}, s{sW2b}, {W2P_OFF}')

    def wo_groups():
        g = []
        for f in range(25):
            pre = [f's_add_u32 s{sWo}, s{sWo}, 4096'] if f and f % 4 == 0 else []
            g.append((pre + [f'buffer_load_dwordx4 {R("a", aWO + 4 * f)}, v{vL16}, {WS}, s{sWo} offen offset:{1024 * (f & 3)} sc1'], 'wo'))
        return g
    W2R = [('v', Z + 20 * i) for i in range(4)] + [('a', 160 + 20 * i) for i in range(4)]
    W2R += [('v', Y), ('v', Y + 20), ('v', Y + 40), ('v', Y), ('v', Z), ('v', Z + 20)]
    W2L = {8: SA, 9: 0, 10: 20480, 11: 40960}

    def w2l_groups(i):
        g = []
        for sg in range(5):
            pre = []
            if sg == 0:
                pre = [f's_add_u32 s{sM2}, s{sW2b}, {20480 * i}', f's_mul_i32 s{sCnt}, s{sWv}, 5120', f's_add_u32 m0, s{sCnt}, {W2L[i]}', 's_nop 0']
            if sg == 4:
                pre = [f's_mul_i32 s{sCnt}, s{sWv}, 5120', f's_add_u32 m0, s{sCnt}, {W2L[i] + 4096}', 's_nop 0']
            v, off = (vL16, 1024 * sg) if sg < 4 else (vL16b, 0)
            g.append((pre + [f'buffer_load_dwordx4 v{v}, {WS}, s{sM2} offen offset:{off} sc1 lds'], f'w2_{i}'))
        return g

    def w2_groups(i):
        f, r = W2R[i]
        g = []
        for sg in range(5):
            pre = []
            if sg == 0:
                pre = [f's_add_u32 s{sM2}, s{sW2b}, {20480 * i}']
                if i == 5:
                    pre += [f's_cmp_ge_u32 s{sWv}, 2', f's_cselect_b32 s{sM2}, 0x{BIG:x}, s{sM2}']
            v, off = (vL16, 1024 * sg) if sg < 4 else (vL16b, 0)
            g.append((pre + [f'buffer_load_dwordx4 {R(f, r + 4 * sg)}, v{v}, {WS}, s{sM2} offen offset:{off} sc1'], f'w2_{i}'))
        return g
    PUB_KV = E('G_PUBKV', 7)
    rq = acc + 16
    RLATE = E('G_RLATE', 0)
    RW_M = 99 if RLATE or REARLY else E('G_RWM', 7)
    wg_ = wo_groups()
    NW2Q = E('G_NW2Q', 0) if REARLY else 0
    for i in range(4, 4 + NW2Q):
        wg_ += w2_groups(i)
    pend += wg_[:E('G_WOQ', 10)]
    wo_late = wg_[E('G_WOQ', 10):]
    carry = []
    for m in range(10):
        a('s_waitcnt lgkmcnt(0)')
        later = list(carry)
        carry = []
        if m & 1:
            n = 10 + (m >> 1)
            if m == PUB_KV and 'kva' in a.vm:
                a.vm_wait('kva')
            if n + 1 <= 12:
                need_tag(f's{n + 1}')
            if m == 7:
                poll_wait(sRpc, 0, 32, nl=8, barrier=False)
            a('s_barrier')
            if m == PUB_KV:
                publish(sKvc, 0, 'kva', barrier=False)
            if 13 <= n + 2 <= 14:
                need_tag(f's{n + 2}')
                later.append([f'v_add_u32 v{t[0]}, s{sMB}, v{vL16}'])
                for j in range(5):
                    (later if j < 3 else carry).append([f'ds_write_b128 v{t[0]}, {R("a", 200 + 20 * (n + 2 - 13) + 4 * j)} offset:{((n + 2) % 3) * 20480 + 1024 * j}'])
        if qcarry:
            later += qcarry[:5]
            qcarry = qcarry[5:]
        if m == 2:
            later.append(([f's_add_u32 s{sRpc}, s{sFw}, {FL_RP * 128}', 's_mov_b64 exec, 0xff',
                           f'buffer_load_dword v{vT[1]}, v{vL128}, {WS}, s{sRpc} offen sc1', 's_mov_b64 exec, -1'], 'poll'))
        if m == RW_M:
            if 'r2' in a.vm:
                a.vm_wait('r2')
            later.append([f's_lshl_b32 s{sT1}, s{sWv}, 10', f's_add_u32 s{sT1}, s{sT1}, {KVA}', f'v_add_u32 v{t[3]}, s{sT1}, v{vL16}'])
            for i in range(4):
                (later if i < 2 else carry).append([f'ds_write_b128 v{t[3]}, {R("a", aRP + 4 * i)} offset:{4096 * i}'])
        if m == RW_M + 2:
            later.append([f'v_add_u32 v{t[3]}, {KVA - RB}, v{vRT}'])
            for i in range(4):
                later.append([f'ds_read_b64_tr_b16 {R("v", rq + 4 * i + 2 * j, 2)}, v{t[3]} offset:{4096 * i + 512 * j}' for j in range(2)])
        if m == RW_M + 3:
            for i in range(4):
                later.append(([f'buffer_store_dwordx4 {R("v", rq + 4 * i)}, v{vL16}, {WS}, s{sTab + 6 + i} offen sc1'], 'rst2'))
            later.append([f'{M16} {R("v", rq + 16)}, {R("v", rq + 4 * i)}, {ones}, {"0" if i == 0 else R("v", rq + 16)}' for i in range(4)])
        if m == RW_M + 4:
            later.append(([f'v_lshlrev_b32 v{t[4]}, 4, v{vG}', f'v_lshl_add_u32 v{t[4]}, v{vR}, 6, v{t[4]}',
                           's_mov_b32 exec_lo, 0x00030003', 's_mov_b32 exec_hi, 0x00030003',
                           f'buffer_store_dwordx4 {R("v", rq + 16)}, v{t[4]}, {WS}, s{sTab + 10} offen sc1', 's_mov_b64 exec, -1'], 'rst2'))
        if m == 9:
            cw = [f's_mul_i32 s{sT1}, s{sRh}, 384', f's_mul_i32 s{sT2}, s{sCh}, 192', f's_add_u32 s{sT1}, s{sT1}, s{sT2}',
                  f's_add_u32 s{sT1}, s{sT1}, {QCS}', f'v_lshl_add_u32 v{t[2]}, v{vG}, 4, s{sT1}',
                  's_mov_b32 exec_lo, 0x00010001', 's_mov_b32 exec_hi, 0x00010001']
            cw += [f'ds_write_b128 v{t[2]}, {R("v", qcs + 4 * tc)} offset:{64 * tc}' for tc in range(3)] + ['s_mov_b64 exec, -1']
        if m >= max(7, E('G_WOM', 7)):
            k = E('G_QPULL', 5)
            while pend and k > 0:
                later.append(pend.pop(0)); k -= 1
        nxt = reads_q(m + 1) if m < 9 else []
        if m == 9:
            ms = mf_q(m)
            sched(ms[:9], nxt, later)
            sched(ms[9:], [], [cw], start=2)
        else:
            sched(mf_q(m), nxt, later, start=E('G_QST', 6), per=2)
        lap('Q')
    lap()
    while pend:
        pull()
    if not REARLY:
        srd(a, sO, P_OUT, 0, S * D * 2)
    a('s_waitcnt lgkmcnt(0)')
    a('s_barrier')
    if RW_M == 7:
        for i in range(4):
            a(f'buffer_store_dwordx4 {R("v", rq + 4 * i)}, v{vL16}, {WS}, s{sTab + 6 + i} offen sc1', tag='rst2')
            a(f'{M16} {R("v", rq + 16)}, {R("v", rq + 4 * i)}, {ones}, {"0" if i == 0 else R("v", rq + 16)}')
    ra, rb_, rc = fr[0], fr[0] + 4, fr[0] + 8
    a(f's_lshl_b32 s{sT1}, s{sRh}, 7')
    a(f's_add_u32 s{sT1}, s{sT1}, {AA}')
    a(f'v_lshl_add_u32 v{t[0]}, v{vR}, 2, s{sT1}')
    a(f's_mul_i32 s{sT1}, s{sCh}, 192')
    a(f's_add_u32 s{sT1}, s{sT1}, {QCS}')
    a(f'v_lshl_add_u32 v{t[1]}, v{vG}, 4, s{sT1}')
    for tr in range(2):
        a(f'ds_read_b32 v{ra + 2 * tr}, v{t[0]} offset:{64 * tr}')
        a(f'ds_read_b32 v{rb_ + 2 * tr}, v{t[0]} offset:{256 + 64 * tr}')
    for tc in range(3):
        a(f'ds_read_b128 {R("v", rc + 4 * tc)}, v{t[1]} offset:{64 * tc}')
        a(f'ds_read_b128 {R("v", rc + 12 + 4 * tc)}, v{t[1]} offset:{384 + 64 * tc}')
    kraw = acc
    a(f'v_lshrrev_b32 v{t[0]}, 2, v{vR}')
    a(f'v_and_b32 v{t[1]}, 3, v{vR}')
    a(f'v_lshlrev_b32 v{t[2]}, 4, v{vR}')
    a(f'v_add_u32 v{t[3]}, 16, v{t[0]}')
    a(f'v_mov_b32 v{t[4]}, 20')
    a(f'v_cmp_eq_u32 vcc, 1, v{t[1]}')
    a(f'v_cndmask_b32 v{t[3]}, v{t[3]}, v{t[4]}, vcc')
    a(f'v_lshlrev_b32 v{t[3]}, 4, v{t[3]}')
    a(f'v_mul_u32_u24 v{t[0]}, 336, v{vG}')
    a(f'v_mov_b32 v{t[4]}, 0x{BIG:x}')
    a(f's_lshl_b32 s{sSB}, s{sHg}, 2')
    a(f's_lshl_b32 s{sT1}, s{sCh}, 1')
    a(f's_add_u32 s{sSB}, s{sSB}, s{sT1}')
    a(f's_mul_i32 s{sSB}, s{sSB}, {KV_HS}')
    a(f's_add_u32 s{sSB}, s{sSB}, {KV_OFF}')
    ka = s1
    for tau in range(2):
        rowok = lambda i: tau == 0 or (i & 3) < 2
        m = lane_mask(lambda g, i: rowok(i))
        a(f'v_add_u32 v{ka + 4 * tau}, v{t[0]}, v{t[2 + tau]}')
        a(f's_mov_b32 vcc_lo, 0x{m & 0xffffffff:x}'); a(f's_mov_b32 vcc_hi, 0x{m >> 32:x}')
        a(f'v_cndmask_b32 v{ka + 4 * tau}, v{t[4]}, v{ka + 4 * tau}, vcc')
        for gsel in range(2):
            m = lane_mask(lambda g, i: rowok(i) and g == gsel)
            a(f's_mov_b32 vcc_lo, 0x{m & 0xffffffff:x}'); a(f's_mov_b32 vcc_hi, 0x{m >> 32:x}')
            a(f'v_cndmask_b32 v{ka + 4 * tau + 1 + gsel}, v{t[4]}, v{t[2 + tau]}, vcc')
    a('s_waitcnt lgkmcnt(0)')
    for k in range(6):
        a(f'v_pk_add_f32 {R("v", rc + 2 * k, 2)}, {R("v", rc + 2 * k, 2)}, {R("v", rc + 12 + 2 * k, 2)}')
    pq = cs
    chains = []
    for tr in range(2):
        for tc in range(3):
            for h in range(2):
                d = qacc + 4 * (tr * 3 + tc) + 2 * h
                w = fr[1] + 6 * (len(chains) % 4)
                c = [f'v_pk_mul_f32 {R("v", w, 2)}, {R("v", rc + 4 * tc + 2 * h, 2)}, {R("v", rb_ + 2 * tr, 2)} op_sel_hi:[1,0]',
                     f'v_pk_fma_f32 {R("v", d, 2)}, {R("v", d, 2)}, {R("v", ra + 2 * tr, 2)}, {R("v", w, 2)} op_sel_hi:[1,0,1]']
                c += phi_chain(d, w + 2, w + 4)
                c.append(f'v_cvt_pk_bf16_f32 v{pq + 8 * tr + 2 * tc + h}, v{w + 2}, v{w + 3}')
                chains.append(c)
    if RW_M == 7:
        for x in [f'v_lshlrev_b32 v{t[4]}, 4, v{vG}', f'v_lshl_add_u32 v{t[4]}, v{vR}, 6, v{t[4]}',
                  's_mov_b32 exec_lo, 0x00030003', 's_mov_b32 exec_hi, 0x00030003']:
            a(x)
        a(f'buffer_store_dwordx4 {R("v", rq + 16)}, v{t[4]}, {WS}, s{sTab + 10} offen sc1', tag='rst2')
        a('s_mov_b64 exec, -1')
    weave(chains[:8], 4)
    poll_issue(sKvc, 0)
    weave(chains[8:], 4)
    lap('F')
    if 'rst2' in a.vm:
        a.vm_wait('rst2')
    if RLATE:
        if 'r2' in a.vm:
            a.vm_wait('r2')
        a(f's_lshl_b32 s{sT1}, s{sWv}, 10')
        a(f's_add_u32 s{sT1}, s{sT1}, {RB}')
        a(f'v_add_u32 v{t[0]}, s{sT1}, v{vL16}')
        for i in range(4):
            a(f'ds_write_b128 v{t[0]}, {R("a", aRP + 4 * i)} offset:{4096 * i}')
        a('s_waitcnt lgkmcnt(0)')
    lap('F')
    poll_wait(sKvc, 0, 32)
    lap('AF')
    for tau in range(2):
        b = kraw + 8 * tau
        a(f'buffer_load_dwordx4 {R("v", b)}, v{ka + 4 * tau}, {WS}, s{sSB} offen sc1', tag='kvl')
        a(f'buffer_load_dwordx4 {R("v", b + 4)}, v{ka + 4 * tau + 1}, {WS}, s{sSB} offen offset:{4 * 336} sc1', tag='kvl')
        b = kraw + 16 + 8 * tau
        a(f'buffer_load_dwordx4 {R("v", b)}, v{ka + 4 * tau + 2}, {WS}, s{sSB} offen offset:{KV_HS} sc1', tag='kvl')
        a(f'buffer_load_dwordx4 {R("v", b + 4)}, v{ka + 4 * tau}, {WS}, s{sSB} offen offset:{KV_HS + 336} sc1', tag='kvl')
    if RLATE:
        rq = qacc
        for i in range(4):
            for j in range(2):
                a(f'ds_read_b64_tr_b16 {R("v", rq + 4 * i + 2 * j, 2)}, v{vRT} offset:{4096 * i + 512 * j}')
    elif not REARLY:
        a(f's_and_b32 s{sT1}, s2, 7')
        a(f's_lshl_b32 s{sT1}, s{sT1}, 7')
        a(f's_add_u32 s{sT1}, s{sT1}, s{sRpc}')
        publish(sT1, FL_RP2 - FL_RP, 'rst2', barrier=False)
    if E('G_MAP3', 1):
        a(f's_and_b32 s{sT1}, s2, 7')
        a(f's_lshr_b32 s{sT2}, s2, 3')
        a(f's_lshr_b32 s{sC3}, s{sT1}, 1')
        a(f's_lshl_b32 s{sC3}, s{sC3}, 2')
        a(f's_lshr_b32 s{sT3}, s{sT2}, 3')
        a(f's_add_u32 s{sC3}, s{sC3}, s{sT3}')
        a(f's_and_b32 s{sT1}, s{sT1}, 1')
        a(f's_lshl_b32 s{sT1}, s{sT1}, 3')
        a(f's_and_b32 s{sT2}, s{sT2}, 7')
        a(f's_add_u32 s{sJ}, s{sT1}, s{sT2}')
    else:
        a(f's_mov_b32 s{sC3}, s{sC}')
    a(f's_lshl_b32 s{sF3}, s{sC3}, 9')
    a(f's_add_u32 s{sF3}, s{sF3}, s{sFw}')
    a(f's_lshl_b32 s{sW1m}, s{sWv}, 12')
    a(f's_mul_i32 s{sW1}, s{sJ}, 143360')
    a(f's_add_u32 s{sW1}, s{sW1}, s{sW1m}')
    a(f's_add_u32 s{sW1}, s{sW1}, {W1P_OFF}')

    sW1s = sTab + 2
    a(f's_and_b32 s{sT1}, s{sJ}, 7')
    a(f's_cmp_ge_u32 s{sT1}, 6')
    a(f's_cselect_b32 s{sW1s}, 0x{BIG:x}, s{sW1}')

    HROT = E('G_HROT', 0)
    sRo = sTab + 3
    a(f's_and_b32 s{sRo}, s{sJ}, {1 if HROT else 0}')
    a(f's_mul_i32 s{sRo}, s{sRo}, 20480')

    def w1_groups(lo, hi, tag):
        g = []
        segs = []
        for base in (0, 61440, 102400):
            segs += [(base, base + 20480, sW1, 1), (base + 20480, base + 40960, sW1, -1)]
        segs.insert(2, (40960, 61440, sW1s, 0))
        for lo_, hi_, sb, sgn in segs:
            off, hi_ = max(lo, lo_), min(hi, hi_)
            rot = {1: [f's_add_u32 s{sM2 + 1}, s{sM2 + 1}, s{sRo}'], -1: [f's_sub_u32 s{sM2 + 1}, s{sM2 + 1}, s{sRo}'], 0: []}[sgn]
            while sgn and off + 16384 <= hi_:
                for i in range(4):
                    pre = [f's_add_u32 m0, s{sW1m}, {off}', f's_add_u32 s{sM2 + 1}, s{sb}, {off}'] + rot if i == 0 else []
                    g.append((pre + [f'buffer_load_dwordx4 v{vL16}, {WS}, s{sM2 + 1} offen offset:{1024 * i} sc1 lds'], tag))
                off += 16384
            while off < hi_:
                pre = [f's_lshl_b32 s{sCnt}, s{sWv}, 10', f's_add_u32 m0, s{sCnt}, {off}', f's_sub_u32 s{sM2 + 1}, s{sb}, s{sW1m}',
                       f's_add_u32 s{sM2 + 1}, s{sM2 + 1}, s{sCnt}', f's_add_u32 s{sM2 + 1}, s{sM2 + 1}, {off}'] + rot
                if sgn == 0:
                    b0 = (off - 40960) // 1024
                    pre += [f's_lshr_b32 s{sCnt}, s{sRo}, 1']
                    if b0 + 3 < 10:
                        pre += [f's_add_u32 s{sM2 + 1}, s{sM2 + 1}, s{sCnt}']
                    elif b0 >= 10:
                        pre += [f's_sub_u32 s{sM2 + 1}, s{sM2 + 1}, s{sCnt}']
                    else:
                        pre += [f's_add_u32 s{sM2 + 1}, s{sM2 + 1}, s{sCnt}', f's_cmp_ge_u32 s{sWv}, {10 - b0}',
                                f's_cselect_b32 s{sCnt}, s{sRo}, 0', f's_sub_u32 s{sM2 + 1}, s{sM2 + 1}, s{sCnt}']
                g.append((pre + [f'buffer_load_dwordx4 v{vL16}, {WS}, s{sM2 + 1} offen sc1 lds'], tag))
                off += 4096
        return g
    for g in wo_late[:E('G_WOK', 0)]:
        emit(g)
    wo_late = wo_late[E('G_WOK', 0):]
    W1Q = E('G_W1Q', 40) * 1024 if REARLY else 0
    for g in w1_groups(0, W1Q, 'w1q'):
        emit(g)
    a(f's_mul_i32 s{sT1}, s{sRh}, {32 * 160}')
    a(f's_mul_i32 s{sT2}, s{sCh}, 80')
    a(f's_add_u32 s{sT1}, s{sT1}, s{sT2}')
    a(f's_add_u32 s{sT1}, s{sT1}, {KVA}')
    a(f'v_mul_u32_u24 v{t[2]}, 160, v{vR}')
    a(f'v_mad_u32_u24 v{t[3]}, v{vG}, 10, v{t[2]}')
    a(f'v_add_u32 v{t[3]}, s{sT1}, v{t[3]}')
    a(f's_mul_i32 s{sT1}, s{sWv}, {16 * 160}')
    a(f's_add_u32 s{sT1}, s{sT1}, {KVA}')
    a(f'v_lshl_add_u32 v{t[2]}, v{vG}, 4, v{t[2]}')
    a(f'v_add_u32 v{t[2]}, s{sT1}, v{t[2]}')
    vOd = s2
    a(f's_mul_i32 s{sT1}, s{sHg}, 10')
    for u in range(3):
        a(f's_add_u32 s{sT2}, s{sT1}, {4 * u}')
        a(f'v_add_u32 v{t[5]}, s{sT2}, v{vG}')
        a(f'v_lshrrev_b32 v{vOd + u}, 2, v{t[5]}')
        a(f'v_lshlrev_b32 v{vOd + u}, 12, v{vOd + u}')
        a(f'v_and_b32 v{t[5]}, 3, v{t[5]}')
        a(f'v_lshl_add_u32 v{vOd + u}, v{t[5]}, 8, v{vOd + u}')
        a(f'v_lshl_add_u32 v{vOd + u}, v{vR}, 4, v{vOd + u}')
    a(f's_mul_i32 s{sT0}, s{sR1}, {20 * 4096}')
    a(f's_lshl_b32 s{sT1}, s{sWv}, 10')
    a(f's_add_u32 s{sT0}, s{sT0}, s{sT1}')
    if OP_OFF:
        a(f's_add_u32 s{sT0}, s{sT0}, {OP_OFF}')
    if RLATE:
        a('s_waitcnt lgkmcnt(0)')
        for i in range(4):
            a(f'{M16} {R("v", rq + 16)}, {R("v", rq + 4 * i)}, {ones}, {"0" if i == 0 else R("v", rq + 16)}')
    a.vm_wait('kvl')
    lap('F')
    kT = fr[0]
    for k in range(16):
        a(f'v_cvt_pk_bf16_f32 v{kT + k}, v{kraw + 2 * k}, v{kraw + 2 * k + 1}')
    od = acc
    for tr in range(2):
        for hd in range(2):
            for tau in range(2):
                d = od + 16 * tr + 8 * hd + 4 * tau
                a(f'{M16} {R("v", d)}, {R("v", kT + 8 * hd + 4 * tau)}, {R("v", pq + 8 * tr + 2 * hd)}, 0')
    chains = []
    for tr in range(2):
        for hd in range(2):
            d = od + 16 * tr + 8 * hd
            c = [f'v_add_f32 v{d + 6}, 0x358637bd, v{d + 5}', f'v_rcp_f32 v{d + 6}, v{d + 6}']
            c += [f'v_mul_f32 v{d + k}, v{d + k}, v{d + 6}' for k in range(5)]
            c += [f'v_cvt_pk_bf16_f32 v{d}, v{d}, v{d + 1}', f'v_cvt_pk_bf16_f32 v{d + 2}, v{d + 2}, v{d + 3}',
                  f'v_cvt_pk_bf16_f32 v{d + 4}, v{d + 4}, v{d + 4}']
            o = 2560 * tr + 40 * hd
            c += [f'ds_write_b16 v{t[3]}, v{d} offset:{o}', f'ds_write_b16_d16_hi v{t[3]}, v{d} offset:{o + 2}',
                  f'ds_write_b16 v{t[3]}, v{d + 2} offset:{o + 4}', f'ds_write_b16_d16_hi v{t[3]}, v{d + 2} offset:{o + 6}',
                  f'ds_write_b16 v{t[3]}, v{d + 4} offset:{o + 8}']
            chains.append(c)
    weave(chains, 4)
    a('s_waitcnt lgkmcnt(0)')
    a('s_barrier')
    ob = fr[1]
    for u in range(3):
        a(f'ds_read_b128 {R("v", ob + 4 * u)}, v{t[2]} offset:{64 * u}')
    a('s_waitcnt lgkmcnt(0)')
    for u in range(3):
        if u == 2:
            a('s_mov_b32 exec_hi, 0')
        a(f'buffer_store_dwordx4 {R("v", ob + 4 * u)}, v{vOd + u}, {WS}, s{sT0} offen sc1', tag='ost')
    a('s_mov_b64 exec, -1')
    if RLATE:
        for i in range(4):
            a(f'buffer_store_dwordx4 {R("v", rq + 4 * i)}, v{vL16}, {WS}, s{sTab + 6 + i} offen sc1', tag='rst2')
        a(f'v_lshlrev_b32 v{t[4]}, 4, v{vG}')
        a(f'v_lshl_add_u32 v{t[4]}, v{vR}, 6, v{t[4]}')
        a('s_mov_b32 exec_lo, 0x00030003'); a('s_mov_b32 exec_hi, 0x00030003')
        a(f'buffer_store_dwordx4 {R("v", rq + 16)}, v{t[4]}, {WS}, s{sTab + 10} offen sc1', tag='rst2')
        a('s_mov_b64 exec, -1')
    lap()
    vXo = hres + 10
    vL8 = hres + 11
    a(f'v_lshlrev_b32 v{vL8}, 3, v{vL}')
    a(f'v_mul_u32_u24 v{vXo}, 1280, v{vR}')
    a(f'v_lshl_add_u32 v{vXo}, v{vG}, 4, v{vXo}')
    sx = f's[{sX}:{sX + 3}]'
    mid = [([f'buffer_load_dwordx4 {R("v", hres)}, v{vXo}, {sx}, s{sOa} offen'], 'x'),
           ([f'buffer_load_dwordx4 {R("v", hres + 4)}, v{vXo}, {sx}, s{sOa} offen offset:64'], 'x'),
           ([f'buffer_load_dwordx2 {R("v", hres + 8, 2)}, v{vXo}, {sx}, s{sOb} offen'], 'x')]
    xg = []
    if E('G_XLATE', 0):
        xg, mid = mid, []
    mid += wo_late
    nb4 = min(len(mid), E('G_NB4', 8))
    for g in mid[:nb4]:
        emit(g)
    a(f's_lshl_b32 s{sT1}, s{sR1}, 7')
    a(f's_add_u32 s{sT1}, s{sT1}, {FL_O * 128}')
    a(f's_add_u32 s{sT1}, s{sT1}, s{sFw}')
    if not RLATE and not REARLY:
        poll_issue(sRpc, FL_RP2 - FL_RP, 8)
    publish(sT1, 0, 'ost')
    lap()
    if RLATE:
        a(f's_and_b32 s{sT1}, s2, 7')
        a(f's_lshl_b32 s{sT1}, s{sT1}, 7')
        a(f's_add_u32 s{sT1}, s{sT1}, s{sRpc}')
        publish(sT1, FL_RP2 - FL_RP, 'rst2')
    for g in mid[nb4:]:
        emit(g)
    if not RLATE and not REARLY:
        poll_wait(sRpc, FL_RP2 - FL_RP, 32, nl=8)
    W1E = 0 if RLATE else E('G_W1E', 40) * 1024
    for g in w1_groups(W1Q, W1E, 'w1e'):
        emit(g)
    a(f's_lshl_b32 s{sT1}, s{sRb}, 7')
    a(f's_add_u32 s{sT1}, s{sT1}, {FL_O * 128}')
    a(f's_add_u32 s{sT1}, s{sT1}, s{sFw}')
    poll_issue(sT1, 0)
    a(f's_lshl_b32 s{sFc}, s{sC}, 9')
    a(f's_add_u32 s{sFc}, s{sFc}, s{sFw}')
    vR4 = [Y + 68, Y + 69, Y + 70, Y + 71]
    vAo = vR4
    vRW = Y + 60
    for i in range(4):
        a(f's_add_u32 s{sT2}, s{sWv}, {1 + i}')
        a(f's_and_b32 s{sT2}, s{sT2}, 3')
        a(f's_lshl_b32 s{sT3}, s{sT2}, 10')
        a(f'v_add_u32 v{vAo[i]}, s{sT3}, v{vL16}')
        if i < 3:
            a(f's_mul_i32 s{sT2}, s{sT2}, 15360')
            a(f's_add_u32 s{sT2}, s{sT2}, {P2L + 5120 * i}')
            a(f'v_add_u32 v{vRW + i}, s{sT2}, v{vL16}')
    a(f's_mul_i32 s{sA}, s{sRb}, {20 * 4096}')
    a(f's_mul_i32 s{sT2}, s{sWv}, {5 * 4096}')
    a(f's_add_u32 s{sA}, s{sA}, s{sT2}')
    if OP_OFF:
        a(f's_add_u32 s{sA}, s{sA}, {OP_OFF}')
    poll_wait(sT1, 0, 8)
    lap()
    acc = X
    for i in range(4):
        for m in range(5):
            a(f's_add_u32 s{sT2}, s{sA}, {4096 * m}')
            a(f'buffer_load_dwordx4 {R("v", Z + 20 * i + 4 * m)}, v{vAo[i]}, {WS}, s{sT2} offen sc1', tag=f'o{i}_{m}')
    W1M = E('G_W1M', 100) * 1024
    pend += xg
    p2pf = w1_groups(W1E, W1M, 'w1m')
    w2next = [4, 5, 6, 7, 0, 1, 2, 3][NW2Q:]
    assert NW2Q + E('G_NW2P2', 4) <= 4
    for i in w2next[:E('G_NW2P2', 4)]:
        p2pf += w2_groups(i)
    if RLATE:
        poll_issue(sRpc, FL_RP2 - FL_RP, 8)
    else:
        pend += p2pf
    w2next = w2next[E('G_NW2P2', 4):]
    w2next.sort()

    def send(i, base):
        return [f'ds_write_b128 v{base + i}, {R("v", acc + 20 * i + 4 * sg)} offset:{1024 * sg}' for sg in range(5)]
    sq = []
    for i in range(4):
        if RLATE and i == E('G_RP2AT', 3):
            poll_wait(sRpc, FL_RP2 - FL_RP, 32, nl=8)
            pend += p2pf
        k = 0
        for m in range(5):
            a.vm_wait(f'o{i}_{m}')
            for sg in range(5):
                d = acc + 20 * i + 4 * sg
                a(f'{M16} {R("v", d)}, {R("a", aWO + 4 * (5 * m + sg))}, {R("v", Z + 20 * i + 4 * m)}, {"0" if m == 0 else R("v", d)}')
                k += 1
                if sq and k >= 4 and k % 3 == 0:
                    a(sq.pop(0))
                if k % E('G_P2PULL', 4) == 2:
                    pull()
        assert not sq
        if i < 3:
            sq = send(i, vRW)
    while pend:
        pull()
    lap()

    def reduce_own(base):
        a('s_waitcnt lgkmcnt(0)')
        a('s_barrier')
        a(f's_mul_i32 s{sT0}, s{sWv}, 15360')
        a(f's_add_u32 s{sT0}, s{sT0}, {base}')
        a(f'v_add_u32 v{vT[0]}, s{sT0}, v{vL16}')
        for k in range(15):
            a(f'ds_read_b128 {R("v", acc + 4 * k)}, v{vT[0]} offset:{1024 * k}')
        own = acc + 60
        for p in range(3):
            a(f's_waitcnt lgkmcnt({10 - 5 * p})')
            for k in range(10):
                a(f'v_pk_add_f32 {R("v", own + 2 * k, 2)}, {R("v", own + 2 * k, 2)}, {R("v", acc + 20 * p + 2 * k, 2)}')
        return own

    def residual(own, out, tmp):
        chains = []
        for i in range(10):
            q = tmp + 6 * (i % 4)
            chains.append([f'v_cvt_pk_bf16_f32 v{q + 4}, v{own + 2 * i}, v{own + 2 * i + 1}',
                           f'v_lshlrev_b32 v{q + 2}, 16, v{hres + i}',
                           f'v_and_b32 v{q + 3}, 0xffff0000, v{hres + i}',
                           f'v_lshlrev_b32 v{q}, 16, v{q + 4}',
                           f'v_and_b32 v{q + 1}, 0xffff0000, v{q + 4}',
                           f'v_pk_add_f32 {R("v", q, 2)}, {R("v", q, 2)}, {R("v", q + 2, 2)}',
                           f'v_cvt_pk_bf16_f32 v{out + i}, v{q}, v{q + 1}'])
        weave(chains, 4)

    a(f's_lshl_b32 s{sT3}, s{sRb}, 2')
    a(f's_add_u32 s{sT3}, s{sT3}, s{sWv}')
    a(f's_lshr_b32 s{sT1}, s{sT3}, 1')
    a(f's_mul_i32 s{sT1}, s{sT1}, 40960')
    a(f's_and_b32 s{sT2}, s{sT3}, 1')
    a(f's_lshl_b32 s{sT2}, s{sT2}, 10')
    a(f's_add_u32 s{sT1}, s{sT1}, s{sT2}')
    a(f's_add_u32 s{sT1}, s{sT1}, {HP_OFF}')
    a(f's_lshl_b32 s{sA}, s{sPb}, 11')
    a(f's_add_u32 s{sA}, s{sA}, s{sT1}')
    a(f's_lshr_b32 s{sB}, s{sSb}, 1')
    a(f's_lshl_b32 s{sB}, s{sB}, 11')
    a(f's_and_b32 s{sT2}, s{sSb}, 1')
    a(f's_lshl_b32 s{sT2}, s{sT2}, 9')
    a(f's_add_u32 s{sB}, s{sB}, s{sT2}')
    a(f's_add_u32 s{sB}, s{sB}, s{sT1}')
    a(f's_lshl_b32 s{sT1}, s{sT3}, 10')
    a(f's_lshl_b32 s{sT2}, s{sCg}, 7')
    a(f's_add_u32 s{sT1}, s{sT1}, s{sT2}')
    a(f's_add_u32 s{sT1}, s{sT1}, {ST_OFF}')
    own = reduce_own(P2L)
    tmpk = Y
    if 'x' in a.vm:
        a.vm_wait('x')
    residual(own, hres, tmpk)
    a(f'buffer_store_dwordx4 {R("v", hres)}, v{vL16}, {WS}, s{sA} offen sc1', tag='hst')
    a(f'buffer_store_dwordx4 {R("v", hres + 4)}, v{vL16}, {WS}, s{sA} offen offset:2048 sc1', tag='hst')
    a(f'buffer_store_dwordx2 {R("v", hres + 8, 2)}, v{vL8}, {WS}, s{sB} offen sc1', tag='hst')
    hf_ = acc
    for i in range(10):
        a(f'v_lshlrev_b32 v{hf_ + 2 * i}, 16, v{hres + i}')
        a(f'v_and_b32 v{hf_ + 2 * i + 1}, 0xffff0000, v{hres + i}')
    sm = tmpk
    a(f'v_pk_add_f32 {R("v", sm + 2, 2)}, {R("v", hf_, 2)}, {R("v", hf_ + 2, 2)}')
    a(f'v_pk_mul_f32 {R("v", sm + 4, 2)}, {R("v", hf_, 2)}, {R("v", hf_, 2)}')
    a(f'v_pk_mul_f32 {R("v", sm + 6, 2)}, {R("v", hf_ + 2, 2)}, {R("v", hf_ + 2, 2)}')
    for i in range(2, 10):
        d = sm + 4 + 2 * (i & 1)
        a(f'v_pk_add_f32 {R("v", sm + 2, 2)}, {R("v", sm + 2, 2)}, {R("v", hf_ + 2 * i, 2)}')
        a(f'v_pk_fma_f32 {R("v", d, 2)}, {R("v", hf_ + 2 * i, 2)}, {R("v", hf_ + 2 * i, 2)}, {R("v", d, 2)}')
    a(f'v_pk_add_f32 {R("v", sm + 4, 2)}, {R("v", sm + 4, 2)}, {R("v", sm + 6, 2)}')
    a(f'v_add_f32 v{sm}, v{sm + 2}, v{sm + 3}')
    a(f'v_add_f32 v{sm + 1}, v{sm + 4}, v{sm + 5}')
    s1_, s2_ = Asm(), Asm()
    xsum_g(s1_, sm, sm + 2)
    xsum_g(s2_, sm + 1, sm + 3)
    for x, y in zip(s1_.items, s2_.items):
        a(x.text); a(y.text)
    a('s_mov_b64 exec, 0xffff')
    a(f'buffer_store_dwordx2 {R("v", sm, 2)}, v{vL8}, {WS}, s{sT1} offen sc1', tag='hst')
    a('s_mov_b64 exec, -1')
    lap('B')
    acc3, otmp = X, X + 56
    fb = [Y, Y + 16]
    vCs, vSt, ab = Y + 32, Y + 60, Y + 60
    csg = []
    for sg in range(7):
        pre = []
        if sg == 0:
            pre = [f'v_and_b32 v{vT[0]}, 7, v{vL}', f'v_cmp_gt_u32 vcc, 5, v{vT[0]}', f'v_mul_u32_u24 v{vT[0]}, {CS1P}, v{vT[0]}',
                   f'v_lshl_add_u32 v{vT[0]}, v{vG}, 4, v{vT[0]}', f'v_mov_b32 v{vT[2]}, 0x{BIG:x}', f'v_cndmask_b32 v{vT[0]}, v{vT[2]}, v{vT[0]}, vcc',
                   f's_mul_i32 s{sT0}, s{sJ}, 896', f's_add_u32 s{sT0}, s{sT0}, {CS1_OFF}']
        if sg == 6:
            pre = [f's_cmp_eq_u32 s{sW1s}, 0x{BIG:x}', f's_cselect_b32 s{sT0}, s{sW1s}, s{sT0}']
        csg.append((pre + [f'buffer_load_dwordx4 {R("v", vCs + 4 * sg)}, v{vT[0]}, {WS}, s{sT0} offen offset:{128 * sg} sc1'], 'cs'))
    for g in csg + w1_groups(W1M, 102400, 'w1m'):
        emit(g)
    publish(sFc, 0, 'hst')
    lap()
    mid = w1_groups(102400, 143360, 'w1l')
    NW2S = E('G_NW2S', 2)
    for i in w2next[:NW2S]:
        mid += w2_groups(i)
    w2next = w2next[NW2S:]
    for g in mid:
        emit(g)
    poll_issue(sF3, 0)
    a(f's_lshl_b32 s{sT0}, s{sC3}, 2')
    a(f's_add_u32 s{sT0}, s{sT0}, s{sWv}')
    a(f's_mul_i32 s{sA}, s{sT0}, 40960')
    a(f's_add_u32 s{sA}, s{sA}, {HP_OFF}')
    a(f's_add_u32 s{sA}, s{sA}, s{sRo}')
    a(f's_lshl_b32 s{sT0}, s{sT0}, 11')
    a(f's_add_u32 s{sT0}, s{sT0}, {ST_OFF}')
    vBa = [vL16, vT[2], hres + 10]
    a(f'v_add_u32 v{vT[2]}, {65536}, v{vL16}')
    a(f'v_add_u32 v{hres + 10}, {131072}, v{vL16}')
    a(f's_lshl_b32 s{sT2}, s{sC3}, 1')
    a(f's_lshr_b32 s{sT3}, s{sWv}, 1')
    a(f's_add_u32 s{sT2}, s{sT2}, s{sT3}')
    a(f's_mul_i32 s{sH}, s{sT2}, {H1G}')
    a(f's_and_b32 s{sT3}, s{sWv}, 1')
    a(f's_lshl_b32 s{sT3}, s{sT3}, 11')
    a(f's_add_u32 s{sH}, s{sH}, s{sT3}')
    a(f's_add_u32 s{sH}, s{sH}, {H1P_OFF}')
    a(f's_lshr_b32 s{sHs}, s{sJ}, 3')
    a(f's_mul_i32 s{sHs}, s{sHs}, 3')
    a(f's_and_b32 s{sT2}, s{sJ}, 7')
    a(f's_lshr_b32 s{sT3}, s{sT2}, 1')
    a(f's_add_u32 s{sHs}, s{sHs}, s{sT3}')
    a(f's_lshl_b32 s{sHs}, s{sHs}, 12')
    a(f's_and_b32 s{sT3}, s{sJ}, 1')
    a(f's_lshl_b32 s{sT3}, s{sT3}, 9')
    a(f's_add_u32 s{sHs}, s{sHs}, s{sT3}')
    a(f's_add_u32 s{sHs}, s{sHs}, s{sH}')
    a(f's_add_u32 s{sHs}, s{sHs}, {16 * 4096}')
    a(f's_cmp_ge_u32 s{sT2}, 6')
    a(f's_cselect_b32 s{sHs}, 0x{BIG:x}, s{sHs}')
    a(f's_lshl_b32 s{sT2}, s{sJ}, 12')
    a(f's_add_u32 s{sH}, s{sH}, s{sT2}')
    a(f's_mul_i32 s{sA4}, s{sRb}, {H1G}')
    a(f's_lshl_b32 s{sT2}, s{sWv}, 12')
    a(f's_add_u32 s{sA4}, s{sA4}, s{sT2}')
    a(f's_add_u32 s{sA4}, s{sA4}, {H1P_OFF}')
    a.vm_wait('w1l')
    poll_wait(sF3, 0, 16)
    lap()

    def a3_groups():
        g = []
        for q in range(4):
            g.append(([f'buffer_load_dwordx2 {R("v", vSt + 2 * q, 2)}, v{vL8}, {WS}, s{sT0} offen offset:{512 * q} sc1'], 'st'))
        for f in range(40):
            pre = [f's_add_u32 s{sA}, s{sA}, 4096'] if f and f % 4 == 0 else []
            if f == 20:
                pre += [f's_sub_u32 s{sA}, s{sA}, s{sRo}', f's_sub_u32 s{sA}, s{sA}, s{sRo}']
            if (f // 2) % 5 == 2:
                g.append((pre + [f'buffer_load_dwordx2 {R("a", 4 * f, 2)}, v{vL8}, {WS}, s{sA} offen offset:{1024 * (f & 3)} sc1',
                                 f'buffer_load_dwordx2 {R("a", 4 * f + 2, 2)}, v{vL8}, {WS}, s{sA} offen offset:{1024 * (f & 3) + 512} sc1'], f'h{f // 2}'))
            else:
                g.append((pre + [f'buffer_load_dwordx4 {R("a", 4 * f)}, v{vL16}, {WS}, s{sA} offen offset:{1024 * (f & 3)} sc1'], f'h{f // 2}'))
        return g
    pend += a3_groups()
    for i in w2next:
        pend += w2_groups(i)
    pend += w2l_groups(8)
    pull(E('G_H0', 18))
    PART = {0: ([0, 1, 6], 0, 3072), 1: ([2, 3], 61440, 2048), 2: ([4, 5], 102400, 2048)}

    def steps(part):
        sl = PART[part][0]
        if part == 0:
            return [[(ks, q, s_) for q, s_ in enumerate(sl)] for ks in range(20)]
        return [[(ks, q, s_) for ks in (2 * m, 2 * m + 1) for q, s_ in enumerate(sl)] for m in range(10)]
    allsteps = [(p, st) for p in range(3) for st in steps(p)]

    def breads(n):
        p, st = allsteps[n]
        f = fb[n & 1]
        out = []
        for k, (ks, q, s_) in enumerate(st):
            o = w1_frag_off(0, ks, s_)
            out.append(f'ds_read_b128 {R("v", f + 4 * k)}, v{vBa[o >> 16]} offset:{o & 0xffff}')
        return out

    def mf3(n):
        p, st = allsteps[n]
        f = fb[n & 1]
        lst = []
        for k, (ks, q, s_) in enumerate(st):
            for t_ in range(2):
                d = acc3 + 28 * t_ + 4 * s_
                c = '0' if ks == 0 else R('v', d)
                lst.append(f'{M16} {R("v", d)}, {R("v", f + 4 * k)}, {R("a", 8 * ks + 4 * t_)}, {c}')
        return lst

    dpp = [f'v_add_f32_dpp v{vCs + r}, v{vCs + r}, v{vCs + r} quad_perm:[1,0,3,2] row_mask:0xf bank_mask:0xf' for r in range(28)]
    dpp += [f'v_add_f32_dpp v{vCs + r}, v{vCs + r}, v{vCs + r} quad_perm:[2,3,0,1] row_mask:0xf bank_mask:0xf' for r in range(28)]
    dpp += [f'v_add_f32_dpp v{vCs + r}, v{vCs + r}, v{vCs + r} row_half_mirror row_mask:0xf bank_mask:0xf' for r in range(28)]
    sub = Asm()
    for t_ in range(2):
        s_ = vSt + 4 * t_
        m, v, x = otmp + 4 * t_ + 2, otmp + 8 + 2 * t_, otmp + 9 + 2 * t_
        sub(f'v_add_f32 v{m}, v{s_}, v{s_ + 2}')
        sub(f'v_add_f32 v{v}, v{s_ + 1}, v{s_ + 3}')
        xsum_g(sub, m, x)
        xsum_g(sub, v, x)
        sub(f'v_mul_f32 v{m}, 0x3acccccd, v{m}')
        sub(f'v_mul_f32 v{v}, 0x3acccccd, v{v}')
        sub(f'v_fma_f32 v{v}, -v{m}, v{m}, v{v}')
        ln_stats(sub, m, v, otmp + 4 * t_)
        sub(f'v_mov_b32 v{ab + 4 * t_}, v{otmp + 4 * t_}')
        sub(f'v_mov_b32 v{ab + 4 * t_ + 1}, v{m}')
    half_n = len(sub.items) // 2
    stl = [None] * len(sub.items)
    stl[0::2] = [i.text for i in sub.items[:half_n]]
    stl[1::2] = [i.text for i in sub.items[half_n:]]

    def epi_tile(t_, sg, ob):
        lst = []
        d = acc3 + 28 * t_ + 4 * sg
        for r in range(4):
            lst.append(f'v_mul_f32 v{d + r}, v{d + r}, v{ab + 4 * t_}')
        for r in range(4):
            lst.append(f'v_fmac_f32 v{d + r}, v{vCs + 4 * sg + r}, v{ab + 4 * t_ + 1}')
        for h in range(2):
            lst.append(f'v_cvt_pk_bf16_f32 v{ob + h}, v{d + 2 * h}, v{d + 2 * h + 1}')
        for h in range(2):
            lst.append(f'v_pk_max_i16 v{ob + h}, v{ob + h}, v{vZero}')
        return lst

    def epi_part(p):
        out = []
        base = otmp + (0, 12, 0)[p]
        if p:
            out.append(f's_add_u32 s{sH}, s{sH}, {(24 if p == 1 else 16) * 4096}')
        for t_ in range(2):
            ob = base + 4 * t_
            out += epi_tile(t_, 2 * p, ob) + epi_tile(t_, 2 * p + 1, ob + 2)
            out.append(('vm', f'buffer_store_dwordx4 {R("v", ob)}, v{vL16}, {WS}, s{sH} offen offset:{1024 * t_} sc1', f'h1_{p}'))
        if p == 0:
            for t_ in range(2):
                ob = base + 8 + 2 * t_
                out += epi_tile(t_, 6, ob)
                out.append(('vm', f'buffer_store_dwordx2 {R("v", ob, 2)}, v{vL8}, {WS}, s{sHs} offen offset:{1024 * t_} sc1', 'h1_0'))
        return out

    AR = [('a', 16 * i) for i in range(10)]
    vTm = Y + 67
    NR_ = len(AR)

    def a4_groups(i):
        f, r = AR[i % NR_]
        g = []
        for t_ in range(4):
            pre = []
            if t_ == 0:
                pre = [f's_add_u32 s{sA}, s{sA4}, {16384 * i}']
                if i == 5:
                    pre += [f's_cmp_ge_u32 s{sWv}, 2', f's_cselect_b32 s{sA}, 0x{BIG:x}, s{sA}']
            if i in (4, 5):
                g.append((pre + [f'v_sub_u32 v{vT[1] if False else vTm}, v{vAo[t_]}, v{vL8}',
                                 f'buffer_load_dwordx2 {R(f, r + 4 * t_, 2)}, v{vTm}, {WS}, s{sA} offen sc1',
                                 f'buffer_load_dwordx2 {R(f, r + 4 * t_ + 2, 2)}, v{vTm}, {WS}, s{sA} offen offset:512 sc1'], f'a{i}'))
            else:
                g.append((pre + [f'buffer_load_dwordx4 {R(f, r + 4 * t_)}, v{vAo[t_]}, {WS}, s{sA} offen sc1'], f'a{i}'))
        return g

    for x in breads(0):
        a(x)
    side = list(dpp)
    PUB_A, POLL_A, CHK_A, PUB_B = E('G_PUBA', 27), E('G_POLLA', 36), E('G_CHKA', 38), E('G_PUBB', 38)
    DENS = E('G_DENS', 3)
    P3K = {0: (6, 7), 1: (4, 7), 2: (7,), 3: (4, 5, 6, 7), 4: (4, 6)}[E('G_P3K', 0)]
    NS_ = len(allsteps)
    nexta = 0
    for n in range(NS_):
        p, st = allsteps[n]
        if p == 0:
            need_tag(f'h{n}')
            if n == 6:
                side += stl
        if n == 20:
            while side:
                a(side.pop(0))
            lap()
            side = epi_part(0)
        if n == 30:
            assert not side
            side = epi_part(1)
        if n % 3 == 0:
            lap('E')
        a('s_waitcnt lgkmcnt(0)')
        if n == 21:
            a('s_barrier')
        nxt = breads(n + 1) if n + 1 < NS_ else []
        ms = mf3(n)
        for k, m in enumerate(ms):
            a(m)
            cnt = 2 if p == 0 else DENS
            if nxt:
                a(nxt.pop(0))
                cnt -= 1
            elif pend and (k >= len(ms) - E('G_P3PULL', 2) if p == 0 else k in P3K):
                pull()
                cnt -= 2
            for _ in range(max(cnt, 0)):
                if side:
                    x = side.pop(0)
                    if isinstance(x, tuple):
                        a(x[1], tag=x[2])
                        if x[2] == 'h1_0' and not side:
                            assert n > 21
                            pend += w2l_groups(9) + w2l_groups(10) + w2l_groups(11)
                    else:
                        a(x)
        if n == PUB_A:
            assert n >= 30 or not side
            lap('C')
            publish(sF3, 1, 'h1_0')
            lap('C')
        if n == POLL_A:
            while pend:
                pull()
            poll_issue(sFc, 1)
        if n == CHK_A:
            lap('C')
            poll_wait(sFc, 1, 16)
            lap('C')
        if n >= CHK_A:
            while nexta < 6 and nexta <= n - 30:
                pend += a4_groups(nexta)
                nexta += 1
        if n == PUB_B:
            assert not side
            publish(sF3, 2, 'h1_1')
    lap()
    ecl = epi_part(2)
    EOV = E('G_EOV', 1)
    k = 0
    while ecl and (not EOV or (pend and k < E('G_EPRE', 24))):
        x = ecl.pop(0)
        if isinstance(x, tuple):
            a(x[1], tag=x[2])
        else:
            a(x)
        k += 1
        if k % 3 == 0:
            pull()
    lap()
    acc4 = X
    PD = E('G_PD', 2)
    vWl = [vT[0], vT[2]]
    a(f's_mul_i32 s{sT0}, s{sWv}, 5120')
    a(f'v_add_u32 v{vWl[0]}, s{sT0}, v{vL16}')
    a(f'v_add_u32 v{vWl[1]}, {SA}, v{vWl[0]}')
    vRW = Y + 60
    vXo = Y + 64
    fin = []
    for i in range(3):
        fin += [f's_add_u32 s{sT0}, s{sWv}, {1 + i}', f's_and_b32 s{sT0}, s{sT0}, 3', f's_mul_i32 s{sT0}, s{sT0}, 15360',
                f's_add_u32 s{sT0}, s{sT0}, {61440 + 5120 * i}', f'v_add_u32 v{vRW + i}, s{sT0}, v{vL16}']
    fin += [f'v_mul_u32_u24 v{vXo}, 1280, v{vR}', f'v_lshl_add_u32 v{vXo}, v{vG}, 4, v{vXo}']
    PUB_C, POLL_B, POLL_C = E('G_PUBC', 1), E('G_POLLB', 0), E('G_POLLC', 4)
    avail = 6
    for i in range(14):
        need_tag(f'a{i}')
        need_tag(f'w2_{i}')
        if i in W2L:
            a('s_waitcnt lgkmcnt(0)')
        lrd = []
        if i + 2 in W2L:
            need_tag(f'w2_{i + 2}')
            o_ = W2L[i + 2]
            lrd = [f'ds_read_b128 {R("v", W2R[i + 2][1] + 4 * sg)}, v{vWl[o_ >= SA]} offset:{(o_ - SA if o_ >= SA else o_) + 1024 * sg}' for sg in range(5)]
        if i == 12:
            lrd = fin
        lap('D')
        fa, ra_ = AR[i % NR_]
        fw, rw = W2R[i]
        k = 0
        order = [(t_, sg) for t_ in range(4) for sg in range(5)]
        if i == 0:
            clash = [(0, 4), (1, 0), (2, 1), (2, 2), (2, 4), (3, 0)]
            order = [o_ for o_ in order if o_ not in clash] + clash
        for t_, sg in order:
            if True:
                if i == 0:
                    for _ in range(3 if k < 14 else 99):
                        if ecl:
                            x = ecl.pop(0)
                            if isinstance(x, tuple):
                                a(x[1], tag=x[2])
                            else:
                                a(x)
                d = acc4 + 20 * t_ + 4 * sg
                c = '0' if i == 0 else R('v', d)
                a(f'{M16} {R("v", d)}, {R(fw, rw + 4 * sg)}, {R(fa, ra_ + 4 * t_)}, {c}')
                k += 1
                if i == 13:
                    if t_ >= 2 or (t_ == 1 and sg >= 3):
                        q = k - 9
                        a(send(q // 5, vRW)[q % 5])
                elif k % E('G_P4PULL', 4) == 0 and pend:
                    pull()
                elif lrd:
                    a(lrd.pop(0))
        assert not lrd
        if i == PUB_C:
            publish(sF3, 3, 'h1_2')
        if i in (POLL_B, POLL_C):
            poll_issue(sFc, 2 if i == POLL_B else 3)
        if i in (POLL_B + PD, POLL_C + PD):
            poll_wait(sFc, 2 if i == POLL_B + PD else 3, 16)
            avail += 4
        newa = []
        while nexta < avail and nexta <= i + NR_:
            newa += a4_groups(nexta)
            nexta += 1
        k_ = 0
        while k_ < len(pend) and not (pend[k_][1].startswith('w2') and len(pend[k_][0]) > 1):
            k_ += 1
        pend[k_:k_] = newa
        if i == max(1, POLL_B + PD):
            pend += w2_groups(12) + w2_groups(13)
    assert not pend
    lap()
    for q in range(12, 15):
        a(send(q // 5, vRW)[q % 5])
    own = reduce_own(61440)
    outr = Y + 8
    residual(own, outr, Y + 24)
    so = f's[{sO}:{sO + 3}]'
    OST = {0: '', 1: ' sc1', 2: ' nt', 3: ' sc0 sc1'}[E('G_OST', 0)]
    a(f'buffer_store_dwordx4 {R("v", outr)}, v{vXo}, {so}, s{sOa} offen{OST}')
    a(f'buffer_store_dwordx4 {R("v", outr + 4)}, v{vXo}, {so}, s{sOa} offen offset:64{OST}')
    a(f'buffer_store_dwordx2 {R("v", outr + 8, 2)}, v{vXo}, {so}, s{sOb} offen{OST}')
    if a.diag is not None:
        a('s_waitcnt vmcnt(0)')
    if a.diag is not None and E('G_DBG', 0):
        a.stamp(5)
        a(f's_cmp_lg_u32 s2, {E("G_DBGWG", 77)}')
        a(f's_cbranch_scc1 {Lend}')
        a(f's_cmp_lg_u32 s{sWv}, 1')
        a(f's_cbranch_scc1 {Lend}')
        regs = [77, 79] + list(range(82, 95)) + [81]
        for i, r in enumerate(regs):
            a(f's_sub_u32 s98, s{r}, s76')
            a(f'v_writelane_b32 v9, s98, {i}')
        a(f'v_lshlrev_b32 v8, 2, v{vL}')
        a('s_mov_b64 exec, 0xffff')
        a(f'global_store_dword v8, v9, s[{P_DBG}:{P_DBG + 1}]')
    else:
        a.stamp_flush(sWv, P_WS, TS_OFF)
    a.label(Lend)
    a('s_endpgm')
    a.raw(f'.p2align 6\n.type {name}_tab,@object\n{name}_tab:')
    for e in kg_table():
        a.raw('.long ' + ', '.join(str(x) for x in e))
```

```python
import os
from asmlib import *
from layout import *
from k1 import load_args, srd, ln_stats, spread, LOG2E, P_X, P_WQKV, P_WO, P_W1, P_W2, P_OUT, P_DBG, P_WS
from k234 import xsum_g, cg_blocks, M16, BIG

KG_LDS = 163840
RB = 81920
SA = 143360
P2L = 102400
OP_OFF = PQ_OFF
FL_C, FL_O, FL_KV, FL_RP, FL_RP2 = 0, 64, 96, 104, 112


def E(name, default):
    return int(os.environ.get(name, str(default)))


def R(f, b, n=4):
    return f'{f}[{b}:{b + n - 1}]'


def sig5(T):
    cg, rel = T // 5, T % 5
    return cg, ((4 if rel == 0 else rel - 1) if cg & 1 else rel)


def kg_table():
    bp = blk_pos()
    inv = {}
    for j in range(16):
        for sg, T in enumerate(slot_tiles(w1_t0(j), w1_cnt(j), 7)):
            if T is not None:
                inv[T] = (j, sg)

    def w2u(u, w):
        ks, nb = u // 10, u % 10
        cg, sg = sig5(4 * nb + w)
        return 32 * ks * 1280 + 128 * nb, W2P_OFF + cg * W2G + bp[ks] * 5120 + sg * 1024
    tab = []
    for r in range(256):
        for w in range(4):
            if r < 200:
                ks, nb = r // 10, r % 10
                cg, sg = sig5(4 * nb + w)
                e = [32 * ks * 1280 + 128 * nb, WOP_OFF + cg * 102400 + ks * 5120 + sg * 1024]
            else:
                e = list(w2u(484 + r - 200, w))
            if r < 135:
                p, nb = r // 27, r % 27
                j, sg = inv[4 * nb + w]
                e += [(128 * p + 32 * i) * 3456 + 128 * nb for i in range(4)]
                e += [W1P_OFF + w1_frag_off(j, 4 * p + i, sg) for i in range(4)]
                e.append(CS1_OFF + p * CS1P + (j * 7 + sg) * 128)
            else:
                us = [w2u(4 * (r - 135) + i, w) for i in range(4)]
                e += [u[0] for u in us] + [u[1] for u in us] + [BIG]
            e += [0] * (16 - len(e))
            tab.append(e)
    return tab


def lane_mask(fn):
    m = 0
    for l in range(64):
        if fn(l >> 4, l & 15):
            m |= 1 << l
    return m


def set_exec(m):
    return [f's_mov_b32 exec_lo, 0x{m & 0xffffffff:x}', f's_mov_b32 exec_hi, 0x{m >> 32:x}']


def gen_kg(a, name):
    sX, sW, sWS, sR = 36, 40, 44, 48
    sO = sR
    sa = RegAlloc('s', 52, 76)
    sTab = 4
    sP = sa.get(8, 4)
    sWv = sa.get(); sRh = sa.get(); sCh = sa.get(); sR1 = sa.get(); sHg = sa.get()
    sT0 = sa.get(); sT1 = sa.get(); sT2 = sa.get(); sT3 = sa.get()
    sKc = sa.get(); sSA = sa.get(); sSB = sa.get(); sMA = sa.get(); sMB = sa.get()
    sFw = sa.get(); sCnt = sa.get()
    sM0, sM1, sM2 = 22, 34, 28
    sRb, sCg, sPb, sSb, sJ, sC, sOa, sOb = [sP + i for i in range(8)]
    sW1, sW1m, sW2, sA, sB = sKc, sSA, sSB, sMA, sMB
    sH, sHs, sA4 = sRh, sCh, sR1
    sC3, sF3 = sTab, sTab + 1
    sFc = sHg
    sM0x = sP
    sRpc = 3
    WS = f's[{sWS}:{sWS + 3}]'
    lapn = [0]
    LSET = os.environ.get('G_LAPS', 'A')

    def lap(kind='A'):
        if any(k_ in LSET for k_ in kind) and lapn[0] < 14:
            a.slap(lapn[0])
            lapn[0] += 1

    vL, vG, vR, vL16, vL16b, vL128 = 1, 2, 3, 4, 5, 6
    vT = [7, 8, 9, 10, 11]
    vOne, vZero = vT[3], vT[4]
    hres = 12
    X, Y, Z = 24, 104, 176
    Lend = name + '_end'
    a.raw(f'.globl {name}\n.p2align 8\n.type {name},@function')
    a.label(name)
    a('s_cmp_ge_u32 s2, 256')
    a(f's_cbranch_scc1 {Lend}')
    a.stamp(0)
    load_args(a)
    for _ in range(E('G_SHIFT', 0)):
        a('s_nop 0')
    a(f'v_and_b32 v{vL}, 63, v0')
    a(f'v_lshrrev_b32 v{vT[0]}, 6, v0')
    a(f'v_readfirstlane_b32 s{sWv}, v{vT[0]}')
    a(f'v_lshrrev_b32 v{vG}, 4, v{vL}')
    a(f'v_and_b32 v{vR}, 15, v{vL}')
    a(f's_lshr_b32 s{sRh}, s{sWv}, 1')
    a(f's_and_b32 s{sCh}, s{sWv}, 1')
    a(f's_getpc_b64 s[{sM1}:{sM1 + 1}]')
    a.label(name + '_pc')
    a(f's_mov_b64 s[{sM0x}:{sM0x + 1}], s[{sM1}:{sM1 + 1}]')
    if E('G_EARLY', 3):
        t = [hres + i for i in range(6)]
        if E('G_CODEPF', 1):
            a(f's_lshr_b32 s{sT0}, s2, 3')
            a(f's_lshl_b32 s{sT0}, s{sT0}, 2')
            a(f's_add_u32 s{sT0}, s{sT0}, s{sWv}')
            a(f's_lshl_b32 s{sT0}, s{sT0}, 10')
            Lc = a.newlabel('Lc')
            a(f's_cmp_ge_u32 s{sT0}, {name}_tab-{name}_pc')
            a(f's_cbranch_scc1 {Lc}')
            a(f'v_lshl_add_u32 v{t[0]}, v{vL}, 4, s{sT0}')
            keep = list(a.vm)
            a(f'global_load_dwordx4 a[0:3], v{t[0]}, s[{sM0x}:{sM0x + 1}]')
            a.vm = keep
            a.label(Lc)
    a(f's_lshl_b32 s{sT0}, s2, 2')
    a(f's_add_u32 s{sT0}, s{sT0}, s{sWv}')
    a(f's_lshl_b32 s{sT0}, s{sT0}, 6')
    a(f's_add_u32 s{sM1}, s{sM1}, {name}_tab-{name}_pc')
    a(f's_addc_u32 s{sM1 + 1}, s{sM1 + 1}, 0')
    a(f's_add_u32 s{sM1}, s{sM1}, s{sT0}')
    a(f's_addc_u32 s{sM1 + 1}, s{sM1 + 1}, 0')
    a(f's_and_b32 s{sT0}, s2, 7')
    a(f's_lshr_b32 s{sT1}, s2, 3')
    a(f's_lshr_b32 s{sT2}, s{sT0}, 1')
    a(f's_lshl_b32 s{sR1}, s{sT2}, 3')
    a(f's_lshr_b32 s{sT3}, s{sT1}, 2')
    a(f's_add_u32 s{sR1}, s{sR1}, s{sT3}')
    a(f's_and_b32 s{sT0}, s{sT0}, 1')
    a(f's_lshl_b32 s{sHg}, s{sT0}, 2')
    if E('G_HSH', 0):
        a(f's_add_u32 s{sT1}, s{sT1}, {E("G_HSH", 0)}')
    a(f's_and_b32 s{sT1}, s{sT1}, 3')
    a(f's_add_u32 s{sHg}, s{sHg}, s{sT1}')
    ROT = E('G_ROT', 1)
    a(f's_add_u32 s{sKc}, s{sT3}, s{sT1}')
    if ROT == 1:
        a(f's_lshl_b32 s{sKc}, s{sKc}, 1')
        a(f's_add_u32 s{sKc}, s{sKc}, s{sT2}')
    elif ROT == 2:
        a(f's_and_b32 s{sKc}, s{sKc}, 1')
        a(f's_mul_i32 s{sKc}, s{sKc}, 5')
        a(f's_add_u32 s{sKc}, s{sKc}, s{sT2}')
    elif ROT == 3:
        a(f's_and_b32 s{sKc}, s{sKc}, 3')
        a(f's_mul_i32 s{sKc}, s{sKc}, 5')
        a(f's_lshr_b32 s{sKc}, s{sKc}, 1')
        a(f's_and_b32 s{sT0}, s{sT2}, 1')
        a(f's_add_u32 s{sKc}, s{sKc}, s{sT0}')
    elif ROT == 4:
        a(f's_mul_i32 s{sKc}, s{sT2}, 5')
        a(f's_lshr_b32 s{sKc}, s{sKc}, 1')
    elif ROT == 6:
        a(f's_add_u32 s{sKc}, s{sKc}, s{sT1}')
        a(f's_mul_i32 s{sKc}, s{sKc}, 5')
        a(f's_lshr_b32 s{sKc}, s{sKc}, 2')
        a(f's_add_u32 s{sKc}, s{sKc}, s{sT2}')
    elif ROT == 7:
        a(f's_lshl_b32 s{sKc}, s{sKc}, 1')
        a(f's_lshr_b32 s{sT0}, s{sT1}, 1')
        a(f's_add_u32 s{sKc}, s{sKc}, s{sT0}')
        a(f's_add_u32 s{sKc}, s{sKc}, s{sT2}')
    elif ROT == 5:
        a(f's_add_u32 s{sKc}, s{sKc}, s{sT2}')
    else:
        a(f's_mov_b32 s{sKc}, 0')
    for _ in range(2):
        a(f's_sub_u32 s{sT0}, s{sKc}, 10')
        a(f's_cmp_ge_u32 s{sKc}, 10')
        a(f's_cselect_b32 s{sKc}, s{sT0}, s{sKc}')
    va = RegAlloc('v', 24, 256)
    vOA = va.get(2); vOB = va.get(5); vOQ = va.get(5); vRP = va.get(); vRT = va.get()
    t = [hres + i for i in range(6)]
    a(f's_lshl_b32 s{sT1}, s{sWv}, 4')
    a(f'v_lshrrev_b32 v{t[0]}, 3, v{vL}')
    a(f'v_add_u32 v{t[0]}, s{sT1}, v{t[0]}')
    a(f'v_and_b32 v{t[1]}, 7, v{vL}')
    a(f'v_xor_b32 v{t[2]}, v{vG}, v{t[1]}')
    a(f'v_lshlrev_b32 v{t[2]}, 4, v{t[2]}')
    a(f'v_mul_u32_u24 v{t[0]}, 1280, v{t[0]}')
    a(f'v_add_u32 v{vOA}, v{t[0]}, v{t[2]}')
    a(f'v_xor_b32 v{t[2]}, 64, v{t[2]}')
    a(f'v_add3_u32 v{vOA + 1}, v{t[0]}, v{t[2]}, 0') if False else None
    a(f'v_add_u32 v{vOA + 1}, v{t[0]}, v{t[2]}')
    a(f'v_add_u32 v{vOA + 1}, {10240 - 1024}, v{vOA + 1}')
    def b_offsets(after=None):
        a(f's_mul_i32 s{sT3}, s{sWv}, {16 * 3840}')
        a(f's_movk_i32 s{sT2}, 3840')
        for j in range(5):
            a(f'v_add_u32 v{t[0]}, {64 * j}, v{vL}')
            a(f'v_mul_u32_u24 v{t[1]}, 3277, v{t[0]}')
            a(f'v_lshrrev_b32 v{t[1]}, 16, v{t[1]}')
            a(f'v_mul_u32_u24 v{t[2]}, 20, v{t[1]}')
            a(f'v_sub_u32 v{t[0]}, v{t[0]}, v{t[2]}')
            a(f'v_lshrrev_b32 v{t[2]}, 2, v{t[1]}')
            a(f'v_and_b32 v{t[2]}, 2, v{t[2]}')
            a(f'v_xor_b32 v{t[0]}, v{t[0]}, v{t[2]}')
            a(f'v_mul_u32_u24 v{t[2]}, 205, v{t[0]}')
            a(f'v_lshrrev_b32 v{t[2]}, 10, v{t[2]}')
            a(f'v_and_b32 v{t[3]}, 1, v{t[2]}')
            a(f'v_mul_u32_u24 v{t[3]}, 1200, v{t[3]}')
            a(f'v_lshl_add_u32 v{t[0]}, v{t[0]}, 4, v{t[3]}')
            a(f'v_lshrrev_b32 v{t[2]}, 1, v{t[2]}')
            a(f'v_mul_u32_u24 v{t[2]}, 80, v{t[2]}')
            a(f'v_sub_u32 v{t[0]}, v{t[0]}, v{t[2]}')
            a(f'v_mad_u32_u24 v{t[0]}, v{t[1]}, s{sT2}, v{t[0]}')
            a(f's_sub_u32 s{sT1}, s{sT3}, {1024 * (j & 3)}')
            a(f'v_add_u32 v{vOB + j}, s{sT1}, v{t[0]}')
            if after:
                after(j)
    if not E('G_EARLY', 3):
        b_offsets()
    a(f's_lshl_b32 s{sMA}, s{sWv}, 11')
    a(f's_mul_i32 s{sMB}, s{sWv}, 5120')
    a(f's_add_u32 s{sMB}, s{sMB}, {RB}')
    a(f's_mul_i32 s{sT0}, s{sR1}, {64 * 1280}')
    a(f's_mul_i32 s{sT1}, s{sHg}, 160')
    a('s_waitcnt lgkmcnt(0)')
    a(f's_load_dwordx8 s[{sTab}:{sTab + 7}], s[{sM1}:{sM1 + 1}], 0')
    a(f's_load_dwordx4 s[{sTab + 8}:{sTab + 11}], s[{sM1}:{sM1 + 1}], 32')
    a(f's_add_u32 s{sX}, s{P_X}, s{sT0}')
    a(f's_addc_u32 s{sX + 1}, s{P_X + 1}, 0')
    a(f's_sub_u32 s{sX + 2}, {S * D * 2}, s{sT0}')
    a(f's_mov_b32 s{sX + 3}, 0x20000')
    a(f's_add_u32 s{sW}, s{P_WQKV}, s{sT1}')
    a(f's_addc_u32 s{sW + 1}, s{P_WQKV + 1}, 0')
    a(f's_sub_u32 s{sW + 2}, {D * 3 * D * 2}, s{sT1}')
    a(f's_mov_b32 s{sW + 3}, 0x20000')
    a.vm_reset()

    def stage_groups(n):
        g = []
        slot = RB_slot = (n % 3) * 20480
        adv = [f's_add_u32 s{sKc}, s{sKc}, 1', f's_cmp_eq_u32 s{sKc}, 10', f's_cselect_b32 s{sKc}, 0, s{sKc}']
        if n < 10:
            for j in range(2):
                pre = []
                if j == 0:
                    pre = [f's_lshl_b32 s{sSA}, s{sKc}, 7', f's_mul_i32 s{sSB}, s{sKc}, {64 * 3840}',
                           f's_add_u32 s{sSB}, s{sSB}, 1280', f's_add_u32 m0, s{sMA}, {8192 * n}'] + adv
                g.append((pre + [f'buffer_load_dwordx4 v{vOA + j}, s[{sX}:{sX + 3}], s{sSA} offen offset:{1024 * j}{" nt" if E("G_XNT", 0) else ""} lds'], f's{n}'))
            vo = vOB
        else:
            vo = vOQ
        if n >= 13:
            for j in range(5):
                pre = []
                if j == 0:
                    pre = [f's_add_u32 s{sSB}, s{sKc}, s{sRh}', f's_cmp_eq_u32 s{sSB}, 10', f's_cselect_b32 s{sSB}, 0, s{sSB}',
                           f's_mul_i32 s{sSB}, s{sSB}, {64 * 3840}'] + adv + adv
                r = 200 + 20 * (n - 13) + 4 * j
                g.append((pre + [f'buffer_load_dwordx4 {R("a", r)}, v{vo + j}, s[{sW}:{sW + 3}], s{sSB} offen offset:{1024 * (j & 3)}'], f's{n}'))
            return g
        for j in range(5):
            pre = []
            if j == 0:
                if n >= 10:
                    pre = [f's_add_u32 s{sSB}, s{sKc}, s{sRh}', f's_cmp_eq_u32 s{sSB}, 10', f's_cselect_b32 s{sSB}, 0, s{sSB}',
                           f's_mul_i32 s{sSB}, s{sSB}, {64 * 3840}'] + adv + adv
                pre = pre + [f's_add_u32 m0, s{sMB}, {slot}', 's_nop 0']
            if j == 4:
                pre = [f's_add_u32 m0, s{sMB}, {slot + 4096}', 's_nop 0']
            elif j > 0:
                pre = [f's_add_u32 m0, s{sMB}, {slot}', 's_nop 0'] if j == 2 else []
            g.append((pre + [f'buffer_load_dwordx4 v{vo + j}, s[{sW}:{sW + 3}], s{sSB} offen offset:{1024 * (j & 3)}{" nt" if E("G_WNT", 0) else ""} lds'], f's{n}'))
        return g

    def emit(g):
        for x in g[0]:
            a(x, tag=g[1])
    pend = []

    def pull(n=1):
        for _ in range(n):
            if pend:
                emit(pend.pop(0))

    def need_tag(tag, extra=''):
        while any(g[1] == tag for g in pend):
            pull()
        if tag in a.vm:
            a.vm_wait(tag, extra)
        elif extra:
            a('s_waitcnt' + extra)
    a.stamp(1)
    LIN = E('G_LIN', 0)

    def linear_pf():
        a(f's_lshl_b32 s{sT0}, s2, 2')
        a(f's_add_u32 s{sT0}, s{sT0}, s{sWv}')
        a(f's_mul_i32 s{sT1}, s{sT0}, 2560')
        a(f's_mul_i32 s{sT2}, s{sT0}, 2400')
        a(f'v_mul_u32_u24 v{t[0]}, 40, v{vL}')
        a(f'v_add_u32 v{t[1]}, s{sT1}, v{t[0]}')
        a(f'v_min_u32 v{t[0]}, 2396, v{t[0]}')
        a(f'v_add_u32 v{t[2]}, s{sT2}, v{t[0]}')
        a(f'global_load_dword a8, v{t[1]}, s[{P_X}:{P_X + 1}]', tag='lin')
        a(f'global_load_dword a9, v{t[2]}, s[{P_WQKV}:{P_WQKV + 1}]', tag='lin')
    if LIN == 1:
        linear_pf()
    if E('G_EARLY', 3) == 2:
        g0, g1 = stage_groups(0), stage_groups(1)
        for g in g0[:2]:
            emit(g)
        a(f's_mov_b32 s{sCnt}, s{sSB}')
        for g in g1[:2]:
            emit((g[0], 's0'))
        a(f's_mov_b32 s{sFw}, s{sSB}')
        a(f's_mov_b32 s{sSB}, s{sCnt}')
        b_offsets(lambda j: emit(g0[2 + j]))
        a(f's_mov_b32 s{sSB}, s{sFw}')
        for g in g1[2:]:
            emit(g)
    elif E('G_EARLY', 3):
        g0 = stage_groups(0)
        for g in g0[:2]:
            emit(g)
        b_offsets((lambda j: emit(g0[2 + j])) if E('G_EARLY', 3) == 3 else None)
        for g in (g0[2:] if E('G_EARLY', 3) == 1 else []) + stage_groups(1):
            emit(g)
    else:
        for n in range(2):
            for g in stage_groups(n):
                emit(g)
    srd(a, sWS, P_WS, 0, WS_USED)
    a(f'v_lshlrev_b32 v{vL16}, 4, v{vL}')
    a(f'v_add_u32 v{vL16b}, 4096, v{vL16}')
    a(f'v_lshlrev_b32 v{vL128}, 7, v{vL}')
    a(f'v_mov_b32 v{vOne}, 1')
    a(f'v_mov_b32 v{vZero}, 0')
    vOnes = va.get(4, 4)
    vA = va.get(4); vB = va.get(4); vQ = va.get(2)
    fr = [va.get(40, 4) for _ in range(2)]
    acc = va.get(40, 4); s1 = va.get(8, 4); s2 = va.get(8, 4); cs = va.get(20, 4)
    pad_ = va.get(4, 4)
    qacc = va.get(24, 4); qcs = va.get(12, 4)
    vC = hres + 6
    for i in range(4):
        a(f'v_mov_b32 v{vOnes + i}, 0x3f803f80')
        a(f'v_mov_b32 v{pad_ + i}, 0')
    if not E('G_EARLY', 3):
        if E('G_CODEPF', 1):
            a(f's_lshr_b32 s{sT0}, s2, 3')
            a(f's_lshl_b32 s{sT0}, s{sT0}, 2')
            a(f's_add_u32 s{sT0}, s{sT0}, s{sWv}')
            a(f's_lshl_b32 s{sT0}, s{sT0}, 10')
            Lc = a.newlabel('Lc')
            a(f's_cmp_ge_u32 s{sT0}, {name}_tab-{name}_pc')
            a(f's_cbranch_scc1 {Lc}')
            a(f'v_lshl_add_u32 v{t[0]}, v{vL}, 4, s{sT0}')
            keep = list(a.vm)
            a(f'global_load_dwordx4 a[0:3], v{t[0]}, s[{sM0x}:{sM0x + 1}]')
            a.vm = keep
            a.label(Lc)
    a(f's_xor_b32 s{sT0}, s{sRh}, s{sCh}')
    a(f'v_lshrrev_b32 v{t[0]}, 3, v{vR}')
    a(f'v_lshlrev_b32 v{t[0]}, 10, v{t[0]}')
    a(f'v_and_b32 v{t[1]}, 7, v{vR}')
    a(f'v_lshl_add_u32 v{t[0]}, v{t[1]}, 7, v{t[0]}')
    a(f's_lshl_b32 s{sT1}, s{sRh}, 12')
    a(f'v_add_u32 v{t[0]}, s{sT1}, v{t[0]}')
    a(f'v_lshrrev_b32 v{t[1]}, 1, v{vR}')
    a(f'v_xor_b32 v{t[1]}, v{t[1]}, v{vG}')
    a(f's_lshl_b32 s{sT1}, s{sT0}, 2')
    a(f'v_xor_b32 v{t[1]}, s{sT1}, v{t[1]}')
    a(f'v_lshl_add_u32 v{vA}, v{t[1]}, 4, v{t[0]}')
    a(f'v_xor_b32 v{t[1]}, 4, v{t[1]}')
    a(f'v_lshl_add_u32 v{vA + 1}, v{t[1]}, 4, v{t[0]}')
    a(f'v_add_u32 v{vA + 2}, 40960, v{vA}')
    a(f'v_add_u32 v{vA + 3}, 40960, v{vA + 1}')
    a(f'v_bfe_u32 v{t[0]}, v{vL}, 2, 2')
    a(f'v_and_b32 v{t[1]}, 3, v{vL}')
    a(f'v_lshl_add_u32 v{t[2]}, v{vG}, 3, v{t[0]}')
    a(f'v_and_b32 v{t[3]}, 1, v{vG}')
    a(f'v_mul_u32_u24 v{t[2]}, 320, v{t[2]}')
    a(f'v_lshl_add_u32 v{t[2]}, v{t[1]}, 3, v{t[2]}')
    a(f's_mul_i32 s{sT1}, s{sCh}, 160')
    a(f's_add_u32 s{sT1}, s{sT1}, {RB}')
    a(f'v_add_u32 v{t[2]}, s{sT1}, v{t[2]}')
    a(f'v_lshlrev_b32 v{t[4]}, 5, v{t[3]}')
    a(f'v_sub_u32 v{t[5]}, v{t[2]}, v{t[4]}')
    a(f'v_add_u32 v{t[4]}, v{t[2]}, v{t[4]}')
    a(f's_cmp_eq_u32 s{sCh}, 0')
    a('s_cselect_b64 vcc, -1, 0')
    a(f'v_cndmask_b32 v{t[2]}, v{t[5]}, v{t[4]}, vcc')
    a(f'v_cndmask_b32 v{t[4]}, v{t[4]}, v{t[5]}, vcc')
    a(f's_mul_i32 s{sT1}, s{sT0}, 10240')
    a(f's_sub_u32 s{sT2}, 10240, s{sT1}')
    for o, sreg in ((0, sT1), (1, sT2)):
        a(f'v_add_u32 v{vB + 2 * o}, s{sreg}, v{t[2]}')
        a(f'v_add_u32 v{vB + 2 * o + 1}, s{sreg}, v{t[4]}')
    a('s_cmp_lt_u32 s2, 200')
    a(f's_cselect_b32 s{sR}, s{P_WO}, s{P_W2}')
    a(f's_cselect_b32 s{sR + 1}, s{P_WO + 1}, s{P_W2 + 1}')
    a(f's_mov_b32 s{sR + 2}, {D * F * 2}')
    a(f's_cselect_b32 s{sR + 2}, {D * D * 2}, s{sR + 2}')
    a(f's_mov_b32 s{sR + 3}, 0x20000')
    a(f's_movk_i32 s{sT0}, 1280')
    a('s_cmp_lt_u32 s2, 135')
    a(f's_cselect_b32 s{sT2}, 3456, s{sT0}')
    a(f's_lshl_b32 s{sT1}, s{sWv}, 3')
    a(f'v_lshrrev_b32 v{t[0]}, 3, v{vL}')
    a(f'v_add_u32 v{t[0]}, s{sT1}, v{t[0]}')
    a(f'v_and_b32 v{t[1]}, 7, v{vL}')
    a(f'v_lshlrev_b32 v{t[1]}, 4, v{t[1]}')
    a(f'v_mad_u32_u24 v{vRP}, v{t[0]}, s{sT2}, v{t[1]}')
    a(f'v_mad_u32_u24 v{t[0]}, v{t[0]}, s{sT0}, v{t[1]}')
    a(f's_lshl_b32 s{sT1}, s{sWv}, 10')
    a(f's_add_u32 m0, s{sT1}, {SA}')
    a('s_waitcnt lgkmcnt(0)')
    a(f'buffer_load_dwordx4 v{t[0]}, s[{sR}:{sR + 3}], s{sTab} offen{" nt" if E("G_RNT", 0) else ""} lds', tag='r')
    a(f'v_lshlrev_b32 v{vRT}, 10, v{vG}')
    a(f'v_bfe_u32 v{t[5]}, v{vL}, 2, 2')
    a(f'v_lshl_add_u32 v{vRT}, v{t[5]}, 7, v{vRT}')
    a(f'v_and_b32 v{t[5]}, 3, v{vL}')
    a(f'v_lshl_add_u32 v{vRT}, v{t[5]}, 4, v{vRT}')
    a(f's_lshl_b32 s{sT1}, s{sRh}, 6')
    a(f's_lshl_b32 s{sT2}, s{sCh}, 3')
    a(f's_add_u32 s{sT1}, s{sT1}, s{sT2}')
    a(f's_add_u32 s{sT1}, s{sT1}, {RB}')
    a(f'v_add_u32 v{vRT}, s{sT1}, v{vRT}')
    a('s_cmp_lt_u32 s2, 135')
    a(f's_cselect_b32 s{sR}, s{P_W1}, s{P_W2}')
    a(f's_cselect_b32 s{sR + 1}, s{P_W1 + 1}, s{P_W2 + 1}')
    a(f's_mov_b32 s{sR + 2}, {D * F * 2}')
    REARLY = E('G_REARLY', 0)
    r2e = []
    for i in range(4):
        r2e.append(([f's_lshl_b32 s{sCnt}, s{sWv}, 10', f's_add_u32 m0, s{sCnt}, {SA + 4096 * (i + 1)}', 's_nop 0',
                     f'buffer_load_dwordx4 v{vRP}, s[{sR}:{sR + 3}], s{sTab + 2 + i} offen lds'], 'r'))
    if REARLY and E('G_REIT', -1) < 0:
        for g in r2e:
            emit(g)
    Lnz = a.newlabel('Lnz')
    a(f's_lshl_b32 s{sT1}, s{sHg}, 2')
    a(f's_add_u32 s{sT1}, s{sT1}, s{sWv}')
    a(f's_mul_i32 s{sT2}, s{sT1}, {KV_HS}')
    a(f's_add_u32 s{sT2}, s{sT2}, {KV_OFF}')
    a(f's_lshl_b32 s{sT3}, s{sT1}, 9')
    a(f's_add_u32 s{sT3}, s{sT3}, {FL_OFF}')
    a(f's_cmp_eq_u32 s{sR1}, 0')
    a(f's_cselect_b32 s{sT2}, s{sT2}, 0x{BIG:x}')
    a(f's_cselect_b32 s{sT3}, s{sT3}, 0x{BIG:x}')
    a(f'v_lshlrev_b32 v{t[0]}, 3, v{vL}')
    a(f'buffer_store_dwordx4 {R("v", pad_)}, v{vL16}, {WS}, s{sT2} offen sc1', tag='z')
    a(f'buffer_store_dwordx4 {R("v", pad_)}, v{vL16}, {WS}, s{sT2} offen offset:768 sc1', tag='z')
    a(f'buffer_store_dwordx2 {R("v", pad_, 2)}, v{t[0]}, {WS}, s{sT3} offen sc1', tag='z')
    if E('G_TLB', 1):
        hl = tlb_holes()
        for i, h in enumerate(hl):
            a(f's_mov_b32 s{sT1}, {h}')
            a(f'v_writelane_b32 v{t[0]}, s{sT1}, {i}')
        a(f's_mov_b64 exec, {(1 << len(hl)) - 1}')
        a(f'buffer_load_dword a4, v{t[0]}, {WS}, 0 offen', tag='tlb')
        a('s_mov_b64 exec, 3')
        a(f'v_mul_u32_u24 v{t[1]}, {S * D * 2 - 4}, v{vL}')
        a(f'global_load_dword a5, v{t[1]}, s[{P_OUT}:{P_OUT + 1}]', tag='tlb')
        a('s_mov_b64 exec, -1')
    a(f's_cmp_eq_u32 s{sWv}, 0')
    a(f's_mov_b32 s{sFw}, 0x{BIG:x}')
    a(f's_cselect_b32 s{sFw}, {FL_OFF}, s{sFw}')
    ones = R('v', vOnes)

    deferred = []

    def dq(x):
        deferred.append(x)
    dq(f's_mul_i32 s{sT3}, s{sCh}, {32 * 3840}')
    dq(f's_movk_i32 s{sT2}, 3840')
    for j in range(5):
        dq(f'v_add_u32 v{t[0]}, {64 * j}, v{vL}')
        dq(f'v_mul_u32_u24 v{t[1]}, 6554, v{t[0]}')
        dq(f'v_lshrrev_b32 v{t[1]}, 16, v{t[1]}')
        dq(f'v_mul_u32_u24 v{t[2]}, 10, v{t[1]}')
        dq(f'v_sub_u32 v{t[0]}, v{t[0]}, v{t[2]}')
        dq(f'v_and_b32 v{t[2]}, 0x13, v{t[1]}')
        dq(f'v_bfe_u32 v{t[3]}, v{t[1]}, 2, 1')
        dq(f'v_lshl_or_b32 v{t[2]}, v{t[3]}, 3, v{t[2]}')
        dq(f'v_bfe_u32 v{t[3]}, v{t[1]}, 3, 1')
        dq(f'v_lshl_or_b32 v{t[2]}, v{t[3]}, 2, v{t[2]}')
        dq(f'v_lshlrev_b32 v{t[0]}, 4, v{t[0]}')
        dq(f'v_mad_u32_u24 v{t[0]}, v{t[2]}, s{sT2}, v{t[0]}')
        dq(f's_sub_u32 s{sT1}, s{sT3}, {1024 * (j & 3)}')
        dq(f'v_add_u32 v{vOQ + j}, s{sT1}, v{t[0]}')
    dq(f'v_bfe_u32 v{t[0]}, v{vL}, 2, 2')
    dq(f'v_and_b32 v{t[1]}, 3, v{vL}')
    dq(f'v_and_b32 v{t[3]}, 1, v{vG}')
    dq(f's_xor_b32 s{sT0}, s{sRh}, s{sCh}')
    dq(f'v_lshl_add_u32 v{t[0]}, v{t[3]}, 2, v{t[0]}')
    dq(f'v_lshrrev_b32 v{t[3]}, 1, v{vG}')
    dq(f'v_lshl_add_u32 v{t[0]}, v{t[3]}, 4, v{t[0]}')
    dq(f'v_mul_u32_u24 v{t[0]}, 160, v{t[0]}')
    dq(f'v_lshl_add_u32 v{t[0]}, v{t[1]}, 3, v{t[0]}')
    dq(f's_mul_i32 s{sT1}, s{sCh}, 80')
    dq(f's_add_u32 s{sT1}, s{sT1}, {RB}')
    dq(f's_mul_i32 s{sT2}, s{sT0}, 5120')
    dq(f's_add_u32 s{sT3}, s{sT1}, s{sT2}')
    dq(f'v_add_u32 v{vQ}, s{sT3}, v{t[0]}')
    dq(f's_sub_u32 s{sT3}, s{sT1}, s{sT2}')
    dq(f's_add_u32 s{sT3}, s{sT3}, 5120')
    dq(f'v_add_u32 v{vQ + 1}, s{sT3}, v{t[0]}')
    for i, c in enumerate((LOG2E, LOG2E, 0x3f800000, 0x3f800000, 0x358637bd, 0x358637bd)):
        dq(f'v_mov_b32 v{vC + i}, 0x{c:x}')

    def a_read(dst, slot, o, tr):
        hi = slot >= 5
        return f'ds_read_b128 {R("v", dst)}, v{vA + 2 * hi + o} offset:{8192 * (slot - 5 * hi) + 2048 * tr}'

    def reads_kv(n, o):
        f = fr[o]
        lst = [a_read(f + 4 * tr, n, o, tr) for tr in range(2)]
        for tc in range(5):
            for j in range(2):
                b = f + 8 + 4 * tc + 2 * j
                lst.append(f'ds_read_b64_tr_b16 {R("v", b, 2)}, v{vB + 2 * o + (tc & 1)} offset:{(n % 3) * 20480 + 32 * tc + 1280 * j}')
        return lst

    def mf_kv(n, o, extras_first=False):
        f = fr[o]
        A = lambda tr: R('v', f + 4 * tr)
        B = lambda tc: R('v', f + 8 + 4 * tc)
        z = lambda d, first: '0' if first else R('v', d)
        lst, ex = [], []
        for tc in range(5):
            for tr in range(2):
                d = acc + 4 * (tr * 5 + tc)
                lst.append(f'{M16} {R("v", d)}, {A(tr)}, {B(tc)}, {z(d, n == 0 and o == 0)}')
        if o == 0:
            for tr in range(2):
                ex.append(f'{M16} {R("v", s1 + 4 * tr)}, {A(tr)}, {ones}, {z(s1 + 4 * tr, n == 0)}')
                ex.append(f'{M16} {R("v", s2 + 4 * tr)}, {A(tr)}, {A(tr)}, {z(s2 + 4 * tr, n == 0)}')
        else:
            for tc in range(5):
                ex.append(f'{M16} {R("v", cs + 4 * tc)}, {ones}, {B(tc)}, {z(cs + 4 * tc, n == 0)}')
        return ex + lst if extras_first else lst + ex

    def sched(ms, first, later, start=1, per=1):
        n = len(ms)
        first = list(first)
        pos = {}
        for k, g in enumerate(later):
            pos.setdefault(min(n - 1, start + (k * (n - start)) // max(1, len(later))), []).append(g)
        for k, m in enumerate(ms):
            a(m)
            for _ in range(per):
                if first:
                    a(first.pop(0))
            for g in pos.get(k, []):
                if isinstance(g, tuple):
                    emit(g)
                else:
                    for x in g:
                        a(x)
        for x in first:
            a(x)

    def publish(sOff, line, tag, barrier=True):
        if tag in a.vm:
            a.vm_wait(tag)
        if barrier:
            a('s_barrier')
        a('s_mov_b64 exec, 1')
        a(f'buffer_atomic_add v{vOne}, v{vZero}, {WS}, s{sOff} offen offset:{128 * line} sc1', tag='flag')
        a('s_mov_b64 exec, -1')

    def poll_issue(sOff, line, nl=1):
        a(f's_mov_b64 exec, {(1 << nl) - 1}')
        a(f'buffer_load_dword v{vT[1]}, v{vL128}, {WS}, s{sOff} offen offset:{128 * line} sc1', tag='poll')
        a('s_mov_b64 exec, -1')

    def poll_wait(sOff, line, expect, nl=1, barrier=True):
        Lp = a.newlabel('Lp'); Lok = a.newlabel('Lok')
        keep = list(a.vm)
        a(f's_cmp_lg_u32 s{sWv}, 0')
        a(f's_cbranch_scc1 {Lok}')
        a.vm_wait('poll')
        a(f's_mov_b32 s{sCnt}, 0')
        a(f's_mov_b64 exec, {(1 << nl) - 1}')
        a.label(Lp)
        a(f'v_cmp_gt_u32 vcc, {expect}, v{vT[1]}')
        a(f's_add_u32 s{sCnt}, s{sCnt}, 1')
        a('s_cmp_eq_u64 vcc, 0')
        a(f's_cbranch_scc1 {Lok}')
        a(f's_cmp_ge_u32 s{sCnt}, 200000')
        a(f's_cbranch_scc1 {Lok}')
        a('s_sleep 1')
        a(f'buffer_load_dword v{vT[1]}, v{vL128}, {WS}, s{sOff} offen offset:{128 * line} sc1')
        a('s_waitcnt vmcnt(0)')
        a(f's_branch {Lp}')
        a.label(Lok)
        a.vm = keep
        a('s_mov_b64 exec, -1')
        if barrier:
            a('s_barrier')

    ZP_IT = E('G_ZPIT', 5)
    aRP = 240

    def zero_poll():
        Lz = a.newlabel('Lzq')
        keep = list(a.vm)
        a(f's_cmp_lg_u32 s{sWv}, 0')
        a(f's_cbranch_scc1 {Lz}')
        a('s_mov_b32 exec_hi, 0')
        a(f'global_load_dword v{vT[2]}, v{t[5]}, s[{P_DBG}:{P_DBG + 1}] offset:128 sc1')
        a('s_mov_b64 exec, -1')
        a.label(Lz)
        a.vm = keep + ['zmark']
        a.vm_mark = True

    def zero_check():
        Lp = a.newlabel('Lzp'); Lok = a.newlabel('Lzok')
        assert 'zmark' not in a.vm
        keep = list(a.vm)
        a(f's_cmp_lg_u32 s{sWv}, 0')
        a(f's_cbranch_scc1 {Lok}')
        a(f's_mov_b32 s{sCnt}, 0')
        a('s_mov_b32 exec_hi, 0')
        a.label(Lp)
        a(f'v_cmp_ne_u32 vcc, 1, v{vT[2]}')
        a(f's_add_u32 s{sCnt}, s{sCnt}, 1')
        a('s_cmp_eq_u64 vcc, 0')
        a(f's_cbranch_scc1 {Lok}')
        a(f's_cmp_ge_u32 s{sCnt}, 200000')
        a(f's_cbranch_scc1 {Lok}')
        a('s_sleep 2')
        a(f'global_load_dword v{vT[2]}, v{t[5]}, s[{P_DBG}:{P_DBG + 1}] offset:128 sc1')
        a('s_waitcnt vmcnt(0)')
        a(f's_branch {Lp}')
        a.label(Lok)
        a.vm = keep
        a('s_mov_b64 exec, -1')

    ST1, ST2, CSP, AA, BB, QCS, KVA = SA, SA + 512, SA + 1024, SA + 2304, SA + 2560, SA + 2816, SA + 4096
    sg2 = stage_groups(2)
    for g in sg2[:4]:
        emit(g)
    a.stamp(2)
    a.vm_wait('s0', ' lgkmcnt(0)')
    a('s_barrier')
    a.stamp(3)
    for x in reads_kv(0, 0):
        a(x)
    carry = sg2[4:]
    R2_IT = E('G_R2IT', 2)
    rpr = fr[0] + 28
    rpe = [fr[0] + 32, fr[0] + 36, fr[1] + 28, fr[1] + 32]
    rpd = fr[1] + 36
    pairs = [(0, 2), (0, 3), (1, 2), (1, 3), (1, 4), (2, 3), (2, 4)]
    cp, ad, vSa, vSc = fr[1] + 28, fr[1] + 31, fr[1] + 38, fr[1] + 39
    rpz = fr[0] + 32
    ep_addr = [f's_mul_i32 s{sT3}, s{sWv}, {2 * KV_HS}', f's_add_u32 s{sT3}, s{sT3}, {KVA}']
    for tk in range(3):
        ep_addr += [f'v_add_u32 v{t[2]}, {4 * tk}, v{vG}', f'v_mul_u32_u24 v{t[2]}, 336, v{t[2]}', f'v_add_u32 v{cp + tk}, s{sT3}, v{t[2]}']
        if tk == 1:
            ep_addr += [f'v_min_u32 v{t[3]}, 1, v{vG}', f'v_mul_u32_u24 v{t[3]}, {KV_HS - 1680}, v{t[3]}', f'v_add_u32 v{cp + tk}, v{cp + tk}, v{t[3]}']
        if tk == 2:
            ep_addr += [f'v_add_u32 v{cp + tk}, {KV_HS - 1680}, v{cp + tk}']
    for tv in range(2, 5):
        x = rpz + tv - 2
        m4 = lane_mask(lambda g, j: ((16 * tv + j - 40) % 20) % 5 == 4)
        ep_addr += [f'v_add_u32 v{x}, {(16 * tv - 40) & 0xffffffff}, v{vR}', f'v_subrev_u32 v{t[2]}, 20, v{x}',
                    f'v_min_u32 v{x}, v{x}, v{t[2]}', f'v_mul_u32_u24 v{t[2]}, 205, v{x}', f'v_lshrrev_b32 v{t[2]}, 10, v{t[2]}',
                    f'v_sub_u32 v{x}, v{x}, v{t[2]}', f'v_add_u32 v{t[2]}, 16, v{t[2]}',
                    f's_mov_b32 s{sM0}, 0x{m4 & 0xffffffff:x}', f's_mov_b32 s{sM0 + 1}, 0x{m4 >> 32:x}',
                    f'v_cndmask_b32 v{x}, v{x}, v{t[2]}, s[{sM0}:{sM0 + 1}]', f'v_lshlrev_b32 v{x}, 4, v{x}']
    for n, (tk, tv) in enumerate(pairs):
        ep_addr.append(f'v_add_u32 v{ad + n}, v{cp + tk}, v{rpz + tv - 2}')
    ep_addr += [f's_lshl_b32 s{sT3}, s{sRh}, 7', f's_add_u32 s{sT3}, s{sT3}, {AA}', f'v_lshl_add_u32 v{vSa}, v{vG}, 4, s{sT3}',
                f's_mul_i32 s{sT3}, s{sCh}, 320', f's_add_u32 s{sT3}, s{sT3}, {CSP}', f'v_lshl_add_u32 v{vSc}, v{vR}, 2, s{sT3}']
    for it in range(10):
        last = it == 9
        later = list(carry)
        if it == E('G_ZFIT', 2):
            later.append(('zf', 'zf'))
        if it == R2_IT + 1:
            later.append(([f'buffer_store_dwordx4 {R("v", rpr)}, v{vL16}, {WS}, s{sTab + 1} offen sc1'], 'rst'))
            if REARLY:
                for i in range(4):
                    later.append(([f'buffer_store_dwordx4 {R("v", rpe[i])}, v{vL16}, {WS}, s{sTab + 6 + i} offen sc1'], 'rst'))
                later.append([f'{M16} {R("v", rpd)}, {R("v", rpe[i])}, {ones}, {"0" if i == 0 else R("v", rpd)}' for i in range(4)])
        if it == ZP_IT + 2:
            later.append(('zchk', 'zchk'))
        g1 = []
        if last:
            g1 = [[f's_mov_b32 s{sM0}, 0x22222222', f's_mov_b32 s{sM0 + 1}, 0x22222222', f's_mov_b32 s{sM1}, 0x44444444',
                   f's_mov_b32 s{sM1 + 1}, 0x44444444', 's_mov_b32 vcc_lo, 0x88888888', 's_mov_b32 vcc_hi, 0x88888888',
                   f's_lshl_b32 s{sT1}, s{sCh}, 8', f's_lshl_b32 s{sT2}, s{sRh}, 7', f's_add_u32 s{sT1}, s{sT1}, s{sT2}',
                   f's_add_u32 s{sT1}, s{sT1}, {SA}',
                   f'v_lshl_add_u32 v{t[0]}, v{vR}, 2, s{sT1}', f'v_lshl_add_u32 v{t[1]}, v{vG}, 4, s{sT1}']]
            for tr in range(2):
                d = s2 + 4 * tr
                g1.append([f'v_cndmask_b32 v{d}, v{d}, v{d + 1}, s[{sM0}:{sM0 + 1}]',
                           f'v_cndmask_b32 v{d}, v{d}, v{d + 2}, s[{sM1}:{sM1 + 1}]',
                           f'v_cndmask_b32 v{d}, v{d}, v{d + 3}, vcc'])
            w = ['s_mov_b32 exec_lo, 0x00F0000F', 's_mov_b32 exec_hi, 0xF0000F00']
            w += [f'ds_write_b32 v{t[0]}, v{s2 + 4 * tr} offset:{512 + 64 * tr}' for tr in range(2)]
            w += ['s_mov_b32 exec_lo, 0x00010001', 's_mov_b32 exec_hi, 0x00010001']
            w += [f'ds_write_b128 v{t[1]}, {R("v", s1 + 4 * tr)} offset:{64 * tr}' for tr in range(2)]
            w += ['s_mov_b64 exec, -1']
            g1.append(w)
        a('s_waitcnt lgkmcnt(0)')
        zf = [g for g in later if g == ('zf', 'zf')]
        zchk = [g for g in later if g == ('zchk', 'zchk')]
        later = [g for g in later if g not in (('zf', 'zf'), ('zchk', 'zchk'))]
        if last:
            ms = mf_kv(it, 0, True)
            sched(ms[:8], reads_kv(it, 1), later)
            sched(ms[8:], [], g1, start=2)
        else:
            if it < 2:
                later = later + [deferred[k:k + 3] for k in range(0, 27, 3)]
                deferred = deferred[27:]
            sched(mf_kv(it, 0), reads_kv(it, 1), later, start=E('G_KST', 4), per=E('G_KPER', 2))
        if zf:
            Lz = a.newlabel('Lz')
            assert 'z' not in a.vm
            a(f's_cmp_lg_u32 s{sR1}, 0')
            a(f's_cbranch_scc1 {Lz}')
            a(f's_lshl_b32 s{sT1}, s{sHg}, 2')
            a(f's_add_u32 s{sT1}, s{sT1}, s{sWv}')
            a(f's_lshl_b32 s{sT1}, s{sT1}, 2')
            a(f'v_mov_b32 v{t[0]}, s{sT1}')
            a('s_mov_b64 exec, 1')
            keep = list(a.vm)
            a(f'global_store_dword v{t[0]}, v{vOne}, s[{P_DBG}:{P_DBG + 1}] offset:128 sc1')
            a.vm = keep
            a('s_mov_b64 exec, -1')
            a.label(Lz)
        if it == R2_IT:
            a.vm_wait('r') if 'r' in a.vm else None
        if not last:
            need_tag(f's{it + 1}', ' lgkmcnt(0)')
        else:
            a('s_waitcnt lgkmcnt(0)')
        if zchk:
            zero_check()
            assert 'rst' not in a.vm
        a('s_barrier')
        if it == ZP_IT:
            a(f'v_lshlrev_b32 v{t[5]}, 2, v{vL}')
            zero_poll()
        if zchk:
            a(f's_and_b32 s{sT1}, s2, 7')
            a(f's_lshl_b32 s{sT1}, s{sT1}, 7')
            a(f's_add_u32 s{sT1}, s{sT1}, {FL_RP * 128}')
            a(f's_add_u32 s{sT1}, s{sT1}, s{sFw}')
            publish(sT1, 0, 'rst', barrier=False)
        nx = stage_groups(it + 3)
        h = 4 if it + 3 < 10 else 3
        later = nx[:h]
        carry = nx[h:]
        first = reads_kv(it + 1, 0) if not last else []
        if it == R2_IT:
            later.append([f'ds_read_b64_tr_b16 {R("v", rpr + 2 * j, 2)}, v{vRT} offset:{SA - RB + 512 * j}' for j in range(2)])
            if REARLY:
                later.append([f'v_add_u32 v{t[3]}, {KVA - RB}, v{vRT}'])
                for i in range(4):
                    later.append([f'ds_read_b64_tr_b16 {R("v", rpe[i] + 2 * j, 2)}, v{t[3]} offset:{4096 * i + 512 * j}' for j in range(2)])
        if REARLY and it == R2_IT + 1:
            later.append(([f'v_lshlrev_b32 v{t[4]}, 4, v{vG}', f'v_lshl_add_u32 v{t[4]}, v{vR}, 6, v{t[4]}',
                           's_mov_b32 exec_lo, 0x00030003', 's_mov_b32 exec_hi, 0x00030003',
                           f'buffer_store_dwordx4 {R("v", rpd)}, v{t[4]}, {WS}, s{sTab + 10} offen sc1', 's_mov_b64 exec, -1'], 'rst'))
        if REARLY and it == E('G_REIT', -1):
            carry += r2e
        if it in (6, 7, 8):
            n_ = (len(ep_addr) + (8 - it)) // (9 - it)
            later += [ep_addr[k:k + 3] for k in range(0, n_, 3)]
            ep_addr = ep_addr[(n_ + 2) // 3 * 3:]
        if last:
            r2g = [([f'buffer_load_dwordx4 {R("a", aRP + 4 * i)}, v{vRP}, s[{sR}:{sR + 3}], s{sTab + 2 + i} offen{" nt" if E("G_RNT", 0) else ""}'], 'r2') for i in range(4)]
            R2POS = E('G_R2POS', 2)
            if REARLY:
                r2g = []
            if R2POS == 0:
                pend += carry + stage_groups(13) + stage_groups(14) + r2g
                carry = []
            elif R2POS == 1:
                pend += carry + r2g + stage_groups(13) + stage_groups(14)
                carry = []
            elif R2POS == 2:
                pend += carry + stage_groups(13) + stage_groups(14)
                carry = []
            elif R2POS == 3:
                pend += carry
                r2g = stage_groups(13) + stage_groups(14) + r2g
                carry = []
            else:
                pend += carry + stage_groups(13)
                r2g = stage_groups(14) + r2g
                carry = []
        if last:
            e = fr[0]
            first = [f'v_lshlrev_b32 v{t[0]}, 2, v{vL}', f'v_add_u32 v{t[0]}, {SA}, v{t[0]}',
                     f'ds_read_b32 v{e}, v{t[0]}', f'ds_read_b32 v{e + 1}, v{t[0]} offset:256',
                     f'ds_read_b32 v{e + 2}, v{t[0]} offset:512', f'ds_read_b32 v{e + 3}, v{t[0]} offset:768']
            sub = Asm()
            sub('s_waitcnt lgkmcnt(0)')
            sub(f'v_add_f32 v{e}, v{e}, v{e + 1}')
            sub(f'v_add_f32 v{e + 2}, v{e + 2}, v{e + 3}')
            sub(f'v_mul_f32 v{e}, 0x3acccccd, v{e}')
            sub(f'v_mul_f32 v{e + 2}, 0x3acccccd, v{e + 2}')
            sub(f'v_fma_f32 v{e + 2}, -v{e}, v{e}, v{e + 2}')
            ln_stats(sub, e, e + 2, e + 1)
            st = [i.text for i in sub.items]
            g2 = []
            while st:
                g2.append(st[:4]); st = st[4:]
            cw = [f's_mul_i32 s{sT1}, s{sRh}, 640', f's_mul_i32 s{sT2}, s{sCh}, 320', f's_add_u32 s{sT1}, s{sT1}, s{sT2}',
                  f's_add_u32 s{sT1}, s{sT1}, {CSP}', f'v_lshl_add_u32 v{t[2]}, v{vR}, 2, s{sT1}', 's_mov_b64 exec, 0xffff']
            cw += [f'ds_write_b32 v{t[2]}, v{cs + 4 * tc} offset:{64 * tc}' for tc in range(5)] + ['s_mov_b64 exec, -1']
            g2.append(cw)
            g2.append([f'ds_write_b32 v{t[0]}, v{e + 1} offset:{AA - SA}', f'ds_write_b32 v{t[0]}, v{e} offset:{BB - SA}'])
            ms = mf_kv(it, 1, True)
            sched(ms[:7], first, later + carry)
            carry = []
            sched(ms[7:], [], g2, start=0)
        else:
            if it < 2:
                n_ = 27 if it == 0 else len(deferred)
                later = later + [deferred[k:k + 3] for k in range(0, n_, 3)]
                deferred = deferred[n_:]
            sched(mf_kv(it, 1), first, later, start=E('G_KST', 4), per=E('G_KPER', 2))
        lap('K')
    a.stamp(4)
    lap()
    a('s_waitcnt lgkmcnt(0)')
    a('s_barrier')
    ra, rb_, rc = fr[0], fr[0] + 8, fr[0] + 16
    for tc in range(5):
        a(f'ds_read_b32 v{rc + 2 * tc}, v{vSc} offset:{64 * tc}')
        a(f'ds_read_b32 v{rc + 2 * tc + 1}, v{vSc} offset:{640 + 64 * tc}')
    for tr in range(2):
        a(f'ds_read_b128 {R("v", ra + 4 * tr)}, v{vSa} offset:{64 * tr}')
        a(f'ds_read_b128 {R("v", rb_ + 4 * tr)}, v{vSa} offset:{256 + 64 * tr}')
    pull(2)
    a(f's_mov_b32 s{sM0}, 0x00ff00ff'); a(f's_mov_b32 s{sM0 + 1}, 0x00ff00ff')
    a('s_waitcnt lgkmcnt(0)')
    for tc in range(5):
        a(f'v_add_f32 v{rc + 2 * tc}, v{rc + 2 * tc}, v{rc + 2 * tc + 1}')
    pk = cs

    def phi_chain(d, u, p):
        return [f'v_pk_mul_f32 {R("v", u, 2)}, {R("v", d, 2)}, {R("v", vC, 2)}',
                f'v_pk_add_f32 {R("v", p, 2)}, {R("v", d, 2)}, {R("v", vC + 2, 2)}',
                f'v_exp_f32 v{u}, v{u}', f'v_exp_f32 v{u + 1}, v{u + 1}',
                f'v_med3_f32 v{u}, v{u}, v{p}, 1.0', f'v_med3_f32 v{u + 1}, v{u + 1}, v{p + 1}, 1.0',
                f'v_pk_add_f32 {R("v", u, 2)}, {R("v", u, 2)}, {R("v", vC + 4, 2)}']

    def weave(chains, k, pl=0):
        for b in range(0, len(chains), k):
            grp = chains[b:b + k]
            for i in range(max(len(c) for c in grp)):
                for c in grp:
                    if i < len(c):
                        a(c[i])
                if pl and i % pl == pl - 1:
                    pull()
    chains = []
    for tc in range(5):
        for tr in range(2):
            for h in range(2):
                d = acc + 4 * (tr * 5 + tc) + 2 * h
                w = fr[1] + 6 * (len(chains) % 4)
                c = [f'v_pk_mul_f32 {R("v", w, 2)}, {R("v", rb_ + 4 * tr + 2 * h, 2)}, {R("v", rc + 2 * tc, 2)} op_sel_hi:[1,0]',
                     f'v_pk_fma_f32 {R("v", d, 2)}, {R("v", d, 2)}, {R("v", ra + 4 * tr + 2 * h, 2)}, {R("v", w, 2)}']
                dst = pk + 4 * tc + 2 * tr + h
                if tc <= 2:
                    u, p = w + 2, w + 4
                    c += phi_chain(d, u, p)
                    if tc == 2:
                        c += [f'v_cndmask_b32 v{u}, v{d}, v{u}, s[{sM0}:{sM0 + 1}]', f'v_cndmask_b32 v{u + 1}, v{d + 1}, v{u + 1}, s[{sM0}:{sM0 + 1}]']
                    c.append(f'v_cvt_pk_bf16_f32 v{dst}, v{u}, v{u + 1}')
                else:
                    c.append(f'v_cvt_pk_bf16_f32 v{dst}, v{d}, v{d + 1}')
                chains.append(c)
    lap('F')
    weave(chains, 4, E('G_EPULL', 4))
    lap('F')
    kd = acc
    for n, (tk, tv) in enumerate(pairs):
        a(f'{M16} {R("v", kd + 4 * n)}, {R("v", pk + 4 * tk)}, {R("v", pk + 4 * tv)}, 0')
        if n % 3 == 2:
            pull()
    for tk in range(3):
        a(f'{M16} {R("v", kd + 28 + 4 * tk)}, {R("v", pk + 4 * tk)}, {ones}, 0')
    a(f's_mul_i32 s{sT1}, s{sWv}, {KV_HS}')
    a(f's_add_u32 s{sT2}, s{sT1}, {KVA}')
    a(f'v_add_u32 v{t[1]}, s{sT2}, v{t[5]}')
    a(f's_mul_i32 s{sT2}, s{sHg}, {4 * KV_HS}')
    a(f's_add_u32 s{sT1}, s{sT1}, s{sT2}')
    a(f's_add_u32 s{sT1}, s{sT1}, {KV_OFF}')
    for n, (tk, tv) in enumerate(pairs):
        m = lane_mask(lambda g, j: (4 * tk + g) < 10 and 0 <= (16 * tv + j - 40) and (4 * tk + g) // 5 == (16 * tv + j - 40) // 20)
        for x in set_exec(m):
            a(x)
        a(f'ds_write_b128 v{ad + n}, {R("v", kd + 4 * n)}')
    for tk in range(3):
        if tk != 1:
            for x in set_exec(lane_mask(lambda g, j: j == 0 and (4 * tk + g) < 10)):
                a(x)
        a(f'ds_write_b128 v{cp + tk}, {R("v", kd + 28 + 4 * tk)} offset:320')
    a('s_mov_b64 exec, -1')
    while pend:
        pull()
    lap('F')
    need_tag('s10', ' lgkmcnt(0)')
    lap('F')
    a('s_barrier')
    lap('F')
    kt = acc
    for i in range(7):
        a(f'ds_read_b32 v{kt + i}, v{t[1]} offset:{256 * i}')
        a(f'ds_read_b32 v{kt + 8 + i}, v{t[1]} offset:{256 * i + 4 * KV_HS}')

    TOFF = (0, 32, 48)

    def reads_q(m):
        f = fr[m & 1]
        n = 10 + (m >> 1)
        lst = []
        for o in range(2):
            b0 = f + 20 * o
            lst += [a_read(b0 + 4 * tr, m, o, tr) for tr in range(2)]
            for tc in range(3):
                for j in range(2):
                    lst.append(f'ds_read_b64_tr_b16 {R("v", b0 + 8 + 4 * tc + 2 * j, 2)}, v{vQ + o} offset:{(n % 3) * 20480 + (m & 1) * 10240 + 1280 * j + TOFF[tc]}')
        return lst

    def mf_q(m):
        f = fr[m & 1]
        lst = []
        for o in range(2):
            b0 = f + 20 * o
            if o == 0:
                for tc in range(3):
                    d = qcs + 4 * tc
                    lst.append(f'{M16} {R("v", d)}, {R("v", b0 + 8 + 4 * tc)}, {ones}, {"0" if m == 0 else R("v", d)}')
            for tc in range(3):
                for tr in range(2):
                    d = qacc + 4 * (tr * 3 + tc)
                    lst.append(f'{M16} {R("v", d)}, {R("v", b0 + 8 + 4 * tc)}, {R("v", b0 + 4 * tr)}, {"0" if m == 0 and o == 0 else R("v", d)}')
        return lst
    for i in range(7):
        a(f's_waitcnt lgkmcnt({12 - 2 * i})')
        a(f'v_add_f32 v{kt + i}, v{kt + i}, v{kt + 8 + i}')
        if i == 6:
            a('s_mov_b32 exec_hi, 0xf')
        a(f'buffer_atomic_add_f32 v{kt + i}, v{t[5]}, {WS}, s{sT1} offen offset:{256 * i}', tag='kva')
    a('s_mov_b64 exec, -1')
    for x in reads_q(0):
        a(x)
    qcarry = []
    if R2POS == 2:
        for g in r2g:
            emit(g)
    elif R2POS >= 3:
        qcarry = list(r2g)
    lap('AF')
    p2s = [f's_and_b32 s{sT0}, s2, 7', f's_lshr_b32 s{sT1}, s2, 3', f's_and_b32 s{sJ}, s{sT1}, 15', f's_lshr_b32 s{sT1}, s{sT1}, 4',
           f's_lshl_b32 s{sC}, s{sT0}, 1', f's_add_u32 s{sC}, s{sC}, s{sT1}', f's_and_b32 s{sCg}, s{sJ}, 7', f's_lshr_b32 s{sT1}, s{sJ}, 3',
           f's_lshl_b32 s{sRb}, s{sC}, 1', f's_add_u32 s{sRb}, s{sRb}, s{sT1}']
    sub = Asm()
    cg_blocks(sub, sCg, sPb, sSb, sT0)
    p2s += [i.text for i in sub.items]
    p2s += [f's_lshl_b32 s{sT0}, s{sRb}, 2', f's_add_u32 s{sT0}, s{sT0}, s{sWv}', f's_mul_i32 s{sT1}, s{sT0}, {16 * 1280}',
            f's_lshl_b32 s{sOa}, s{sPb}, 6', f's_add_u32 s{sOa}, s{sOa}, s{sT1}', f's_lshr_b32 s{sT2}, s{sSb}, 1',
            f's_lshl_b32 s{sT2}, s{sT2}, 6', f's_and_b32 s{sT3}, s{sSb}, 1', f's_lshl_b32 s{sT3}, s{sT3}, 3',
            f's_add_u32 s{sT2}, s{sT2}, s{sT3}', f's_add_u32 s{sOb}, s{sT2}, s{sT1}']
    for x in p2s:
        a(x)
    srd(a, sX, P_X, 0, S * D * 2)
    if REARLY:
        srd(a, sO, P_OUT, 0, S * D * 2)
    aWO = 0
    sWo = sM0
    a(f's_mul_i32 s{sWo}, s{sCg}, 102400')
    a(f's_mul_i32 s{sT2}, s{sWv}, 25600')
    a(f's_add_u32 s{sWo}, s{sWo}, s{sT2}')
    a(f's_add_u32 s{sWo}, s{sWo}, {WOP_OFF}')
    sKvc, sW2b = sM0 + 1, sM1 + 1
    a(f's_lshl_b32 s{sKvc}, s{sHg}, 7')
    a(f's_add_u32 s{sKvc}, s{sKvc}, {FL_KV * 128}')
    a(f's_add_u32 s{sKvc}, s{sKvc}, s{sFw}')
    a(f's_mul_i32 s{sW2b}, s{sCg}, {W2G}')
    a(f's_mul_i32 s{sT0}, s{sWv}, 5120')
    a(f's_add_u32 s{sW2b}, s{sW2b}, s{sT0}')
    a(f's_add_u32 s{sW2b}, s{sW2b}, {W2P_OFF}')

    def wo_groups():
        g = []
        for f in range(25):
            pre = [f's_add_u32 s{sWo}, s{sWo}, 4096'] if f and f % 4 == 0 else []
            g.append((pre + [f'buffer_load_dwordx4 {R("a", aWO + 4 * f)}, v{vL16}, {WS}, s{sWo} offen offset:{1024 * (f & 3)} sc1'], 'wo'))
        return g
    W2R = [('v', Z + 20 * i) for i in range(4)] + [('a', 160 + 20 * i) for i in range(4)]
    W2R += [('v', Y), ('v', Y + 20), ('v', Y + 40), ('v', Y), ('v', Z), ('v', Z + 20)]
    W2L = {8: SA, 9: 0, 10: 20480, 11: 40960}

    def w2l_groups(i):
        g = []
        for sg in range(5):
            pre = []
            if sg == 0:
                pre = [f's_add_u32 s{sM2}, s{sW2b}, {20480 * i}', f's_mul_i32 s{sCnt}, s{sWv}, 5120', f's_add_u32 m0, s{sCnt}, {W2L[i]}', 's_nop 0']
            if sg == 4:
                pre = [f's_mul_i32 s{sCnt}, s{sWv}, 5120', f's_add_u32 m0, s{sCnt}, {W2L[i] + 4096}', 's_nop 0']
            v, off = (vL16, 1024 * sg) if sg < 4 else (vL16b, 0)
            g.append((pre + [f'buffer_load_dwordx4 v{v}, {WS}, s{sM2} offen offset:{off} sc1 lds'], f'w2_{i}'))
        return g

    def w2_groups(i):
        f, r = W2R[i]
        g = []
        for sg in range(5):
            pre = []
            if sg == 0:
                pre = [f's_add_u32 s{sM2}, s{sW2b}, {20480 * i}']
                if i == 5:
                    pre += [f's_cmp_ge_u32 s{sWv}, 2', f's_cselect_b32 s{sM2}, 0x{BIG:x}, s{sM2}']
            v, off = (vL16, 1024 * sg) if sg < 4 else (vL16b, 0)
            g.append((pre + [f'buffer_load_dwordx4 {R(f, r + 4 * sg)}, v{v}, {WS}, s{sM2} offen offset:{off} sc1'], f'w2_{i}'))
        return g
    PUB_KV = E('G_PUBKV', 7)
    rq = acc + 16
    RLATE = E('G_RLATE', 0)
    RW_M = 99 if RLATE or REARLY else E('G_RWM', 7)
    wg_ = wo_groups()
    NW2Q = E('G_NW2Q', 0) if REARLY else 0
    for i in range(4, 4 + NW2Q):
        wg_ += w2_groups(i)
    pend += wg_[:E('G_WOQ', 10)]
    wo_late = wg_[E('G_WOQ', 10):]
    carry = []
    for m in range(10):
        a('s_waitcnt lgkmcnt(0)')
        later = list(carry)
        carry = []
        if m & 1:
            n = 10 + (m >> 1)
            if m == PUB_KV and 'kva' in a.vm:
                a.vm_wait('kva')
            if n + 1 <= 12:
                need_tag(f's{n + 1}')
            if m == 7:
                poll_wait(sRpc, 0, 32, nl=8, barrier=False)
            a('s_barrier')
            if m == PUB_KV:
                publish(sKvc, 0, 'kva', barrier=False)
            if 13 <= n + 2 <= 14:
                need_tag(f's{n + 2}')
                later.append([f'v_add_u32 v{t[0]}, s{sMB}, v{vL16}'])
                for j in range(5):
                    (later if j < 3 else carry).append([f'ds_write_b128 v{t[0]}, {R("a", 200 + 20 * (n + 2 - 13) + 4 * j)} offset:{((n + 2) % 3) * 20480 + 1024 * j}'])
        if qcarry:
            later += qcarry[:5]
            qcarry = qcarry[5:]
        if m == 2:
            later.append(([f's_add_u32 s{sRpc}, s{sFw}, {FL_RP * 128}', 's_mov_b64 exec, 0xff',
                           f'buffer_load_dword v{vT[1]}, v{vL128}, {WS}, s{sRpc} offen sc1', 's_mov_b64 exec, -1'], 'poll'))
        if m == RW_M:
            if 'r2' in a.vm:
                a.vm_wait('r2')
            later.append([f's_lshl_b32 s{sT1}, s{sWv}, 10', f's_add_u32 s{sT1}, s{sT1}, {KVA}', f'v_add_u32 v{t[3]}, s{sT1}, v{vL16}'])
            for i in range(4):
                (later if i < 2 else carry).append([f'ds_write_b128 v{t[3]}, {R("a", aRP + 4 * i)} offset:{4096 * i}'])
        if m == RW_M + 2:
            later.append([f'v_add_u32 v{t[3]}, {KVA - RB}, v{vRT}'])
            for i in range(4):
                later.append([f'ds_read_b64_tr_b16 {R("v", rq + 4 * i + 2 * j, 2)}, v{t[3]} offset:{4096 * i + 512 * j}' for j in range(2)])
        if m == RW_M + 3:
            for i in range(4):
                later.append(([f'buffer_store_dwordx4 {R("v", rq + 4 * i)}, v{vL16}, {WS}, s{sTab + 6 + i} offen sc1'], 'rst2'))
            later.append([f'{M16} {R("v", rq + 16)}, {R("v", rq + 4 * i)}, {ones}, {"0" if i == 0 else R("v", rq + 16)}' for i in range(4)])
        if m == RW_M + 4:
            later.append(([f'v_lshlrev_b32 v{t[4]}, 4, v{vG}', f'v_lshl_add_u32 v{t[4]}, v{vR}, 6, v{t[4]}',
                           's_mov_b32 exec_lo, 0x00030003', 's_mov_b32 exec_hi, 0x00030003',
                           f'buffer_store_dwordx4 {R("v", rq + 16)}, v{t[4]}, {WS}, s{sTab + 10} offen sc1', 's_mov_b64 exec, -1'], 'rst2'))
        if m == 9:
            cw = [f's_mul_i32 s{sT1}, s{sRh}, 384', f's_mul_i32 s{sT2}, s{sCh}, 192', f's_add_u32 s{sT1}, s{sT1}, s{sT2}',
                  f's_add_u32 s{sT1}, s{sT1}, {QCS}', f'v_lshl_add_u32 v{t[2]}, v{vG}, 4, s{sT1}',
                  's_mov_b32 exec_lo, 0x00010001', 's_mov_b32 exec_hi, 0x00010001']
            cw += [f'ds_write_b128 v{t[2]}, {R("v", qcs + 4 * tc)} offset:{64 * tc}' for tc in range(3)] + ['s_mov_b64 exec, -1']
        if m >= max(7, E('G_WOM', 7)):
            k = E('G_QPULL', 5)
            while pend and k > 0:
                later.append(pend.pop(0)); k -= 1
        nxt = reads_q(m + 1) if m < 9 else []
        if m == 9:
            ms = mf_q(m)
            sched(ms[:9], nxt, later)
            sched(ms[9:], [], [cw], start=2)
        else:
            sched(mf_q(m), nxt, later, start=E('G_QST', 6), per=2)
        lap('Q')
    lap()
    while pend:
        pull()
    if not REARLY:
        srd(a, sO, P_OUT, 0, S * D * 2)
    a('s_waitcnt lgkmcnt(0)')
    a('s_barrier')
    if RW_M == 7:
        for i in range(4):
            a(f'buffer_store_dwordx4 {R("v", rq + 4 * i)}, v{vL16}, {WS}, s{sTab + 6 + i} offen sc1', tag='rst2')
            a(f'{M16} {R("v", rq + 16)}, {R("v", rq + 4 * i)}, {ones}, {"0" if i == 0 else R("v", rq + 16)}')
    ra, rb_, rc = fr[0], fr[0] + 4, fr[0] + 8
    a(f's_lshl_b32 s{sT1}, s{sRh}, 7')
    a(f's_add_u32 s{sT1}, s{sT1}, {AA}')
    a(f'v_lshl_add_u32 v{t[0]}, v{vR}, 2, s{sT1}')
    a(f's_mul_i32 s{sT1}, s{sCh}, 192')
    a(f's_add_u32 s{sT1}, s{sT1}, {QCS}')
    a(f'v_lshl_add_u32 v{t[1]}, v{vG}, 4, s{sT1}')
    for tr in range(2):
        a(f'ds_read_b32 v{ra + 2 * tr}, v{t[0]} offset:{64 * tr}')
        a(f'ds_read_b32 v{rb_ + 2 * tr}, v{t[0]} offset:{256 + 64 * tr}')
    for tc in range(3):
        a(f'ds_read_b128 {R("v", rc + 4 * tc)}, v{t[1]} offset:{64 * tc}')
        a(f'ds_read_b128 {R("v", rc + 12 + 4 * tc)}, v{t[1]} offset:{384 + 64 * tc}')
    kraw = acc
    a(f'v_lshrrev_b32 v{t[0]}, 2, v{vR}')
    a(f'v_and_b32 v{t[1]}, 3, v{vR}')
    a(f'v_lshlrev_b32 v{t[2]}, 4, v{vR}')
    a(f'v_add_u32 v{t[3]}, 16, v{t[0]}')
    a(f'v_mov_b32 v{t[4]}, 20')
    a(f'v_cmp_eq_u32 vcc, 1, v{t[1]}')
    a(f'v_cndmask_b32 v{t[3]}, v{t[3]}, v{t[4]}, vcc')
    a(f'v_lshlrev_b32 v{t[3]}, 4, v{t[3]}')
    a(f'v_mul_u32_u24 v{t[0]}, 336, v{vG}')
    a(f'v_mov_b32 v{t[4]}, 0x{BIG:x}')
    a(f's_lshl_b32 s{sSB}, s{sHg}, 2')
    a(f's_lshl_b32 s{sT1}, s{sCh}, 1')
    a(f's_add_u32 s{sSB}, s{sSB}, s{sT1}')
    a(f's_mul_i32 s{sSB}, s{sSB}, {KV_HS}')
    a(f's_add_u32 s{sSB}, s{sSB}, {KV_OFF}')
    ka = s1
    for tau in range(2):
        rowok = lambda i: tau == 0 or (i & 3) < 2
        m = lane_mask(lambda g, i: rowok(i))
        a(f'v_add_u32 v{ka + 4 * tau}, v{t[0]}, v{t[2 + tau]}')
        a(f's_mov_b32 vcc_lo, 0x{m & 0xffffffff:x}'); a(f's_mov_b32 vcc_hi, 0x{m >> 32:x}')
        a(f'v_cndmask_b32 v{ka + 4 * tau}, v{t[4]}, v{ka + 4 * tau}, vcc')
        for gsel in range(2):
            m = lane_mask(lambda g, i: rowok(i) and g == gsel)
            a(f's_mov_b32 vcc_lo, 0x{m & 0xffffffff:x}'); a(f's_mov_b32 vcc_hi, 0x{m >> 32:x}')
            a(f'v_cndmask_b32 v{ka + 4 * tau + 1 + gsel}, v{t[4]}, v{t[2 + tau]}, vcc')
    a('s_waitcnt lgkmcnt(0)')
    for k in range(6):
        a(f'v_pk_add_f32 {R("v", rc + 2 * k, 2)}, {R("v", rc + 2 * k, 2)}, {R("v", rc + 12 + 2 * k, 2)}')
    pq = cs
    chains = []
    for tr in range(2):
        for tc in range(3):
            for h in range(2):
                d = qacc + 4 * (tr * 3 + tc) + 2 * h
                w = fr[1] + 6 * (len(chains) % 4)
                c = [f'v_pk_mul_f32 {R("v", w, 2)}, {R("v", rc + 4 * tc + 2 * h, 2)}, {R("v", rb_ + 2 * tr, 2)} op_sel_hi:[1,0]',
                     f'v_pk_fma_f32 {R("v", d, 2)}, {R("v", d, 2)}, {R("v", ra + 2 * tr, 2)}, {R("v", w, 2)} op_sel_hi:[1,0,1]']
                c += phi_chain(d, w + 2, w + 4)
                c.append(f'v_cvt_pk_bf16_f32 v{pq + 8 * tr + 2 * tc + h}, v{w + 2}, v{w + 3}')
                chains.append(c)
    if RW_M == 7:
        for x in [f'v_lshlrev_b32 v{t[4]}, 4, v{vG}', f'v_lshl_add_u32 v{t[4]}, v{vR}, 6, v{t[4]}',
                  's_mov_b32 exec_lo, 0x00030003', 's_mov_b32 exec_hi, 0x00030003']:
            a(x)
        a(f'buffer_store_dwordx4 {R("v", rq + 16)}, v{t[4]}, {WS}, s{sTab + 10} offen sc1', tag='rst2')
        a('s_mov_b64 exec, -1')
    weave(chains[:8], 4)
    poll_issue(sKvc, 0)
    weave(chains[8:], 4)
    lap('F')
    if 'rst2' in a.vm:
        a.vm_wait('rst2')
    if RLATE:
        if 'r2' in a.vm:
            a.vm_wait('r2')
        a(f's_lshl_b32 s{sT1}, s{sWv}, 10')
        a(f's_add_u32 s{sT1}, s{sT1}, {RB}')
        a(f'v_add_u32 v{t[0]}, s{sT1}, v{vL16}')
        for i in range(4):
            a(f'ds_write_b128 v{t[0]}, {R("a", aRP + 4 * i)} offset:{4096 * i}')
        a('s_waitcnt lgkmcnt(0)')
    lap('F')
    poll_wait(sKvc, 0, 32)
    lap('AF')
    for tau in range(2):
        b = kraw + 8 * tau
        a(f'buffer_load_dwordx4 {R("v", b)}, v{ka + 4 * tau}, {WS}, s{sSB} offen sc1', tag='kvl')
        a(f'buffer_load_dwordx4 {R("v", b + 4)}, v{ka + 4 * tau + 1}, {WS}, s{sSB} offen offset:{4 * 336} sc1', tag='kvl')
        b = kraw + 16 + 8 * tau
        a(f'buffer_load_dwordx4 {R("v", b)}, v{ka + 4 * tau + 2}, {WS}, s{sSB} offen offset:{KV_HS} sc1', tag='kvl')
        a(f'buffer_load_dwordx4 {R("v", b + 4)}, v{ka + 4 * tau}, {WS}, s{sSB} offen offset:{KV_HS + 336} sc1', tag='kvl')
    if RLATE:
        rq = qacc
        for i in range(4):
            for j in range(2):
                a(f'ds_read_b64_tr_b16 {R("v", rq + 4 * i + 2 * j, 2)}, v{vRT} offset:{4096 * i + 512 * j}')
    elif not REARLY:
        a(f's_and_b32 s{sT1}, s2, 7')
        a(f's_lshl_b32 s{sT1}, s{sT1}, 7')
        a(f's_add_u32 s{sT1}, s{sT1}, s{sRpc}')
        publish(sT1, FL_RP2 - FL_RP, 'rst2', barrier=False)
    if E('G_MAP3', 1):
        a(f's_and_b32 s{sT1}, s2, 7')
        a(f's_lshr_b32 s{sT2}, s2, 3')
        a(f's_lshr_b32 s{sC3}, s{sT1}, 1')
        a(f's_lshl_b32 s{sC3}, s{sC3}, 2')
        a(f's_lshr_b32 s{sT3}, s{sT2}, 3')
        a(f's_add_u32 s{sC3}, s{sC3}, s{sT3}')
        a(f's_and_b32 s{sT1}, s{sT1}, 1')
        a(f's_lshl_b32 s{sT1}, s{sT1}, 3')
        a(f's_and_b32 s{sT2}, s{sT2}, 7')
        a(f's_add_u32 s{sJ}, s{sT1}, s{sT2}')
    else:
        a(f's_mov_b32 s{sC3}, s{sC}')
    a(f's_lshl_b32 s{sF3}, s{sC3}, 9')
    a(f's_add_u32 s{sF3}, s{sF3}, s{sFw}')
    a(f's_lshl_b32 s{sW1m}, s{sWv}, 12')
    a(f's_mul_i32 s{sW1}, s{sJ}, 143360')
    a(f's_add_u32 s{sW1}, s{sW1}, s{sW1m}')
    a(f's_add_u32 s{sW1}, s{sW1}, {W1P_OFF}')

    sW1s = sTab + 2
    a(f's_and_b32 s{sT1}, s{sJ}, 7')
    a(f's_cmp_ge_u32 s{sT1}, 6')
    a(f's_cselect_b32 s{sW1s}, 0x{BIG:x}, s{sW1}')

    HROT = E('G_HROT', 0)
    sRo = sTab + 3
    a(f's_and_b32 s{sRo}, s{sJ}, {1 if HROT else 0}')
    a(f's_mul_i32 s{sRo}, s{sRo}, 20480')

    def w1_groups(lo, hi, tag):
        g = []
        segs = []
        for base in (0, 61440, 102400):
            segs += [(base, base + 20480, sW1, 1), (base + 20480, base + 40960, sW1, -1)]
        segs.insert(2, (40960, 61440, sW1s, 0))
        for lo_, hi_, sb, sgn in segs:
            off, hi_ = max(lo, lo_), min(hi, hi_)
            rot = {1: [f's_add_u32 s{sM2 + 1}, s{sM2 + 1}, s{sRo}'], -1: [f's_sub_u32 s{sM2 + 1}, s{sM2 + 1}, s{sRo}'], 0: []}[sgn]
            while sgn and off + 16384 <= hi_:
                for i in range(4):
                    pre = [f's_add_u32 m0, s{sW1m}, {off}', f's_add_u32 s{sM2 + 1}, s{sb}, {off}'] + rot if i == 0 else []
                    g.append((pre + [f'buffer_load_dwordx4 v{vL16}, {WS}, s{sM2 + 1} offen offset:{1024 * i} sc1 lds'], tag))
                off += 16384
            while off < hi_:
                pre = [f's_lshl_b32 s{sCnt}, s{sWv}, 10', f's_add_u32 m0, s{sCnt}, {off}', f's_sub_u32 s{sM2 + 1}, s{sb}, s{sW1m}',
                       f's_add_u32 s{sM2 + 1}, s{sM2 + 1}, s{sCnt}', f's_add_u32 s{sM2 + 1}, s{sM2 + 1}, {off}'] + rot
                if sgn == 0:
                    b0 = (off - 40960) // 1024
                    pre += [f's_lshr_b32 s{sCnt}, s{sRo}, 1']
                    if b0 + 3 < 10:
                        pre += [f's_add_u32 s{sM2 + 1}, s{sM2 + 1}, s{sCnt}']
                    elif b0 >= 10:
                        pre += [f's_sub_u32 s{sM2 + 1}, s{sM2 + 1}, s{sCnt}']
                    else:
                        pre += [f's_add_u32 s{sM2 + 1}, s{sM2 + 1}, s{sCnt}', f's_cmp_ge_u32 s{sWv}, {10 - b0}',
                                f's_cselect_b32 s{sCnt}, s{sRo}, 0', f's_sub_u32 s{sM2 + 1}, s{sM2 + 1}, s{sCnt}']
                g.append((pre + [f'buffer_load_dwordx4 v{vL16}, {WS}, s{sM2 + 1} offen sc1 lds'], tag))
                off += 4096
        return g
    for g in wo_late[:E('G_WOK', 0)]:
        emit(g)
    wo_late = wo_late[E('G_WOK', 0):]
    W1Q = E('G_W1Q', 40) * 1024 if REARLY else 0
    for g in w1_groups(0, W1Q, 'w1q'):
        emit(g)
    a(f's_mul_i32 s{sT1}, s{sRh}, {32 * 160}')
    a(f's_mul_i32 s{sT2}, s{sCh}, 80')
    a(f's_add_u32 s{sT1}, s{sT1}, s{sT2}')
    a(f's_add_u32 s{sT1}, s{sT1}, {KVA}')
    a(f'v_mul_u32_u24 v{t[2]}, 160, v{vR}')
    a(f'v_mad_u32_u24 v{t[3]}, v{vG}, 10, v{t[2]}')
    a(f'v_add_u32 v{t[3]}, s{sT1}, v{t[3]}')
    a(f's_mul_i32 s{sT1}, s{sWv}, {16 * 160}')
    a(f's_add_u32 s{sT1}, s{sT1}, {KVA}')
    a(f'v_lshl_add_u32 v{t[2]}, v{vG}, 4, v{t[2]}')
    a(f'v_add_u32 v{t[2]}, s{sT1}, v{t[2]}')
    vOd = s2
    a(f's_mul_i32 s{sT1}, s{sHg}, 10')
    for u in range(3):
        a(f's_add_u32 s{sT2}, s{sT1}, {4 * u}')
        a(f'v_add_u32 v{t[5]}, s{sT2}, v{vG}')
        a(f'v_lshrrev_b32 v{vOd + u}, 2, v{t[5]}')
        a(f'v_lshlrev_b32 v{vOd + u}, 12, v{vOd + u}')
        a(f'v_and_b32 v{t[5]}, 3, v{t[5]}')
        a(f'v_lshl_add_u32 v{vOd + u}, v{t[5]}, 8, v{vOd + u}')
        a(f'v_lshl_add_u32 v{vOd + u}, v{vR}, 4, v{vOd + u}')
    a(f's_mul_i32 s{sT0}, s{sR1}, {20 * 4096}')
    a(f's_lshl_b32 s{sT1}, s{sWv}, 10')
    a(f's_add_u32 s{sT0}, s{sT0}, s{sT1}')
    if OP_OFF:
        a(f's_add_u32 s{sT0}, s{sT0}, {OP_OFF}')
    if RLATE:
        a('s_waitcnt lgkmcnt(0)')
        for i in range(4):
            a(f'{M16} {R("v", rq + 16)}, {R("v", rq + 4 * i)}, {ones}, {"0" if i == 0 else R("v", rq + 16)}')
    a.vm_wait('kvl')
    lap('F')
    kT = fr[0]
    for k in range(16):
        a(f'v_cvt_pk_bf16_f32 v{kT + k}, v{kraw + 2 * k}, v{kraw + 2 * k + 1}')
    od = acc
    for tr in range(2):
        for hd in range(2):
            for tau in range(2):
                d = od + 16 * tr + 8 * hd + 4 * tau
                a(f'{M16} {R("v", d)}, {R("v", kT + 8 * hd + 4 * tau)}, {R("v", pq + 8 * tr + 2 * hd)}, 0')
    chains = []
    for tr in range(2):
        for hd in range(2):
            d = od + 16 * tr + 8 * hd
            c = [f'v_add_f32 v{d + 6}, 0x358637bd, v{d + 5}', f'v_rcp_f32 v{d + 6}, v{d + 6}']
            c += [f'v_mul_f32 v{d + k}, v{d + k}, v{d + 6}' for k in range(5)]
            c += [f'v_cvt_pk_bf16_f32 v{d}, v{d}, v{d + 1}', f'v_cvt_pk_bf16_f32 v{d + 2}, v{d + 2}, v{d + 3}',
                  f'v_cvt_pk_bf16_f32 v{d + 4}, v{d + 4}, v{d + 4}']
            o = 2560 * tr + 40 * hd
            c += [f'ds_write_b16 v{t[3]}, v{d} offset:{o}', f'ds_write_b16_d16_hi v{t[3]}, v{d} offset:{o + 2}',
                  f'ds_write_b16 v{t[3]}, v{d + 2} offset:{o + 4}', f'ds_write_b16_d16_hi v{t[3]}, v{d + 2} offset:{o + 6}',
                  f'ds_write_b16 v{t[3]}, v{d + 4} offset:{o + 8}']
            chains.append(c)
    weave(chains, 4)
    a('s_waitcnt lgkmcnt(0)')
    a('s_barrier')
    ob = fr[1]
    for u in range(3):
        a(f'ds_read_b128 {R("v", ob + 4 * u)}, v{t[2]} offset:{64 * u}')
    a('s_waitcnt lgkmcnt(0)')
    for u in range(3):
        if u == 2:
            a('s_mov_b32 exec_hi, 0')
        a(f'buffer_store_dwordx4 {R("v", ob + 4 * u)}, v{vOd + u}, {WS}, s{sT0} offen sc1', tag='ost')
    a('s_mov_b64 exec, -1')
    if RLATE:
        for i in range(4):
            a(f'buffer_store_dwordx4 {R("v", rq + 4 * i)}, v{vL16}, {WS}, s{sTab + 6 + i} offen sc1', tag='rst2')
        a(f'v_lshlrev_b32 v{t[4]}, 4, v{vG}')
        a(f'v_lshl_add_u32 v{t[4]}, v{vR}, 6, v{t[4]}')
        a('s_mov_b32 exec_lo, 0x00030003'); a('s_mov_b32 exec_hi, 0x00030003')
        a(f'buffer_store_dwordx4 {R("v", rq + 16)}, v{t[4]}, {WS}, s{sTab + 10} offen sc1', tag='rst2')
        a('s_mov_b64 exec, -1')
    lap()
    vXo = hres + 10
    vL8 = hres + 11
    a(f'v_lshlrev_b32 v{vL8}, 3, v{vL}')
    a(f'v_mul_u32_u24 v{vXo}, 1280, v{vR}')
    a(f'v_lshl_add_u32 v{vXo}, v{vG}, 4, v{vXo}')
    sx = f's[{sX}:{sX + 3}]'
    mid = [([f'buffer_load_dwordx4 {R("v", hres)}, v{vXo}, {sx}, s{sOa} offen'], 'x'),
           ([f'buffer_load_dwordx4 {R("v", hres + 4)}, v{vXo}, {sx}, s{sOa} offen offset:64'], 'x'),
           ([f'buffer_load_dwordx2 {R("v", hres + 8, 2)}, v{vXo}, {sx}, s{sOb} offen'], 'x')]
    xg = []
    if E('G_XLATE', 0):
        xg, mid = mid, []
    mid += wo_late
    nb4 = min(len(mid), E('G_NB4', 8))
    for g in mid[:nb4]:
        emit(g)
    a(f's_lshl_b32 s{sT1}, s{sR1}, 7')
    a(f's_add_u32 s{sT1}, s{sT1}, {FL_O * 128}')
    a(f's_add_u32 s{sT1}, s{sT1}, s{sFw}')
    if not RLATE and not REARLY:
        poll_issue(sRpc, FL_RP2 - FL_RP, 8)
    publish(sT1, 0, 'ost')
    lap()
    if RLATE:
        a(f's_and_b32 s{sT1}, s2, 7')
        a(f's_lshl_b32 s{sT1}, s{sT1}, 7')
        a(f's_add_u32 s{sT1}, s{sT1}, s{sRpc}')
        publish(sT1, FL_RP2 - FL_RP, 'rst2')
    for g in mid[nb4:]:
        emit(g)
    if not RLATE and not REARLY:
        poll_wait(sRpc, FL_RP2 - FL_RP, 32, nl=8)
    W1E = 0 if RLATE else E('G_W1E', 40) * 1024
    for g in w1_groups(W1Q, W1E, 'w1e'):
        emit(g)
    a(f's_lshl_b32 s{sT1}, s{sRb}, 7')
    a(f's_add_u32 s{sT1}, s{sT1}, {FL_O * 128}')
    a(f's_add_u32 s{sT1}, s{sT1}, s{sFw}')
    poll_issue(sT1, 0)
    a(f's_lshl_b32 s{sFc}, s{sC}, 9')
    a(f's_add_u32 s{sFc}, s{sFc}, s{sFw}')
    vR4 = [Y + 68, Y + 69, Y + 70, Y + 71]
    vAo = vR4
    vRW = Y + 60
    for i in range(4):
        a(f's_add_u32 s{sT2}, s{sWv}, {1 + i}')
        a(f's_and_b32 s{sT2}, s{sT2}, 3')
        a(f's_lshl_b32 s{sT3}, s{sT2}, 10')
        a(f'v_add_u32 v{vAo[i]}, s{sT3}, v{vL16}')
        if i < 3:
            a(f's_mul_i32 s{sT2}, s{sT2}, 15360')
            a(f's_add_u32 s{sT2}, s{sT2}, {P2L + 5120 * i}')
            a(f'v_add_u32 v{vRW + i}, s{sT2}, v{vL16}')
    a(f's_mul_i32 s{sA}, s{sRb}, {20 * 4096}')
    a(f's_mul_i32 s{sT2}, s{sWv}, {5 * 4096}')
    a(f's_add_u32 s{sA}, s{sA}, s{sT2}')
    if OP_OFF:
        a(f's_add_u32 s{sA}, s{sA}, {OP_OFF}')
    poll_wait(sT1, 0, 8)
    lap()
    acc = X
    for i in range(4):
        for m in range(5):
            a(f's_add_u32 s{sT2}, s{sA}, {4096 * m}')
            a(f'buffer_load_dwordx4 {R("v", Z + 20 * i + 4 * m)}, v{vAo[i]}, {WS}, s{sT2} offen sc1', tag=f'o{i}_{m}')
    W1M = E('G_W1M', 100) * 1024
    pend += xg
    p2pf = w1_groups(W1E, W1M, 'w1m')
    w2next = [4, 5, 6, 7, 0, 1, 2, 3][NW2Q:]
    assert NW2Q + E('G_NW2P2', 4) <= 4
    for i in w2next[:E('G_NW2P2', 4)]:
        p2pf += w2_groups(i)
    if RLATE:
        poll_issue(sRpc, FL_RP2 - FL_RP, 8)
    else:
        pend += p2pf
    w2next = w2next[E('G_NW2P2', 4):]
    w2next.sort()

    def send(i, base):
        return [f'ds_write_b128 v{base + i}, {R("v", acc + 20 * i + 4 * sg)} offset:{1024 * sg}' for sg in range(5)]
    sq = []
    for i in range(4):
        if RLATE and i == E('G_RP2AT', 3):
            poll_wait(sRpc, FL_RP2 - FL_RP, 32, nl=8)
            pend += p2pf
        k = 0
        for m in range(5):
            a.vm_wait(f'o{i}_{m}')
            for sg in range(5):
                d = acc + 20 * i + 4 * sg
                a(f'{M16} {R("v", d)}, {R("a", aWO + 4 * (5 * m + sg))}, {R("v", Z + 20 * i + 4 * m)}, {"0" if m == 0 else R("v", d)}')
                k += 1
                if sq and k >= 4 and k % 3 == 0:
                    a(sq.pop(0))
                if k % E('G_P2PULL', 4) == 2:
                    pull()
        assert not sq
        if i < 3:
            sq = send(i, vRW)
    while pend:
        pull()
    lap()

    def reduce_own(base):
        a('s_waitcnt lgkmcnt(0)')
        a('s_barrier')
        a(f's_mul_i32 s{sT0}, s{sWv}, 15360')
        a(f's_add_u32 s{sT0}, s{sT0}, {base}')
        a(f'v_add_u32 v{vT[0]}, s{sT0}, v{vL16}')
        for k in range(15):
            a(f'ds_read_b128 {R("v", acc + 4 * k)}, v{vT[0]} offset:{1024 * k}')
        own = acc + 60
        for p in range(3):
            a(f's_waitcnt lgkmcnt({10 - 5 * p})')
            for k in range(10):
                a(f'v_pk_add_f32 {R("v", own + 2 * k, 2)}, {R("v", own + 2 * k, 2)}, {R("v", acc + 20 * p + 2 * k, 2)}')
        return own

    def residual(own, out, tmp):
        chains = []
        for i in range(10):
            q = tmp + 6 * (i % 4)
            chains.append([f'v_cvt_pk_bf16_f32 v{q + 4}, v{own + 2 * i}, v{own + 2 * i + 1}',
                           f'v_lshlrev_b32 v{q + 2}, 16, v{hres + i}',
                           f'v_and_b32 v{q + 3}, 0xffff0000, v{hres + i}',
                           f'v_lshlrev_b32 v{q}, 16, v{q + 4}',
                           f'v_and_b32 v{q + 1}, 0xffff0000, v{q + 4}',
                           f'v_pk_add_f32 {R("v", q, 2)}, {R("v", q, 2)}, {R("v", q + 2, 2)}',
                           f'v_cvt_pk_bf16_f32 v{out + i}, v{q}, v{q + 1}'])
        weave(chains, 4)

    a(f's_lshl_b32 s{sT3}, s{sRb}, 2')
    a(f's_add_u32 s{sT3}, s{sT3}, s{sWv}')
    a(f's_lshr_b32 s{sT1}, s{sT3}, 1')
    a(f's_mul_i32 s{sT1}, s{sT1}, 40960')
    a(f's_and_b32 s{sT2}, s{sT3}, 1')
    a(f's_lshl_b32 s{sT2}, s{sT2}, 10')
    a(f's_add_u32 s{sT1}, s{sT1}, s{sT2}')
    a(f's_add_u32 s{sT1}, s{sT1}, {HP_OFF}')
    a(f's_lshl_b32 s{sA}, s{sPb}, 11')
    a(f's_add_u32 s{sA}, s{sA}, s{sT1}')
    a(f's_lshr_b32 s{sB}, s{sSb}, 1')
    a(f's_lshl_b32 s{sB}, s{sB}, 11')
    a(f's_and_b32 s{sT2}, s{sSb}, 1')
    a(f's_lshl_b32 s{sT2}, s{sT2}, 9')
    a(f's_add_u32 s{sB}, s{sB}, s{sT2}')
    a(f's_add_u32 s{sB}, s{sB}, s{sT1}')
    a(f's_lshl_b32 s{sT1}, s{sT3}, 10')
    a(f's_lshl_b32 s{sT2}, s{sCg}, 7')
    a(f's_add_u32 s{sT1}, s{sT1}, s{sT2}')
    a(f's_add_u32 s{sT1}, s{sT1}, {ST_OFF}')
    own = reduce_own(P2L)
    tmpk = Y
    if 'x' in a.vm:
        a.vm_wait('x')
    residual(own, hres, tmpk)
    a(f'buffer_store_dwordx4 {R("v", hres)}, v{vL16}, {WS}, s{sA} offen sc1', tag='hst')
    a(f'buffer_store_dwordx4 {R("v", hres + 4)}, v{vL16}, {WS}, s{sA} offen offset:2048 sc1', tag='hst')
    a(f'buffer_store_dwordx2 {R("v", hres + 8, 2)}, v{vL8}, {WS}, s{sB} offen sc1', tag='hst')
    hf_ = acc
    for i in range(10):
        a(f'v_lshlrev_b32 v{hf_ + 2 * i}, 16, v{hres + i}')
        a(f'v_and_b32 v{hf_ + 2 * i + 1}, 0xffff0000, v{hres + i}')
    sm = tmpk
    a(f'v_pk_add_f32 {R("v", sm + 2, 2)}, {R("v", hf_, 2)}, {R("v", hf_ + 2, 2)}')
    a(f'v_pk_mul_f32 {R("v", sm + 4, 2)}, {R("v", hf_, 2)}, {R("v", hf_, 2)}')
    a(f'v_pk_mul_f32 {R("v", sm + 6, 2)}, {R("v", hf_ + 2, 2)}, {R("v", hf_ + 2, 2)}')
    for i in range(2, 10):
        d = sm + 4 + 2 * (i & 1)
        a(f'v_pk_add_f32 {R("v", sm + 2, 2)}, {R("v", sm + 2, 2)}, {R("v", hf_ + 2 * i, 2)}')
        a(f'v_pk_fma_f32 {R("v", d, 2)}, {R("v", hf_ + 2 * i, 2)}, {R("v", hf_ + 2 * i, 2)}, {R("v", d, 2)}')
    a(f'v_pk_add_f32 {R("v", sm + 4, 2)}, {R("v", sm + 4, 2)}, {R("v", sm + 6, 2)}')
    a(f'v_add_f32 v{sm}, v{sm + 2}, v{sm + 3}')
    a(f'v_add_f32 v{sm + 1}, v{sm + 4}, v{sm + 5}')
    s1_, s2_ = Asm(), Asm()
    xsum_g(s1_, sm, sm + 2)
    xsum_g(s2_, sm + 1, sm + 3)
    for x, y in zip(s1_.items, s2_.items):
        a(x.text); a(y.text)
    a('s_mov_b64 exec, 0xffff')
    a(f'buffer_store_dwordx2 {R("v", sm, 2)}, v{vL8}, {WS}, s{sT1} offen sc1', tag='hst')
    a('s_mov_b64 exec, -1')
    lap('B')
    acc3, otmp = X, X + 56
    fb = [Y, Y + 16]
    vCs, vSt, ab = Y + 32, Y + 60, Y + 60
    csg = []
    for sg in range(7):
        pre = []
        if sg == 0:
            pre = [f'v_and_b32 v{vT[0]}, 7, v{vL}', f'v_cmp_gt_u32 vcc, 5, v{vT[0]}', f'v_mul_u32_u24 v{vT[0]}, {CS1P}, v{vT[0]}',
                   f'v_lshl_add_u32 v{vT[0]}, v{vG}, 4, v{vT[0]}', f'v_mov_b32 v{vT[2]}, 0x{BIG:x}', f'v_cndmask_b32 v{vT[0]}, v{vT[2]}, v{vT[0]}, vcc',
                   f's_mul_i32 s{sT0}, s{sJ}, 896', f's_add_u32 s{sT0}, s{sT0}, {CS1_OFF}']
        if sg == 6:
            pre = [f's_cmp_eq_u32 s{sW1s}, 0x{BIG:x}', f's_cselect_b32 s{sT0}, s{sW1s}, s{sT0}']
        csg.append((pre + [f'buffer_load_dwordx4 {R("v", vCs + 4 * sg)}, v{vT[0]}, {WS}, s{sT0} offen offset:{128 * sg} sc1'], 'cs'))
    for g in csg + w1_groups(W1M, 102400, 'w1m'):
        emit(g)
    publish(sFc, 0, 'hst')
    lap()
    mid = w1_groups(102400, 143360, 'w1l')
    NW2S = E('G_NW2S', 2)
    for i in w2next[:NW2S]:
        mid += w2_groups(i)
    w2next = w2next[NW2S:]
    for g in mid:
        emit(g)
    poll_issue(sF3, 0)
    a(f's_lshl_b32 s{sT0}, s{sC3}, 2')
    a(f's_add_u32 s{sT0}, s{sT0}, s{sWv}')
    a(f's_mul_i32 s{sA}, s{sT0}, 40960')
    a(f's_add_u32 s{sA}, s{sA}, {HP_OFF}')
    a(f's_add_u32 s{sA}, s{sA}, s{sRo}')
    a(f's_lshl_b32 s{sT0}, s{sT0}, 11')
    a(f's_add_u32 s{sT0}, s{sT0}, {ST_OFF}')
    vBa = [vL16, vT[2], hres + 10]
    a(f'v_add_u32 v{vT[2]}, {65536}, v{vL16}')
    a(f'v_add_u32 v{hres + 10}, {131072}, v{vL16}')
    a(f's_lshl_b32 s{sT2}, s{sC3}, 1')
    a(f's_lshr_b32 s{sT3}, s{sWv}, 1')
    a(f's_add_u32 s{sT2}, s{sT2}, s{sT3}')
    a(f's_mul_i32 s{sH}, s{sT2}, {H1G}')
    a(f's_and_b32 s{sT3}, s{sWv}, 1')
    a(f's_lshl_b32 s{sT3}, s{sT3}, 11')
    a(f's_add_u32 s{sH}, s{sH}, s{sT3}')
    a(f's_add_u32 s{sH}, s{sH}, {H1P_OFF}')
    a(f's_lshr_b32 s{sHs}, s{sJ}, 3')
    a(f's_mul_i32 s{sHs}, s{sHs}, 3')
    a(f's_and_b32 s{sT2}, s{sJ}, 7')
    a(f's_lshr_b32 s{sT3}, s{sT2}, 1')
    a(f's_add_u32 s{sHs}, s{sHs}, s{sT3}')
    a(f's_lshl_b32 s{sHs}, s{sHs}, 12')
    a(f's_and_b32 s{sT3}, s{sJ}, 1')
    a(f's_lshl_b32 s{sT3}, s{sT3}, 9')
    a(f's_add_u32 s{sHs}, s{sHs}, s{sT3}')
    a(f's_add_u32 s{sHs}, s{sHs}, s{sH}')
    a(f's_add_u32 s{sHs}, s{sHs}, {16 * 4096}')
    a(f's_cmp_ge_u32 s{sT2}, 6')
    a(f's_cselect_b32 s{sHs}, 0x{BIG:x}, s{sHs}')
    a(f's_lshl_b32 s{sT2}, s{sJ}, 12')
    a(f's_add_u32 s{sH}, s{sH}, s{sT2}')
    a(f's_mul_i32 s{sA4}, s{sRb}, {H1G}')
    a(f's_lshl_b32 s{sT2}, s{sWv}, 12')
    a(f's_add_u32 s{sA4}, s{sA4}, s{sT2}')
    a(f's_add_u32 s{sA4}, s{sA4}, {H1P_OFF}')
    a.vm_wait('w1l')
    poll_wait(sF3, 0, 16)
    lap()

    def a3_groups():
        g = []
        for q in range(4):
            g.append(([f'buffer_load_dwordx2 {R("v", vSt + 2 * q, 2)}, v{vL8}, {WS}, s{sT0} offen offset:{512 * q} sc1'], 'st'))
        for f in range(40):
            pre = [f's_add_u32 s{sA}, s{sA}, 4096'] if f and f % 4 == 0 else []
            if f == 20:
                pre += [f's_sub_u32 s{sA}, s{sA}, s{sRo}', f's_sub_u32 s{sA}, s{sA}, s{sRo}']
            if (f // 2) % 5 == 2:
                g.append((pre + [f'buffer_load_dwordx2 {R("a", 4 * f, 2)}, v{vL8}, {WS}, s{sA} offen offset:{1024 * (f & 3)} sc1',
                                 f'buffer_load_dwordx2 {R("a", 4 * f + 2, 2)}, v{vL8}, {WS}, s{sA} offen offset:{1024 * (f & 3) + 512} sc1'], f'h{f // 2}'))
            else:
                g.append((pre + [f'buffer_load_dwordx4 {R("a", 4 * f)}, v{vL16}, {WS}, s{sA} offen offset:{1024 * (f & 3)} sc1'], f'h{f // 2}'))
        return g
    pend += a3_groups()
    for i in w2next:
        pend += w2_groups(i)
    pend += w2l_groups(8)
    pull(E('G_H0', 18))
    PART = {0: ([0, 1, 6], 0, 3072), 1: ([2, 3], 61440, 2048), 2: ([4, 5], 102400, 2048)}

    def steps(part):
        sl = PART[part][0]
        if part == 0:
            return [[(ks, q, s_) for q, s_ in enumerate(sl)] for ks in range(20)]
        return [[(ks, q, s_) for ks in (2 * m, 2 * m + 1) for q, s_ in enumerate(sl)] for m in range(10)]
    allsteps = [(p, st) for p in range(3) for st in steps(p)]

    def breads(n):
        p, st = allsteps[n]
        f = fb[n & 1]
        out = []
        for k, (ks, q, s_) in enumerate(st):
            o = w1_frag_off(0, ks, s_)
            out.append(f'ds_read_b128 {R("v", f + 4 * k)}, v{vBa[o >> 16]} offset:{o & 0xffff}')
        return out

    def mf3(n):
        p, st = allsteps[n]
        f = fb[n & 1]
        lst = []
        for k, (ks, q, s_) in enumerate(st):
            for t_ in range(2):
                d = acc3 + 28 * t_ + 4 * s_
                c = '0' if ks == 0 else R('v', d)
                lst.append(f'{M16} {R("v", d)}, {R("v", f + 4 * k)}, {R("a", 8 * ks + 4 * t_)}, {c}')
        return lst

    dpp = [f'v_add_f32_dpp v{vCs + r}, v{vCs + r}, v{vCs + r} quad_perm:[1,0,3,2] row_mask:0xf bank_mask:0xf' for r in range(28)]
    dpp += [f'v_add_f32_dpp v{vCs + r}, v{vCs + r}, v{vCs + r} quad_perm:[2,3,0,1] row_mask:0xf bank_mask:0xf' for r in range(28)]
    dpp += [f'v_add_f32_dpp v{vCs + r}, v{vCs + r}, v{vCs + r} row_half_mirror row_mask:0xf bank_mask:0xf' for r in range(28)]
    sub = Asm()
    for t_ in range(2):
        s_ = vSt + 4 * t_
        m, v, x = otmp + 4 * t_ + 2, otmp + 8 + 2 * t_, otmp + 9 + 2 * t_
        sub(f'v_add_f32 v{m}, v{s_}, v{s_ + 2}')
        sub(f'v_add_f32 v{v}, v{s_ + 1}, v{s_ + 3}')
        xsum_g(sub, m, x)
        xsum_g(sub, v, x)
        sub(f'v_mul_f32 v{m}, 0x3acccccd, v{m}')
        sub(f'v_mul_f32 v{v}, 0x3acccccd, v{v}')
        sub(f'v_fma_f32 v{v}, -v{m}, v{m}, v{v}')
        ln_stats(sub, m, v, otmp + 4 * t_)
        sub(f'v_mov_b32 v{ab + 4 * t_}, v{otmp + 4 * t_}')
        sub(f'v_mov_b32 v{ab + 4 * t_ + 1}, v{m}')
    half_n = len(sub.items) // 2
    stl = [None] * len(sub.items)
    stl[0::2] = [i.text for i in sub.items[:half_n]]
    stl[1::2] = [i.text for i in sub.items[half_n:]]

    def epi_tile(t_, sg, ob):
        lst = []
        d = acc3 + 28 * t_ + 4 * sg
        for r in range(4):
            lst.append(f'v_mul_f32 v{d + r}, v{d + r}, v{ab + 4 * t_}')
        for r in range(4):
            lst.append(f'v_fmac_f32 v{d + r}, v{vCs + 4 * sg + r}, v{ab + 4 * t_ + 1}')
        for h in range(2):
            lst.append(f'v_cvt_pk_bf16_f32 v{ob + h}, v{d + 2 * h}, v{d + 2 * h + 1}')
        for h in range(2):
            lst.append(f'v_pk_max_i16 v{ob + h}, v{ob + h}, v{vZero}')
        return lst

    def epi_part(p):
        out = []
        base = otmp + (0, 12, 0)[p]
        if p:
            out.append(f's_add_u32 s{sH}, s{sH}, {(24 if p == 1 else 16) * 4096}')
        for t_ in range(2):
            ob = base + 4 * t_
            out += epi_tile(t_, 2 * p, ob) + epi_tile(t_, 2 * p + 1, ob + 2)
            out.append(('vm', f'buffer_store_dwordx4 {R("v", ob)}, v{vL16}, {WS}, s{sH} offen offset:{1024 * t_} sc1', f'h1_{p}'))
        if p == 0:
            for t_ in range(2):
                ob = base + 8 + 2 * t_
                out += epi_tile(t_, 6, ob)
                out.append(('vm', f'buffer_store_dwordx2 {R("v", ob, 2)}, v{vL8}, {WS}, s{sHs} offen offset:{1024 * t_} sc1', 'h1_0'))
        return out

    AR = [('a', 16 * i) for i in range(10)]
    vTm = Y + 67
    NR_ = len(AR)

    def a4_groups(i):
        f, r = AR[i % NR_]
        g = []
        for t_ in range(4):
            pre = []
            if t_ == 0:
                pre = [f's_add_u32 s{sA}, s{sA4}, {16384 * i}']
                if i == 5:
                    pre += [f's_cmp_ge_u32 s{sWv}, 2', f's_cselect_b32 s{sA}, 0x{BIG:x}, s{sA}']
            if i in (4, 5):
                g.append((pre + [f'v_sub_u32 v{vT[1] if False else vTm}, v{vAo[t_]}, v{vL8}',
                                 f'buffer_load_dwordx2 {R(f, r + 4 * t_, 2)}, v{vTm}, {WS}, s{sA} offen sc1',
                                 f'buffer_load_dwordx2 {R(f, r + 4 * t_ + 2, 2)}, v{vTm}, {WS}, s{sA} offen offset:512 sc1'], f'a{i}'))
            else:
                g.append((pre + [f'buffer_load_dwordx4 {R(f, r + 4 * t_)}, v{vAo[t_]}, {WS}, s{sA} offen sc1'], f'a{i}'))
        return g

    for x in breads(0):
        a(x)
    side = list(dpp)
    PUB_A, POLL_A, CHK_A, PUB_B = E('G_PUBA', 27), E('G_POLLA', 36), E('G_CHKA', 38), E('G_PUBB', 38)
    DENS = E('G_DENS', 3)
    P3K = {0: (6, 7), 1: (4, 7), 2: (7,), 3: (4, 5, 6, 7), 4: (4, 6)}[E('G_P3K', 0)]
    NS_ = len(allsteps)
    nexta = 0
    for n in range(NS_):
        p, st = allsteps[n]
        if p == 0:
            need_tag(f'h{n}')
            if n == 6:
                side += stl
        if n == 20:
            while side:
                a(side.pop(0))
            lap()
            side = epi_part(0)
        if n == 30:
            assert not side
            side = epi_part(1)
        if n % 3 == 0:
            lap('E')
        a('s_waitcnt lgkmcnt(0)')
        if n == 21:
            a('s_barrier')
        nxt = breads(n + 1) if n + 1 < NS_ else []
        ms = mf3(n)
        for k, m in enumerate(ms):
            a(m)
            cnt = 2 if p == 0 else DENS
            if nxt:
                a(nxt.pop(0))
                cnt -= 1
            elif pend and (k >= len(ms) - E('G_P3PULL', 2) if p == 0 else k in P3K):
                pull()
                cnt -= 2
            for _ in range(max(cnt, 0)):
                if side:
                    x = side.pop(0)
                    if isinstance(x, tuple):
                        a(x[1], tag=x[2])
                        if x[2] == 'h1_0' and not side:
                            assert n > 21
                            pend += w2l_groups(9) + w2l_groups(10) + w2l_groups(11)
                    else:
                        a(x)
        if n == PUB_A:
            assert n >= 30 or not side
            lap('C')
            publish(sF3, 1, 'h1_0')
            lap('C')
        if n == POLL_A:
            while pend:
                pull()
            poll_issue(sFc, 1)
        if n == CHK_A:
            lap('C')
            poll_wait(sFc, 1, 16)
            lap('C')
        if n >= CHK_A:
            while nexta < 6 and nexta <= n - 30:
                pend += a4_groups(nexta)
                nexta += 1
        if n == PUB_B:
            assert not side
            publish(sF3, 2, 'h1_1')
    lap()
    ecl = epi_part(2)
    EOV = E('G_EOV', 1)
    k = 0
    while ecl and (not EOV or (pend and k < E('G_EPRE', 24))):
        x = ecl.pop(0)
        if isinstance(x, tuple):
            a(x[1], tag=x[2])
        else:
            a(x)
        k += 1
        if k % 3 == 0:
            pull()
    lap()
    acc4 = X
    PD = E('G_PD', 2)
    vWl = [vT[0], vT[2]]
    a(f's_mul_i32 s{sT0}, s{sWv}, 5120')
    a(f'v_add_u32 v{vWl[0]}, s{sT0}, v{vL16}')
    a(f'v_add_u32 v{vWl[1]}, {SA}, v{vWl[0]}')
    vRW = Y + 60
    vXo = Y + 64
    fin = []
    for i in range(3):
        fin += [f's_add_u32 s{sT0}, s{sWv}, {1 + i}', f's_and_b32 s{sT0}, s{sT0}, 3', f's_mul_i32 s{sT0}, s{sT0}, 15360',
                f's_add_u32 s{sT0}, s{sT0}, {61440 + 5120 * i}', f'v_add_u32 v{vRW + i}, s{sT0}, v{vL16}']
    fin += [f'v_mul_u32_u24 v{vXo}, 1280, v{vR}', f'v_lshl_add_u32 v{vXo}, v{vG}, 4, v{vXo}']
    PUB_C, POLL_B, POLL_C = E('G_PUBC', 1), E('G_POLLB', 0), E('G_POLLC', 4)
    avail = 6
    for i in range(14):
        need_tag(f'a{i}')
        need_tag(f'w2_{i}')
        if i in W2L:
            a('s_waitcnt lgkmcnt(0)')
        lrd = []
        if i + 2 in W2L:
            need_tag(f'w2_{i + 2}')
            o_ = W2L[i + 2]
            lrd = [f'ds_read_b128 {R("v", W2R[i + 2][1] + 4 * sg)}, v{vWl[o_ >= SA]} offset:{(o_ - SA if o_ >= SA else o_) + 1024 * sg}' for sg in range(5)]
        if i == 12:
            lrd = fin
        lap('D')
        fa, ra_ = AR[i % NR_]
        fw, rw = W2R[i]
        k = 0
        order = [(t_, sg) for t_ in range(4) for sg in range(5)]
        if i == 0:
            clash = [(0, 4), (1, 0), (2, 1), (2, 2), (2, 4), (3, 0)]
            order = [o_ for o_ in order if o_ not in clash] + clash
        for t_, sg in order:
            if True:
                if i == 0:
                    for _ in range(3 if k < 14 else 99):
                        if ecl:
                            x = ecl.pop(0)
                            if isinstance(x, tuple):
                                a(x[1], tag=x[2])
                            else:
                                a(x)
                d = acc4 + 20 * t_ + 4 * sg
                c = '0' if i == 0 else R('v', d)
                a(f'{M16} {R("v", d)}, {R(fw, rw + 4 * sg)}, {R(fa, ra_ + 4 * t_)}, {c}')
                k += 1
                if i == 13:
                    if t_ >= 2 or (t_ == 1 and sg >= 3):
                        q = k - 9
                        a(send(q // 5, vRW)[q % 5])
                elif k % E('G_P4PULL', 4) == 0 and pend:
                    pull()
                elif lrd:
                    a(lrd.pop(0))
        assert not lrd
        if i == PUB_C:
            publish(sF3, 3, 'h1_2')
        if i in (POLL_B, POLL_C):
            poll_issue(sFc, 2 if i == POLL_B else 3)
        if i in (POLL_B + PD, POLL_C + PD):
            poll_wait(sFc, 2 if i == POLL_B + PD else 3, 16)
            avail += 4
        newa = []
        while nexta < avail and nexta <= i + NR_:
            newa += a4_groups(nexta)
            nexta += 1
        k_ = 0
        while k_ < len(pend) and not (pend[k_][1].startswith('w2') and len(pend[k_][0]) > 1):
            k_ += 1
        pend[k_:k_] = newa
        if i == max(1, POLL_B + PD):
            pend += w2_groups(12) + w2_groups(13)
    assert not pend
    lap()
    for q in range(12, 15):
        a(send(q // 5, vRW)[q % 5])
    own = reduce_own(61440)
    outr = Y + 8
    residual(own, outr, Y + 24)
    so = f's[{sO}:{sO + 3}]'
    OST = {0: '', 1: ' sc1', 2: ' nt', 3: ' sc0 sc1'}[E('G_OST', 0)]
    a(f'buffer_store_dwordx4 {R("v", outr)}, v{vXo}, {so}, s{sOa} offen{OST}')
    a(f'buffer_store_dwordx4 {R("v", outr + 4)}, v{vXo}, {so}, s{sOa} offen offset:64{OST}')
    a(f'buffer_store_dwordx2 {R("v", outr + 8, 2)}, v{vXo}, {so}, s{sOb} offen{OST}')
    if a.diag is not None:
        a('s_waitcnt vmcnt(0)')
    if a.diag is not None and E('G_DBG', 0):
        a.stamp(5)
        a(f's_cmp_lg_u32 s2, {E("G_DBGWG", 77)}')
        a(f's_cbranch_scc1 {Lend}')
        a(f's_cmp_lg_u32 s{sWv}, 1')
        a(f's_cbranch_scc1 {Lend}')
        regs = [77, 79] + list(range(82, 95)) + [81]
        for i, r in enumerate(regs):
            a(f's_sub_u32 s98, s{r}, s76')
            a(f'v_writelane_b32 v9, s98, {i}')
        a(f'v_lshlrev_b32 v8, 2, v{vL}')
        a('s_mov_b64 exec, 0xffff')
        a(f'global_store_dword v8, v9, s[{P_DBG}:{P_DBG + 1}]')
    else:
        a.stamp_flush(sWv, P_WS, TS_OFF)
    a.label(Lend)
    a('s_endpgm')
    a.raw(f'.p2align 6\n.type {name}_tab,@object\n{name}_tab:')
    for e in kg_table():
        a.raw('.long ' + ', '.join(str(x) for x in e))
```
